```python
import torch

def _softmax(x, axis=-1):
    return torch.softmax(x, dim=axis)

def _gelu(x):
    return torch.nn.functional.gelu(x, approximate='tanh')

def _silu(x):
    return torch.nn.functional.silu(x)

def _sigmoid(x):
    return torch.sigmoid(x)

def _layernorm(x, axis=-1, eps=1e-05):
    m = x.mean(dim=axis, keepdim=True)
    v = x.var(dim=axis, keepdim=True, unbiased=False)
    return (x - m) / torch.sqrt(v + eps)

def _scatter_add(tgt, idx, src, axis=0):
    return tgt.clone().index_add_(axis, idx, src)

def _segment_sum(src, seg, n):
    out = torch.zeros((n,) + src.shape[1:], dtype=src.dtype)
    return out.index_add_(0, seg, src)

def _pad(x, pw):
    flat = tuple((v for pair in reversed(pw) for v in pair))
    return torch.nn.functional.pad(x, flat)
kernel_name = 'adaLN_cond__spectral_fnet__moe_arch_mod__prompt'

def setup_inputs():

    _w = lambda a: (lambda t: t.to(torch.bfloat16) if t.is_floating_point() else t)(torch.as_tensor(a))

    def _A_setup():
        B, S, D = (1, 2048, 1024)
        ns = torch.arange(S)[:, None] * torch.arange(S)[None, :]
        nd = torch.arange(D)[:, None] * torch.arange(D)[None, :]
        Ws_re = torch.cos(-2.0 * torch.pi * ns / S).to(float)
        Ws_im = torch.sin(-2.0 * torch.pi * ns / S).to(float)
        Wd_re = torch.cos(-2.0 * torch.pi * nd / D).to(float)
        Wd_im = torch.sin(-2.0 * torch.pi * nd / D).to(float)
        return {'x': _w((lambda *s: torch.randn(*s, dtype=torch.bfloat16) * 0.1)(B, S, D)), 'dft_seq_re': _w(Ws_re), 'dft_seq_im': _w(Ws_im), 'dft_hid_re': _w(Wd_re), 'dft_hid_im': _w(Wd_im)}
    _A_in = _A_setup()

    def _B_setup():
        B, S, D, F, C = (1, 2048, 1024, 3584, 2)
        return {'x': _w((lambda *s: torch.randn(*s, dtype=torch.bfloat16) * 0.1)(B, S, D)), 'w_r': _w((lambda *s: torch.randn(*s, dtype=torch.bfloat16) * 1.6)(D)), 'w_gate': _w((lambda *s: torch.randn(*s, dtype=torch.bfloat16) * 0.8)(D, F)), 'w_up': _w((lambda *s: torch.randn(*s, dtype=torch.bfloat16) * 0.8)(D, F)), 'w_down': _w((lambda *s: torch.randn(*s, dtype=torch.bfloat16) * 0.8)(F, D))}
    _B_in = _B_setup()
    return {'A_x': _A_in['x'], 'A_dft_seq_re': _A_in['dft_seq_re'], 'A_dft_seq_im': _A_in['dft_seq_im'], 'A_dft_hid_re': _A_in['dft_hid_re'], 'A_dft_hid_im': _A_in['dft_hid_im'], 'B_x': _B_in['x'], 'B_w_r': _B_in['w_r'], 'B_w_gate': _B_in['w_gate'], 'B_w_up': _B_in['w_up'], 'B_w_down': _B_in['w_down'], 'c': _w((lambda *s: torch.randn(*s, dtype=torch.bfloat16) * 0.1)(1, 1024) * 8.0), 'w_mod': _w((lambda *s: torch.randn(*s, dtype=torch.bfloat16) * 0.1)(1024, 6 * 1024) * 1024 ** (-0.5) * 8.0)}

def reference(A_x, A_dft_seq_re, A_dft_seq_im, A_dft_hid_re, A_dft_hid_im, B_x, B_w_r, B_w_gate, B_w_up, B_w_down, c, w_mod):

    def _A_ref(x, dft_seq_re, dft_seq_im, dft_hid_re, dft_hid_im):
        a = torch.einsum('bsd,ed->bse', x, dft_hid_re)
        b = torch.einsum('bsd,ed->bse', x, dft_hid_im)
        y = torch.einsum('ts,bse->bte', dft_seq_re, a) - torch.einsum('ts,bse->bte', dft_seq_im, b)
        return y

    def _B_ref(x, w_r, w_gate, w_up, w_down):
        B, S, D = x.shape
        C = 2
        r = x @ w_r
        idx = torch.argsort(-r, axis=-1)[:, :C]
        idx_e = (lambda x, n, axis: torch.repeat_interleave(x, n, dim=axis))(idx.reshape(B, C, 1), D, axis=2)
        x_sel = (lambda x, i, axis: torch.take_along_dim(x, i, dim=axis))(x, idx_e, axis=1)
        g = _silu(x_sel @ w_gate)
        u = x_sel @ w_up
        y = g * u @ w_down
        r_sel = _sigmoid((lambda x, i, axis: torch.take_along_dim(x, i, dim=axis))(r, idx, axis=1))
        y = y * r_sel.reshape(B, C, 1)
        b_off = (torch.arange(B) * S).reshape(B, 1)
        flat_idx = (idx + b_off).reshape(B * C)
        zero = (x * 0.0).reshape(B * S, D)
        upd = _scatter_add(zero, flat_idx, y.reshape(B * C, D), axis=0)
        return x + upd.reshape(B, S, D)
    x = A_x
    mod = (_silu(c) @ w_mod).reshape(c.shape[0], 6, 1, -1)
    sa, ca, ga, sb, cb, gb = (mod[:, 0].clone(), mod[:, 1].clone(), mod[:, 2].clone(), mod[:, 3].clone(), mod[:, 4].clone(), mod[:, 5].clone())
    h = _layernorm(x, axis=-1) * (1 + ca) + sa
    x = x + ga * _A_ref(h, A_dft_seq_re, A_dft_seq_im, A_dft_hid_re, A_dft_hid_im)
    h = _layernorm(x, axis=-1) * (1 + cb) + sb
    x = x + gb * _B_ref(h, B_w_r, B_w_gate, B_w_up, B_w_down)
    return x
```

```python
import re

TRANS = ("v_exp_f32", "v_log_f32", "v_rcp_f32", "v_rsq_f32", "v_sqrt_f32", "v_sin_f32", "v_cos_f32",
         "v_rcp_iflag_f32")

def _regs(tok):
    tok = tok.strip()
    tok = tok.lstrip("-")
    m = re.match(r"^(?:abs\(|\|)(.*?)(?:\)|\|)$", tok)
    if m:
        tok = m.group(1)
    m = re.match(r"^([vsa])(\d+)$", tok)
    if m:
        return {m.group(1) + m.group(2)}
    m = re.match(r"^([vsa])\[(\d+):(\d+)\]$", tok)
    if m:
        return {m.group(1) + str(i) for i in range(int(m.group(2)), int(m.group(3)) + 1)}
    if tok in ("vcc", "vcc_lo", "vcc_hi"):
        return {"vcc"}
    if tok in ("exec", "exec_lo", "exec_hi"):
        return {"exec"}
    if tok == "m0":
        return {"m0"}
    return set()

class Ins:
    def __init__(self, text):
        self.text = text
        t = text.split(";")[0].strip()
        self.label = t.endswith(":")
        self.directive = t.startswith(".") or t == ""
        self.op = ""
        self.w = set(); self.r = set()
        self.kind = "other"
        self.states = 1
        if self.label or self.directive:
            self.states = 0
            return
        parts = t.split(None, 1)
        op = parts[0]; self.op = op
        rest = parts[1] if len(parts) > 1 else ""
        ops = []; depth = 0; cur = ""
        for ch in rest:
            if ch in "[(": depth += 1
            if ch in "])": depth -= 1
            if ch == "," and depth == 0:
                ops.append(cur); cur = ""
            else:
                cur += ch
        ops.append(cur)
        mods = ""
        if ops:
            last = ops[-1].strip().split(None, 1)
            if last:
                ops[-1] = last[0]
                mods = last[1] if len(last) > 1 else ""
        ops = [o.strip() for o in ops if o.strip() != ""]
        self.ops = ops; self.mods = mods
        R = [_regs(o) for o in ops]
        self.dpp = ("_dpp" in op) or any(k in mods for k in ("row_", "quad_perm", "wave_"))
        if op == "s_nop":
            self.states = int(ops[0], 0) + 1
            self.kind = "nop"
        elif op.startswith("v_mfma"):
            self.kind = "mfma"
            self.w = R[0]; self.ra = R[1] | R[2]; self.rc = R[3]; self.r = self.ra | self.rc
            self.passes = 8 if "32x32" in op else 4
        elif op.startswith("v_"):
            self.kind = "valu"
            base = op.replace("_e32", "").replace("_e64", "").replace("_dpp", "").replace("_sdwa", "")
            self.base = base
            if base in ("v_swap_b32", "v_permlane16_swap_b32", "v_permlane32_swap_b32"):
                self.w = R[0] | R[1]; self.r = R[0] | R[1]
            elif base.startswith("v_cmpx"):
                self.w = R[0] | {"exec"}; self.r = set().union(*R[1:])
            elif base in ("v_add_co_u32", "v_sub_co_u32", "v_addc_co_u32", "v_subb_co_u32"):
                self.w = R[0] | R[1]; self.r = set().union(*R[2:])
            else:
                self.w = R[0]; self.r = set().union(*R[1:]) if len(R) > 1 else set()
                if base.startswith(("v_fmac", "v_dot2c", "v_fma_mixlo", "v_fma_mixhi", "v_writelane")) or self.dpp:
                    self.r |= R[0]
            self.trans = base in TRANS
            self.opsel_dst = base in ("v_fma_mixhi_f16", "v_fma_mixlo_f16") or "dst_sel:WORD" in mods or "dst_sel:BYTE" in mods
        elif op.startswith(("buffer_", "global_")):
            self.kind = "vmem"
            self.lds = (" lds" in (" " + mods)) or "_lds_" in op
            self.wide_store = False
            if "load" in op and not self.lds:
                self.w = R[0]; self.r = set().union(*R[1:])
            elif "atomic" in op:
                self.r = set().union(*R)
                if "sc0" in mods and op.startswith("buffer_"): self.w = R[0]
            else:
                self.r = set().union(*R) if R else set()
                if "store" in op and ("x4" in op or "x3" in op):
                    self.wide_store = True
                    self.sdata = R[0] if op.startswith("buffer_") else R[1]
            if self.lds: self.r |= {"m0"}
        elif op.startswith("ds_"):
            self.kind = "ds"
            if op.startswith(("ds_read", "ds_bpermute", "ds_permute", "ds_swizzle")):
                self.w = R[0]; self.r = set().union(*R[1:])
            else:
                self.r = set().union(*R)
        elif op.startswith("s_"):
            self.kind = "salu"
            if op.startswith(("s_cmp", "s_cbranch", "s_branch", "s_waitcnt", "s_barrier", "s_endpgm", "s_sleep", "s_setprio", "s_bitcmp")):
                self.r = set().union(*R) if R else set()
            else:
                self.w = R[0] if R else set(); self.r = set().union(*R[1:]) if len(R) > 1 else set()
                if "saveexec" in op: self.w |= {"exec"}

def _need(p, c):
    n = 0
    vw = {x for x in p.w if x[0] in "va" and x != "vcc"}
    sw = {x for x in p.w if x[0] == "s" or x == "vcc"}
    if p.kind == "valu":
        if c.kind == "mfma" and (vw & c.r): n = max(n, 2)
        if c.kind == "mfma" and "exec" in p.w: n = max(n, 4)
        if c.kind == "valu":
            if c.dpp and (vw & c.r): n = max(n, 2)
            if c.dpp and "exec" in p.w: n = max(n, 5)
            if c.base.startswith("v_permlane") and (vw & c.r): n = max(n, 2)
            if c.base.startswith("v_permlane") and "exec" in p.w: n = max(n, 4)
            if c.base in ("v_readlane_b32", "v_readfirstlane_b32") and (vw & c.r): n = max(n, 1)
            if c.base in ("v_readlane_b32", "v_readfirstlane_b32", "v_writelane_b32") and "exec" in p.w: n = max(n, 4)
            if sw & c.r:
                n = max(n, 4 if c.base in ("v_readlane_b32", "v_writelane_b32") else 2)
            if p.trans and (vw & c.r) : n = max(n, 1)
            if p.opsel_dst and (vw & (c.r | c.w)): n = max(n, 1)
        if c.kind == "vmem" and (sw & c.r): n = max(n, 5)
        if c.kind == "mfma" and p.trans and (vw & c.r): n = max(n, 2)
        if c.kind in ("vmem", "ds") and p.trans and (vw & c.r): n = max(n, 1)
    if p.kind == "mfma":
        big = {4: 8, 8: 12}[p.passes]
        if c.kind == "mfma":
            if p.w & c.ra: n = max(n, big)
            if p.w & c.rc:
                if not (p.w == c.rc and p.passes == c.passes): n = max(n, {4: 6, 8: 10}[p.passes])
            elif p.w & c.w: n = max(n, big)
        elif c.kind in ("valu", "vmem", "ds"):
            if p.w & (c.r | c.w): n = max(n, big)
        if c.kind == "valu" and (p.rc & c.w): n = max(n, {4: 3, 8: 7}[p.passes])
    if p.kind == "vmem" and p.wide_store:
        if p.sdata & c.w: n = max(n, 2 if c.kind in ("valu", "mfma") else 1)
    if p.kind == "salu" and "m0" in p.w and c.kind == "vmem" and c.lds: n = max(n, 1)
    return n

def fix_hazards(lines):
    out = []
    hist = []
    for ln in lines:
        ins = Ins(ln)
        if ins.label or ins.directive:
            out.append(ln)
            continue
        need = 0
        for p, dist in hist:
            k = _need(p, ins) - dist
            if k > need: need = k
        while need > 0:
            k = min(need, 16)
            out.append(f"    s_nop {k-1}")
            hist = [(p, d + k) for p, d in hist]
            need -= k
        out.append(ln)
        hist = [(p, d + ins.states) for p, d in hist if d + ins.states < 24]
        if ins.op == "s_endpgm":
            hist = []
        else:
            hist.append((ins, 0))
    return out

class K:
    def __init__(self, name):
        self.name = name
        self.lines = []
    def __call__(self, s):
        for ln in s.strip("\n").split("\n"):
            ln = ln.strip()
            if ln == "": continue
            if ln.endswith(":") and not ln.startswith(";"):
                self.lines.append(ln)
            else:
                self.lines.append("    " + ln)
    def c(self, s):
        self.lines.append("    ; " + s)
    def text(self):
        body = fix_hazards(self.lines)
        body = [l + "    ; poll back-off (reads of a line that is still being written slow its writers)" if l.strip().startswith("s_sleep") else l for l in body]
        return (f".globl {self.name}\n.p2align 8\n.type {self.name},@function\n{self.name}:\n" + "\n".join(body) + "\n")
    def maxreg(self, kind):
        mx = -1
        for ln in self.lines:
            t = ln.split(";")[0]
            for m in re.finditer(r"\b%s(\d+)\b" % kind, t): mx = max(mx, int(m.group(1)))
            for m in re.finditer(r"\b%s\[(\d+):(\d+)\]" % kind, t): mx = max(mx, int(m.group(2)))
        return mx
    def desc(self):
        nv = self.maxreg("v") + 1
        na = self.maxreg("a") + 1
        ns = self.maxreg("s") + 1
        acc = max(4, (nv + 3) // 4 * 4)
        nfv = acc + na if na else nv
        return f""".p2align 6
.amdhsa_kernel {self.name}
  .amdhsa_next_free_vgpr {nfv}
  .amdhsa_next_free_sgpr {max(ns, 16)}
  .amdhsa_accum_offset {acc}
  .amdhsa_group_segment_fixed_size 0
  .amdhsa_kernarg_size 120
  .amdhsa_user_sgpr_count 2
  .amdhsa_user_sgpr_kernarg_segment_ptr 1
  .amdhsa_system_sgpr_workgroup_id_x 1
  .amdhsa_float_denorm_mode_32 3
  .amdhsa_float_denorm_mode_16_64 3
.end_amdhsa_kernel
"""

def v(a, n=1):
    return f"v{a}" if n == 1 else f"v[{a}:{a+n-1}]"
def s(a, n=1):
    return f"s{a}" if n == 1 else f"s[{a}:{a+n-1}]"
import struct
def f32(x):
    return "0x%08x" % struct.unpack("<I", struct.pack("<f", x))[0]
```

```python
import math, sys
from asmgen import K, v, s, f32

WS_Z1   = 0x0100000
WS_ZF   = 0x0600000
WS_H2   = 0x0B00000
WS_MODP = 0x1000000
WS_CS   = 0x1040000
WS_SAS  = 0x1040800
WS_MAXP = 0x1041000
WS_PAR  = 0x1042000
WS_SENT = 0x1100000
WS_PART = WS_SENT
WS_XA   = WS_SENT + 0x80000
WS_XB   = WS_SENT + 0xC0000
WS_FLAG = WS_SENT + 0xF8000
WS_KEY  = WS_SENT + 0xFC000
WS_SIZE = 0x10000000

A_X, A_WR, A_WG, A_WU, A_WD, A_C, A_WM, A_OUT, A_DBG, A_WS = 0, 48, 56, 64, 72, 80, 88, 96, 104, 112

import os
STAMPS = int(os.environ.get("STAMPS", "0"))
WS_STAMP = 0x2000000
def _slot(i):
    if STAMPS == 1: return i if i < 7 else None
    if STAMPS == 2: return 0 if i == 0 else (i - 6 if 7 <= i < 13 else None)
    if STAMPS == 3: return 0 if i == 0 else (i - 12 if 13 <= i < 19 else None)
    if STAMPS == 4: return 0 if i == 0 else (i - 19 if 20 <= i < 26 else None)
    if STAMPS == 6: return 0 if i == 0 else (i - 39 if 40 <= i < 46 else None)
    if STAMPS == 5: return 0 if i == 0 else (i - 29 if 30 <= i < 36 else None)
    return None
def stamp(k, i):
    j = _slot(i)
    if j is not None: k(f"s_memrealtime s[{84+2*j}:{85+2*j}]")
def stamp_init(k):
    if STAMPS:
        for j in range(8): k(f"s_mov_b32 s{84+2*j}, 0")
def stamp_out(k, kid, n=7, srdb=12):
    if not STAMPS: return
    k("s_mov_b64 exec, -1")
    k("s_waitcnt vmcnt(0)")
    k("s_memrealtime s[98:99]")
    k("s_waitcnt lgkmcnt(0)")
    k(f"v_lshrrev_b32 v248, 6, v0")
    k(f"v_lshlrev_b32 v248, 5, v248")
    k(f"s_lshl_b32 s100, s2, 8")
    k(f"s_add_u32 s100, s100, {WS_STAMP + kid * 0x40000}")
    for i in range(8):
        k(f"v_mov_b32 v{240+i}, s{84+2*i}")
    k("s_mov_b64 exec, 1")
    k(f"buffer_store_dwordx4 v[240:243], v248, s[{srdb}:{srdb+3}], s100 offen")
    k(f"buffer_store_dwordx4 v[244:247], v248, s[{srdb}:{srdb+3}], s100 offen offset:16")

K1ST = os.environ.get("K1ST", "")
K2ST = os.environ.get("K2ST", "")
K3ST = os.environ.get("K3ST", "")
K4ST = os.environ.get("K4ST", "")
NT1 = os.environ.get("NT1", "")
NT2 = os.environ.get("NT2", "")
class RA:
    def __init__(self, base): self.n = base
    def __call__(self, n=1, align=None):
        if align is None: align = 2 if n >= 2 else 1
        self.n = (self.n + align - 1) // align * align
        b = self.n; self.n += n
        return b

def srd(k, d, src, nbytes):
    k(f"""s_mov_b32 s{d}, s{src}
    s_mov_b32 s{d+1}, s{src+1}
    s_mov_b32 s{d+2}, {nbytes}
    s_mov_b32 s{d+3}, 0x00020000""")

def P(a): return f"v[{a}:{a+1}]"
def padd(k, d, a, b): k(f"v_pk_add_f32 {P(d)}, {P(a)}, {P(b)}")
def psub(k, d, a, b): k(f"v_pk_add_f32 {P(d)}, {P(a)}, {P(b)} neg_lo:[0,1] neg_hi:[0,1]")
def pmul(k, d, a, b): k(f"v_pk_mul_f32 {P(d)}, {P(a)}, {P(b)}")
def pfma(k, d, a, b, c, nega=False):
    k(f"v_pk_fma_f32 {P(d)}, {P(a)}, {P(b)}, {P(c)}" + (" neg_lo:[1,0,0] neg_hi:[1,0,0]" if nega else ""))
def spair(sr):
    return f"s[{sr & ~1}:{(sr & ~1) + 1}]", sr & 1
def pmul_s(k, d, a, sr):
    p, b = spair(sr)
    k(f"v_pk_mul_f32 {P(d)}, {P(a)}, {p} op_sel:[0,{b}] op_sel_hi:[1,{b}]")
def pfma_s(k, d, a, sr, c, nega=False):
    p, b = spair(sr)
    k(f"v_pk_fma_f32 {P(d)}, {P(a)}, {p}, {P(c)} op_sel:[0,{b},0] op_sel_hi:[1,{b},1]" + (" neg_lo:[1,0,0] neg_hi:[1,0,0]" if nega else ""))
def psub_s(k, d, a, sr):
    p, b = spair(sr)
    k(f"v_pk_add_f32 {P(d)}, {P(a)}, {p} op_sel:[0,{b}] op_sel_hi:[1,{b}] neg_lo:[0,1] neg_hi:[0,1]")
def unpack_bf16(k, d, src):
    k(f"v_lshlrev_b32 v{d}, 16, v{src}")
    k(f"v_and_b32 v{d+1}, 0xffff0000, v{src}")
def round_bf16(k, d, a):
    k(f"v_cvt_pk_bf16_f32 v{d}, v{a}, v{a}")
    k(f"v_lshlrev_b32 v{d}, 16, v{d}")
DPPM = "row_mask:0xf bank_mask:0xf"
def row_allreduce(k, regs, op="v_add_f32"):
    for sh in (8, 4, 2, 1):
        for r in regs:
            k(f"{op}_dpp v{r}, v{r}, v{r} row_ror:{sh} {DPPM}")
def wave_reduce_to63(k, regs, op="v_add_f32"):
    row_allreduce(k, regs, op)
    for r in regs:
        k(f"{op}_dpp v{r}, v{r}, v{r} row_bcast:15 row_mask:0xa bank_mask:0xf")
    for r in regs:
        k(f"{op}_dpp v{r}, v{r}, v{r} row_bcast:31 row_mask:0xc bank_mask:0xf")

def rho_map(k, dst, t1, t2):
    k(f"""s_and_b32 s{dst}, s2, 7
    s_lshr_b32 s{t1}, s2, 4
    s_xor_b32 s{t1}, s{t1}, 15
    s_lshl_b32 s{t1}, s{t1}, 3
    s_add_u32 s{dst}, s{dst}, s{t1}
    s_sub_u32 s{t1}, 256, s{dst}
    s_cmp_eq_u32 s{dst}, 0
    s_cselect_b32 s{t1}, 128, s{t1}
    s_bitcmp1_b32 s2, 3
    s_cselect_b32 s{dst}, s{t1}, s{dst}""")

def code_prefetch(k, vaddr, vdst, sp):
    k(f"""s_getpc_b64 s[{sp}:{sp+1}]
    cpf_base:
    v_lshlrev_b32 v{vaddr}, 7, v0
    v_min_u32 v{vaddr}, code_end-cpf_base-4, v{vaddr}
    global_load_dword v{vdst}, v{vaddr}, s[{sp}:{sp+1}]""")

def pos32(k, d, e, t):
    k(f"""v_lshrrev_b32 v{d}, 9, v{e}
    v_lshlrev_b32 v{d}, 11, v{d}
    v_bfe_u32 v{t}, v{e}, 2, 1
    v_lshl_add_u32 v{d}, v{t}, 10, v{d}
    v_bfe_u32 v{t}, v{e}, 3, 6
    v_lshl_add_u32 v{d}, v{t}, 4, v{d}
    v_and_b32 v{t}, 3, v{e}
    v_lshl_add_u32 v{d}, v{t}, 2, v{d}""")
def pos16(k, d, e, t):
    k(f"""v_bfe_u32 v{d}, v{e}, 7, 1
    v_lshlrev_b32 v{d}, 9, v{d}
    v_and_b32 v{t}, 31, v{e}
    v_lshl_add_u32 v{d}, v{t}, 4, v{d}
    v_bfe_u32 v{t}, v{e}, 8, 1
    v_lshl_add_u32 v{d}, v{t}, 3, v{d}
    v_lshrrev_b32 v{t}, 9, v{e}
    v_lshl_add_u32 v{d}, v{t}, 10, v{d}
    v_bfe_u32 v{t}, v{e}, 5, 2
    v_lshl_add_u32 v{d}, v{t}, 1, v{d}""")

def gen_k1():
    k = K("k1_kernel")
    stamp_init(k)
    k("""s_cmp_ge_u32 s2, 512
    s_cbranch_scc1 k1_done
    s_cmp_ge_u32 s2, 256
    s_cbranch_scc1 k1_gemv""")
    k.c("---------------- LN1 + radix-8 over rows r+256j ----------------")
    stamp(k, 0)
    k(f"""s_load_dwordx2 s[4:5], s[0:1], {A_X}
    s_load_dwordx2 s[6:7], s[0:1], {A_WS}
    s_load_dwordx2 s[28:29], s[0:1], {A_WR}""")
    code_prefetch(k, 1, 200, 20)
    rho_map(k, 3, 16, 17)
    k(f"""v_lshlrev_b32 v1, 2, v0
    v_and_b32 v2, 7, v0
    v_mul_u32_u24 v3, s3, v2
    v_cvt_f32_u32 v3, v3
    v_mul_f32 v3, {f32(1.0/2048)}, v3
    v_cos_f32 v4, v3
    v_sin_f32 v5, v3
    s_lshl_b32 s16, s3, 11
    s_waitcnt lgkmcnt(0)""")
    srd(k, 8, 4, 2048 * 1024 * 2)
    srd(k, 12, 6, WS_SIZE)
    stamp(k, 1)
    ra = RA(8)
    XR = ra(8); XI = ra(8)
    for j in range(8):
        k(f"buffer_load_dword v{XR+j}, v1, s[8:11], s16 offen {NT1}")
        k(f"buffer_load_dword v{XI+j}, v1, s[8:11], s16 offen offset:1024 {NT1}")
        if j < 7: k(f"s_add_u32 s16, s16, {256*2048}")
    k(f"""v_mov_b32 v192, -1
    v_mov_b32 v193, -1
    v_mov_b32 v194, -1
    v_mov_b32 v195, -1
    v_lshlrev_b32 v196, 4, v0
    s_lshl_b32 s22, s2, 12
    s_add_u32 s22, s22, {WS_SENT}
    buffer_store_dwordx4 v[192:195], v196, s[12:15], s22 offen sc1""")
    TW = 40
    for kk in range(1, 8):
        k(f"v_readlane_b32 s{TW+2*kk}, v4, {kk}")
        k(f"v_readlane_b32 s{TW+2*kk+1}, v5, {kk}")
    KAP = 38
    k(f"s_mov_b32 s{KAP}, {f32(math.sqrt(0.5))}")
    k("""v_lshrrev_b32 v6, 6, v0
    v_lshlrev_b32 v6, 2, v6
    v_bfe_u32 v7, v0, 4, 2
    v_lshl_add_u32 v6, v7, 5, v6
    v_lshlrev_b32 v2, 4, v2""")
    VO = ra()
    k(f"""v_lshlrev_b32 v{VO}, 20, v7
    v_lshrrev_b32 v3, 6, v0
    v_lshl_add_u32 v{VO}, v3, 17, v{VO}
    v_bfe_u32 v3, v0, 2, 2
    v_lshl_add_u32 v{VO}, v3, 15, v{VO}
    v_and_b32 v3, 3, v0
    v_lshl_add_u32 v{VO}, v3, 4, v{VO}
    s_lshl_b32 s24, s3, 6
    s_add_u32 s24, s24, {WS_Z1}
    s_add_u32 s25, s24, 16384
    s_add_u32 s26, s24, 524288
    s_add_u32 s27, s24, {524288+16384}""")
    RE = ra(16); IM = ra(16); SS = ra(8); T = ra(16)
    for j in range(8):
        k(f"s_waitcnt vmcnt({15-2*j})")
        unpack_bf16(k, RE + 2*j, XR + j)
        unpack_bf16(k, IM + 2*j, XI + j)
        padd(k, T + 2*j, RE + 2*j, IM + 2*j)
        k(f"v_add_f32 v{SS+j}, v{T+2*j}, v{T+2*j+1}")
    stamp(k, 2)
    def reduce8(ldsoff, dst4):
        for j in range(4): k(f"v_permlane32_swap_b32 v{SS+j}, v{SS+j+4}")
        for j in range(4): k(f"v_add_f32 v{SS+j}, v{SS+j}, v{SS+j+4}")
        for j in range(2): k(f"v_permlane16_swap_b32 v{SS+j}, v{SS+j+2}")
        for j in range(2): k(f"v_add_f32 v{SS+j}, v{SS+j}, v{SS+j+2}")
        row_allreduce(k, [SS, SS + 1])
        k(f"ds_write2_b32 v6, v{SS}, v{SS+1} offset0:{ldsoff//4} offset1:{ldsoff//4+4}")
        k("s_waitcnt lgkmcnt(0)\ns_barrier")
        k(f"ds_read_b128 v[{dst4}:{dst4+3}], v2 offset:{ldsoff}")
        k("s_waitcnt lgkmcnt(0)")
        padd(k, dst4, dst4, dst4 + 2)
        k(f"v_add_f32 v{dst4}, v{dst4}, v{dst4+1}")
        k(f"v_mul_f32 v{dst4}, {f32(1.0/1024)}, v{dst4}")
    R4 = ra(4, 4); MB = ra(); DM = ra()
    reduce8(0, R4)
    round_bf16(k, MB, R4)
    k(f"v_sub_f32 v{DM}, v{R4}, v{MB}")
    SM = 56
    for j in range(8): k(f"v_readlane_b32 s{SM+j}, v{MB}, {j}")
    for j in range(8):
        psub_s(k, RE + 2*j, RE + 2*j, SM + j)
        psub_s(k, IM + 2*j, IM + 2*j, SM + j)
    for j in range(8):
        pmul(k, T + 2*j, RE + 2*j, RE + 2*j)
    for j in range(8):
        pfma(k, T + 2*j, IM + 2*j, IM + 2*j, T + 2*j)
    for j in range(8):
        k(f"v_add_f32 v{SS+j}, v{T+2*j}, v{T+2*j+1}")
    reduce8(128, R4)
    k(f"v_fma_f32 v{R4}, -v{DM}, v{DM}, v{R4}")
    k(f"v_max_f32 v{R4}, 0, v{R4}")
    round_bf16(k, R4, R4)
    k(f"v_add_f32 v{R4}, {f32(1e-5)}, v{R4}")
    round_bf16(k, R4, R4)
    k(f"v_sqrt_f32 v{R4}, v{R4}")
    round_bf16(k, R4, R4)
    k(f"v_rcp_f32 v{R4}, v{R4}")
    k(f"v_mul_f32 v{R4}, {f32(1.0/32)}, v{R4}")
    SR = 64
    for j in range(8): k(f"v_readlane_b32 s{SR+j}, v{R4}, {j}")
    for j in range(4):
        for ci, A in enumerate((RE, IM)):
            t = T + 2 * (2*j + ci)
            pmul_s(k, t, A + 2*j, SR + j)
    for j in range(4):
        for ci, A in enumerate((RE, IM)):
            t = T + 2 * (2*j + ci)
            pfma_s(k, A + 2*j, A + 2*(j+4), SR + j + 4, t)
            pfma_s(k, A + 2*(j+4), A + 2*(j+4), SR + j + 4, t, nega=True)
    b = [(RE + 2*j, IM + 2*j) for j in range(4)]
    c = [(RE + 2*(j+4), IM + 2*(j+4)) for j in range(4)]
    def cv(): return (ra(2), ra(2))
    X = [cv() for _ in range(8)]
    p, q, ss_, w = cv(), cv(), cv(), cv()
    for i in range(2):
        padd(k, p[i], b[0][i], b[2][i]); psub(k, q[i], b[0][i], b[2][i])
        padd(k, ss_[i], b[1][i], b[3][i]); psub(k, w[i], b[1][i], b[3][i])
    for i in range(2):
        padd(k, X[0][i], p[i], ss_[i]); psub(k, X[4][i], p[i], ss_[i])
    padd(k, X[2][0], q[0], w[1]); psub(k, X[2][1], q[1], w[0])
    psub(k, X[6][0], q[0], w[1]); padd(k, X[6][1], q[1], w[0])
    p, q, ss_, w, u1, u3 = cv(), cv(), cv(), cv(), cv(), cv()
    padd(k, p[0], c[0][0], c[2][1]); psub(k, p[1], c[0][1], c[2][0])
    psub(k, q[0], c[0][0], c[2][1]); padd(k, q[1], c[0][1], c[2][0])
    padd(k, u1[0], c[1][0], c[1][1]); psub(k, u1[1], c[1][1], c[1][0])
    psub(k, u3[0], c[3][1], c[3][0]); padd(k, u3[1], c[3][0], c[3][1])
    padd(k, ss_[0], u1[0], u3[0]); psub(k, ss_[1], u1[1], u3[1])
    psub(k, w[0], u1[0], u3[0]); padd(k, w[1], u1[1], u3[1])
    for i in range(2):
        pfma_s(k, X[1][i], ss_[i], KAP, p[i]); pfma_s(k, X[5][i], ss_[i], KAP, p[i], nega=True)
    pfma_s(k, X[3][0], w[1], KAP, q[0]); pfma_s(k, X[3][1], w[0], KAP, q[1], nega=True)
    pfma_s(k, X[7][0], w[1], KAP, q[0], nega=True); pfma_s(k, X[7][1], w[0], KAP, q[1])
    Y = [X[0]] + [(RE + 2*j, IM + 2*j) for j in range(1, 8)]
    for kk in range(1, 8):
        pmul_s(k, Y[kk][0], X[kk][0], TW + 2*kk)
        pmul_s(k, Y[kk][1], X[kk][1], TW + 2*kk)
    for kk in range(1, 8):
        pfma_s(k, Y[kk][0], X[kk][1], TW + 2*kk + 1, Y[kk][0])
        pfma_s(k, Y[kk][1], X[kk][0], TW + 2*kk + 1, Y[kk][1], nega=True)
    OB = ra(16, 4)
    for kk in range(8):
        for cc in range(2):
            k(f"v_cvt_pk_f16_f32 v{OB + ((kk&1)*2+cc)*4 + (kk>>1)}, v{Y[kk][0]+cc}, v{Y[kk][1]+cc}")
    for g in range(4):
        G = OB + 4*g
        k(f"v_permlane32_swap_b32 v{G}, v{G+2}")
        k(f"v_permlane32_swap_b32 v{G+1}, v{G+3}")
    for g in range(4):
        G = OB + 4*g
        k(f"v_permlane16_swap_b32 v{G}, v{G+1}")
        k(f"v_permlane16_swap_b32 v{G+2}, v{G+3}")
    stamp(k, 3)
    for g in range(4):
        k(f"buffer_store_dwordx4 v[{OB+4*g}:{OB+4*g+3}], v{VO}, s[12:15], s{24+g} offen {K1ST}")
    k.c("WGs 0..3: w_r -> fp32, permuted")
    k("s_cmp_ge_u32 s2, 4\ns_cbranch_scc1 k1_lnd")
    srd(k, 32, 28, 2048)
    k(f"""s_lshl_b32 s22, s2, 8
    v_add_u32 v1, s22, v0
    v_lshlrev_b32 v2, 1, v1
    buffer_load_ushort v6, v2, s[32:35], 0 offen""")
    pos32(k, 5, 1, 4)
    k(f"""s_mov_b32 s22, {WS_PAR + 4*4096}
    s_waitcnt vmcnt(0)
    v_lshlrev_b32 v6, 16, v6
    buffer_store_dword v6, v5, s[12:15], s22 offen
    k1_lnd:""")
    stamp_out(k, 0)
    k("s_endpgm")
    k.c("---------------- mod GEMV partials ----------------")
    k("k1_gemv:")
    stamp(k, 0)
    k(f"""s_load_dwordx4 s[4:7], s[0:1], {A_C}
    s_load_dwordx2 s[20:21], s[0:1], {A_WS}
    s_sub_u32 s3, s2, 256
    s_lshr_b32 s16, s3, 5
    s_and_b32 s17, s3, 31""")
    k.c("s16 = ks (0..7), s17 = nchunk (0..31), tile [128 k][192 n]")
    k(f"""v_lshrrev_b32 v1, 6, v0
    v_bfe_u32 v2, v0, 5, 1
    v_lshl_add_u32 v3, v1, 5, v2
    v_mul_u32_u24 v4, 12288, v3
    v_and_b32 v5, 31, v0
    v_lshl_add_u32 v4, v5, 4, v4
    v_cmp_gt_u32 vcc, 24, v5
    v_mov_b32 v7, 0x7ff00000
    v_cndmask_b32 v4, v7, v4, vcc
    v_and_b32 v5, 15, v0
    v_lshl_add_u32 v5, v5, 1, v3
    v_lshlrev_b32 v5, 1, v5
    s_mul_i32 s18, s16, {128*12288}
    s_mul_i32 s19, s17, 384
    s_add_u32 s18, s18, s19
    s_lshl_b32 s19, s16, 8
    s_waitcnt lgkmcnt(0)""")
    srd(k, 8, 6, 1024 * 6144 * 2)
    srd(k, 12, 4, 2048)
    srd(k, 24, 20, WS_SIZE)
    stamp(k, 1)
    k("buffer_load_ushort v6, v5, s[12:15], s19 offen")
    W = 16
    for i in range(16):
        k(f"buffer_load_dwordx4 v[{W+4*i}:{W+4*i+3}], v4, s[8:11], s18 offen {NT1}")
        if i < 15: k("s_add_u32 s18, s18, 24576")
    ACC = 80; U = 88; SB = 8
    for i in range(8): k(f"v_mov_b32 v{ACC+i}, 0")
    k(f"""s_waitcnt vmcnt(16)
    v_lshlrev_b32 v6, 16, v6
    v_mul_f32 v7, {f32(-math.log2(math.e))}, v6
    v_exp_f32 v7, v7
    v_add_f32 v7, 1.0, v7
    v_rcp_f32 v7, v7
    v_mul_f32 v6, v6, v7""")
    round_bf16(k, 6, 6)
    stamp(k, 2)
    for i in range(16):
        sb = SB + 2 * (i & 1)
        k(f"v_mov_b32_dpp v{sb}, v6 row_newbcast:{i} {DPPM}")
        k(f"s_waitcnt vmcnt({15-i})")
        u = U + 8 * (i & 1)
        for j in range(4): unpack_bf16(k, u + 2*j, W + 4*i + j)
        for j in range(4):
            k(f"v_pk_fma_f32 {P(ACC+2*j)}, {P(u+2*j)}, {P(sb)}, {P(ACC+2*j)} op_sel_hi:[1,0,1]")
    for j in range(4): k(f"v_permlane32_swap_b32 v{ACC+j}, v{ACC+j+4}")
    for j in range(2): padd(k, ACC + 2*j, ACC + 2*j, ACC + 4 + 2*j)
    stamp(k, 3)
    k.c("lane<32: cols 8*cl+0..3 ; lane>=32: cols 8*cl+4..7")
    k(f"""v_and_b32 v5, 31, v0
    v_lshlrev_b32 v5, 5, v5
    v_lshl_add_u32 v5, v2, 4, v5
    v_lshl_add_u32 v5, v1, 10, v5
    ds_write_b128 v5, v[{ACC}:{ACC+3}]
    v_lshlrev_b32 v5, 2, v0
    s_mul_i32 s18, s16, 24576
    s_mul_i32 s19, s17, 768
    s_add_u32 s18, s18, s19
    s_add_u32 s18, s18, {WS_MODP}
    v_cmp_gt_u32 vcc, 192, v0
    v_mov_b32 v7, 0x7ff00000
    v_cndmask_b32 v7, v7, v5, vcc
    s_lshl_b32 s19, s16, 4
    s_add_u32 s19, s19, s17
    s_lshl_b32 s19, s19, 4
    s_add_u32 s19, s19, {WS_MAXP}
    s_cmp_lt_u32 s17, 11
    s_cselect_b32 s22, 0x7fffffff, 0
    v_lshlrev_b32 v1, 2, v1
    s_waitcnt lgkmcnt(0)
    s_barrier
    ds_read2st64_b32 v[8:9], v5 offset0:0 offset1:4
    ds_read2st64_b32 v[10:11], v5 offset0:8 offset1:12
    s_waitcnt lgkmcnt(0)
    v_pk_add_f32 v[8:9], v[8:9], v[10:11]
    v_add_f32 v8, v8, v9
    buffer_store_dword v8, v7, s[24:27], s18 offen
    s_cmp_ge_u32 s17, 16
    s_cbranch_scc1 k1_gdone
    v_and_b32 v9, s22, v8""")
    wave_reduce_to63(k, [9], "v_max_u32")
    k("""s_mov_b32 exec_lo, 0
    s_mov_b32 exec_hi, 0x80000000
    buffer_store_dword v9, v1, s[24:27], s19 offen
    k1_gdone:""")
    stamp_out(k, 0, 7, 24)
    k("""k1_done:
    s_endpgm""")
    return k

def top2(k, KB, s1, s2, tmp):
    m1, m2, c = tmp, tmp + 1, tmp + 2
    k(f"v_max_u32 v{m1}, v{KB}, v{KB+1}")
    k(f"v_min_u32 v{m2}, v{KB}, v{KB+1}")
    for i in range(2, 8):
        k(f"v_med3_u32 v{m2}, v{m1}, v{m2}, v{KB+i}")
        k(f"v_max_u32 v{m1}, v{m1}, v{KB+i}")
    k(f"v_mov_b32 v{c}, v{m1}")
    wave_reduce_to63(k, [c], "v_max_u32")
    k(f"v_readlane_b32 s{s1}, v{c}, 63")
    k(f"v_cmp_eq_u32 vcc, s{s1}, v{m1}")
    k(f"v_cndmask_b32 v{c}, v{m1}, v{m2}, vcc")
    wave_reduce_to63(k, [c], "v_max_u32")
    k(f"v_readlane_b32 s{s2}, v{c}, 63")


L_C = 0
L_P = 16384
L_Y = 36864
L_KEY = L_Y + 5 * 4608
L_W = 60416
KB_LDS = L_W + 65536
SL1 = int(os.environ.get("SL1", "6"))
SL2 = int(os.environ.get("SL2", "4"))
XFAST = int(os.environ.get("XFAST", "3"))
B2AT = int(os.environ.get("B2AT", "2"))
LDF = os.environ.get("LDF", "sc1")
SPIN = "0x40000"

def chk_sent(k, regs, tmp):
    regs = list(regs)
    k(f"v_max3_u32 v{tmp}, v{regs[0]}, v{regs[1]}, v{regs[2]}")
    regs = regs[3:]
    while len(regs) >= 2:
        k(f"v_max3_u32 v{tmp}, v{tmp}, v{regs[0]}, v{regs[1]}"); regs = regs[2:]
    if regs: k(f"v_max_u32 v{tmp}, v{tmp}, v{regs[0]}")
    k(f"v_cmp_eq_u32 vcc, -1, v{tmp}")

def poll_records(k, lab, base, soff, tmp):
    k(f"s_mov_b32 s83, 0\n{lab}:")
    for j in range(2):
        k(f"buffer_load_dwordx4 v[{base+4*j}:{base+4*j+3}], v3, s[12:15], s{soff} offen offset:{j*1024} sc1")
    k("s_waitcnt vmcnt(0)")
    chk_sent(k, range(base, base + 8), tmp)
    k(f"""s_cbranch_vccz {lab}x
    s_sleep {SL2}
    s_add_u32 s83, s83, 1
    s_cmp_lt_u32 s83, {SPIN}
    s_cbranch_scc1 {lab}
    {lab}x:""")

def gen_kb():
    k = K("kb_kernel")
    stamp_init(k)
    k(f"""s_cmp_ge_u32 s2, 256
    s_cbranch_scc1 kb_done""")
    stamp(k, 0)
    k(f"""s_load_dwordx2 s[4:5], s[0:1], {A_X}
    s_load_dwordx2 s[6:7], s[0:1], {A_WS}
    s_load_dwordx2 s[20:21], s[0:1], {A_OUT}
    s_load_dwordx4 s[48:51], s[0:1], {A_WG}
    s_load_dwordx2 s[56:57], s[0:1], {A_WD}
    s_load_dwordx2 s[58:59], s[0:1], {A_WR}
    v_lshrrev_b32 v1, 6, v0
    v_and_b32 v2, 63, v0
    v_readfirstlane_b32 s16, v1
    v_lshlrev_b32 v3, 4, v2""")
    XR, ZA, ZB, CS, SAR = 8, 16, 24, 32, 40
    ZAD, YW, YRA, YRB, YRC, FA, DMA = 48, 49, 50, 51, 52, 53, 54
    BRE, BIM, TC, TS, W, D1R, D1I = 56, 72, 88, 104, 120, 136, 152
    GA, SBv, C1, GBv, WR = 168, 184, 200, 216, 232
    k.c("phase-B load address (A waves) / finalize address (wave 4)")
    k(f"""v_and_b32 v5, 15, v0
    v_bfe_u32 v6, v0, 4, 2
    v_lshlrev_b32 v4, 12, v6
    v_lshl_add_u32 v4, v5, 6, v4
    v_lshl_add_u32 v4, v1, 4, v4
    s_and_b32 s40, s2, 7
    s_lshr_b32 s41, s2, 3
    s_lshl_b32 s42, s40, 19
    s_lshl_b32 s43, s41, 14
    s_add_u32 s42, s42, s43
    s_add_u32 s42, s42, {WS_Z1}
    v_lshrrev_b32 v7, 3, v2
    v_mul_u32_u24 v7, 24576, v7
    v_and_b32 v16, 7, v0
    v_lshl_add_u32 v7, v16, 4, v7
    s_lshl_b32 s43, s2, 7
    s_add_u32 s43, s43, {WS_MODP}
    s_mov_b32 s46, {WS_MAXP}""")
    rho_map(k, 3, 17, 18)
    k.c("s16 = wave ; s17 = row ; s44 = 1 if this wave runs an FFT ; s45 = y slot")
    k(f"""s_and_b32 s45, s16, 3
    s_lshl_b32 s17, s45, 8
    s_add_u32 s17, s17, s3
    s_sub_u32 s18, 2048, s17
    s_cmp_eq_u32 s17, 0
    s_cselect_b32 s18, 1024, s18
    s_cselect_b32 s44, 1, 0
    s_cselect_b32 s19, s16, s45
    s_mov_b32 s45, s19
    s_cmp_ge_u32 s16, 4
    s_cselect_b32 s17, s18, s17
    s_cselect_b32 s44, s44, 1
    s_lshl_b32 s19, s17, 11""")
    k.c("shared FFT constants: wave w computes i = 2w, 2w+1 ; idx = 8*(w>>1) + 2*(w&1) + 4h + {0,1}")
    c = 120
    k(f"""v_and_b32 v{c}, 31, v0
    v_cvt_f32_u32 v{c}, v{c}
    v_mul_f32 v{c}, {f32(1.0/1024)}, v{c}
    v_lshrrev_b32 v{c+1}, 7, v0
    v_lshlrev_b32 v{c+1}, 3, v{c+1}
    v_bfe_u32 v{c+2}, v0, 6, 1
    v_lshl_add_u32 v{c+1}, v{c+2}, 1, v{c+1}
    v_bfe_u32 v{c+2}, v0, 5, 1
    v_lshl_add_u32 v{c+1}, v{c+2}, 2, v{c+1}
    v_cvt_f32_u32 v{c+1}, v{c+1}
    v_mul_f32 v{c+4}, v{c}, v{c+1}
    v_add_f32 v{c+5}, v{c+4}, v{c}
    v_mul_f32 v{c+6}, {f32(32.0)}, v{c+4}
    v_mul_f32 v{c+7}, {f32(32.0)}, v{c+5}
    v_fract_f32 v{c+6}, v{c+6}
    v_fract_f32 v{c+7}, v{c+7}
    v_cos_f32 v{c+8}, v{c+4}
    v_cos_f32 v{c+9}, v{c+5}
    v_sin_f32 v{c+10}, v{c+4}
    v_sin_f32 v{c+11}, v{c+5}
    v_cos_f32 v{c+12}, v{c+6}
    v_cos_f32 v{c+13}, v{c+7}
    v_sin_f32 v{c+14}, v{c+6}
    v_sin_f32 v{c+15}, v{c+7}
    s_waitcnt lgkmcnt(0)""")
    srd(k, 12, 6, WS_SIZE)
    srd(k, 8, 4, 2048 * 1024 * 2)
    stamp(k, 1)
    L = 16
    k("s_cmp_ge_u32 s16, 4\ns_cbranch_scc1 kb_l1")
    for j in range(4):
        k(f"buffer_load_dwordx4 v[{L+4*j}:{L+4*j+3}], v4, s[12:15], s42 offen offset:{j*1024}")
    k(f"""s_branch kb_l2
    kb_l1:
    s_cmp_lg_u32 s16, 4
    s_cbranch_scc1 kb_l2
    s_cmp_ge_u32 s2, 192
    s_cbranch_scc1 kb_l2
    buffer_load_dwordx4 v[16:19], v7, s[12:15], s43 offen
    buffer_load_dwordx4 v[20:23], v3, s[12:15], s46 offen
    buffer_load_dwordx4 v[24:27], v3, s[12:15], s46 offen offset:1024
    kb_l2:""")
    for j in range(2):
        k(f"buffer_load_dwordx4 v[{XR+4*j}:{XR+4*j+3}], v3, s[8:11], s19 offen offset:{j*1024}")
    k(f"""v_lshrrev_b32 v{c+1}, 7, v0
    v_lshl_add_u32 v{c+1}, v{c+1}, 10, v3
    v_bfe_u32 v{c+2}, v0, 6, 1
    v_lshl_add_u32 v{c+1}, v{c+2}, 3, v{c+1}
    v_cvt_pk_f16_f32 v{c+4}, v{c+12}, v{c+14}
    v_cvt_pk_f16_f32 v{c+5}, v{c+13}, v{c+15}
    v_cvt_pk_f16_f32 v{c+6}, -v{c+14}, v{c+12}
    v_cvt_pk_f16_f32 v{c+7}, -v{c+15}, v{c+13}
    ds_write_b64 v{c+1}, v[{c+4}:{c+5}] offset:{L_C}
    ds_write_b64 v{c+1}, v[{c+6}:{c+7}] offset:{L_C+4096}
    ds_write_b64 v{c+1}, v[{c+8}:{c+9}] offset:{L_C+8192}
    ds_write_b64 v{c+1}, v[{c+10}:{c+11}] offset:{L_C+12288}""")
    srd(k, 24, 20, 2048 * 1024 * 2)
    srd(k, 36, 50, 1024 * 3584 * 2)
    srd(k, 52, 48, 1024 * 3584 * 2)
    srd(k, 60, 56, 1024 * 3584 * 2)
    k.c("MoE mapping: s64 = lg, s65 = kq, s66 = w&3 ; DMA source: row 8*(l>>5) + ((l>>3)&3), piece (l&7) ^ (2*((l>>4)&3))")
    k(f"""s_mul_i32 s64, s40, 28
    s_add_u32 s64, s64, s41
    s_and_b32 s65, s64, 3
    s_lshr_b32 s64, s64, 2
    s_and_b32 s66, s16, 3
    v_bfe_u32 v{DMA}, v0, 5, 1
    v_lshlrev_b32 v{DMA}, 3, v{DMA}
    v_bfe_u32 v248, v0, 3, 2
    v_add_u32 v{DMA}, v{DMA}, v248
    v_mul_u32_u24 v{DMA}, 7168, v{DMA}
    v_bfe_u32 v248, v0, 4, 2
    v_lshlrev_b32 v248, 1, v248
    v_xor_b32 v248, v248, v0
    v_and_b32 v248, 7, v248
    v_lshl_add_u32 v{DMA}, v248, 4, v{DMA}
    s_lshl_b32 s67, s65, 2
    s_add_u32 s67, s67, s66
    s_mul_i32 s67, s67, {64*7168}
    s_lshl_b32 s68, s64, 7
    s_add_u32 s67, s67, s68
    s_lshl_b32 s68, s66, 14
    s_add_u32 s68, s68, {L_W}
    s_waitcnt lgkmcnt(0)
    s_barrier""")
    def slab():
        for ks in range(2):
            for d in range(4):
                rows = 32 * ks + 16 * (d & 1) + 4 * (d >> 1)
                k(f"s_add_u32 s34, s67, {rows*7168}")
                k(f"s_add_u32 s35, s68, {ks*4096 + d*1024}")
                k(f"s_mov_b32 m0, s35")
                k(f"s_add_u32 s35, s35, 8192")
                k(f"buffer_load_dwordx4 v{DMA}, s[52:55], s34 offen lds")
                k(f"s_mov_b32 m0, s35")
                k(f"buffer_load_dwordx4 v{DMA}, s[36:39], s34 offen lds")
    k("s_cmp_ge_u32 s16, 4\ns_cbranch_scc1 kb_b1")
    k.c("================= phase B (A waves): 256-pt DFT over r =================")
    B2R, B2I, T2C, T2S, TMP = 32, 36, 40, 44, 120
    k(f"""v_cvt_f32_u32 v248, v5
    v_mul_f32 v248, {f32(1.0/256)}, v248
    v_cvt_f32_u32 v249, v6
    v_mul_f32 v249, 4.0, v249
    v_mul_f32 v249, v248, v249""")
    for j in range(4):
        if j == 0: k(f"v_mov_b32 v{TMP}, v249")
        else: k(f"v_fmamk_f32 v{TMP+j}, v248, {f32(float(j))}, v249")
    for j in range(4):
        k(f"v_cos_f32 v{T2C+j}, v{TMP+j}")
        k(f"v_sin_f32 v{T2S+j}, v{TMP+j}")
    for j in range(4):
        k(f"v_mul_f32 v{TMP+j}, {f32(16.0)}, v{TMP+j}")
        k(f"v_fract_f32 v{TMP+j}, v{TMP+j}")
    for j in range(4):
        k(f"v_cos_f32 v{TMP+4+j}, v{TMP+j}")
        k(f"v_sin_f32 v{TMP+8+j}, v{TMP+j}")
    for j in range(4):
        k(f"v_cvt_pk_f16_f32 v{B2R+j}, v{TMP+4+j}, v{TMP+8+j}")
        k(f"v_cvt_pk_f16_f32 v{B2I+j}, -v{TMP+8+j}, v{TMP+4+j}")
    k(f"""v_bfe_u32 v5, v0, 1, 2
    v_xor_b32 v5, v5, v1
    v_lshlrev_b32 v5, 4, v5
    v_lshl_add_u32 v5, v2, 6, v5
    v_lshlrev_b32 v6, 4, v0
    v_bfe_u32 v7, v0, 2, 4
    v_lshlrev_b32 v7, 18, v7
    v_lshl_add_u32 v7, v1, 16, v7
    v_bfe_u32 v4, v0, 3, 2
    v_xor_b32 v4, v4, v0
    v_and_b32 v4, 3, v4
    v_lshl_add_u32 v7, v4, 4, v7
    s_lshl_b32 s70, s40, 11
    s_lshl_b32 s71, s41, 6
    s_add_u32 s70, s70, s71
    s_add_u32 s70, s70, {WS_ZF}
    s_add_u32 s71, s70, 16384
    s_add_u32 s72, s70, 32768
    s_add_u32 s73, s70, 49152
    s_waitcnt vmcnt(2)""")
    stamp(k, 2)
    for j in range(4):
        for cc in range(j + 1, 4):
            k(f"v_swap_b32 v{L+4*j+cc}, v{L+4*cc+j}")
    D1 = 136
    for cc in range(4):
        k(f"v_mfma_f32_16x16x32_f16 v[{D1+8*cc}:{D1+8*cc+3}], v[{L+4*cc}:{L+4*cc+3}], v[{B2R}:{B2R+3}], 0")
        k(f"v_mfma_f32_16x16x32_f16 v[{D1+8*cc+4}:{D1+8*cc+7}], v[{L+4*cc}:{L+4*cc+3}], v[{B2I}:{B2I+3}], 0")
    V = 168; VT = 184; D2 = 200; O = L
    for cc in range(4):
        re, im = D1 + 8*cc, D1 + 8*cc + 4
        t = VT + 8 * (cc & 1)
        for h in range(2):
            pmul(k, t + 2*h, re + 2*h, T2C + 2*h)
            pmul(k, t + 4 + 2*h, im + 2*h, T2C + 2*h)
        for h in range(2):
            pfma(k, t + 2*h, im + 2*h, T2S + 2*h, t + 2*h)
            pfma(k, t + 4 + 2*h, re + 2*h, T2S + 2*h, t + 4 + 2*h, nega=True)
        for i in range(4):
            k(f"v_cvt_pk_f16_f32 v{V+4*cc+i}, v{t+i}, v{t+4+i}")
        k(f"v_mfma_f32_16x16x32_f16 v[{D2+8*cc}:{D2+8*cc+3}], v[{V+4*cc}:{V+4*cc+3}], v[{B2R}:{B2R+3}], 0")
        k(f"v_mfma_f32_16x16x32_f16 v[{D2+8*cc+4}:{D2+8*cc+7}], v[{V+4*cc}:{V+4*cc+3}], v[{B2I}:{B2I+3}], 0")
    for cc in range(4):
        for i in range(4):
            k(f"v_cvt_pk_f16_f32 v{O+4*i+cc}, v{D2+8*cc+i}, v{D2+8*cc+4+i}")
    for i in range(4):
        k(f"ds_write_b128 v5, v[{O+4*i}:{O+4*i+3}] offset:{L_P+i*4096}")
    k("s_waitcnt lgkmcnt(0)\ns_barrier")
    O2 = 168
    for i in range(4):
        k(f"ds_read_b128 v[{O2+4*i}:{O2+4*i+3}], v6 offset:{L_P+i*4096}")
    for i in range(4):
        k(f"s_waitcnt lgkmcnt({3-i})")
        k(f"buffer_store_dwordx4 v[{O2+4*i}:{O2+4*i+3}], v7, s[12:15], s{70+i} offen sc1")
    stamp(k, 3)
    k("s_branch kb_j1")
    k.c("================= B waves: weight stream (5..7) / mod finalize (4) =================")
    k(f"""kb_b1:
    s_cmp_eq_u32 s16, 4
    s_cbranch_scc1 kb_fin
    s_cmp_ge_u32 s2, 224
    s_cbranch_scc1 kb_b2""")
    slab()
    k(f"""s_branch kb_b2
    kb_fin:
    s_cmp_ge_u32 s2, 192
    s_cbranch_scc1 kb_b2
    s_lshr_b32 s70, s2, 5
    s_and_b32 s71, s2, 31
    s_lshl_b32 s71, s71, 5
    v_and_b32 v4, 7, v0
    v_lshlrev_b32 v4, 2, v4
    v_bfe_u32 v5, v0, 4, 2
    v_add3_u32 v4, v4, v5, s71""")
    k.c("s70 = vec, v4 = column")
    pos16(k, 5, 4, 7)
    pos32(k, 6, 4, 7)
    k(f"""s_cmp_eq_u32 s70, 1
    s_cselect_b32 s72, 1.0, 0
    s_cmp_eq_u32 s70, 4
    s_cselect_b32 s72, 1.0, s72
    s_waitcnt vmcnt(2)
    v_max3_u32 v20, v20, v21, v22
    v_max3_u32 v23, v23, v24, v25
    v_max3_u32 v20, v20, v26, v27
    v_max_u32 v20, v20, v23
    v_permlane32_swap_b32 v16, v18
    v_permlane32_swap_b32 v17, v19""")
    padd(k, 16, 16, 18)
    k("v_permlane16_swap_b32 v16, v17")
    k("v_add_f32 v16, v16, v17")
    k(f"v_add_f32_dpp v16, v16, v16 row_ror:8 {DPPM}")
    wave_reduce_to63(k, [20], "v_max_u32")
    round_bf16(k, 16, 16)
    k(f"""v_mul_f32 v20, {f32(8.25)}, v20
    v_add_f32 v16, s72, v16
    v_add_f32 v20, 1.0, v20
    v_frexp_exp_i32_f32 v20, v20
    v_readlane_b32 s73, v20, 63""")
    round_bf16(k, 16, 16)
    k.c("K = e+1 ; exponent: sa 7-K, ca -K, ga K+4, others 0")
    k(f"""s_sub_u32 s74, 6, s73
    s_sub_u32 s75, -1, s73
    s_add_u32 s76, s73, 5
    s_cmp_eq_u32 s70, 0
    s_cselect_b32 s74, s74, 0
    s_cmp_eq_u32 s70, 1
    s_cselect_b32 s74, s75, s74
    s_cmp_eq_u32 s70, 2
    s_cselect_b32 s74, s76, s74
    v_ldexp_f32 v16, v16, s74
    s_mov_b32 exec_lo, 0x00ff00ff
    s_mov_b32 exec_hi, 0x00ff00ff
    s_cmp_ge_u32 s70, 2
    s_cbranch_scc1 kb_fin32
    v_cvt_f16_f32 v16, v16
    s_xor_b32 s75, s70, 1
    s_lshl_b32 s75, s75, 11
    s_add_u32 s75, s75, {WS_CS}
    buffer_store_short v16, v5, s[12:15], s75 offen sc1
    s_branch kb_find
    kb_fin32:
    s_lshl_b32 s75, s70, 12
    s_add_u32 s75, s75, {WS_PAR - 2*4096}
    buffer_store_dword v16, v6, s[12:15], s75 offen sc1
    kb_find:
    s_mov_b64 exec, -1
    kb_b2:""")
    stamp(k, 3)
    k("s_barrier")
    k("kb_j1:")
    k.c("addresses for phase C")
    k(f"""s_mul_i32 s45, s45, 4608
    s_add_u32 s45, s45, {L_Y}
    s_sub_u32 s18, 2048, s17
    s_and_b32 s18, s18, 2047
    s_lshl_b32 s18, s18, 11
    s_add_u32 s28, s19, {WS_ZF}
    s_add_u32 s29, s18, {WS_ZF}
    s_mov_b32 s30, {WS_CS}
    s_lshl_b32 s77, s40, 11
    s_add_u32 s78, s77, {WS_KEY}
    s_add_u32 s77, s77, {WS_FLAG}
    s_lshl_b32 s79, s2, 3
    s_add_u32 s80, s79, {WS_KEY}
    s_add_u32 s79, s79, {WS_FLAG}
    v_lshlrev_b32 v{FA}, 11, v2
    v_and_b32 v248, 0x38, v0
    v_lshlrev_b32 v{ZAD}, 4, v248
    v_and_b32 v248, 1, v0
    v_lshl_add_u32 v{ZAD}, v248, 6, v{ZAD}
    v_bfe_u32 v248, v0, 1, 2
    v_lshl_add_u32 v{ZAD}, v248, 4, v{ZAD}
    v_and_b32 v248, 31, v0
    v_mul_u32_u24 v248, 144, v248
    v_bfe_u32 v249, v0, 5, 1
    v_lshl_add_u32 v248, v249, 4, v248
    v_add_u32 v{YW}, s45, v248
    v_sub_u32 v248, 63, v2
    s_cmp_eq_u32 s44, 1
    s_cselect_b64 vcc, -1, 0
    v_cndmask_b32 v248, v248, v2, vcc
    v_lshrrev_b32 v249, 2, v248
    v_mul_u32_u24 v249, 144, v249
    v_and_b32 v248, 3, v248
    v_lshl_add_u32 v248, v248, 5, v249
    v_add_u32 v{YRA}, s45, v248
    v_sub_u32 v248, 128, v2
    v_and_b32 v248, 127, v248
    v_lshrrev_b32 v249, 2, v248
    v_mul_u32_u24 v249, 144, v249
    v_and_b32 v248, 3, v248
    v_lshl_add_u32 v248, v248, 5, v249
    v_add_u32 v{YRB}, s45, v248
    v_sub_u32 v248, 64, v2
    v_lshrrev_b32 v249, 2, v248
    v_mul_u32_u24 v249, 144, v249
    v_and_b32 v248, 3, v248
    v_lshl_add_u32 v248, v248, 5, v249
    v_add_u32 v{YRC}, s45, v248
    v_mov_b32 v4, 1
    v_mov_b32 v5, 1
    s_cmp_eq_u32 s44, 0
    s_cbranch_scc1 kb_nc""")
    for a, base in enumerate((BRE, BIM, TC, TS)):
        for q in range(4):
            k(f"ds_read_b128 v[{base+4*q}:{base+4*q+3}], v3 offset:{L_C+a*4096+q*1024}")
    k(f"""kb_nc:
    s_cmp_gt_u32 s16, 4
    s_cbranch_scc1 kb_nw
    s_waitcnt vmcnt(0)
    kb_nw:""")
    stamp(k, 4)
    k(f"""s_barrier
    s_cmp_lg_u32 s16, 0
    s_cbranch_scc1 kb_np
    s_mov_b64 exec, 0xff
    buffer_store_dwordx2 v[4:5], v{FA}, s[12:15], s79 offen sc1
    s_mov_b64 exec, -1
    s_sleep {SL1}""")
    poll_records(k, "kb_pf", 16, 77, 6)
    k("kb_np:")
    k("s_barrier")
    stamp(k, 5)
    k.c("================= phase C: hidden-dim DFT + LN2 =================")
    k("""s_cmp_eq_u32 s44, 0
    s_cbranch_scc1 kb_noz""")
    for j in range(2):
        k(f"buffer_load_dwordx4 v[{ZA+4*j}:{ZA+4*j+3}], v{ZAD}, s[12:15], s28 offen offset:{j*1024} {LDF}")
        k(f"buffer_load_dwordx4 v[{ZB+4*j}:{ZB+4*j+3}], v{ZAD}, s[12:15], s29 offen offset:{j*1024} {LDF}")
    for j in range(2):
        k(f"buffer_load_dwordx4 v[{CS+4*j}:{CS+4*j+3}], v3, s[12:15], s30 offen offset:{j*1024} {LDF}")
    k("s_cmp_lg_u32 s17, 0\ns_cbranch_scc1 kb_noz")
    for j in range(2):
        k(f"buffer_load_dwordx4 v[{SAR+4*j}:{SAR+4*j+3}], v3, s[12:15], s30 offen offset:{2048+j*1024} {LDF}")
    k(f"""kb_noz:
    s_barrier
    s_cmp_lt_u32 s16, 4
    s_cbranch_scc1 kb_nodma
    s_lshl_b32 s31, s66, 10
    s_add_u32 s32, s31, {WS_PAR}
    s_add_u32 s31, s31, {L_P}""")
    for vec in range(5):
        k("s_mov_b32 m0, s31")
        k("s_add_u32 s31, s31, 4096")
        k(f"buffer_load_dwordx4 v3, s[12:15], s32 offen {LDF} lds")
        if vec < 4: k("s_add_u32 s32, s32, 4096")
    WD = BRE
    k(f"""kb_nodma:
    s_barrier
    s_cmp_lt_u32 s16, 4
    s_cbranch_scc1 kb_w0
    s_cmp_ge_u32 s2, 224
    s_cbranch_scc1 kb_w0
    v_lshlrev_b32 v4, 3, v2
    s_lshl_b32 s18, s64, 2
    s_add_u32 s18, s18, s66
    s_lshl_b32 s18, s18, 15
    s_lshl_b32 s31, s65, 9
    s_add_u32 s18, s18, s31
    s_cmp_lg_u32 s16, 4
    s_cbranch_scc1 kb_s2""")
    slab()
    k("s_waitcnt vmcnt(16)\nkb_s2:")
    k.c("w_down rows (lg*64 + w*16 + f), cols kq*256 + 4*lane")
    for f in range(16):
        off = (f & 1) * 2048
        k(f"buffer_load_dwordx2 v[{WD+2*f}:{WD+2*f+1}], v4, s[60:63], s18 offen offset:{off}")
        if f & 1 and f < 15: k("s_add_u32 s18, s18, 4096")
    k("""s_cmp_eq_u32 s16, 4
    s_cbranch_scc1 kb_nofft
    s_waitcnt vmcnt(16)
    s_branch kb_nofft
    kb_w0:
    s_waitcnt vmcnt(0)
    s_cmp_eq_u32 s44, 0
    s_cbranch_scc1 kb_nofft""")
    stamp(k, 6)
    preads = []
    for vec, base in enumerate((GA, SBv, C1, GBv, WR)):
        for q in range(4):
            preads.append(f"ds_read_b128 v[{base+4*q}:{base+4*q+3}], v3 offset:{L_P+vec*4096+q*1024}")
    for i in range(8):
        k(f"v_pk_add_f16 v{W+i}, v{ZA+i}, v{ZB+i} neg_hi:[0,1]")
    for i in range(8):
        k(f"v_pk_add_f16 v{W+8+i}, v{ZA+i}, v{ZB+i} op_sel:[1,1] op_sel_hi:[0,0] neg_hi:[1,0]")
    k(f"""s_waitcnt lgkmcnt(0)
    s_cmp_eq_u32 s17, 0
    s_cbranch_scc1 kb_sa""")
    def modul(j):
        for i in range(4*j, 4*j + 4):
            b = i & 1
            k(f"v_pk_mul_f16 v{W+i}, v{W+i}, v{CS+(i>>1)} op_sel:[0,{b}] op_sel_hi:[1,{b}]")
    def st1(j, part):
        D, B = (D1R, BRE) if part == 0 else (D1I, BIM)
        cc = "0" if j == 0 else f"v[{D}:{D+15}]"
        k(f"v_mfma_f32_32x32x16_f16 v[{D}:{D+15}], v[{W+4*j}:{W+4*j+3}], v[{B+4*j}:{B+4*j+3}], {cc}")
    modul(0); modul(1)
    st1(0, 0); modul(2); st1(0, 1); modul(3)
    k("kb_st1:")
    pr = list(preads)
    for j in range(1, 4):
        for part in range(2): st1(j, part)
    VR = ZA; VI = BIM; Y = CS
    for j in range(4):
        for i in range(2*j, 2*j + 2):
            pmul(k, VR + 2*i, D1R + 2*i, TC + 2*i)
            pmul(k, VI + 2*i, D1I + 2*i, TC + 2*i)
        for i in range(2*j, 2*j + 2):
            pfma(k, VR + 2*i, D1I + 2*i, TS + 2*i, VR + 2*i)
            pfma(k, VI + 2*i, D1R + 2*i, TS + 2*i, VI + 2*i, nega=True)
        for i in range(4*j, 4*j + 4):
            k(f"v_cvt_pk_f16_f32 v{W+i}, v{VR+i}, v{VI+i}")
        if j > 0:
            jj = j - 1
            cr = "0" if jj == 0 else f"v[{Y}:{Y+15}]"
            k(f"v_mfma_f32_32x32x16_f16 v[{Y}:{Y+15}], v[{W+4*jj}:{W+4*jj+3}], v[{BRE+4*jj}:{BRE+4*jj+3}], {cr}")
        if j == B2AT: k("s_barrier")
        if j >= B2AT and j < 3:
            for _ in range(20 // (4 - B2AT)): k(pr.pop(0))
    k(f"v_mfma_f32_32x32x16_f16 v[{Y}:{Y+15}], v[{W+12}:{W+15}], v[{BRE+12}:{BRE+15}], v[{Y}:{Y+15}]")
    for x in pr: k(x)
    XF = D1I; YN = D1R; YE = ZA; X2 = XF
    for q in range(4):
        k(f"ds_write_b128 v{YW}, v[{Y+4*q}:{Y+4*q+3}] offset:{q*32}")
    stamp(k, 7)
    k("s_waitcnt lgkmcnt(0)\ns_barrier")
    for q in range(4):
        k(f"ds_read_b128 v[{YN+4*q}:{YN+4*q+3}], v{YRA} offset:{(q>>1)*2304 + (q&1)*16}")
    for i in range(8): unpack_bf16(k, XF + 2*i, XR + i)
    k("s_waitcnt lgkmcnt(0)")
    for i in range(8): pfma(k, X2 + 2*i, GA + 2*i, YN + 2*i, XF + 2*i)
    k("s_branch kb_join")
    k.c("row 0: add the sa term (rare path)")
    k("kb_sa:")
    for j in range(4): modul(j)
    for i in range(8):
        k(f"v_and_b32 v{ZA+i}, 0xffff, v{SAR+i}")
        k(f"v_lshrrev_b32 v{ZB+i}, 16, v{SAR+i}")
    for i in range(8):
        k(f"v_pk_add_f16 v{W+2*i}, v{W+2*i}, v{ZA+i}")
        k(f"v_pk_add_f16 v{W+2*i+1}, v{W+2*i+1}, v{ZB+i}")
    st1(0, 0); st1(0, 1)
    k("s_branch kb_st1")
    k.c("mirror waves")
    k("kb_nofft:")
    stamp(k, 6)
    for i in range(8): unpack_bf16(k, XF + 2*i, XR + i)
    k("s_barrier")
    for x in preads: k(x)
    stamp(k, 7)
    k("s_barrier")
    for q in range(4):
        k(f"ds_read_b128 v[{YN+4*q}:{YN+4*q+3}], v{YRA} offset:{(q>>1)*2304 + (q&1)*16}")
    k(f"""ds_read_b32 v{YE}, v{YRB}
    ds_read_b32 v{YE+1}, v{YRC}
    s_waitcnt lgkmcnt(0)""")
    for hf in range(2):
        for j in range(8):
            src = YE + hf if j == 0 else YN + 8 * (1 - hf) + 8 - j
            k(f"v_fmac_f32 v{X2+8*hf+j}, v{GA+8*hf+j}, v{src}")
    k("kb_join:")
    T = W
    for i in range(4): padd(k, T + 2*i, X2 + 4*i, X2 + 4*i + 2)
    padd(k, T, T, T + 2); padd(k, T + 4, T + 4, T + 6); padd(k, T, T, T + 4)
    k(f"v_add_f32 v5, v{T}, v{T+1}")
    k(f"v_mul_f32 v5, {f32(1.0/1024)}, v5")
    wave_reduce_to63(k, [5])
    k("v_readlane_b32 s40, v5, 63")
    Dd = GA
    for i in range(8): psub_s(k, Dd + 2*i, X2 + 2*i, 40)
    for i in range(8): pmul(k, C1 + 2*i, Dd + 2*i, C1 + 2*i)
    A0, A1, A2, A3 = T, T + 2, T + 4, T + 6
    pmul(k, A0, Dd, Dd); pmul(k, A1, Dd + 2, Dd + 2); pmul(k, A2, C1, WR); pmul(k, A3, C1 + 2, WR + 2)
    for i in range(1, 4):
        pfma(k, A0, Dd + 4*i, Dd + 4*i, A0); pfma(k, A1, Dd + 4*i + 2, Dd + 4*i + 2, A1)
        pfma(k, A2, C1 + 4*i, WR + 4*i, A2); pfma(k, A3, C1 + 4*i + 2, WR + 4*i + 2, A3)
    padd(k, A0, A0, A1); padd(k, A2, A2, A3)
    k(f"v_add_f32 v5, v{A0}, v{A0+1}")
    k(f"v_add_f32 v6, v{A2}, v{A2+1}")
    wave_reduce_to63(k, [5, 6])
    k(f"v_mul_f32 v5, {f32(1.0/1024)}, v5")
    round_bf16(k, 5, 5)
    k(f"v_add_f32 v5, {f32(1e-5)}, v5")
    round_bf16(k, 5, 5)
    k("v_sqrt_f32 v5, v5")
    round_bf16(k, 5, 5)
    k("v_rcp_f32 v5, v5")
    k("v_mul_f32 v6, v6, v5")
    k("v_readlane_b32 s40, v5, 63")
    k("v_readlane_b32 s41, v6, 63")
    k(f"""s_ashr_i32 s42, s41, 31
    s_or_b32 s42, s42, 0x80000000
    s_xor_b32 s41, s41, s42
    s_min_u32 s41, s41, 0xfffff000
    s_and_b32 s41, s41, 0xfffff800
    s_or_b32 s41, s41, s17
    v_mov_b32 v5, s41
    v_lshlrev_b32 v6, 2, v1
    ds_write_b32 v6, v5 offset:{L_KEY}""")
    stamp(k, 8)
    H2 = C1; HP = CS
    for i in range(8): pfma_s(k, H2 + 2*i, C1 + 2*i, 40, SBv + 2*i)
    for i in range(8): k(f"v_cvt_pk_bf16_f32 v{HP+i}, v{H2+2*i}, v{H2+2*i+1}")
    k(f"""v_and_b32 v6, 7, v0
    v_lshlrev_b32 v6, 2, v6
    s_add_u32 s43, s19, {WS_H2}
    s_waitcnt lgkmcnt(0)
    s_barrier
    ds_read_b32 v7, v6 offset:{L_KEY}""")
    for i in range(8): pfma(k, X2 + 2*i, GBv + 2*i, H2 + 2*i, X2 + 2*i)
    k(f"""s_waitcnt lgkmcnt(0)
    v_cmp_lt_u32 vcc, s41, v7
    s_and_b32 s42, vcc_lo, 0xff
    s_bcnt1_i32_b32 s42, s42
    s_cmp_ge_u32 s42, 2
    s_cbranch_scc1 kb_nocand""")
    for j in range(2):
        k(f"buffer_store_dwordx4 v[{HP+4*j}:{HP+4*j+3}], v3, s[12:15], s43 offen offset:{j*1024} sc1")
    k(f"""s_lshl_b32 s42, s42, 2
    v_mov_b32 v6, s42
    ds_write_b32 v6, v5 offset:{L_KEY+32}
    kb_nocand:""")
    for i in range(8): k(f"v_cvt_pk_bf16_f32 v{XR+i}, v{X2+2*i}, v{X2+2*i+1}")
    for j in range(2):
        k(f"buffer_store_dwordx4 v[{XR+4*j}:{XR+4*j+3}], v3, s[24:27], s19 offen offset:{j*1024} sc1")
    stamp(k, 9)
    k.c("================= phase D: routed FFN =================")
    KB, TA, HA, BF, AC, PB = 16, 28, 32, 56, 120, 152
    k(f"""v_lshrrev_b32 v6, 2, v2
    v_lshlrev_b32 v6, 7, v6
    v_and_b32 v7, 3, v0
    v_lshl_add_u32 v6, v7, 3, v6
    v_add_u32 v6, s68, v6
    v_bfe_u32 v7, v0, 3, 2
    v_lshl_add_u32 v{TA}, v7, 5, v6""")
    for sub in range(1, 4):
        k(f"v_xor_b32 v{TA+sub}, {sub*32}, v{TA}")
    k(f"""v_bfe_u32 v7, v0, 4, 2
    v_lshlrev_b32 v156, 4, v7
    v_lshl_add_u32 v156, v1, 7, v156
    s_lshl_b32 s70, s65, 9
    s_add_u32 s70, s70, {WS_H2}
    v_and_b32 v6, 1, v0
    v_cmp_eq_u32 s[46:47], 1, v6
    v_cmp_eq_u32 s[72:73], 1, v7
    v_cmp_eq_u32 s[74:75], 2, v7
    v_cmp_eq_u32 s[48:49], 3, v7
    v_lshl_add_u32 v157, v1, 10, v3
    v_lshlrev_b32 v158, 10, v7
    v_and_b32 v6, 15, v0
    v_lshl_add_u32 v158, v6, 4, v158
    s_lshl_b32 s71, s64, 12
    s_lshl_b32 s76, s65, 8
    s_add_u32 s76, s76, s71
    s_add_u32 s76, s76, {WS_XA}
    s_add_u32 s77, s76, {WS_XB - WS_XA}
    s_lshl_b32 s81, s66, 10
    s_add_u32 s81, s81, s71
    s_add_u32 s81, s81, {WS_XA}
    s_add_u32 s82, s81, {WS_XB - WS_XA}
    v_mov_b32 v6, 0
    s_waitcnt vmcnt(0) lgkmcnt(0)""")
    stamp(k, 10)
    k(f"""s_barrier
    s_cmp_ge_u32 s16, 4
    s_cbranch_scc1 kb_dB
    s_cmp_lg_u32 s16, 0
    s_cbranch_scc1 kb_nk
    ds_read_b64 v[4:5], v6 offset:{L_KEY+32}
    s_waitcnt lgkmcnt(0)
    s_mov_b64 exec, 0xff
    buffer_store_dwordx2 v[4:5], v{FA}, s[12:15], s80 offen sc1
    s_mov_b64 exec, -1
    kb_nk:
    s_cmp_ge_u32 s2, 224
    s_cbranch_scc1 kb_red""")
    for mat in range(2):
        for ks in range(2):
            for sub in range(4):
                b = BF + ((mat*2 + ks)*4 + sub)*4
                off = mat*8192 + ks*4096
                k(f"ds_read_b64_tr_b16 v[{b}:{b+1}], v{TA+sub} offset:{off}")
                k(f"ds_read_b64_tr_b16 v[{b+2}:{b+3}], v{TA+sub} offset:{off+2048}")
    k(f"s_sleep {SL1}")
    poll_records(k, "kb_pk", KB, 78, 6)
    stamp(k, 11)
    top2(k, KB, 40, 41, 24)
    k(f"""s_and_b32 s40, s40, 0x7ff
    s_and_b32 s41, s41, 0x7ff
    s_lshl_b32 s40, s40, 11
    s_lshl_b32 s41, s41, 11
    v_add_u32 v7, s40, v156
    v_add_u32 v6, s41, v156
    v_cndmask_b32 v6, v7, v6, s[46:47]""")
    for ks in range(2):
        k(f"buffer_load_dwordx4 v[{HA+4*ks}:{HA+4*ks+3}], v6, s[12:15], s70 offen offset:{ks*64} sc1")
    k("s_waitcnt vmcnt(0) lgkmcnt(0)")
    stamp(k, 12)
    for ks in range(2):
        for mat in range(2):
            for sub in range(4):
                a = AC + (mat*4 + sub)*4
                b = BF + ((mat*2 + ks)*4 + sub)*4
                cc = "0" if ks == 0 else f"v[{a}:{a+3}]"
                k(f"v_mfma_f32_16x16x32_bf16 v[{a}:{a+3}], v[{HA+4*ks}:{HA+4*ks+3}], v[{b}:{b+3}], {cc}")
    for mat in range(2):
        for row in range(2):
            k(f"v_cndmask_b32 v{PB+2*mat+row}, v{AC+(mat*4)*4+row}, v{AC+(mat*4+1)*4+row}, s[72:73]")
    for sub, m in ((2, "s[74:75]"), (3, "s[48:49]")):
        for mat in range(2):
            for row in range(2):
                d = PB + 2*mat + row
                k(f"v_cndmask_b32 v{d}, v{d}, v{AC+(mat*4+sub)*4+row}, {m}")
    k(f"""ds_write_b128 v157, v[{PB}:{PB+3}] offset:{L_C}
    s_waitcnt lgkmcnt(0)
    s_barrier
    s_cmp_lg_u32 s16, 0
    s_cbranch_scc1 kb_fin_a""")
    for w in range(1, 4):
        k(f"ds_read_b128 v[{AC+4*w}:{AC+4*w+3}], v3 offset:{L_C+w*1024}")
    k("s_waitcnt lgkmcnt(0)")
    for h in range(2):
        padd(k, PB + 2*h, PB + 2*h, AC + 4 + 2*h); padd(k, AC + 8 + 2*h, AC + 8 + 2*h, AC + 12 + 2*h)
    for h in range(2): padd(k, PB + 2*h, PB + 2*h, AC + 8 + 2*h)
    for i in range(4): k(f"v_min_u32 v{PB+i}, -2, v{PB+i}")
    k(f"""buffer_store_dwordx4 v[{PB}:{PB+3}], v158, s[12:15], s76 offen
    buffer_store_dwordx4 v[{PB}:{PB+3}], v158, s[12:15], s77 offen sc1
    kb_fin_a:""")
    stamp(k, 13)
    stamp_out(k, 1)
    k("s_endpgm")
    k.c("----- B waves: activation + down projection -----")
    k(f"""kb_dB:
    s_cmp_ge_u32 s2, 224
    s_cbranch_scc1 kb_fin_a""")
    WF = 160
    for i in range(32): unpack_bf16(k, WF + 2*i, WD + i)
    k(f"""v_bfe_u32 v5, v0, 7, 1
    v_lshlrev_b32 v5, 18, v5
    v_bfe_u32 v7, v0, 3, 4
    v_lshl_add_u32 v5, v7, 12, v5
    v_and_b32 v7, 7, v0
    v_lshl_add_u32 v5, v7, 3, v5
    s_lshl_b32 s18, s65, 16
    s_lshl_b32 s19, s64, 6
    s_add_u32 s18, s18, s19
    s_add_u32 s18, s18, {WS_PART}
    v_and_b32 v6, 3, v1
    v_lshl_add_u32 v6, v6, 11, v3
    v_and_b32 v7, 255, v0
    v_lshlrev_b32 v7, 3, v7
    s_barrier
    s_sleep {int(os.environ.get("SL3", "2"))}
    s_mov_b32 s83, 0
    kb_px:""")
    R = 16
    for rep in range(XFAST + 1):
        so = 81 if rep < XFAST else 82
        k(f"buffer_load_dwordx4 v[{R}:{R+3}], v3, s[12:15], s{so} offen sc1")
        k("s_waitcnt vmcnt(0)")
        chk_sent(k, range(R, R + 4), 4)
        k("s_cbranch_vccz kb_pxx")
    k(f"""s_add_u32 s83, s83, 1
    s_cmp_lt_u32 s83, {SPIN}
    s_cbranch_scc1 kb_px
    kb_pxx:""")
    stamp(k, 13)
    k(f"v_permlane32_swap_b32 v{R}, v{R+2}")
    k(f"v_permlane32_swap_b32 v{R+1}, v{R+3}")
    padd(k, R, R, R + 2)
    k(f"v_permlane16_swap_b32 v{R}, v{R+1}")
    k(f"v_add_f32 v{R}, v{R}, v{R+1}")
    round_bf16(k, R, R)
    k(f"""v_mul_f32 v{R+1}, {f32(-math.log2(math.e))}, v{R}
    v_exp_f32 v{R+1}, v{R+1}
    v_mov_b32 v{R+2}, v{R}
    v_add_f32 v{R+1}, 1.0, v{R+1}
    v_rcp_f32 v{R+1}, v{R+1}
    v_mov_b32 v{R+3}, v{R}
    v_mul_f32 v{R+1}, v{R}, v{R+1}
    v_permlane32_swap_b32 v{R+2}, v{R+3}""")
    round_bf16(k, R + 1, R + 1)
    k(f"v_mul_f32 v{R+1}, v{R+1}, v{R+3}")
    round_bf16(k, R + 1, R + 1)
    SA = 24
    for f in range(16):
        k(f"v_readlane_b32 s{SA+2*f}, v{R+1}, {f}")
        k(f"v_readlane_b32 s{SA+2*f+1}, v{R+1}, {16+f}")
    Y = 24
    for f in range(16):
        for row in range(2):
            for h in range(2):
                if f == 0: pmul_s(k, Y + 4*row + 2*h, WF + 4*f + 2*h, SA + 2*f + row)
                else: pfma_s(k, Y + 4*row + 2*h, WF + 4*f + 2*h, SA + 2*f + row, Y + 4*row + 2*h)
    for row in range(2):
        k(f"ds_write_b128 v6, v[{Y+4*row}:{Y+4*row+3}] offset:{L_P+row*1024}")
    k("s_waitcnt lgkmcnt(0)\ns_barrier")
    for w in range(4):
        k(f"ds_read_b64 v[{32+2*w}:{33+2*w}], v7 offset:{L_P+w*2048}")
    k("s_waitcnt lgkmcnt(0)")
    padd(k, 32, 32, 34); padd(k, 36, 36, 38); padd(k, 32, 32, 36)
    k("""v_min_u32 v32, -2, v32
    v_min_u32 v33, -2, v33
    buffer_store_dwordx2 v[32:33], v5, s[12:15], s18 offen sc1""")
    stamp(k, 14)
    stamp_out(k, 1)
    k("s_endpgm")
    k.c("----- reducer waves: j = (wg-224)*4 + wave -> row j>>6, 16 columns -----")
    k("kb_red:")
    srd(k, 8, 58, 2048)
    k(f"""s_sub_u32 s17, s2, 224
    s_lshl_b32 s17, s17, 2
    s_add_u32 s17, s17, s16
    s_and_b32 s18, s17, 63
    v_and_b32 v5, 3, v0
    v_lshlrev_b32 v5, 3, v5
    v_and_b32 v6, 1, v0
    v_lshlrev_b32 v6, 10, v6
    v_bfe_u32 v7, v0, 1, 1
    v_lshl_add_u32 v6, v7, 4, v6
    s_lshr_b32 s19, s18, 5
    s_lshl_b32 s19, s19, 11
    s_and_b32 s31, s18, 31
    s_lshl_b32 s31, s31, 5
    s_add_u32 s19, s19, s31
    s_add_u32 s19, s19, {L_P + 3*4096}
    v_add_u32 v6, s19, v6
    ds_read_b128 v[80:83], v6""")
    for j in range(2):
        k(f"buffer_load_dwordx4 v[{40+4*j}:{43+4*j}], v3, s[8:11], 0 offen offset:{j*1024}")
    k(f"s_sleep {SL1}")
    poll_records(k, "kb_pr", KB, 78, 6)
    top2(k, KB, 40, 41, 24)
    k(f"""s_cmp_lt_u32 s17, 64
    s_cselect_b32 s40, s40, s41
    s_and_b32 s40, s40, 0x7ff
    s_lshl_b32 s41, s40, 11
    s_add_u32 s42, s41, {WS_H2}
    s_lshl_b32 s19, s18, 5
    s_add_u32 s41, s41, s19""")
    for j in range(2):
        k(f"buffer_load_dwordx4 v[{32+4*j}:{35+4*j}], v3, s[12:15], s42 offen offset:{j*1024} sc1")
    k("buffer_load_dwordx2 v[84:85], v5, s[24:27], s41 offen sc1")
    for i in range(8): unpack_bf16(k, 48 + 2*i, 40 + i)
    k(f"""s_lshl_b32 s44, s17, 12
    s_add_u32 s44, s44, {WS_PART}
    v_cmp_gt_u32 vcc, 32, v2
    v_mov_b32 v7, 0x7ff00000
    v_cndmask_b32 v7, v7, v3, vcc
    s_waitcnt vmcnt(1)""")
    for i in range(8): unpack_bf16(k, 64 + 2*i, 32 + i)
    pmul(k, 8, 48, 64)
    for i in range(1, 8): pfma(k, 8, 48 + 2*i, 64 + 2*i, 8)
    k("v_add_f32 v8, v8, v9")
    wave_reduce_to63(k, [8])
    round_bf16(k, 8, 8)
    k(f"""v_mul_f32 v8, {f32(-math.log2(math.e))}, v8
    v_exp_f32 v8, v8
    v_add_f32 v8, 1.0, v8
    v_rcp_f32 v8, v8""")
    round_bf16(k, 8, 8)
    k("v_readlane_b32 s46, v8, 63")
    k("s_waitcnt vmcnt(0) lgkmcnt(0)")
    unpack_bf16(k, 44, 84); unpack_bf16(k, 46, 85)
    for h in range(2): pmul_s(k, 80 + 2*h, 80 + 2*h, 46)
    stamp(k, 13)
    L = 16
    k(f"s_sleep {int(os.environ.get('SL4', '16'))}")
    k(f"s_mov_b32 s83, 0\nkb_p2:")
    for j in range(4):
        k(f"buffer_load_dwordx4 v[{L+4*j}:{L+4*j+3}], v{7 if j == 3 else 3}, s[12:15], s44 offen offset:{j*1024} sc1")
    k("s_waitcnt vmcnt(0)")
    chk_sent(k, range(L, L + 16), 12)
    k(f"""s_cbranch_vccz kb_p3
    s_add_u32 s83, s83, 1
    s_cmp_lt_u32 s83, {SPIN}
    s_cbranch_scc1 kb_p2
    kb_p3:""")
    stamp(k, 14)
    for h in range(2):
        padd(k, L + 2*h, L + 2*h, L + 4 + 2*h); padd(k, L + 8 + 2*h, L + 8 + 2*h, L + 12 + 2*h)
    for h in range(2): padd(k, L + 2*h, L + 2*h, L + 8 + 2*h)
    regs = [L, L + 1, L + 2, L + 3]
    for sh in (4, 8):
        for r in regs: k(f"v_add_f32_dpp v{r}, v{r}, v{r} row_ror:{sh} {DPPM}")
    for r in regs: k(f"v_mov_b32 v{r+4}, v{r}")
    for r in regs: k(f"v_permlane16_swap_b32 v{r}, v{r+4}")
    for r in regs: k(f"v_add_f32 v{r}, v{r}, v{r+4}")
    for r in regs: k(f"v_mov_b32 v{r+4}, v{r}")
    for r in regs: k(f"v_permlane32_swap_b32 v{r}, v{r+4}")
    for r in regs: k(f"v_add_f32 v{r}, v{r}, v{r+4}")
    for h in range(2): pfma(k, 44 + 2*h, L + 2*h, 80 + 2*h, 44 + 2*h)
    k(f"""v_cvt_pk_bf16_f32 v12, v44, v45
    v_cvt_pk_bf16_f32 v13, v46, v47
    s_mov_b64 exec, 15
    buffer_store_dwordx2 v[12:13], v5, s[24:27], s41 offen sc1""")
    stamp_out(k, 1)
    k("""kb_done:
    s_endpgm""")
    return k

HEADER = """; adaLN + FNet mixing + MoD block, gfx950.  Generated by gen/gen2.py (hand-written generator).
"""

def main(out):
    ks = [(gen_k1(), 512, 256, 4096), (gen_kb(), 256, 512, KB_LDS)]
    t = HEADER
    for k, g, b, lds in ks:
        t += f"; @launch kernel={k.name} grid=({g},1,1) block=({b},1,1) lds={lds}\n"
    t += '.amdgcn_target "amdgcn-amd-amdhsa--gfx950"\n.text\n'
    for k, *_ in ks: t += k.text()
    t += 'code_end:\n'
    t += '.section .rodata,"a"\n'
    for k, *_ in ks: t += k.desc()
    open(out, "w").write(t)

if __name__ == "__main__":
    main(sys.argv[1] if len(sys.argv) > 1 else "adaLN_cond__spectral_fnet__moe_arch_mod__prompt.s")
```

```python
import math, sys, os
from asmgen import K, f32
import gen2 as G
from gen2 import (srd, P, padd, psub, pmul, pfma, pmul_s, pfma_s, psub_s, unpack_bf16, round_bf16, DPPM,
                  row_allreduce, wave_reduce_to63, RA, pos16, pos32, stamp, stamp_init, stamp_out, chk_sent,
                  A_X, A_WR, A_WG, A_WU, A_WD, A_C, A_WM, A_OUT, A_DBG, A_WS, WS_SIZE)

NAME = "adaLN_cond__spectral_fnet__moe_arch_mod__prompt_kernel"
WS_Z1   = 0x0100000
WS_ZF   = 0x0600000
WS_H2   = 0x0B00000
WS_MODP = 0x1000000
WS_CS   = 0x1040000
WS_MAXP = 0x1041000
WS_PAR  = 0x1042000
WS_FL1  = 0x1050000
WS_FLM  = 0x1054000
WS_FL2  = 0x1058000
WS_PART = 0x1100000
WS_XA   = 0x1140000
WS_XB   = 0x1180000
WS_KEY  = 0x11B8000

L_C = 0; L_P = 16384; L_Y = 36864; L_KEY = L_Y + 9 * 4608; L_ST = L_KEY + 128
L_S = 81920
L_G = 114688
L_T = 16384
LDS = 131072 + 1024
E = lambda n, d: int(os.environ.get(n, str(d)))
SL1, SL2, SL3, SL4, SLX = E("SL1", 6), E("SL2", 4), E("SL3", 2), E("SL4", 16), E("SLX", 60)
XFAST = E("XFAST", 3); B2AT = E("B2AT", 2)
SPIN = "0x40000"

def get_nonce_issue(k, vz, vd):
    k(f"buffer_load_dwordx2 v[{vd}:{vd+1}], v{vz}, s[20:23], 0 offen sc1")
def get_nonce_finish(k, lab, vz, vd):
    k(f"""s_mov_b32 s83, 0
    {lab}:
    v_readfirstlane_b32 s32, v{vd}
    v_readfirstlane_b32 s33, v{vd+1}
    s_cmp_lg_u32 s32, 0
    s_cbranch_scc1 {lab}x
    s_add_u32 s83, s83, 1
    s_cmp_ge_u32 s83, {SPIN}
    s_cbranch_scc1 {lab}x
    buffer_load_dwordx2 v[{vd}:{vd+1}], v{vz}, s[20:23], 0 offen sc1
    s_waitcnt vmcnt(0)
    s_branch {lab}
    {lab}x:""")
def poll_flags(k, lab, base, soff, tmp, extra=0):
    k(f"s_mov_b32 s83, 0\n{lab}:")
    k(f"buffer_load_dwordx4 v[{base}:{base+3}], v3, s[12:15], s{soff} offen sc1")
    if extra == 1:
        k(f"v_and_b32 v{tmp}, 0x70, v3")
        k(f"buffer_load_dwordx4 v[{base+4}:{base+7}], v{tmp}, s[12:15], s{soff} offen offset:1024 sc1")
    if extra == 2:
        k(f"buffer_load_dwordx4 v[{base+4}:{base+7}], v3, s[12:15], s{soff} offen offset:1024 sc1")
    k("s_waitcnt vmcnt(0)")
    n = 8 if extra else 4
    for i in range(n): k(f"v_xor_b32 v{base+i}, s{32 + (i & 1)}, v{base+i}")
    k(f"v_or3_b32 v{tmp}, v{base}, v{base+1}, v{base+2}")
    if extra:
        k(f"v_or3_b32 v{tmp}, v{tmp}, v{base+3}, v{base+4}")
        k(f"v_or3_b32 v{tmp}, v{tmp}, v{base+5}, v{base+6}")
        k(f"v_or_b32 v{tmp}, v{tmp}, v{base+7}")
    else:
        k(f"v_or_b32 v{tmp}, v{tmp}, v{base+3}")
    k(f"""v_cmp_ne_u32 vcc, 0, v{tmp}
    s_cbranch_vccz {lab}x
    s_sleep {SL2}
    s_add_u32 s83, s83, 1
    s_cmp_lt_u32 s83, {SPIN}
    s_cbranch_scc1 {lab}
    {lab}x:""")
def poll_keys(k, lab, base, soff, tmp):
    k(f"s_mov_b32 s83, 0\n{lab}:")
    k(f"buffer_load_dwordx4 v[{base}:{base+3}], v3, s[12:15], s{soff} offen sc1")
    k("s_waitcnt vmcnt(0)")
    chk_sent(k, range(base, base + 4), tmp)
    k(f"""s_cbranch_vccz {lab}x
    s_sleep {SL2}
    s_add_u32 s83, s83, 1
    s_cmp_lt_u32 s83, {SPIN}
    s_cbranch_scc1 {lab}
    {lab}x:""")
def top2(k, KB, s1, s2, tmp):
    m1, m2, c = tmp, tmp + 1, tmp + 2
    k(f"v_max_u32 v{m1}, v{KB}, v{KB+2}")
    k(f"v_min_u32 v{m2}, v{KB}, v{KB+2}")
    k(f"v_max3_u32 v{m2}, v{m2}, v{KB+1}, v{KB+3}")
    k(f"v_mov_b32 v{c}, v{m1}")
    wave_reduce_to63(k, [c], "v_max_u32")
    k(f"v_readlane_b32 s{s1}, v{c}, 63")
    k(f"v_cmp_eq_u32 vcc, s{s1}, v{m1}")
    k(f"v_cndmask_b32 v{c}, v{m1}, v{m2}, vcc")
    wave_reduce_to63(k, [c], "v_max_u32")
    k(f"v_readlane_b32 s{s2}, v{c}, 63")

NON = 6
FA = 62
def phase_A(k):
    k(f"""s_load_dwordx2 s[4:5], s[0:1], {A_X}
    s_load_dwordx4 s[24:27], s[0:1], {A_OUT}
    s_load_dwordx2 s[6:7], s[0:1], {A_WS}
    s_load_dwordx4 s[72:75], s[0:1], {A_C}
    s_memrealtime s[32:33]""")
    k.c("s35 = mm ; s3 = u ; s17 = r ; s39 = 1 for G role ; s64 = cluster / X index ; s65 = kq ; s66 = 1 for X")
    k(f"""s_lshr_b32 s35, s2, 4
    s_lshl_b32 s3, s35, 3
    s_add_u32 s3, s3, s34
    s_sub_u32 s17, 256, s3
    s_cmp_eq_u32 s3, 0
    s_cselect_b32 s17, 128, s17
    s_bfe_u32 s39, s2, 0x10003
    s_cmp_eq_u32 s39, 0
    s_cselect_b32 s17, s3, s17
    s_and_b32 s81, s35, 3
    s_lshr_b32 s40, s35, 2
    s_lshl_b32 s80, s34, 2
    s_mul_i32 s41, s34, 3
    s_add_u32 s41, s41, 4
    s_cmp_lt_u32 s34, 4
    s_cselect_b32 s80, s80, s41
    s_cselect_b32 s82, 0, s39
    s_add_u32 s80, s80, s40
    s_cmp_eq_u32 s40, 3
    s_cselect_b32 s82, s82, 0
    s_lshl_b32 s41, s34, 2
    s_add_u32 s41, s41, s81
    s_sub_u32 s41, s41, 16
    s_cmp_eq_u32 s82, 1
    s_cselect_b32 s80, s41, s80
    s_cmp_ge_u32 s16, 4
    s_cbranch_scc1 a_gemv
    v_lshlrev_b32 v4, 2, v0
    v_and_b32 v5, 7, v0
    v_mul_u32_u24 v6, s17, v5
    v_cvt_f32_u32 v6, v6
    v_mul_f32 v6, {f32(1.0/2048)}, v6
    v_cos_f32 v7, v6
    v_sin_f32 v6, v6
    v_lshlrev_b32 v8, 2, v2
    v_add_u32 v8, {L_ST}, v8
    v_mov_b32 v9, -1
    ds_write_b32 v8, v9
    s_lshl_b32 s36, s17, 11
    s_waitcnt lgkmcnt(0)""")
    srd(k, 8, 4, 2048 * 1024 * 2)
    stamp(k, 1)
    ra = RA(24)
    XR = ra(8); XI = ra(8)
    for j in range(8):
        k(f"buffer_load_dword v{XR+j}, v4, s[8:11], s36 offen")
        k(f"buffer_load_dword v{XI+j}, v4, s[8:11], s36 offen offset:1024")
        if j < 7: k(f"s_add_u32 s36, s36, {256*2048}")
    k("s_barrier")
    srd(k, 12, 6, WS_SIZE)
    srd(k, 20, 26, 256)
    k("s_mov_b32 s26, 4194304\ns_mov_b32 s27, 0x00020000")
    TW = 40
    for kk in range(1, 8):
        k(f"v_readlane_b32 s{TW+2*kk}, v7, {kk}")
        k(f"v_readlane_b32 s{TW+2*kk+1}, v6, {kk}")
    KAP = 38
    k(f"s_mov_b32 s{KAP}, {f32(math.sqrt(0.5))}")
    fft_consts(k)
    VO = ra()
    k(f"""v_lshlrev_b32 v{VO}, 17, v1
    v_lshlrev_b32 v6, 2, v1
    v_bfe_u32 v7, v0, 4, 2
    v_lshl_add_u32 v6, v7, 5, v6
    v_add_u32 v6, {L_ST}, v6
    v_lshlrev_b32 v5, 4, v5
    v_add_u32 v5, {L_ST}, v5
    v_lshl_add_u32 v{VO}, v7, 20, v{VO}
    v_bfe_u32 v7, v0, 2, 2
    v_lshl_add_u32 v{VO}, v7, 15, v{VO}
    v_and_b32 v7, 3, v0
    v_lshl_add_u32 v{VO}, v7, 4, v{VO}
    s_lshl_b32 s36, s17, 7
    s_add_u32 s36, s36, {WS_Z1}
    s_add_u32 s37, s36, 524288""")
    RE = ra(16); IM = ra(16); SS = ra(8); T = ra(16)
    for j in range(8):
        k(f"s_waitcnt vmcnt({14-2*j})")
        unpack_bf16(k, RE + 2*j, XR + j)
        unpack_bf16(k, IM + 2*j, XI + j)
        padd(k, T + 2*j, RE + 2*j, IM + 2*j)
        k(f"v_add_f32 v{SS+j}, v{T+2*j}, v{T+2*j+1}")
    stamp(k, 2)
    def reduce8(ldsoff, dst4):
        for j in range(4): k(f"v_permlane32_swap_b32 v{SS+j}, v{SS+j+4}")
        for j in range(4): k(f"v_add_f32 v{SS+j}, v{SS+j}, v{SS+j+4}")
        for j in range(2): k(f"v_permlane16_swap_b32 v{SS+j}, v{SS+j+2}")
        for j in range(2): k(f"v_add_f32 v{SS+j}, v{SS+j}, v{SS+j+2}")
        row_allreduce(k, [SS, SS + 1])
        k(f"v_min_u32 v{SS}, -2, v{SS}")
        k(f"v_min_u32 v{SS+1}, -2, v{SS+1}")
        k(f"ds_write2_b32 v6, v{SS}, v{SS+1} offset0:{ldsoff//4} offset1:{ldsoff//4+4}")
        k(f"ln_sp{ldsoff}:")
        k(f"ds_read_b128 v[{dst4}:{dst4+3}], v5 offset:{ldsoff}")
        k("s_waitcnt lgkmcnt(0)")
        chk_sent(k, range(dst4, dst4 + 4), SS + 2)
        k(f"s_cbranch_vccnz ln_sp{ldsoff}")
        padd(k, dst4, dst4, dst4 + 2)
        k(f"v_add_f32 v{dst4}, v{dst4}, v{dst4+1}")
        k(f"v_mul_f32 v{dst4}, {f32(1.0/1024)}, v{dst4}")
    R4 = ra(4, 4); MB = ra(); DM = ra()
    reduce8(0, R4)
    round_bf16(k, MB, R4)
    k(f"v_sub_f32 v{DM}, v{R4}, v{MB}")
    SM = 56
    for j in range(8): k(f"v_readlane_b32 s{SM+j}, v{MB}, {j}")
    for j in range(8):
        psub_s(k, RE + 2*j, RE + 2*j, SM + j)
        psub_s(k, IM + 2*j, IM + 2*j, SM + j)
    for j in range(8): pmul(k, T + 2*j, RE + 2*j, RE + 2*j)
    for j in range(8): pfma(k, T + 2*j, IM + 2*j, IM + 2*j, T + 2*j)
    for j in range(8): k(f"v_add_f32 v{SS+j}, v{T+2*j}, v{T+2*j+1}")
    reduce8(128, R4)
    k(f"v_fma_f32 v{R4}, -v{DM}, v{DM}, v{R4}")
    k(f"v_max_f32 v{R4}, 0, v{R4}")
    round_bf16(k, R4, R4)
    k(f"v_add_f32 v{R4}, {f32(1e-5)}, v{R4}")
    round_bf16(k, R4, R4)
    k(f"v_sqrt_f32 v{R4}, v{R4}")
    round_bf16(k, R4, R4)
    k(f"v_rcp_f32 v{R4}, v{R4}")
    k(f"v_mul_f32 v{R4}, {f32(1.0/32)}, v{R4}")
    SR = 64
    for j in range(8): k(f"v_readlane_b32 s{SR+j}, v{R4}, {j}")
    for j in range(4):
        for ci, A in enumerate((RE, IM)):
            pmul_s(k, T + 2 * (2*j + ci), A + 2*j, SR + j)
    for j in range(4):
        for ci, A in enumerate((RE, IM)):
            t = T + 2 * (2*j + ci)
            pfma_s(k, A + 2*j, A + 2*(j+4), SR + j + 4, t)
            pfma_s(k, A + 2*(j+4), A + 2*(j+4), SR + j + 4, t, nega=True)
    b = [(RE + 2*j, IM + 2*j) for j in range(4)]
    c = [(RE + 2*(j+4), IM + 2*(j+4)) for j in range(4)]
    def cv(): return (ra(2), ra(2))
    X = [cv() for _ in range(8)]
    p, q, ss_, w = cv(), cv(), cv(), cv()
    for i in range(2):
        padd(k, p[i], b[0][i], b[2][i]); psub(k, q[i], b[0][i], b[2][i])
        padd(k, ss_[i], b[1][i], b[3][i]); psub(k, w[i], b[1][i], b[3][i])
    for i in range(2):
        padd(k, X[0][i], p[i], ss_[i]); psub(k, X[4][i], p[i], ss_[i])
    padd(k, X[2][0], q[0], w[1]); psub(k, X[2][1], q[1], w[0])
    psub(k, X[6][0], q[0], w[1]); padd(k, X[6][1], q[1], w[0])
    p, q, ss_, w, u1, u3 = cv(), cv(), cv(), cv(), cv(), cv()
    padd(k, p[0], c[0][0], c[2][1]); psub(k, p[1], c[0][1], c[2][0])
    psub(k, q[0], c[0][0], c[2][1]); padd(k, q[1], c[0][1], c[2][0])
    padd(k, u1[0], c[1][0], c[1][1]); psub(k, u1[1], c[1][1], c[1][0])
    psub(k, u3[0], c[3][1], c[3][0]); padd(k, u3[1], c[3][0], c[3][1])
    padd(k, ss_[0], u1[0], u3[0]); psub(k, ss_[1], u1[1], u3[1])
    psub(k, w[0], u1[0], u3[0]); padd(k, w[1], u1[1], u3[1])
    for i in range(2):
        pfma_s(k, X[1][i], ss_[i], KAP, p[i]); pfma_s(k, X[5][i], ss_[i], KAP, p[i], nega=True)
    pfma_s(k, X[3][0], w[1], KAP, q[0]); pfma_s(k, X[3][1], w[0], KAP, q[1], nega=True)
    pfma_s(k, X[7][0], w[1], KAP, q[0], nega=True); pfma_s(k, X[7][1], w[0], KAP, q[1])
    Y = [X[0]] + [(RE + 2*j, IM + 2*j) for j in range(1, 8)]
    for kk in range(1, 8):
        pmul_s(k, Y[kk][0], X[kk][0], TW + 2*kk)
        pmul_s(k, Y[kk][1], X[kk][1], TW + 2*kk)
    for kk in range(1, 8):
        pfma_s(k, Y[kk][0], X[kk][1], TW + 2*kk + 1, Y[kk][0])
        pfma_s(k, Y[kk][1], X[kk][0], TW + 2*kk + 1, Y[kk][1], nega=True)
    OB = ra(16, 4)
    assert ra.n <= 224
    for kk in range(8):
        for cc in range(2):
            k(f"v_cvt_pk_f16_f32 v{OB + ((kk&1)*2+cc)*4 + (kk>>1)}, v{Y[kk][0]+cc}, v{Y[kk][1]+cc}")
    for g in range(4):
        k(f"v_permlane32_swap_b32 v{OB+4*g}, v{OB+4*g+2}")
        k(f"v_permlane32_swap_b32 v{OB+4*g+1}, v{OB+4*g+3}")
    for g in range(4):
        k(f"v_permlane16_swap_b32 v{OB+4*g}, v{OB+4*g+1}")
        k(f"v_permlane16_swap_b32 v{OB+4*g+2}, v{OB+4*g+3}")
    for g in range(4):
        k(f"buffer_store_dwordx4 v[{OB+4*g}:{OB+4*g+3}], v{VO}, s[12:15], s{36+(g>>1)} offen offset:{(g&1)*64} sc1")
    k("v_mov_b32 v4, 0")
    get_nonce_issue(k, 4, NON)
    stamp(k, 3)
    k("s_barrier\ns_branch a_join")
    k.c("---- GEMV tile [128 k][192 n]: ks = s2>>5, nchunk = s2&31 ----")
    k(f"""a_gemv:
    s_getpc_b64 s[36:37]
    g_pc:
    s_sub_u32 s36, s36, g_pc-{NAME}
    s_subb_u32 s37, s37, 0
    v_and_b32 v108, 255, v0
    v_lshlrev_b32 v4, 7, v108
    v_min_u32 v4, code_end-{NAME}-4, v4
    s_cmp_ge_u32 s2, 32
    s_cbranch_scc1 a_npf
    global_load_dword v250, v4, s[36:37]
    a_npf:
    s_lshr_b32 s40, s2, 5
    s_and_b32 s41, s2, 31
    v_bfe_u32 v5, v0, 5, 1
    v_and_b32 v9, 3, v1
    v_lshl_add_u32 v6, v9, 5, v5
    v_mul_u32_u24 v4, 12288, v6
    v_and_b32 v7, 31, v0
    v_lshl_add_u32 v4, v7, 4, v4
    v_cmp_gt_u32 vcc, 24, v7
    v_mov_b32 v8, 0x7ff00000
    v_cndmask_b32 v4, v8, v4, vcc
    v_and_b32 v7, 15, v0
    v_lshl_add_u32 v7, v7, 1, v6
    v_lshlrev_b32 v7, 1, v7
    s_mul_i32 s18, s40, {128*12288}
    s_mul_i32 s19, s41, 384
    s_add_u32 s18, s18, s19
    s_lshl_b32 s19, s40, 8
    v_mov_b32 v104, -1
    v_mov_b32 v105, -1
    v_mov_b32 v106, -1
    v_mov_b32 v107, -1
    v_mov_b32 v14, 0
    s_waitcnt lgkmcnt(0)""")
    srd(k, 20, 26, 256)
    srd(k, 12, 6, WS_SIZE)
    srd(k, 8, 74, 1024 * 6144 * 2)
    srd(k, 44, 72, 2048)
    stamp(k, 1)
    k.c("nonce writer: workgroup 0, wave 4")
    k(f"""s_sub_u32 s42, s16, 4
    s_or_b32 s42, s42, s2
    s_cmp_lg_u32 s42, 0
    s_cbranch_scc1 g_non
    s_or_b32 s32, s32, 1
    v_mov_b32 v12, s32
    v_mov_b32 v13, s33
    s_mov_b64 exec, 1
    buffer_store_dwordx2 v[12:13], v14, s[20:23], 0 offen sc1
    s_mov_b64 exec, -1
    g_non:
    buffer_load_ushort v6, v7, s[44:47], s19 offen
    s_barrier""")
    W = 16
    for i in range(16):
        k(f"buffer_load_dwordx4 v[{W+4*i}:{W+4*i+3}], v4, s[8:11], s18 offen")
        if i < 15: k("s_add_u32 s18, s18, 24576")
    k.c("sentinel prefill: 3 KB per workgroup of the 768 KB region PART|XA|XB+KEY")
    k(f"""s_mov_b32 s26, 4194304
    s_mov_b32 s27, 0x00020000
    v_lshlrev_b32 v109, 4, v108
    v_lshlrev_b32 v108, 2, v108
    v_cmp_gt_u32 vcc, 3072, v109
    v_cndmask_b32 v109, v8, v109, vcc
    s_mul_i32 s42, s2, 3072
    s_add_u32 s42, s42, {WS_PART}
    buffer_store_dwordx4 v[104:107], v109, s[12:15], s42 offen sc1""")
    fft_consts(k)
    ACC = 80; U = 88; SB = 10
    for i in range(8): k(f"v_mov_b32 v{ACC+i}, 0")
    k(f"""s_waitcnt vmcnt(17)
    v_lshlrev_b32 v6, 16, v6
    v_mul_f32 v7, {f32(-math.log2(math.e))}, v6
    v_exp_f32 v7, v7
    v_add_f32 v7, 1.0, v7
    v_rcp_f32 v7, v7
    v_mul_f32 v6, v6, v7""")
    round_bf16(k, 6, 6)
    k(f"""v_and_b32 v7, 31, v0
    v_lshlrev_b32 v7, 5, v7
    v_lshl_add_u32 v7, v5, 4, v7
    v_lshl_add_u32 v7, v9, 10, v7
    v_add_u32 v7, {L_G}, v7
    s_mul_i32 s18, s40, 24576
    s_mul_i32 s19, s41, 768
    s_add_u32 s18, s18, s19
    s_add_u32 s18, s18, {WS_MODP}
    s_lshl_b32 s19, s40, 4
    s_add_u32 s19, s19, s41
    s_lshl_b32 s19, s19, 4
    s_add_u32 s19, s19, {WS_MAXP}
    s_cmp_lt_u32 s41, 11
    s_cselect_b32 s42, 0x7fffffff, 0
    v_cmp_gt_u32 vcc, 768, v108
    v_cndmask_b32 v8, v8, v108, vcc
    v_add_u32 v108, {L_G}, v108
    v_lshlrev_b32 v9, 2, v9""")
    stamp(k, 2)
    GB1 = E("GB1", 2); GB2 = E("GB2", 4)
    for i in range(16):
        sb = SB + 2 * (i & 1)
        k(f"v_mov_b32_dpp v{sb}, v6 row_newbcast:{i} {DPPM}")
        k(f"s_waitcnt vmcnt({16-i})")
        u = U + 8 * (i & 1)
        for j in range(4): unpack_bf16(k, u + 2*j, W + 4*i + j)
        for j in range(4):
            k(f"v_pk_fma_f32 {P(ACC+2*j)}, {P(u+2*j)}, {P(sb)}, {P(ACC+2*j)} op_sel_hi:[1,0,1]")
    for j in range(4): k(f"v_permlane32_swap_b32 v{ACC+j}, v{ACC+j+4}")
    for j in range(2): padd(k, ACC + 2*j, ACC + 2*j, ACC + 4 + 2*j)
    stamp(k, 3)
    k(f"""ds_write_b128 v7, v[{ACC}:{ACC+3}]
    s_waitcnt lgkmcnt(0)
    s_barrier
    ds_read2st64_b32 v[16:17], v108 offset0:0 offset1:4
    ds_read2st64_b32 v[18:19], v108 offset0:8 offset1:12
    s_waitcnt lgkmcnt(0)
    v_pk_add_f32 v[16:17], v[16:17], v[18:19]
    v_add_f32 v16, v16, v17
    buffer_store_dword v16, v8, s[12:15], s18 offen sc1
    s_cmp_ge_u32 s41, 16
    s_cbranch_scc1 a_join
    v_and_b32 v17, s42, v16""")
    wave_reduce_to63(k, [17], "v_max_u32")
    k(f"""s_mov_b32 exec_lo, 0
    s_mov_b32 exec_hi, 0x80000000
    buffer_store_dword v17, v9, s[12:15], s19 offen sc1
    s_mov_b64 exec, -1
    a_join:
    v_lshlrev_b32 v{FA}, 11, v2
    s_lshl_b32 s76, s34, 11
    s_add_u32 s77, s76, {WS_FL2}
    s_add_u32 s76, s76, {WS_FL1}
    s_lshl_b32 s78, s2, 3
    s_add_u32 s78, s78, {WS_FL1}
    s_mov_b32 s64, s80
    s_mov_b32 s65, s81
    s_mov_b32 s66, s82
    s_cmp_eq_u32 s39, 1
    s_cbranch_scc1 g_start""")

def fft_consts(k):
    k.c("shared FFT constants")
    c = 224
    k(f"""v_and_b32 v{c}, 31, v0
    v_cvt_f32_u32 v{c}, v{c}
    v_mul_f32 v{c}, {f32(1.0/1024)}, v{c}
    v_lshrrev_b32 v{c+1}, 7, v0
    v_lshlrev_b32 v{c+1}, 3, v{c+1}
    v_bfe_u32 v{c+2}, v0, 6, 1
    v_lshl_add_u32 v{c+1}, v{c+2}, 1, v{c+1}
    v_bfe_u32 v{c+2}, v0, 5, 1
    v_lshl_add_u32 v{c+1}, v{c+2}, 2, v{c+1}
    v_cvt_f32_u32 v{c+1}, v{c+1}
    v_mul_f32 v{c+4}, v{c}, v{c+1}
    v_add_f32 v{c+5}, v{c+4}, v{c}
    v_mul_f32 v{c+6}, {f32(32.0)}, v{c+4}
    v_mul_f32 v{c+7}, {f32(32.0)}, v{c+5}
    v_fract_f32 v{c+6}, v{c+6}
    v_fract_f32 v{c+7}, v{c+7}
    v_cos_f32 v{c+8}, v{c+4}
    v_cos_f32 v{c+9}, v{c+5}
    v_sin_f32 v{c+10}, v{c+4}
    v_sin_f32 v{c+11}, v{c+5}
    v_cos_f32 v{c+12}, v{c+6}
    v_cos_f32 v{c+13}, v{c+7}
    v_sin_f32 v{c+14}, v{c+6}
    v_sin_f32 v{c+15}, v{c+7}
    v_lshrrev_b32 v{c+1}, 7, v0
    v_lshl_add_u32 v{c+1}, v{c+1}, 10, v3
    v_bfe_u32 v{c+2}, v0, 6, 1
    v_lshl_add_u32 v{c+1}, v{c+2}, 3, v{c+1}
    v_cvt_pk_f16_f32 v{c+4}, v{c+12}, v{c+14}
    v_cvt_pk_f16_f32 v{c+5}, v{c+13}, v{c+15}
    v_cvt_pk_f16_f32 v{c+6}, -v{c+14}, v{c+12}
    v_cvt_pk_f16_f32 v{c+7}, -v{c+15}, v{c+13}
    ds_write_b64 v{c+1}, v[{c+4}:{c+5}] offset:{L_C}
    ds_write_b64 v{c+1}, v[{c+6}:{c+7}] offset:{L_C+4096}
    ds_write_b64 v{c+1}, v[{c+8}:{c+9}] offset:{L_C+8192}
    ds_write_b64 v{c+1}, v[{c+10}:{c+11}] offset:{L_C+12288}""")

def publish1(k, lab):
    k(f"""s_barrier
    s_cmp_lg_u32 s16, 0
    s_cbranch_scc1 {lab}""")
    get_nonce_finish(k, lab + "_non", 4, NON)
    k(f"""s_mov_b64 exec, 0xff
    buffer_store_dwordx2 v[{NON}:{NON+1}], v{FA}, s[12:15], s78 offen sc1
    s_mov_b64 exec, -1""")

def role_F(k):
    XRA, XRB, ZA, ZB, CS, SAR = 8, 16, 24, 32, 40, 48
    ZAD, YW, YRA, YRM, YRB, YRC = 56, 57, 58, 59, 60, 61
    BRE, BIM, TC, TS, W, D1R, D1I = 64, 80, 96, 112, 128, 144, 160
    GA, SBv, C1, GBv, WR = 176, 192, 208, 224, 240
    srd(k, 8, 4, 2048 * 1024 * 2)
    k.c("s18/s19 = byte offsets of rows A/B ; s30/s31 = rows A/B")
    k(f"""s_cmp_eq_u32 s3, 0
    s_cselect_b32 s36, {1024-128}, 0
    s_cmp_lt_u32 s16, 4
    s_cselect_b32 s36, 0, s36
    s_lshl_b32 s30, s16, 8
    s_add_u32 s30, s30, s3
    s_sub_u32 s30, s30, s36
    s_sub_u32 s31, 2048, s30
    s_cmp_eq_u32 s30, 0
    s_cselect_b32 s31, 1024, s31
    s_lshl_b32 s18, s30, 11
    s_lshl_b32 s19, s31, 11""")
    k.c("---- phase-B constants and addresses (while stores drain) ----")
    L = 24; B2R, B2I, T2C, T2S, TMP = 40, 44, 48, 52, 128
    SA_, RA_, TWA, TRA, STA = 64, 65, 66, 67, 68
    k(f"""v_and_b32 v70, 15, v0
    v_bfe_u32 v71, v0, 4, 2
    v_cvt_f32_u32 v72, v70
    v_mul_f32 v72, {f32(1.0/256)}, v72
    v_cvt_f32_u32 v73, v71
    v_mul_f32 v73, 4.0, v73
    v_mul_f32 v73, v72, v73""")
    for j in range(4):
        if j == 0: k(f"v_mov_b32 v{TMP}, v73")
        else: k(f"v_fmamk_f32 v{TMP+j}, v72, {f32(float(j))}, v73")
    for j in range(4):
        k(f"v_cos_f32 v{T2C+j}, v{TMP+j}")
        k(f"v_sin_f32 v{T2S+j}, v{TMP+j}")
    for j in range(4):
        k(f"v_mul_f32 v{TMP+j}, {f32(16.0)}, v{TMP+j}")
        k(f"v_fract_f32 v{TMP+j}, v{TMP+j}")
    for j in range(4):
        k(f"v_cos_f32 v{TMP+4+j}, v{TMP+j}")
        k(f"v_sin_f32 v{TMP+8+j}, v{TMP+j}")
    for j in range(4):
        k(f"v_cvt_pk_f16_f32 v{B2R+j}, v{TMP+4+j}, v{TMP+8+j}")
        k(f"v_cvt_pk_f16_f32 v{B2I+j}, -v{TMP+8+j}, v{TMP+4+j}")
    k(f"""v_lshrrev_b32 v72, 3, v2
    v_lshlrev_b32 v72, 7, v72
    v_xor_b32 v73, v71, v0
    v_and_b32 v73, 7, v73
    v_lshl_add_u32 v{SA_}, v73, 4, v72
    v_xor_b32 v69, 64, v{SA_}
    v_bfe_u32 v72, v0, 1, 3
    v_xor_b32 v72, v72, v1
    v_lshlrev_b32 v72, 4, v72
    v_lshl_add_u32 v72, v70, 7, v72
    v_lshl_add_u32 v72, v71, 13, v72
    v_add_u32 v{RA_}, {L_S}, v72
    v_and_b32 v72, 7, v0
    v_xor_b32 v72, v72, v1
    v_lshlrev_b32 v72, 4, v72
    v_lshl_add_u32 v{TWA}, v2, 7, v72
    v_lshlrev_b32 v{TRA}, 4, v0
    v_bfe_u32 v72, v0, 3, 4
    v_lshlrev_b32 v{STA}, 18, v72
    v_lshrrev_b32 v72, 7, v0
    v_lshl_add_u32 v{STA}, v72, 16, v{STA}
    v_lshrrev_b32 v72, 3, v0
    v_xor_b32 v72, v72, v0
    v_and_b32 v72, 7, v72
    v_lshl_add_u32 v{STA}, v72, 4, v{STA}
    s_lshr_b32 s41, s3, 3
    s_lshl_b32 s42, s34, 19
    s_lshl_b32 s43, s41, 15
    s_add_u32 s42, s42, s43
    s_lshl_b32 s43, s16, 12
    s_add_u32 s42, s42, s43
    s_add_u32 s42, s42, {WS_Z1}
    s_add_u32 s43, s43, {L_S}
    s_lshl_b32 s70, s34, 11
    s_lshl_b32 s71, s41, 7
    s_add_u32 s70, s70, s71
    s_add_u32 s70, s70, {WS_ZF}
    s_add_u32 s71, s70, 16384
    s_add_u32 s72, s70, 32768
    s_add_u32 s73, s70, 49152
    s_lshl_b32 s80, s3, 3
    s_add_u32 s79, s80, {WS_FL2}
    s_add_u32 s80, s80, {WS_KEY}
    s_mov_b32 m0, s43
    s_waitcnt vmcnt(0)""")
    stamp(k, 4)
    publish1(k, "f_np1")
    k(f"s_sleep {SL1}")
    poll_flags(k, "f_p1", 24, 76, 5, extra=2)
    k("f_np1:\ns_barrier")
    stamp(k, 5)
    k.c("================= phase B =================")
    for i in range(4):
        k(f"buffer_load_dwordx4 v{69 if i & 1 else SA_}, s[12:15], s42 offen offset:{i*1024} sc1 lds")
    k("s_barrier")
    for j in range(2):
        k(f"buffer_load_dwordx4 v[{XRA+4*j}:{XRA+4*j+3}], v3, s[8:11], s18 offen offset:{j*1024}")
        k(f"buffer_load_dwordx4 v[{XRB+4*j}:{XRB+4*j+3}], v3, s[8:11], s19 offen offset:{j*1024}")
    k("s_waitcnt vmcnt(4)\ns_barrier")
    stamp(k, 6)
    for j in range(4):
        k(f"ds_read_b128 v[{L+4*j}:{L+4*j+3}], v{RA_} offset:{j*2048}")
    k("s_waitcnt lgkmcnt(0)")
    for j in range(4):
        for cc in range(j + 1, 4):
            k(f"v_swap_b32 v{L+4*j+cc}, v{L+4*cc+j}")
    D1 = 144
    for cc in range(4):
        k(f"v_mfma_f32_16x16x32_f16 v[{D1+8*cc}:{D1+8*cc+3}], v[{L+4*cc}:{L+4*cc+3}], v[{B2R}:{B2R+3}], 0")
        k(f"v_mfma_f32_16x16x32_f16 v[{D1+8*cc+4}:{D1+8*cc+7}], v[{L+4*cc}:{L+4*cc+3}], v[{B2I}:{B2I+3}], 0")
    V = 176; VT = 192; D2 = 208; O = L
    for cc in range(4):
        re, im = D1 + 8*cc, D1 + 8*cc + 4
        t = VT + 8 * (cc & 1)
        for h in range(2):
            pmul(k, t + 2*h, re + 2*h, T2C + 2*h)
            pmul(k, t + 4 + 2*h, im + 2*h, T2C + 2*h)
        for h in range(2):
            pfma(k, t + 2*h, im + 2*h, T2S + 2*h, t + 2*h)
            pfma(k, t + 4 + 2*h, re + 2*h, T2S + 2*h, t + 4 + 2*h, nega=True)
        for i in range(4):
            k(f"v_cvt_pk_f16_f32 v{V+4*cc+i}, v{t+i}, v{t+4+i}")
        k(f"v_mfma_f32_16x16x32_f16 v[{D2+8*cc}:{D2+8*cc+3}], v[{V+4*cc}:{V+4*cc+3}], v[{B2R}:{B2R+3}], 0")
        k(f"v_mfma_f32_16x16x32_f16 v[{D2+8*cc+4}:{D2+8*cc+7}], v[{V+4*cc}:{V+4*cc+3}], v[{B2I}:{B2I+3}], 0")
    for cc in range(4):
        for i in range(4):
            k(f"v_cvt_pk_f16_f32 v{O+4*i+cc}, v{D2+8*cc+i}, v{D2+8*cc+4+i}")
    for i in range(4):
        k(f"ds_write_b128 v{TWA}, v[{O+4*i}:{O+4*i+3}] offset:{L_T+i*8192}")
    k("s_waitcnt lgkmcnt(0)\ns_barrier")
    O2 = 176
    for i in range(4):
        k(f"ds_read_b128 v[{O2+4*i}:{O2+4*i+3}], v{TRA} offset:{L_T+i*8192}")
    for i in range(4):
        k(f"s_waitcnt lgkmcnt({3-i})")
        k(f"buffer_store_dwordx4 v[{O2+4*i}:{O2+4*i+3}], v{STA}, s[12:15], s{70+i} offen sc1")
    stamp(k, 7)
    k.c("---- phase-C addresses / constants ----")
    k(f"""s_mul_i32 s45, s16, 4608
    s_add_u32 s45, s45, {L_Y}
    s_add_u32 s28, s18, {WS_ZF}
    s_add_u32 s29, s19, {WS_ZF}
    s_mov_b32 s44, {WS_CS}
    v_and_b32 v4, 0x38, v0
    v_lshlrev_b32 v{ZAD}, 4, v4
    v_and_b32 v4, 1, v0
    v_lshl_add_u32 v{ZAD}, v4, 6, v{ZAD}
    v_bfe_u32 v4, v0, 1, 2
    v_lshl_add_u32 v{ZAD}, v4, 4, v{ZAD}
    v_and_b32 v4, 31, v0
    v_mul_u32_u24 v4, 144, v4
    v_bfe_u32 v5, v0, 5, 1
    v_lshl_add_u32 v4, v5, 4, v4
    v_add_u32 v{YW}, s45, v4""")
    def yaddr(dst, first):
        k(first)
        k(f"""v_lshrrev_b32 v5, 2, v4
        v_mul_u32_u24 v5, 144, v5
        v_and_b32 v4, 3, v4
        v_lshl_add_u32 v4, v4, 5, v5
        v_add_u32 v{dst}, s45, v4""")
    yaddr(YRA, "v_mov_b32 v4, v2")
    yaddr(YRM, "v_sub_u32 v4, 63, v2")
    yaddr(YRB, "v_sub_u32 v4, 128, v2\nv_and_b32 v4, 127, v4")
    yaddr(YRC, "v_sub_u32 v4, 64, v2")
    for a, base in enumerate((BRE, BIM, TC, TS)):
        for q in range(4):
            k(f"ds_read_b128 v[{base+4*q}:{base+4*q+3}], v3 offset:{L_C+a*4096+q*1024}")
    k(f"""s_lshl_b32 s46, s16, 10
    s_add_u32 s47, s46, {WS_PAR}
    s_add_u32 s46, s46, {L_P}
    s_mov_b32 m0, s46
    s_waitcnt vmcnt(0)""")
    stamp(k, 8)
    k(f"""s_barrier
    s_cmp_lg_u32 s16, 0
    s_cbranch_scc1 f_np2
    s_mov_b64 exec, 0xff
    buffer_store_dwordx2 v[{NON}:{NON+1}], v{FA}, s[12:15], s79 offen sc1
    s_mov_b64 exec, -1
    s_sleep {SL1}""")
    poll_flags(k, "f_p2", 24, 77, 5, extra=1)
    k("f_np2:\ns_barrier")
    stamp(k, 9)
    k.c("================= phase C =================")
    for j in range(2):
        k(f"buffer_load_dwordx4 v[{ZA+4*j}:{ZA+4*j+3}], v{ZAD}, s[12:15], s28 offen offset:{j*1024} sc1")
        k(f"buffer_load_dwordx4 v[{ZB+4*j}:{ZB+4*j+3}], v{ZAD}, s[12:15], s29 offen offset:{j*1024} sc1")
    for j in range(2):
        k(f"buffer_load_dwordx4 v[{CS+4*j}:{CS+4*j+3}], v3, s[12:15], s44 offen offset:{j*1024} sc1")
    k("s_cmp_lg_u32 s30, 0\ns_cbranch_scc1 f_nosa")
    for j in range(2):
        k(f"buffer_load_dwordx4 v[{SAR+4*j}:{SAR+4*j+3}], v3, s[12:15], s44 offen offset:{2048+j*1024} sc1")
    k(f"""f_nosa:
    s_barrier
    buffer_load_dwordx4 v3, s[12:15], s47 offen sc1 lds
    s_add_u32 s46, s46, 8192
    s_add_u32 s47, s47, 8192
    s_mov_b32 m0, s46
    s_add_u32 s46, s46, 8192
    buffer_load_dwordx4 v3, s[12:15], s47 offen sc1 lds
    s_add_u32 s47, s47, 8192
    s_cmp_lt_u32 s16, 4
    s_cselect_b32 s47, s47, 0x7ff00000
    s_cselect_b32 s46, s46, {L_S}
    s_mov_b32 m0, s46
    s_cmp_eq_u32 s30, 0
    buffer_load_dwordx4 v3, s[12:15], s47 offen sc1 lds
    s_waitcnt vmcnt(3) lgkmcnt(0)""")
    stamp(k, 10)
    k("s_cbranch_scc1 f_sp")
    preads = []
    for vec, base in enumerate((GA, SBv, C1, GBv, WR)):
        for q in range(4):
            preads.append(f"ds_read_b128 v[{base+4*q}:{base+4*q+3}], v3 offset:{L_P+vec*4096+q*1024}")
    for i in range(8):
        k(f"v_pk_add_f16 v{W+i}, v{ZA+i}, v{ZB+i} neg_hi:[0,1]")
    for i in range(8):
        k(f"v_pk_add_f16 v{W+8+i}, v{ZA+i}, v{ZB+i} op_sel:[1,1] op_sel_hi:[0,0] neg_hi:[1,0]")
    def modul(j):
        for i in range(4*j, 4*j + 4):
            b = i & 1
            k(f"v_pk_mul_f16 v{W+i}, v{W+i}, v{CS+(i>>1)} op_sel:[0,{b}] op_sel_hi:[1,{b}]")
    def st1(j, part):
        D, B = (D1R, BRE) if part == 0 else (D1I, BIM)
        cc = "0" if j == 0 else f"v[{D}:{D+15}]"
        k(f"v_mfma_f32_32x32x16_f16 v[{D}:{D+15}], v[{W+4*j}:{W+4*j+3}], v[{B+4*j}:{B+4*j+3}], {cc}")
    modul(0); modul(1)
    st1(0, 0); modul(2); st1(0, 1); modul(3)
    k("f_st1:")
    pr = list(preads)
    for j in range(1, 4):
        for part in range(2): st1(j, part)
    Y = CS
    for j in range(4):
        vr = ZA + 8 * (j & 1); vi = vr + 4
        for h in range(2):
            pmul(k, vr + 2*h, D1R + 4*j + 2*h, TC + 4*j + 2*h)
            pmul(k, vi + 2*h, D1I + 4*j + 2*h, TC + 4*j + 2*h)
        for h in range(2):
            pfma(k, vr + 2*h, D1I + 4*j + 2*h, TS + 4*j + 2*h, vr + 2*h)
            pfma(k, vi + 2*h, D1R + 4*j + 2*h, TS + 4*j + 2*h, vi + 2*h, nega=True)
        for i in range(4):
            k(f"v_cvt_pk_f16_f32 v{W+4*j+i}, v{vr+i}, v{vi+i}")
        if j > 0:
            jj = j - 1
            cr = "0" if jj == 0 else f"v[{Y}:{Y+15}]"
            k(f"v_mfma_f32_32x32x16_f16 v[{Y}:{Y+15}], v[{W+4*jj}:{W+4*jj+3}], v[{BRE+4*jj}:{BRE+4*jj+3}], {cr}")
        if j == B2AT: k("s_waitcnt vmcnt(0)\ns_barrier")
        if j >= B2AT and j < 3:
            for _ in range(20 // (4 - B2AT)): k(pr.pop(0))
    k(f"v_mfma_f32_32x32x16_f16 v[{Y}:{Y+15}], v[{W+12}:{W+15}], v[{BRE+12}:{BRE+15}], v[{Y}:{Y+15}]")
    for x in pr: k(x)
    XA2, XB2, YN, YM, YE = D1I, TS, D1R, TC, ZA
    k("s_cmp_eq_u32 s30, 0\ns_cbranch_scc1 f_sp2")
    for i in range(4): unpack_bf16(k, XA2 + 2*i, XRA + i)
    for q in range(4):
        k(f"ds_write_b128 v{YW}, v[{Y+4*q}:{Y+4*q+3}] offset:{q*32}")
    for i in range(4, 8): unpack_bf16(k, XA2 + 2*i, XRA + i)
    def yreads(off):
        for q in range(4):
            k(f"ds_read_b128 v[{YN+4*q}:{YN+4*q+3}], v{YRA} offset:{off + (q>>1)*2304 + (q&1)*16}")
        for q in range(4):
            k(f"ds_read_b128 v[{YM+4*q}:{YM+4*q+3}], v{YRM} offset:{off + (q>>1)*2304 + (q&1)*16}")
        k(f"ds_read_b32 v{YE}, v{YRB} offset:{off}")
        k(f"ds_read_b32 v{YE+1}, v{YRC} offset:{off}")
    def mir(dst):
        for hf in range(2):
            for j in range(8):
                src = YE + hf if j == 0 else YM + 8 * (1 - hf) + 8 - j
                k(f"v_fmac_f32 v{dst+8*hf+j}, v{GA+8*hf+j}, v{src}")
    yreads(0)
    for i in range(8): unpack_bf16(k, XB2 + 2*i, XRB + i)
    k("s_waitcnt lgkmcnt(6)")
    for i in range(8): pfma(k, XA2 + 2*i, GA + 2*i, YN + 2*i, XA2 + 2*i)
    k("s_waitcnt lgkmcnt(0)")
    mir(XB2)
    k("f_join:")
    stamp(k, 11)
    T = W
    rows = ((XA2, BRE, D1R, T, 4, 56), (XB2, BIM, TC, T + 8, 5, 58))
    for X2, _, _, t, vr, _ in rows:
        for i in range(4): padd(k, t + 2*i, X2 + 4*i, X2 + 4*i + 2)
    for X2, _, _, t, vr, _ in rows:
        padd(k, t, t, t + 2); padd(k, t + 4, t + 4, t + 6)
    for X2, _, _, t, vr, _ in rows: padd(k, t, t, t + 4)
    for X2, _, _, t, vr, _ in rows: k(f"v_add_f32 v{vr}, v{t}, v{t+1}")
    for X2, _, _, t, vr, _ in rows: k(f"v_mul_f32 v{vr}, {f32(1.0/1024)}, v{vr}")
    wave_reduce_to63(k, [4, 5])
    for X2, _, _, t, vr, sr in rows: k(f"v_readlane_b32 s{sr}, v{vr}, 63")
    for X2, Dd, Tt, t, vr, sr in rows:
        for i in range(8): psub_s(k, Dd + 2*i, X2 + 2*i, sr)
        for i in range(8): pmul(k, Tt + 2*i, Dd + 2*i, C1 + 2*i)
        A0, A1, A2, A3 = t, t + 2, t + 4, t + 6
        pmul(k, A0, Dd, Dd); pmul(k, A1, Dd + 2, Dd + 2); pmul(k, A2, Tt, WR); pmul(k, A3, Tt + 2, WR + 2)
        for i in range(1, 4):
            pfma(k, A0, Dd + 4*i, Dd + 4*i, A0); pfma(k, A1, Dd + 4*i + 2, Dd + 4*i + 2, A1)
            pfma(k, A2, Tt + 4*i, WR + 4*i, A2); pfma(k, A3, Tt + 4*i + 2, WR + 4*i + 2, A3)
        padd(k, A0, A0, A1); padd(k, A2, A2, A3)
    RQ = ZA
    for n, (X2, Dd, Tt, t, vr, sr) in enumerate(rows):
        k(f"v_add_f32 v{RQ+n}, v{t}, v{t+1}")
        k(f"v_add_f32 v{RQ+2+n}, v{t+4}, v{t+5}")
    wave_reduce_to63(k, [RQ, RQ + 1, RQ + 2, RQ + 3])
    for n in range(2): k(f"v_mul_f32 v{RQ+n}, {f32(1.0/1024)}, v{RQ+n}")
    def rb2():
        k(f"v_cvt_pk_bf16_f32 v4, v{RQ}, v{RQ+1}")
        unpack_bf16(k, RQ, 4)
    rb2()
    for n in range(2): k(f"v_add_f32 v{RQ+n}, {f32(1e-5)}, v{RQ+n}")
    rb2()
    for n in range(2): k(f"v_sqrt_f32 v{RQ+n}, v{RQ+n}")
    rb2()
    for n in range(2): k(f"v_rcp_f32 v{RQ+n}, v{RQ+n}")
    pmul(k, RQ + 2, RQ + 2, RQ)
    for n in range(2):
        k(f"v_readlane_b32 s{56+2*n}, v{RQ+n}, 63")
        k(f"v_readlane_b32 s{60+n}, v{RQ+2+n}, 63")
    for n in range(2):
        k(f"""s_ashr_i32 s42, s{60+n}, 31
        s_or_b32 s42, s42, 0x80000000
        s_xor_b32 s{60+n}, s{60+n}, s42
        s_min_u32 s{60+n}, s{60+n}, 0xfffff000
        s_and_b32 s{60+n}, s{60+n}, 0xfffff800
        s_or_b32 s{60+n}, s{60+n}, s{30+n}""")
    k(f"""v_mov_b32 v4, s60
    v_mov_b32 v5, s61
    v_lshlrev_b32 v{ZAD}, 3, v1
    v_add_u32 v{ZAD}, {L_KEY}, v{ZAD}
    ds_write_b64 v{ZAD}, v[4:5]""")
    stamp(k, 12)
    HPA, HPB = CS, SAR
    for (X2, Dd, Tt, t, vr, sr), HP in zip(rows, (HPA, HPB)):
        for i in range(8): pfma_s(k, Tt + 2*i, Tt + 2*i, sr, SBv + 2*i)
    k(f"""v_and_b32 v{YW}, 15, v0
    v_lshlrev_b32 v{YW}, 2, v{YW}
    v_add_u32 v{YW}, {L_KEY}, v{YW}
    s_add_u32 s62, s18, {WS_H2}
    s_add_u32 s63, s19, {WS_H2}
    s_waitcnt lgkmcnt(0)
    s_barrier
    ds_read_b32 v{YRA}, v{YW}""")
    for (X2, Dd, Tt, t, vr, sr), HP in zip(rows, (HPA, HPB)):
        for i in range(8): k(f"v_cvt_pk_bf16_f32 v{HP+i}, v{Tt+2*i}, v{Tt+2*i+1}")
    k("s_waitcnt lgkmcnt(0)")
    k("s_mov_b32 s43, 0")
    for n, HP in enumerate((HPA, HPB)):
        k(f"""v_cmp_lt_u32 vcc, s{60+n}, v{YRA}
        s_and_b32 s42, vcc_lo, 0xffff
        s_bcnt1_i32_b32 s42, s42
        s_cmp_ge_u32 s42, 2
        s_cbranch_scc1 f_nc{n}""")
        for j in range(2):
            k(f"buffer_store_dwordx4 v[{HP+4*j}:{HP+4*j+3}], v3, s[12:15], s{62+n} offen offset:{j*1024} sc1")
        k(f"""s_lshl_b32 s42, s42, 2
        s_add_u32 s42, s42, {L_KEY+64}
        v_mov_b32 v{YRM}, s42
        ds_write_b32 v{YRM}, v{4+n}
        s_mov_b32 s43, 1
        f_nc{n}:""")
    for (X2, Dd, Tt, t, vr, sr), XO, so in zip(rows, (XRA, XRB), (18, 19)):
        for i in range(8): pfma(k, X2 + 2*i, GBv + 2*i, Tt + 2*i, X2 + 2*i)
        for i in range(8): k(f"v_cvt_pk_bf16_f32 v{XO+i}, v{X2+2*i}, v{X2+2*i+1}")
    def outst(fl="sc1"):
        for XO, so in zip((XRA, XRB), (18, 19)):
            for j in range(2):
                k(f"buffer_store_dwordx4 v[{XO+4*j}:{XO+4*j+3}], v3, s[24:27], s{so} offen offset:{j*1024} {fl}")
    stamp(k, 13)
    k(f"""v_mov_b32 v{YRM}, {L_KEY+64}
    s_cmp_eq_u32 s43, 0
    s_cbranch_scc1 f_late""")
    outst()
    k("s_waitcnt vmcnt(0) lgkmcnt(0)\nf_late:")
    stamp(k, 14)
    k(f"""s_barrier
    s_cmp_lg_u32 s16, 0
    s_cbranch_scc1 f_end
    ds_read_b64 v[4:5], v{YRM}
    s_waitcnt lgkmcnt(0)
    s_mov_b64 exec, 0xfff
    buffer_store_dwordx2 v[4:5], v{FA}, s[12:15], s80 offen sc1
    s_mov_b64 exec, -1
    f_end:
    s_cmp_eq_u32 s43, 1
    s_cbranch_scc1 f_end2""")
    k(f"s_sleep {E('OSL', 1)}")
    outst(os.environ.get("OFL", "sc1"))
    k("f_end2:")
    stamp_out(k, 0)
    k("s_endpgm")
    k.c("---- special wave: rows 0 and 1024 (both spectra real) packed as re/im of one FFT ----")
    k("f_sp:")
    k("s_mov_b32 s42, 0x05040100\ns_mov_b32 s43, 0x07060302")
    for i in range(8):
        k(f"v_perm_b32 v{W+i}, v{ZB+i}, v{ZA+i}, s42")
        k(f"v_perm_b32 v{W+8+i}, v{ZB+i}, v{ZA+i}, s43")
    for j in range(4): modul(j)
    for i in range(8):
        k(f"v_and_b32 v{ZA+i}, 0xffff, v{SAR+i}")
        k(f"v_lshrrev_b32 v{ZB+i}, 16, v{SAR+i}")
    for i in range(8):
        k(f"v_pk_add_f16 v{W+2*i}, v{W+2*i}, v{ZA+i}")
        k(f"v_pk_add_f16 v{W+2*i+1}, v{W+2*i+1}, v{ZB+i}")
    st1(0, 0); st1(0, 1)
    k("s_branch f_st1")
    k("f_sp2:")
    for j in range(4):
        cr = "0" if j == 0 else f"v[{D1R}:{D1R+15}]"
        k(f"v_mfma_f32_32x32x16_f16 v[{D1R}:{D1R+15}], v[{W+4*j}:{W+4*j+3}], v[{BIM+4*j}:{BIM+4*j+3}], {cr}")
    for q in range(4):
        k(f"ds_write_b128 v{YW}, v[{Y+4*q}:{Y+4*q+3}] offset:{q*32}")
    for i in range(8): unpack_bf16(k, XA2 + 2*i, XRA + i)
    for q in range(4):
        k(f"ds_write_b128 v{YW}, v[{D1R+4*q}:{D1R+4*q+3}] offset:{8*4608 + q*32}")
    k("s_waitcnt lgkmcnt(0)")
    yreads(0)
    for i in range(8): unpack_bf16(k, XB2 + 2*i, XRB + i)
    k("s_waitcnt lgkmcnt(0)")
    for i in range(8): pfma(k, XA2 + 2*i, GA + 2*i, YN + 2*i, XA2 + 2*i)
    mir(XA2)
    yreads(8 * 4608)
    k("s_waitcnt lgkmcnt(0)")
    for i in range(8): pfma(k, XB2 + 2*i, GA + 2*i, YN + 2*i, XB2 + 2*i)
    mir(XB2)
    k("s_branch f_join")

def role_G(k):
    k(f"""g_start:
    s_load_dwordx4 s[48:51], s[0:1], {A_WR}
    s_load_dwordx4 s[52:55], s[0:1], {A_WU}
    s_waitcnt vmcnt(0) lgkmcnt(0)""")
    stamp(k, 4)
    publish1(k, "g_nf")
    k(f"""g_nf:
    s_cmp_eq_u32 s66, 1
    s_cbranch_scc1 x_start""")
    k.c("================= M: weight stream =================")
    srd(k, 8, 50, 1024 * 3584 * 2)
    srd(k, 44, 52, 1024 * 3584 * 2)
    srd(k, 56, 54, 1024 * 3584 * 2)
    k(f"""v_lshrrev_b32 v4, 4, v2
    v_lshlrev_b32 v5, 1, v4
    v_xor_b32 v5, v5, v0
    v_and_b32 v5, 15, v5
    v_mul_u32_u24 v4, 7168, v4
    v_lshl_add_u32 v4, v5, 4, v4
    v_xor_b32 v5, 0x80, v4
    s_lshl_b32 s67, s65, 3
    s_add_u32 s67, s67, s16
    s_mul_i32 s67, s67, {32*7168}
    s_lshl_b32 s68, s64, 8
    s_add_u32 s67, s67, s68
    s_lshl_b32 s68, s16, 14
    s_barrier""")
    if E("MWAIT", 0):
        k("s_cmp_lg_u32 s16, 0\ns_cbranch_scc1 m_w1")
        k(f"s_sleep {SL1}")
        poll_flags(k, "m_p1", 16, 76, 9, extra=2)
        k("m_w1:\ns_barrier")
    if E("NOSTREAM", 0):
        k("v_mov_b32 v4, 0x7ff00000\nv_mov_b32 v5, 0x7ff00000")
    for d in range(8):
        rows = 8 * (d & 3) + 4 * (d >> 2)
        k(f"s_add_u32 s42, s67, {rows*7168}")
        k(f"s_add_u32 s43, s68, {d*1024}")
        k(f"s_mov_b32 m0, s43")
        k(f"s_add_u32 s43, s43, 8192")
        k(f"buffer_load_dwordx4 v{4 + (d & 1)}, s[8:11], s42 offen lds")
        k(f"s_mov_b32 m0, s43")
        k(f"buffer_load_dwordx4 v{4 + (d & 1)}, s[44:47], s42 offen lds")
    WD = 16; WF = 48; BF = 112; AC = 176; TA = 240
    k(f"""v_lshlrev_b32 v6, 3, v2
    s_lshl_b32 s18, s64, 3
    s_add_u32 s18, s18, s16
    s_lshl_b32 s69, s18, 10
    s_lshl_b32 s18, s18, 15
    s_lshl_b32 s19, s65, 9
    s_add_u32 s18, s18, s19""")
    if E("NOSTREAM", 0):
        k("v_mov_b32 v6, 0x7ff00000")
    for f in range(16):
        k(f"buffer_load_dwordx2 v[{WD+2*f}:{WD+2*f+1}], v6, s[56:59], s18 offen offset:{(f & 1) * 2048}")
        if f & 1 and f < 15: k("s_add_u32 s18, s18, 4096")
    stamp(k, 5)
    k(f"""v_lshrrev_b32 v6, 2, v2
    v_and_b32 v7, 7, v6
    v_lshlrev_b32 v6, 8, v6
    v_lshl_add_u32 v6, v7, 5, v6
    v_and_b32 v7, 3, v0
    v_lshl_add_u32 v6, v7, 3, v6
    v_add_u32 v{TA}, s68, v6""")
    for sub in range(1, 8):
        k(f"v_xor_b32 v{TA+sub}, {sub*32}, v{TA}")
    k.c("v4 = A address base ; v5 = LDS partial write ; v6 = tid*4 ; v7 = PART store ; v8 = lane*4 ; v9 = y LDS write")
    k(f"""v_bfe_u32 v7, v0, 4, 2
    v_lshlrev_b32 v4, 4, v7
    v_lshl_add_u32 v4, v1, 6, v4
    s_lshl_b32 s70, s65, 9
    s_add_u32 s70, s70, {WS_H2}
    v_and_b32 v6, 1, v0
    v_cmp_eq_u32 s[72:73], 1, v6
    v_lshl_add_u32 v5, v1, 11, v3
    v_lshlrev_b32 v6, 2, v0
    v_lshrrev_b32 v7, 8, v0
    v_lshlrev_b32 v7, 17, v7
    v_bfe_u32 v8, v0, 4, 4
    v_lshl_add_u32 v7, v8, 11, v7
    v_and_b32 v8, 15, v0
    v_lshl_add_u32 v7, v8, 2, v7
    v_lshlrev_b32 v8, 2, v2
    s_lshl_b32 s74, s65, 15
    s_lshl_b32 s75, s64, 6
    s_add_u32 s74, s74, s75
    s_add_u32 s74, s74, {WS_PART}
    s_add_u32 s81, s69, {WS_XA}
    s_add_u32 s82, s69, {WS_XB}
    s_lshl_b32 s76, s65, 8
    s_add_u32 s77, s76, s82
    s_add_u32 s76, s76, s81
    s_lshl_b32 s78, s34, 11
    s_add_u32 s78, s78, {WS_KEY}
    s_waitcnt vmcnt(16)""")
    for mat in range(2):
        for sub in range(8):
            b = BF + (mat*8 + sub)*4
            k(f"ds_read_b64_tr_b16 v[{b}:{b+1}], v{TA+sub} offset:{mat*8192}")
            k(f"ds_read_b64_tr_b16 v[{b+2}:{b+3}], v{TA+sub} offset:{mat*8192+4096}")
    k("s_waitcnt vmcnt(0)")
    for i in range(32): unpack_bf16(k, WF + 2*i, WD + i)
    k("s_waitcnt lgkmcnt(0)")
    stamp(k, 6)
    KB, HA = 16, 24
    k("""v_and_b32 v10, 1, v0
    v_lshlrev_b32 v10, 2, v10
    v_add_u32 v10, 131072, v10
    s_cmp_lg_u32 s16, 0
    s_cbranch_scc1 m_nk""")
    for _ in range(E("MSL", 0)): k("s_sleep 64")
    poll_keys(k, "m_pk", KB, 78, 9)
    stamp(k, 13)
    top2(k, KB, 40, 41, 20)
    k(f"""s_and_b32 s40, s40, 0x7ff
    s_and_b32 s41, s41, 0x7ff
    s_lshl_b32 s40, s40, 11
    s_lshl_b32 s41, s41, 11
    v_mov_b32 v9, s40
    v_mov_b32 v11, s41
    v_cndmask_b32 v9, v9, v11, s[72:73]
    ds_write_b32 v10, v9
    s_waitcnt lgkmcnt(0)
    m_nk:
    s_barrier
    ds_read_b32 v9, v10
    s_waitcnt lgkmcnt(0)
    v_add_u32 v9, v9, v4
    buffer_load_dwordx4 v[{HA}:{HA+3}], v9, s[12:15], s70 offen sc1
    s_waitcnt vmcnt(0)""")
    stamp(k, 14)
    for sub in range(8):
        for mat in range(2):
            a = AC + (mat*8 + sub)*4
            b = BF + (mat*8 + sub)*4
            k(f"v_mfma_f32_16x16x32_bf16 v[{a}:{a+3}], v[{HA}:{HA+3}], v[{b}:{b+3}], 0")
    k("s_mov_b64 exec, 0xffff")
    for sub in range(8):
        k(f"ds_write2_b64 v5, v[{AC+sub*4}:{AC+sub*4+1}], v[{AC+(8+sub)*4}:{AC+(8+sub)*4+1}] offset0:{sub*32} offset1:{sub*32+1}")
    k("s_mov_b64 exec, -1\ns_waitcnt lgkmcnt(0)\ns_barrier")
    for i in range(4):
        k(f"ds_read2st64_b32 v[{16+2*i}:{17+2*i}], v6 offset0:{16*i} offset1:{16*i+8}")
    k("s_waitcnt lgkmcnt(0)")
    padd(k, 16, 16, 18); padd(k, 20, 20, 22); padd(k, 16, 16, 20)
    k(f"""v_add_f32 v11, v16, v17
    v_min_u32 v11, -2, v11
    buffer_store_dword v11, v8, s[12:15], s76 offen
    s_sleep {SL3}""")
    stamp(k, 15)
    R = 16
    for rep in range(XFAST):
        k(f"buffer_load_dwordx4 v[{R}:{R+3}], v3, s[12:15], s81 offen sc1")
        k("s_waitcnt vmcnt(0)")
        chk_sent(k, range(R, R + 4), 9)
        k("s_cbranch_vccz m_pxf")
    k(f"""buffer_store_dword v11, v8, s[12:15], s77 offen sc1
    s_mov_b32 s83, 0
    m_px:""")
    for so in (81, 82):
        k(f"buffer_load_dwordx4 v[{R}:{R+3}], v3, s[12:15], s{so} offen sc1")
        k("s_waitcnt vmcnt(0)")
        chk_sent(k, range(R, R + 4), 9)
        k("s_cbranch_vccz m_pxx")
    k(f"""s_add_u32 s83, s83, 1
    s_cmp_lt_u32 s83, {SPIN}
    s_cbranch_scc1 m_px
    s_branch m_pxx
    m_pxf:
    buffer_store_dword v11, v8, s[12:15], s77 offen sc1
    m_pxx:""")
    stamp(k, 16)
    k(f"v_permlane32_swap_b32 v{R}, v{R+2}")
    k(f"v_permlane32_swap_b32 v{R+1}, v{R+3}")
    padd(k, R, R, R + 2)
    k(f"v_permlane16_swap_b32 v{R}, v{R+1}")
    k(f"v_add_f32 v{R}, v{R}, v{R+1}")
    round_bf16(k, R, R)
    k(f"""v_mul_f32 v{R+1}, {f32(-math.log2(math.e))}, v{R}
    v_exp_f32 v{R+1}, v{R+1}
    v_mov_b32 v{R+2}, v{R}
    v_add_f32 v{R+1}, 1.0, v{R+1}
    v_rcp_f32 v{R+1}, v{R+1}
    v_mov_b32 v{R+3}, v{R}
    v_mul_f32 v{R+1}, v{R}, v{R+1}
    v_permlane32_swap_b32 v{R+2}, v{R+3}""")
    round_bf16(k, R + 1, R + 1)
    k(f"v_mul_f32 v{R+1}, v{R+1}, v{R+3}")
    round_bf16(k, R + 1, R + 1)
    SA = 24
    for f in range(16):
        k(f"v_readlane_b32 s{SA+2*f}, v{R+1}, {f}")
        k(f"v_readlane_b32 s{SA+2*f+1}, v{R+1}, {16+f}")
    Y = 24
    for f in range(16):
        for row in range(2):
            for h in range(2):
                if f == 0: pmul_s(k, Y + 4*row + 2*h, WF + 4*f + 2*h, SA + 2*f + row)
                else: pfma_s(k, Y + 4*row + 2*h, WF + 4*f + 2*h, SA + 2*f + row, Y + 4*row + 2*h)
    for row in range(2):
        k(f"ds_write_b128 v5, v[{Y+4*row}:{Y+4*row+3}] offset:{16384+row*1024}")
    k("s_waitcnt lgkmcnt(0)\ns_barrier")
    for i in range(4):
        k(f"ds_read2st64_b32 v[{32+2*i}:{33+2*i}], v6 offset0:{64+16*i} offset1:{64+16*i+8}")
    k("s_waitcnt lgkmcnt(0)")
    padd(k, 32, 32, 34); padd(k, 36, 36, 38); padd(k, 32, 32, 36)
    k("""v_add_f32 v32, v32, v33
    v_min_u32 v32, -2, v32
    buffer_store_dword v32, v7, s[12:15], s74 offen sc1""")
    stamp(k, 17)
    stamp_out(k, 0)
    k("s_endpgm")
    k.c("================= X: finalize mod, then final reduction =================")
    k("x_start:")
    srd(k, 8, 48, 2048)
    k.c("s17 = j = xi*8 + wave ; finalize: vec s70 = j>>4, column v4")
    k(f"""s_lshl_b32 s17, s64, 3
    s_add_u32 s17, s17, s16
    s_lshr_b32 s70, s17, 4
    s_and_b32 s71, s17, 15
    s_lshl_b32 s71, s71, 6
    v_and_b32 v4, 15, v0
    v_lshlrev_b32 v8, 4, v4
    v_lshlrev_b32 v4, 2, v4
    v_lshrrev_b32 v5, 4, v2
    v_add3_u32 v4, v4, v5, s71
    v_mul_u32_u24 v5, 24576, v5
    v_add_u32 v8, v8, v5
    s_lshl_b32 s43, s17, 8
    s_add_u32 s43, s43, {WS_MODP}
    s_add_u32 s44, s43, {4*24576}
    s_mov_b32 s46, {WS_MAXP}
    s_lshl_b32 s79, s64, 3
    s_add_u32 s79, s79, {WS_FL2 + 1024}
    s_lshl_b32 s78, s34, 11
    s_add_u32 s78, s78, {WS_KEY + 4*2048}""")
    pos16(k, 5, 4, 9)
    pos32(k, 10, 4, 9)
    k(f"""s_cmp_lg_u32 s16, 0
    s_cbranch_scc1 x_np
    s_sleep {SL1}""")
    poll_flags(k, "x_pm", 16, 76, 9, extra=2)
    k(f"""x_np:
    s_barrier
    s_cmp_ge_u32 s70, 7
    s_cbranch_scc1 x_fd
    s_cmp_eq_u32 s70, 6
    s_cbranch_scc0 x_fin
    v_lshlrev_b32 v4, 1, v4
    buffer_load_ushort v16, v4, s[8:11], 0 offen
    s_waitcnt vmcnt(0)
    v_lshlrev_b32 v16, 16, v16
    s_branch x_f32
    x_fin:""")
    stamp(k, 5)
    k(f"""buffer_load_dwordx4 v[16:19], v8, s[12:15], s43 offen sc1
    buffer_load_dwordx4 v[28:31], v8, s[12:15], s44 offen sc1
    buffer_load_dwordx4 v[20:23], v3, s[12:15], s46 offen sc1
    buffer_load_dwordx4 v[24:27], v3, s[12:15], s46 offen offset:1024 sc1
    s_cmp_eq_u32 s70, 1
    s_cselect_b32 s72, 1.0, 0
    s_cmp_eq_u32 s70, 4
    s_cselect_b32 s72, 1.0, s72
    s_waitcnt vmcnt(0)
    v_max3_u32 v20, v20, v21, v22
    v_max3_u32 v23, v23, v24, v25
    v_max3_u32 v20, v20, v26, v27
    v_max_u32 v20, v20, v23""")
    padd(k, 16, 16, 28); padd(k, 18, 18, 30)
    k("""v_permlane32_swap_b32 v16, v18
    v_permlane32_swap_b32 v17, v19""")
    padd(k, 16, 16, 18)
    k("v_permlane16_swap_b32 v16, v17")
    k("v_add_f32 v16, v16, v17")
    wave_reduce_to63(k, [20], "v_max_u32")
    round_bf16(k, 16, 16)
    k(f"""v_mul_f32 v20, {f32(8.25)}, v20
    v_add_f32 v16, s72, v16
    v_add_f32 v20, 1.0, v20
    v_frexp_exp_i32_f32 v20, v20
    v_readlane_b32 s73, v20, 63""")
    round_bf16(k, 16, 16)
    k.c("K = e+1 ; exponent: sa 6-K (half scale), ca -K, ga K+4, others 0")
    k(f"""s_sub_u32 s74, 5, s73
    s_sub_u32 s75, -1, s73
    s_add_u32 s77, s73, 5
    s_cmp_eq_u32 s70, 0
    s_cselect_b32 s74, s74, 0
    s_cmp_eq_u32 s70, 1
    s_cselect_b32 s74, s75, s74
    s_cmp_eq_u32 s70, 2
    s_cselect_b32 s74, s77, s74
    v_ldexp_f32 v16, v16, s74
    s_cmp_ge_u32 s70, 2
    s_cbranch_scc1 x_f32
    v_cvt_f16_f32 v16, v16
    s_xor_b32 s75, s70, 1
    s_lshl_b32 s75, s75, 11
    s_add_u32 s75, s75, {WS_CS}
    buffer_store_short v16, v5, s[12:15], s75 offen sc1
    s_branch x_fd
    x_f32:
    s_lshl_b32 s75, s70, 12
    s_add_u32 s75, s75, {WS_PAR - 2*4096}
    buffer_store_dword v16, v10, s[12:15], s75 offen sc1
    x_fd:
    s_waitcnt vmcnt(0)""")
    stamp(k, 6)
    k(f"""s_barrier
    s_cmp_lg_u32 s16, 0
    s_cbranch_scc1 x_nf
    s_mov_b64 exec, 0xff
    buffer_store_dwordx2 v[{NON}:{NON+1}], v{FA}, s[12:15], s79 offen sc1
    s_mov_b64 exec, -1
    x_nf:
    s_and_b32 s18, s17, 63
    v_and_b32 v5, 3, v0
    v_lshlrev_b32 v5, 3, v5
    v_and_b32 v6, 1, v0
    v_lshlrev_b32 v6, 10, v6
    v_bfe_u32 v7, v0, 1, 1
    v_lshl_add_u32 v6, v7, 4, v6
    s_lshr_b32 s19, s18, 5
    s_lshl_b32 s19, s19, 11
    s_and_b32 s31, s18, 31
    s_lshl_b32 s31, s31, 5
    s_add_u32 s19, s19, s31
    s_add_u32 s31, s19, {WS_PAR + 3*4096}""")
    for j in range(2):
        k(f"buffer_load_dwordx4 v[{40+4*j}:{43+4*j}], v3, s[8:11], 0 offen offset:{j*1024}")
    k(f"s_sleep {SLX}")
    poll_keys(k, "x_pk", KB, 78, 7)
    stamp(k, 13)
    top2(k, KB, 40, 41, 20)
    k(f"""s_cmp_lt_u32 s17, 64
    s_cselect_b32 s40, s40, s41
    s_and_b32 s40, s40, 0x7ff
    s_lshl_b32 s41, s40, 11
    s_add_u32 s42, s41, {WS_H2}
    s_lshl_b32 s19, s18, 5
    s_add_u32 s41, s41, s19""")
    for j in range(2):
        k(f"buffer_load_dwordx4 v[{32+4*j}:{35+4*j}], v3, s[12:15], s42 offen offset:{j*1024} sc1")
    k("buffer_load_dwordx2 v[84:85], v5, s[24:27], s41 offen sc1")
    k("buffer_load_dwordx4 v[80:83], v6, s[12:15], s31 offen sc1")
    for i in range(8): unpack_bf16(k, 48 + 2*i, 40 + i)
    k(f"""s_lshl_b32 s44, s17, 11
    s_add_u32 s44, s44, {WS_PART}
    v_cmp_gt_u32 vcc, 48, v2
    v_mov_b32 v7, 0x7ff00000
    v_cndmask_b32 v7, v7, v3, vcc
    s_waitcnt vmcnt(2)""")
    for i in range(8): unpack_bf16(k, 64 + 2*i, 32 + i)
    pmul(k, 8, 48, 64)
    for i in range(1, 8): pfma(k, 8, 48 + 2*i, 64 + 2*i, 8)
    k("v_add_f32 v8, v8, v9")
    wave_reduce_to63(k, [8])
    round_bf16(k, 8, 8)
    k(f"""v_mul_f32 v8, {f32(-math.log2(math.e))}, v8
    v_exp_f32 v8, v8
    v_add_f32 v8, 1.0, v8
    v_rcp_f32 v8, v8""")
    round_bf16(k, 8, 8)
    k("v_readlane_b32 s46, v8, 63")
    k("s_waitcnt vmcnt(0)")
    unpack_bf16(k, 44, 84); unpack_bf16(k, 46, 85)
    for h in range(2): pmul_s(k, 80 + 2*h, 80 + 2*h, 46)
    stamp(k, 14)
    L = 16
    k(f"s_sleep {SL4}")
    k(f"s_mov_b32 s83, 0\nx_p2:")
    for j in range(2):
        k(f"buffer_load_dwordx4 v[{L+4*j}:{L+4*j+3}], v{7 if j == 1 else 3}, s[12:15], s44 offen offset:{j*1024} sc1")
    k("s_waitcnt vmcnt(0)")
    chk_sent(k, range(L, L + 8), 12)
    k(f"""s_cbranch_vccz x_p3
    s_add_u32 s83, s83, 1
    s_cmp_lt_u32 s83, {SPIN}
    s_cbranch_scc1 x_p2
    x_p3:""")
    stamp(k, 17)
    for h in range(2): padd(k, L + 2*h, L + 2*h, L + 4 + 2*h)
    regs = [L, L + 1, L + 2, L + 3]
    for sh in (4, 8):
        for r in regs: k(f"v_add_f32_dpp v{r}, v{r}, v{r} row_ror:{sh} {DPPM}")
    for r in regs: k(f"v_mov_b32 v{r+4}, v{r}")
    for r in regs: k(f"v_permlane16_swap_b32 v{r}, v{r+4}")
    for r in regs: k(f"v_add_f32 v{r}, v{r}, v{r+4}")
    for r in regs: k(f"v_mov_b32 v{r+4}, v{r}")
    for r in regs: k(f"v_permlane32_swap_b32 v{r}, v{r+4}")
    for r in regs: k(f"v_add_f32 v{r}, v{r}, v{r+4}")
    for h in range(2): pfma(k, 44 + 2*h, L + 2*h, 80 + 2*h, 44 + 2*h)
    k(f"""v_cvt_pk_bf16_f32 v12, v44, v45
    v_cvt_pk_bf16_f32 v13, v46, v47
    s_mov_b64 exec, 15
    buffer_store_dwordx2 v[12:13], v5, s[24:27], s41 offen sc1""")
    stamp_out(k, 0)

def gen():
    k = K(NAME)
    stamp_init(k)
    k("""s_cmp_ge_u32 s2, 256
    s_cbranch_scc1 k_done""")
    stamp(k, 0)
    k("""v_lshrrev_b32 v1, 6, v0
    v_and_b32 v2, 63, v0
    v_readfirstlane_b32 s16, v1
    v_lshlrev_b32 v3, 4, v2
    s_and_b32 s34, s2, 7""")
    phase_A(k)
    role_F(k)
    role_G(k)
    k("k_done:\ns_endpgm")
    return k

HEADER = """; adaLN + FNet mixing + MoD block, gfx950.  Generated by gen/gen4.py (hand-written generator).
"""
def main(out):
    k = gen()
    t = HEADER + f"; @launch grid=(256,1,1) block=(512,1,1) lds={LDS}\n"
    t += '.amdgcn_target "amdgcn-amd-amdhsa--gfx950"\n.text\n' + k.text() + 'code_end:\n'
    t += '.section .rodata,"a"\n' + k.desc()
    open(out, "w").write(t)
if __name__ == "__main__":
    main(sys.argv[1] if len(sys.argv) > 1 else "adaLN_cond__spectral_fnet__moe_arch_mod__prompt.s")
```

```python
import math, sys, os
from asmgen import K, f32
from gen2 import (srd, P, padd, psub, pmul, pfma, pmul_s, pfma_s, psub_s, unpack_bf16, round_bf16, DPPM,
                  row_allreduce, wave_reduce_to63, pos16, pos32, stamp, stamp_init, stamp_out, chk_sent,
                  A_X, A_WR, A_WG, A_WU, A_WD, A_C, A_WM, A_OUT, A_DBG, A_WS, WS_SIZE)
from gen4 import get_nonce_issue, get_nonce_finish, poll_keys, top2, fft_consts, E, SPIN, SL1, SL2, SL3, SL4, XFAST, NAME

WSO = int(os.environ.get("WSO", "0"), 0)
WS_Z1   = WSO + 0x0100000
WS_ZF   = WSO + 0x0600000
WS_CAP  = WSO + 0x1000000
WS_MODP = WSO + 0x1010000
WS_PAR  = WSO + 0x1042000
WS_FL1  = WSO + 0x1050000
WS_FLM  = WSO + 0x1054000
WS_FLX  = WSO + 0x1058000
WS_FLG  = WSO + 0x105C000
WS_ZL   = WSO + 0x1060000
WS_MX   = WSO + 0x1070000
WS_SENT = WSO + 0x1200000
WS_PART = WS_SENT
WS_XA   = WS_SENT + 0x80000
WS_XB   = WS_SENT + 0xC0000
WS_KEY  = WS_SENT + 0xF8000
WS_KEY2 = WS_SENT + 0xB8000
WS_TT   = WS_SENT + 0xFC000
WS_SLOT = WS_SENT + 0x100000
L_C = 0; L_P = 16384; L_Y = 36864; L_KEY = L_Y + 9 * 4608; L_ST = L_KEY + 128
L_SI = L_ST + 256; L_CS = 79872; L_S = 83968; L_T = 16384; XP = 2080
LDS = 131072 + 8192
NON = 6; FA = 62
NTD = os.environ.get('NTD', ''); NTG = os.environ.get('NTG', ''); NTV = os.environ.get('NTV', '')
B2AT = E('B2AT', 1)
DEPTH = E('DEPTH', 0); GDEPTH = E('GDEPTH', 0); ZFL = os.environ.get('ZFL', 'sc1 nt')
LOG2E = f32(-math.log2(math.e))

def cmp_recs(k, base, n, tmp, mask_hi=False):
    for i in range(n): k(f"v_xor_b32 v{base+i}, s{32 + (i & 1)}, v{base+i}")
    if mask_hi:
        k(f"v_or_b32 v{tmp+1}, v{base+1}, v{base+3}")
        k(f"v_and_b32 v{tmp}, -8, v{tmp+1}")
        k(f"v_or3_b32 v{tmp}, v{tmp}, v{base}, v{base+2}")
    else:
        k(f"v_or3_b32 v{tmp}, v{base}, v{base+1}, v{base+2}")
        k(f"v_or_b32 v{tmp}, v{tmp}, v{base+3}")
    k(f"v_cmp_ne_u32 vcc, 0, v{tmp}")
def poll_recs(k, lab, base, vaddr, soff, tmp, mask_hi=False, sl=None):
    k(f"s_mov_b32 s83, 0\n{lab}:")
    k(f"buffer_load_dwordx4 v[{base}:{base+3}], v{vaddr}, s[12:15], s{soff} offen sc1")
    k("s_waitcnt vmcnt(0)")
    cmp_recs(k, base, 4, tmp, mask_hi)
    k(f"""s_cbranch_vccz {lab}x
    s_sleep {SL2 if sl is None else sl}
    s_add_u32 s83, s83, 1
    s_cmp_lt_u32 s83, {SPIN}
    s_cbranch_scc1 {lab}
    {lab}x:""")
def spoll(k, lab, soff, xcc):
    k(f"s_or_b32 s41, s33, s39\ns_mov_b32 s40, s32\ns_mov_b32 s72, 0\ns_mov_b32 s83, 0")
    par = not E("STAMPS", 0)
    for h in range(1 if par else 2):
        k(f"""{lab}{h}:
        s_load_dwordx16 s[56:71], s[6:7], s{soff} offset:{h*64} glc""")
        if par: k(f"s_load_dwordx16 s[84:99], s[6:7], s{soff} offset:64 glc")
        k("s_waitcnt lgkmcnt(0)")
        for i in range(8): k(f"s_xor_b64 s[{56+2*i}:{57+2*i}], s[{56+2*i}:{57+2*i}], s[40:41]")
        if par:
            for i in range(8): k(f"s_xor_b64 s[{84+2*i}:{85+2*i}], s[{84+2*i}:{85+2*i}], s[40:41]")
            for i in range(8): k(f"s_or_b64 s[{56+2*i}:{57+2*i}], s[{56+2*i}:{57+2*i}], s[{84+2*i}:{85+2*i}]")
        for st in (8, 4, 2):
            for i in range(0, st, 2): k(f"s_or_b64 s[{56+i}:{57+i}], s[{56+i}:{57+i}], s[{56+st+i}:{57+st+i}]")
        k(f"""s_and_b32 s58, s57, -8
        s_or_b32 s58, s58, s56
        s_cbranch_scc0 {lab}{h}x
        s_sleep {E("SSL", 4)}
        s_add_u32 s83, s83, 1
        s_cmp_lt_u32 s83, {SPIN}
        s_cbranch_scc1 {lab}{h}
        {lab}{h}x:
        s_or_b32 s72, s72, s57""")
def go_wait(k, lab, soff):
    k(f"""v_mov_b32 v22, 0
    s_mov_b32 s83, 0
    {lab}:
    buffer_load_dword v23, v22, s[12:15], s{soff} offen offset:1024 sc1
    s_waitcnt vmcnt(0)
    v_cmp_eq_u32 vcc, -1, v23
    s_cbranch_vccz {lab}x
    s_sleep {E("SLG", 3)}
    s_add_u32 s83, s83, 1
    s_cmp_lt_u32 s83, {SPIN}
    s_cbranch_scc1 {lab}
    {lab}x:
    s_sleep {E("SLG2", 1)}""")
def res_wait(k, lab, soff, vz, vd, sl):
    k(f"""v_mov_b32 v{vz}, 0
    s_mov_b32 s83, 0
    {lab}:
    buffer_load_dwordx2 v[{vd}:{vd+1}], v{vz}, s[12:15], s{soff} offen offset:1280 sc1
    s_waitcnt vmcnt(0)
    v_readfirstlane_b32 s40, v{vd}
    v_readfirstlane_b32 s41, v{vd+1}
    s_max_u32 s42, s40, s41
    s_cmp_lg_u32 s42, -1
    s_cbranch_scc1 {lab}x
    s_sleep {sl}
    s_add_u32 s83, s83, 1
    s_cmp_lt_u32 s83, {SPIN}
    s_cbranch_scc1 {lab}
    {lab}x:""")
def rb2(k, v, t):
    k(f"v_cvt_pk_bf16_f32 v{t}, v{v}, v{v+1}")
    unpack_bf16(k, v, t)

L_B = 118784
def role_F(k):
    XRA, XRB, ZA, ZB, CS, SAR = 8, 16, 24, 32, 40, 48
    V70, YW, YRA, YRM, YRB, YRC = 56, 57, 58, 59, 60, 61
    BRE, BIM, TC, TS, W, D1R, D1I = 64, 80, 96, 112, 128, 144, 160
    GA, C1, WR, XA2, XB2 = 176, 192, 208, 224, 240
    L = 24; B1R, B1I, B2R, B2I, T2C, T2S = 192, 196, 40, 44, 48, 52
    SA_, RA_, TWA, TRA, STA = 200, 204, 205, 206, 207
    k(f"""s_load_dwordx2 s[4:5], s[0:1], {A_X}
    s_load_dwordx4 s[24:27], s[0:1], {A_OUT}
    s_load_dwordx2 s[6:7], s[0:1], {A_WS}
    s_load_dwordx4 s[48:51], s[0:1], {A_C}
    s_getreg_b32 s39, hwreg(HW_REG_XCC_ID)
    s_getpc_b64 s[62:63]
    f_pc:
    s_add_u32 s62, s62, tables-f_pc
    s_addc_u32 s63, s63, 0
    s_lshr_b32 s35, s2, 4
    s_lshl_b32 s42, s16, 11
    s_mov_b32 m0, s42
    v_add_u32 v4, s42, v3
    global_load_lds_dwordx4 v4, s[62:63]
    global_load_lds_dwordx4 v4, s[62:63] offset:1024
    s_lshr_b32 s43, s35, 3
    s_cmp_eq_u32 s34, 0
    s_cselect_b32 s43, s43, 0
    s_lshl_b32 s43, s43, 13
    s_lshl_b32 s42, s16, 10
    s_add_u32 s43, s43, s42
    s_add_u32 s43, s43, 16384
    s_add_u32 s42, s42, {L_B}
    s_mov_b32 m0, s42
    v_add_u32 v4, s43, v3
    s_cmp_ge_u32 s16, 6
    s_cbranch_scc1 f_nt
    global_load_lds_dwordx4 v4, s[62:63]
    f_nt:""")
    k.c("s35 = mm ; s3 = c*16+mm ; s17 = r ; GEMV tile: kq = s40 = s3&3, nchunk = s41 = s3>>2")
    k(f"""s_and_b32 s39, s39, 7
    s_lshl_b32 s3, s34, 4
    s_add_u32 s3, s3, s35
    s_sub_u32 s17, 16, s34
    s_cmp_eq_u32 s34, 0
    s_cselect_b32 s17, 8, s17
    s_bitcmp1_b32 s35, 0
    s_cselect_b32 s17, s17, s34
    s_lshr_b32 s36, s35, 1
    s_lshl_b32 s36, s36, 4
    s_add_u32 s17, s17, s36
    s_lshl_b32 s36, s16, 8
    s_add_u32 s36, s36, s17
    s_lshl_b32 s36, s36, 11
    s_add_u32 s37, s36, {128*2048}
    s_and_b32 s40, s3, 3
    s_lshr_b32 s41, s3, 2
    v_and_b32 v70, 15, v0
    v_bfe_u32 v71, v0, 4, 2
    v_lshlrev_b32 v4, 1, v0
    v_bfe_u32 v5, v0, 5, 1
    v_lshlrev_b32 v5, 3, v5
    v_bfe_u32 v7, v0, 3, 2
    v_add_u32 v5, v5, v7
    v_mul_u32_u24 v5, 12288, v5
    v_lshlrev_b32 v7, 1, v71
    v_xor_b32 v7, v7, v0
    v_and_b32 v7, 7, v7
    v_lshl_add_u32 v5, v7, 4, v5
    s_lshl_b32 s42, s40, 3
    s_add_u32 s42, s42, s16
    s_mul_i32 s42, s42, {32*12288}
    s_lshl_b32 s43, s41, 7
    s_add_u32 s42, s42, s43
    s_lshl_b32 s43, s16, 12
    s_add_u32 s43, s43, {L_T}
    s_lshl_b32 s44, s40, 9""")
    k.c("A-matrix base: lane m = 2k+c', rows j = 4g+i")
    AB = 40
    k(f"""v_lshrrev_b32 v72, 1, v70
    v_and_b32 v73, 1, v0
    v_cmp_eq_u32 vcc, 1, v70
    v_mov_b32 v74, s17
    v_cndmask_b32_e64 v72, v72, 8, vcc
    v_cndmask_b32_e64 v74, v74, 0, vcc
    v_cndmask_b32_e64 v73, v73, 0, vcc
    v_lshl_add_u32 v74, v71, 9, v74
    v_mul_u32_u24 v74, v72, v74
    v_lshl_add_u32 v74, v73, 9, v74
    v_lshlrev_b32 v72, 7, v72
    v_cmp_gt_u32 vcc, 2, v70
    v_mov_b32 v75, {f32(1.0/16)}
    v_mov_b32 v76, {f32(1.0/32)}
    v_cndmask_b32 v75, v75, v76, vcc
    s_waitcnt lgkmcnt(0)""")
    srd(k, 8, 4, 2048 * 1024 * 2)
    stamp(k, 1)
    XW = 24
    for h in range(2):
        for jj in range(2):
            k(f"buffer_load_dwordx4 v[{XW+8*jj+4*h}:{XW+8*jj+4*h+3}], v3, s[8:11], s{36+jj} offen offset:{h*1024}")
    srd(k, 52, 48, 2048)
    srd(k, 56, 50, 1024 * 6144 * 2)
    k("buffer_load_ushort v63, v4, s[52:55], s44 offen")
    k("s_mov_b32 s72, s42\ns_mov_b32 s73, s43")
    srd(k, 12, 6, WS_SIZE)
    srd(k, 20, 26, 256)
    k("s_mov_b32 s26, 4194304\ns_mov_b32 s27, 0x00020000")
    for i in range(4):
        k(f"v_and_b32 v{AB+i}, 2047, v74")
        if i < 3: k("v_add_u32 v74, v74, v72")
    for i in range(4): k(f"v_cvt_f32_u32 v{AB+i}, v{AB+i}")
    for i in range(4): k(f"v_mul_f32 v{AB+i}, {f32(1.0/2048)}, v{AB+i}")
    for i in range(4): k(f"v_cos_f32 v{AB+i}, v{AB+i}")
    for i in range(4): k(f"v_mul_f32 v{AB+i}, v75, v{AB+i}")
    VO, XWA, TRA_, RT, MT, STW = 44, 45, 46, 47, 52, 53
    GT, GS, GO_ = 64, 65, 66
    k(f"""s_mov_b32 s47, {L_S}
    v_lshlrev_b32 v{VO}, 20, v71
    v_lshl_add_u32 v{VO}, v1, 15, v{VO}
    v_lshl_add_u32 v{VO}, v70, 4, v{VO}
    v_mul_u32_u24 v{XWA}, {2*XP}, v1
    v_add3_u32 v{XWA}, v{XWA}, v3, s47
    v_lshrrev_b32 v72, 2, v2
    v_mul_u32_u24 v{TRA_}, {XP}, v72
    v_lshlrev_b32 v{GT}, 7, v72
    v_and_b32 v72, 3, v0
    v_lshl_add_u32 v{TRA_}, v72, 3, v{TRA_}
    v_lshl_add_u32 v{GT}, v72, 3, v{GT}
    v_lshrrev_b32 v72, 1, v1
    v_lshl_add_u32 v{TRA_}, v72, 8, v{TRA_}
    v_and_b32 v72, 1, v1
    v_lshl_add_u32 v{TRA_}, v72, 5, v{TRA_}
    v_add_u32 v{TRA_}, s47, v{TRA_}
    v_lshlrev_b32 v{RT}, 4, v71
    v_add_u32 v{GS}, {L_SI}, v{RT}
    v_add_u32 v{RT}, {L_ST}, v{RT}
    v_lshlrev_b32 v{MT}, 3, v71
    v_add_u32 v{MT}, {L_ST+64}, v{MT}
    v_lshrrev_b32 v72, 5, v0
    v_lshlrev_b32 v{STW}, 2, v72
    v_add_u32 v{STW}, {L_ST}, v{STW}
    v_lshlrev_b32 v54, 1, v72
    v_add_u32 v54, {L_ST+64}, v54
    v_add_u32 v67, {L_SI}, v4
    v_bfe_u32 v72, v0, 3, 2
    v_xor_b32 v72, v72, v1
    v_lshl_add_u32 v{GT}, v72, 5, v{GT}
    v_lshlrev_b32 v{GO_}, 2, v2
    v_lshlrev_b32 v{FA}, 11, v2
    s_lshl_b32 s64, s3, 8
    s_add_u32 s64, s64, {WS_Z1}
    s_add_u32 s65, s64, 262144
    s_add_u32 s66, s64, 524288
    s_add_u32 s67, s64, {524288+262144}
    s_mov_b32 s44, 0x3f803f80
    s_mov_b32 s46, {f32(1.0/1024)}
    s_lshl_b32 s42, s40, 13
    s_lshl_b32 s43, s41, 8
    s_add_u32 s42, s42, s43
    s_lshl_b32 s43, s16, 6
    s_add_u32 s42, s42, s43
    s_add_u32 s42, s42, {WS_CAP}
    s_lshl_b32 s78, s3, 3
    s_add_u32 s80, s78, {WS_KEY}
    s_add_u32 s78, s78, {WS_FL1}
    s_lshl_b32 s60, s35, 3
    s_add_u32 s60, s60, s16
    s_lshl_b32 s30, s60, 4
    s_add_u32 s30, s30, s34
    s_lshl_b32 s28, s60, 8
    s_add_u32 s29, s28, 262144
    s_cmp_lg_u32 s34, 0
    s_cbranch_scc1 f_g1
    s_sub_u32 s29, 128, s60
    s_cmp_eq_u32 s60, 0
    s_cselect_b32 s29, 64, s29
    s_lshl_b32 s29, s29, 8
    s_cmp_lt_u32 s60, 64
    s_cbranch_scc1 f_g1
    s_sub_u32 s30, s30, {1024-8}
    s_add_u32 s28, s28, {262144-64*256}
    s_add_u32 s29, s29, {262144+63*256}
    f_g1:
    s_lshl_b32 s61, s34, 19
    s_add_u32 s61, s61, {WS_ZF if E('ZMODE', 0) else WS_Z1}
    s_add_u32 s28, s28, s61
    s_add_u32 s29, s29, s61
    s_add_u32 s52, s28, 131072
    s_add_u32 s53, s29, 131072
    s_sub_u32 s31, 2048, s30
    s_cmp_eq_u32 s30, 0
    s_cselect_b32 s31, 1024, s31
    s_lshl_b32 s18, s30, 11
    s_lshl_b32 s19, s31, 11
    s_lshl_b32 s76, s34, 11
    s_add_u32 s77, s76, {WS_FLG}
    s_add_u32 s75, s76, {WS_FLX}
    s_add_u32 s74, s76, {WS_KEY}
    s_add_u32 s76, s76, {WS_FL1}
    s_lshl_b32 s79, s35, 3
    s_add_u32 s79, s79, s77""")
    def wdma():
        for d in range(4):
            rows = 16 * (d & 1) + 4 * (d >> 1)
            k(f"s_add_u32 s71, s72, {rows*12288}")
            k(f"s_mov_b32 m0, s73")
            k(f"s_add_u32 s73, s73, 1024")
            k(f"buffer_load_dwordx4 v5, s[56:59], s71 offen lds")
    WPOS = E("WPOS", 1)
    PW = E("PW", 0)
    if WPOS == 0: wdma()
    S = 48
    for h in range(2):
        for jj in range(2):
            k(f"s_waitcnt vmcnt({(8 if WPOS == 0 else 4) - 2*h - jj})")
            k(f"ds_write_b128 v{XWA}, v[{XW+8*jj+4*h}:{XW+8*jj+4*h+3}] offset:{jj*XP + h*1024}")
            for q in range(4):
                r = XW + 8*jj + 4*h + q
                first = (h == 0 and q == 0)
                k(f"v_dot2_f32_bf16 v{S+jj}, v{r}, s44, {'0' if first else f'v{S+jj}'}")
                k(f"v_dot2_f32_bf16 v{S+2+jj}, v{r}, v{r}, {'0' if first else f'v{S+2+jj}'}")
    stamp(k, 2)
    if PW:
        k(f"""s_cmp_lg_u32 s16, 0
        s_cbranch_scc1 f_npw
        v_mov_b32 v72, 0
        v_mov_b32 v73, 0
        s_mov_b64 exec, 0xff
        buffer_store_dwordx2 v[72:73], v{FA}, s[12:15], s78 offen sc1
        s_mov_b64 exec, -1
        f_npw:""")
    if WPOS == 1: wdma()
    R = 96
    k("s_nop 1")
    def red1(js):
        for j in js: k(f"v_permlane32_swap_b32 v{S+j}, v{S+j+1}")
        for j in js: k(f"v_add_f32 v{S+j}, v{S+j}, v{S+j+1}")
        regs = [S + j for j in js]
        row_allreduce(k, regs)
        for r in regs: k(f"v_add_f32_dpp v{r}, v{r}, v{r} row_bcast:15 row_mask:0xa bank_mask:0xf")
    red1((0, 2))
    k.c("lanes 31 / 63 hold the two rows")
    V = S + 2
    k(f"""v_mul_f32 v{S}, s46, v{S}
    v_mul_f32 v{V}, s46, v{V}
    v_mul_f32 v{R+4}, v{S}, v{S}
    v_cvt_pk_bf16_f32 v55, -v{S}, -v{S}
    v_sub_f32 v{V}, v{V}, v{R+4}
    v_mul_f32 v{R+6}, {f32(512.0)}, v{V}
    v_cmp_gt_f32 vcc, v{R+4}, v{R+6}
    s_or_b32 s68, vcc_lo, vcc_hi
    s_bitcmp1_b32 s68, 31
    s_cbranch_scc1 f_slowvar
    f_var:""")
    round_bf16(k, V, V)
    k(f"v_add_f32 v{V}, {f32(1e-5)}, v{V}")
    round_bf16(k, V, V)
    k(f"v_sqrt_f32 v{V}, v{V}")
    round_bf16(k, V, V)
    k(f"""v_rcp_f32 v{V}, v{V}
    s_mov_b32 exec_lo, 0x80000000
    s_mov_b32 exec_hi, 0x80000000
    ds_write_b16 v54, v55
    ds_write_b32 v{STW}, v{V}
    s_mov_b64 exec, -1""")
    if WPOS == 2: wdma()
    k(f"""s_waitcnt lgkmcnt(0)
    s_barrier
    ds_read_b128 v[{R}:{R+3}], v{RT}
    ds_read_b64 v[{R+4}:{R+5}], v{MT}""")
    BFR = 80
    for ah in range(2):
        for q in range(4):
            u = ah * 4 + q
            k(f"ds_read_b64_tr_b16 v[{BFR+2*u}:{BFR+2*u+1}], v{TRA_} offset:{ah*1024 + q*64}")
    XE = E("XE", 1)
    if XE:
        for j in range(2):
            k(f"buffer_load_dwordx4 v[{XRA+4*j}:{XRA+4*j+3}], v3, s[8:11], s18 offen offset:{j*1024}")
            k(f"buffer_load_dwordx4 v[{XRB+4*j}:{XRB+4*j+3}], v3, s[8:11], s19 offen offset:{j*1024}")
    k("s_waitcnt lgkmcnt(8)")
    BM = R + 4
    for h in range(2): pmul(k, AB + 2*h, AB + 2*h, R + 2*h)
    AH, AL, T = 48, 50, 104
    for h in range(2): k(f"v_cvt_pk_bf16_f32 v{AH+h}, v{AB+2*h}, v{AB+2*h+1}")
    for h in range(2): unpack_bf16(k, T + 2*h, AH + h)
    D0 = 108; D = 112
    k(f"v_mfma_f32_16x16x16_bf16 v[{D0}:{D0+3}], v[{AH}:{AH+1}], v[{BM}:{BM+1}], 0")
    for h in range(2): psub(k, T + 2*h, AB + 2*h, T + 2*h)
    for h in range(2): k(f"v_cvt_pk_bf16_f32 v{AL+h}, v{T+2*h}, v{T+2*h+1}")
    k(f"v_mfma_f32_16x16x16_bf16 v[{D0}:{D0+3}], v[{AL}:{AL+1}], v[{BM}:{BM+1}], v[{D0}:{D0+3}]")
    k("s_waitcnt lgkmcnt(0)")
    for u in range(8):
        k(f"v_mfma_f32_16x16x16_bf16 v[{D+4*u}:{D+4*u+3}], v[{AL}:{AL+1}], v[{BFR+2*u}:{BFR+2*u+1}], v[{D0}:{D0+3}]")
    for u in (0, 4, 1, 5, 2, 6, 3, 7):
        k(f"v_mfma_f32_16x16x16_bf16 v[{D+4*u}:{D+4*u+3}], v[{AH}:{AH+1}], v[{BFR+2*u}:{BFR+2*u+1}], v[{D+4*u}:{D+4*u+3}]")
    OB = 144
    k("v_mov_b32 v4, 0")
    for ah in range(2):
        for q in range(4):
            u = ah * 4 + q
            k(f"v_cvt_pk_f16_f32 v{OB + (2+ah)*4 + q}, v{D+4*u+2}, v{D+4*u+3}")
        k(f"buffer_store_dwordx4 v[{OB+4*(2+ah)}:{OB+4*(2+ah)+3}], v{VO}, s[12:15], s{66+ah} offen sc1")
    k("s_mov_b64 exec, 0xffff")
    for q in range(4):
        k(f"v_swap_b32 v{D+4*q+1}, v{D+4*(4+q)}")
    k("s_mov_b64 exec, -1")
    for ah in range(2):
        for q in range(4):
            u = ah * 4 + q
            k(f"v_cvt_pk_f16_f32 v{OB + ah*4 + q}, v{D+4*u}, v{D+4*u+1}")
        k(f"buffer_store_dwordx4 v[{OB+4*ah}:{OB+4*ah+3}], v{VO}, s[12:15], s{64+ah} offen sc1")
    get_nonce_issue(k, 4, NON)
    stamp(k, 3)
    k.c("---- sa|ca GEMV tile on MFMA: waves 0-3, N-tile = wave ----")
    k(f"""s_waitcnt vmcnt({13 if XE else 9})
    v_lshlrev_b32 v63, 16, v63
    v_mul_f32 v72, {LOG2E}, v63
    v_exp_f32 v72, v72
    v_add_f32 v72, 1.0, v72
    v_rcp_f32 v72, v72
    v_mul_f32 v63, v63, v72
    v_cvt_pk_bf16_f32 v63, v63, v63
    ds_write_b16 v67, v63
    s_waitcnt vmcnt({9 if XE else 5}) lgkmcnt(0)
    s_barrier
    s_cmp_ge_u32 s16, 4
    s_cbranch_scc1 f_ngv""")
    GB_, GA_ = 160, 224
    for ks in range(8):
        k(f"ds_read_b128 v[{GA_+4*ks}:{GA_+4*ks+3}], v{GS} offset:{ks*64}")
        k(f"ds_read_b64_tr_b16 v[{GB_+4*ks}:{GB_+4*ks+1}], v{GT} offset:{L_T+ks*4096}")
        k(f"ds_read_b64_tr_b16 v[{GB_+4*ks+2}:{GB_+4*ks+3}], v{GT} offset:{L_T+ks*4096+2048}")
    for ks in range(8):
        if ks in (0, 4): k(f"s_waitcnt lgkmcnt({12 if ks == 0 else 0})")
        cc = "0" if ks == 0 else "v[76:79]"
        k(f"v_mfma_f32_16x16x32_bf16 v[76:79], v[{GA_+4*ks}:{GA_+4*ks+3}], v[{GB_+4*ks}:{GB_+4*ks+3}], {cc}")
    k(f"""s_mov_b64 exec, 0xffff
    buffer_store_dword v76, v{GO_}, s[12:15], s42 offen sc1
    s_mov_b64 exec, -1
    f_ngv:""")
    k.c("---- phase-B / phase-C addresses (while the stores drain) ----")
    k(f"""v_lshrrev_b32 v79, 1, v71
    v_and_b32 v75, 1, v71
    v_lshl_add_u32 v74, v1, 1, v75
    v_xor_b32 v74, v74, v70
    v_lshlrev_b32 v74, 4, v74
    v_lshl_add_u32 v{SA_}, v71, 8, v74
    v_lshl_add_u32 v76, v1, 1, v79
    v_xor_b32 v74, v76, v70
    v_lshlrev_b32 v74, 4, v74
    v_lshl_add_u32 v74, v70, 8, v74
    v_lshl_add_u32 v{TWA}, v75, 12, v74
    v_sub_u32 v74, 16, v70
    v_and_b32 v74, 7, v74
    v_cmp_gt_u32 vcc, 8, v70
    v_cndmask_b32 v74, v74, v70, vcc
    v_lshrrev_b32 v77, 3, v70
    v_lshl_add_u32 v78, v74, 1, v77
    v_xor_b32 v78, v78, v76
    v_lshlrev_b32 v78, 4, v78
    v_lshl_add_u32 v78, v74, 12, v78
    v_lshl_add_u32 v78, v77, 8, v78
    v_lshl_add_u32 v{RA_}, v75, 11, v78
    v_add_u32 v{RA_}, {L_S}, v{RA_}
    v_lshlrev_b32 v{TRA}, 4, v0
    v_bfe_u32 v74, v0, 4, 4
    v_lshlrev_b32 v{STA}, 11, v74
    v_xor_b32 v74, v74, v70
    v_lshl_add_u32 v{STA}, v74, 4, v{STA}
    v_lshrrev_b32 v74, 8, v0
    v_lshl_add_u32 v{STA}, v74, 10, v{STA}
    v_and_b32 v{V70}, 0x70, v3
    s_lshl_b32 s73, s35, 15
    s_add_u32 s73, s73, s61
    s_lshl_b32 s43, s16, 12
    s_add_u32 s42, s73, s43
    s_sub_u32 s42, s42, {(WS_ZF - WS_Z1) if E('ZMODE', 0) else 0}
    s_add_u32 s45, s43, {L_Y}
    s_add_u32 s43, s43, {L_S}
    s_mov_b32 m0, s43
    s_lshl_b32 s46, s16, 10
    s_add_u32 s47, s46, {WS_PAR}
    s_add_u32 s46, s46, {L_P}
    v_and_b32 v74, 31, v0
    v_bfe_u32 v75, v0, 1, 2
    v_lshl_add_u32 v74, v74, 2, v75
    v_lshlrev_b32 v74, 4, v74
    v_bfe_u32 v75, v0, 5, 1
    v_lshl_add_u32 v74, v75, 11, v74
    v_add_u32 v{YW}, s45, v74""")
    def yaddr(dst, first):
        k(first)
        k(f"""v_bfe_u32 v75, v74, 3, 2
        v_xor_b32 v74, v74, v75
        v_lshl_add_u32 v{dst}, v74, 4, s45""")
    yaddr(YRA, "v_mov_b32 v74, v2")
    yaddr(YRM, "v_sub_u32 v74, 63, v2")
    yaddr(YRB, "v_sub_u32 v74, 128, v2\nv_and_b32 v74, 127, v74")
    yaddr(YRC, "v_sub_u32 v74, 64, v2")
    k("v_lshlrev_b32 v74, 1, v0")
    pos16(k, 63, 74, 75)
    k(f"""v_add_u32 v63, {L_CS}, v63
    v_add_u32 v5, {L_B}, v3""")
    for i, base in enumerate((B1R, B1I, B2R, B2I, T2C, T2S)):
        k(f"ds_read_b128 v[{base}:{base+3}], v5 offset:{i*1024}")
    for a_, base in enumerate((BRE, BIM, TC, TS)):
        for q in range(4):
            k(f"ds_read_b128 v[{base+4*q}:{base+4*q+3}], v3 offset:{L_C+a_*4096+q*1024}")
    k(f"""s_lshl_b32 s68, s16, 7
    s_add_u32 s76, s76, s68""")
    if XE:
        k("s_waitcnt vmcnt(5)")
        for i in range(8): unpack_bf16(k, XA2 + 2*i, XRA + i)
        for i in range(8): unpack_bf16(k, XB2 + 2*i, XRB + i)
    if E("NOCAP", 0): k("s_cmp_ge_u32 s16, 4\ns_cbranch_scc1 f_nc9\ns_waitcnt vmcnt(1)\ns_branch f_nc8\nf_nc9:\ns_waitcnt vmcnt(0)\nf_nc8:")
    else: k("s_waitcnt vmcnt(0)")
    stamp(k, 4)
    get_nonce_finish(k, "f_non", 4, NON)
    k(f"""v_or_b32 v5, s39, v{NON+1}
    v_mov_b32 v4, v{NON}
    s_cmp_lg_u32 s16, 0
    s_barrier
    s_cbranch_scc1 f_nf1
    s_mov_b64 exec, {"0xffff" if E("TWOSET", 0) else "0xff"}
    buffer_store_dwordx2 v[4:5], v{FA}, s[12:15], s78 offen sc1
    s_mov_b64 exec, -1
    buffer_load_dword v129, v{V70}, s[12:15], s77 offen sc1
    f_nf1:""")
    if not XE:
        for j in range(2):
            k(f"buffer_load_dwordx4 v[{XRA+4*j}:{XRA+4*j+3}], v3, s[8:11], s18 offen offset:{j*1024}")
            k(f"buffer_load_dwordx4 v[{XRB+4*j}:{XRB+4*j+3}], v3, s[8:11], s19 offen offset:{j*1024}")
    if E("TWOSET", 0):
        k.c("first look goes to a second replica set, so late arrivers do not back off and early ones leave the main set alone")
        k(f"""s_add_u32 s68, s76, 16384
        s_sleep {E('SLA', 6)}
        buffer_load_dwordx4 v[24:27], v{V70}, s[12:15], s68 offen sc1
        s_waitcnt vmcnt(0)""")
        cmp_recs(k, 24, 4, 4, mask_hi=True)
        k("s_cbranch_vccz f_p1x")
    k(f"s_sleep {E('SLF', 24)}")
    SP = E("SPOLL", 0)
    if SP:
        spoll(k, "f_p1", 76, True)
    else:
        poll_recs(k, "f_p1", 24, V70, 76, 4, mask_hi=True)
    stamp(k, 5)
    k.c("================= phase B =================")
    CP = 208
    for i in range(4):
        k(f"buffer_load_dwordx4 v{SA_}, s[12:15], s42 offen offset:{i*1024} sc1 lds")
    HW = E("HW", 0)
    k(f"""s_cmp_lg_u32 s16, {HW}
    s_cbranch_scc1 f_nzl
    s_lshl_b32 s68, s3, 7
    s_add_u32 s68, s68, {WS_ZL}
    v_mov_b32 v4, 0
    s_mov_b64 exec, 1
    buffer_store_dwordx2 v[{NON}:{NON+1}], v4, s[12:15], s68 offen sc1
    s_mov_b64 exec, -1
    f_nzl:""")
    k.c("same die for the whole group? wave c saw the records of group c")
    k(f"""v_mov_b32 v5, {L_KEY+96}
    s_cmp_lg_u32 s16, s34
    s_cbranch_scc1 f_np1""")
    if SP:
        k("v_mov_b32 v4, s72")
    else:
        k("""v_cmp_ne_u32 vcc, s39, v25
        v_cmp_ne_u32 s[68:69], s39, v27
        s_or_b32 s68, vcc_lo, s68
        v_mov_b32 v4, s68""")
    k("""ds_write_b32 v5, v4
    f_np1:""")
    if not XE:
        k("s_waitcnt vmcnt(4)")
        for i in range(8): unpack_bf16(k, XA2 + 2*i, XRA + i)
        for i in range(8): unpack_bf16(k, XB2 + 2*i, XRB + i)
    KW, KR = 8, 9
    YWQ = [YW, 18, 19, 20]
    k(f"""v_lshrrev_b32 v23, 5, v0
    v_lshlrev_b32 v{KW}, 2, v23
    v_add_u32 v{KW}, {L_KEY}, v{KW}
    v_and_b32 v4, 15, v0
    v_lshlrev_b32 v4, 2, v4
    v_add_u32 v{KR}, {L_KEY}, v4
    v_xor_b32 v18, 16, v{YW}
    v_xor_b32 v19, 32, v{YW}
    v_xor_b32 v20, 48, v{YW}
    v_lshrrev_b32 v21, 4, v2
    v_lshlrev_b32 v21, 15, v21
    v_lshl_add_u32 v21, v4, 2, v21
    v_lshlrev_b32 v10, 2, v1
    v_add_u32 v10, {L_ST+128}, v10
    v_mov_b32 v11, {L_ST+128}
    v_add_u32 v12, {L_CS}, v3
    v_lshlrev_b32 v4, 3, v0
    s_mov_b32 s42, {WS_CAP+4096}""")
    for i in range(8): k(f"v_mov_b32 v{CP+8+i}, 0")
    FPG = E("FPG", 0)
    if FPG:
        k(f"""s_load_dwordx2 s[64:65], s[0:1], {(A_WG, A_WU)[E("FPGM", 0)]}
        v_lshrrev_b32 v13, 3, v2
        v_mul_u32_u24 v13, 7168, v13
        v_and_b32 v24, 7, v0
        v_min_u32 v24, 6, v24
        v_lshl_add_u32 v13, v24, 7, v13
        s_lshl_b32 s70, s35, 3
        s_add_u32 s70, s70, s16
        s_lshr_b32 s71, s70, 6
        s_and_b32 s70, s70, 63
        s_mul_i32 s70, s70, {FPG}
        s_lshl_b32 s71, s71, 9
        s_add_u32 s70, s70, s71
        s_add_u32 s70, s70, {(512 - 64*FPG) if not E("FPGM", 0) else 0}
        s_mul_i32 s70, s70, 7168
        s_mul_i32 s71, s34, 896
        s_add_u32 s70, s70, s71
        s_mov_b32 s66, {1024*3584*2}
        s_mov_b32 s67, 0x00020000""")
    k("""s_waitcnt vmcnt(0) lgkmcnt(0)
    s_barrier""")
    stamp(k, 6); stamp(k, 40)
    for j in range(4):
        k(f"ds_read_b128 v[{L+4*j}:{L+4*j+3}], v{RA_} offset:{j*512}")
    k("ds_read_b32 v22, v5")
    for i in range(4):
        k(f"buffer_load_dwordx2 v[{CP+2*i}:{CP+2*i+1}], v4, s[12:15], s42 offen sc1")
        if i < 3: k("s_add_u32 s42, s42, 8192")
    k(f"""s_cmp_lg_u32 s3, 0
    s_cbranch_scc1 f_nsa
    s_mov_b32 s42, {WS_CAP}""")
    for i in range(4):
        k(f"buffer_load_dwordx2 v[{CP+8+2*i}:{CP+8+2*i+1}], v4, s[12:15], s42 offen sc1")
        if i < 3: k("s_add_u32 s42, s42, 8192")
    k("f_nsa:")
    if FPG:
        msk = (1 << (8 * FPG)) - 1
        k(f"s_mov_b32 exec_lo, {msk & 0xffffffff}\ns_mov_b32 exec_hi, {msk >> 32}")
        k("buffer_load_dword v14, v13, s[64:67], s70 offen\ns_mov_b64 exec, -1")
    k("""s_waitcnt lgkmcnt(0)
    v_readfirstlane_b32 s38, v22
    v_mov_b32 v22, 0xffffff00""")
    stamp(k, 41)
    for j in range(4):
        for cc in range(j + 1, 4):
            k(f"v_swap_b32 v{L+4*j+cc}, v{L+4*cc+j}")
    D1 = 128
    for cc in range(4):
        k(f"v_mfma_f32_16x16x32_f16 v[{D1+8*cc}:{D1+8*cc+3}], v[{L+4*cc}:{L+4*cc+3}], v[{B1R}:{B1R+3}], 0")
        k(f"v_mfma_f32_16x16x32_f16 v[{D1+8*cc+4}:{D1+8*cc+7}], v[{L+4*cc}:{L+4*cc+3}], v[{B1I}:{B1I+3}], 0")
    V = 160; VT = 176; D2 = D1; O = L
    for cc in range(4):
        re, im = D1 + 8*cc, D1 + 8*cc + 4
        t = VT + 8 * (cc & 1)
        for h in range(2):
            pmul(k, t + 2*h, re + 2*h, T2C + 2*h)
            pmul(k, t + 4 + 2*h, im + 2*h, T2C + 2*h)
        for h in range(2):
            pfma(k, t + 2*h, im + 2*h, T2S + 2*h, t + 2*h)
            pfma(k, t + 4 + 2*h, re + 2*h, T2S + 2*h, t + 4 + 2*h, nega=True)
        for i in range(4):
            k(f"v_cvt_pk_f16_f32 v{V+4*cc+i}, v{t+i}, v{t+4+i}")
        if cc > 0:
            c2 = cc - 1
            k(f"v_mfma_f32_16x16x32_f16 v[{D2+8*c2}:{D2+8*c2+3}], v[{V+4*c2}:{V+4*c2+3}], v[{B2R}:{B2R+3}], 0")
            k(f"v_mfma_f32_16x16x32_f16 v[{D2+8*c2+4}:{D2+8*c2+7}], v[{V+4*c2}:{V+4*c2+3}], v[{B2I}:{B2I+3}], 0")
    k(f"v_mfma_f32_16x16x32_f16 v[{D2+24}:{D2+27}], v[{V+12}:{V+15}], v[{B2R}:{B2R+3}], 0")
    k(f"v_mfma_f32_16x16x32_f16 v[{D2+28}:{D2+31}], v[{V+12}:{V+15}], v[{B2I}:{B2I+3}], 0")
    for cc in range(4):
        for i in range(4):
            k(f"v_cvt_pk_f16_f32 v{O+4*i+cc}, v{D2+8*cc+i}, v{D2+8*cc+4+i}")
    stamp(k, 42)
    for i in range(4):
        k(f"ds_write_b128 v{TWA}, v[{O+4*i}:{O+4*i+3}] offset:{L_T+i*8192}")
    k("s_waitcnt lgkmcnt(0)")
    stamp(k, 43)
    k("s_barrier")
    if E("STAMPS", 0) == 6:
        stamp(k, 44); k("s_waitcnt lgkmcnt(0)")
    O2 = 160
    for i in range(4):
        k(f"ds_read_b128 v[{O2+4*i}:{O2+4*i+3}], v{TRA} offset:{L_T+i*8192}")
    k("s_cmp_lg_u32 s38, 0\ns_cbranch_scc1 f_slowst")
    for i in range(4):
        k(f"s_waitcnt lgkmcnt({3-i})")
        k(f"buffer_store_dwordx4 v[{O2+4*i}:{O2+4*i+3}], v{STA}, s[12:15], s73 offen offset:{i*256} {'sc1' if E('ZMODE', 0) == 2 else os.environ.get('ZST', '')}")
    k("f_std:")
    stamp(k, 7); stamp(k, 45)
    k.c("own copy of (1+ca) [and sa]: sum, round, max")
    k("s_waitcnt vmcnt(4)")
    for b_ in (CP, CP + 8):
        padd(k, b_, b_, b_ + 2); padd(k, b_ + 4, b_ + 4, b_ + 6)
    for b_ in (CP, CP + 8): padd(k, b_, b_, b_ + 4)
    rb2(k, CP, 4); rb2(k, CP + 8, 5)
    for n in range(2): k(f"v_add_f32 v{CP+n}, 1.0, v{CP+n}")
    rb2(k, CP, 4)
    k(f"""v_max3_f32 v4, abs(v{CP}), abs(v{CP+1}), abs(v{CP+8})
    v_max_f32_e64 v4, v4, abs(v{CP+9})""")
    wave_reduce_to63(k, [4], "v_max_f32")
    k(f"""s_mov_b32 exec_lo, 0
    s_mov_b32 exec_hi, 0x80000000
    ds_write_b32 v10, v4
    s_mov_b64 exec, -1
    s_waitcnt vmcnt(0) lgkmcnt(0)""")
    stamp(k, 8)
    k(f"""s_barrier
    s_cmp_lg_u32 s16, 0
    s_cbranch_scc1 f_nf2
    v_mov_b32 v4, 0
    s_mov_b64 exec, 1
    s_cmp_lg_u32 s38, 0
    s_cbranch_scc1 f_f2s
    buffer_store_dwordx2 v[{NON}:{NON+1}], v4, s[12:15], s79 offen
    s_branch f_f2d
    f_f2s:
    buffer_store_dwordx2 v[{NON}:{NON+1}], v4, s[12:15], s79 offen sc1
    f_f2d:
    s_mov_b64 exec, -1
    f_nf2:
    ds_read_b128 v[{W}:{W+3}], v11
    ds_read_b128 v[{W+4}:{W+7}], v11 offset:16""")
    k(f"""s_waitcnt lgkmcnt(0)
    v_max3_f32 v{W}, v{W}, v{W+1}, v{W+2}
    v_max3_f32 v{W+3}, v{W+3}, v{W+4}, v{W+5}
    v_max3_f32 v{W}, v{W}, v{W+6}, v{W+7}
    v_max_f32 v{W}, v{W}, v{W+3}
    v_frexp_exp_i32_f32 v{W}, v{W}
    v_sub_u32 v{W+1}, -1, v{W}
    v_add_u32 v{W+2}, 6, v{W+1}
    v_add_u32 v{W}, 5, v{W}
    v_ldexp_f32 v{CP}, v{CP}, v{W+1}
    v_ldexp_f32 v{CP+1}, v{CP+1}, v{W+1}
    v_ldexp_f32 v{CP+8}, v{CP+8}, v{W+2}
    v_ldexp_f32 v{CP+9}, v{CP+9}, v{W+2}
    v_ldexp_f32 v{W}, 1.0, v{W}
    v_cvt_pk_f16_f32 v{CP}, v{CP}, v{CP+1}
    v_cvt_pk_f16_f32 v{CP+8}, v{CP+8}, v{CP+9}
    v_readfirstlane_b32 s54, v{W}
    ds_write_b16 v63, v{CP}
    ds_write_b16_d16_hi v63, v{CP} offset:16
    ds_write_b16 v63, v{CP+8} offset:2048
    ds_write_b16_d16_hi v63, v{CP+8} offset:2064
    {"s_nop 0" if E("NOFLX", 0) else f"buffer_load_dwordx4 v[14:17], v{V70}, s[12:15], s75 offen sc1"}
    s_cmp_lg_u32 s16, 0
    s_cbranch_scc1 f_np2""")
    poll_recs(k, "f_p2", 28, V70, 77, 4, sl=1)
    k("f_np2:")
    k("s_waitcnt vmcnt(0) lgkmcnt(0)")
    cmp_recs(k, 14, 4, 4)
    if E("NOFLX", 0): k("s_mov_b64 vcc, 0")
    k("s_barrier")
    stamp(k, 9); stamp(k, 20)
    k.c("================= phase C =================")
    for j in range(2):
        k(f"buffer_load_dwordx4 v[{ZA+4*j}:{ZA+4*j+3}], v21, s[12:15], s{(28, 52)[j]} offen {ZFL}")
    for j in range(2):
        k(f"buffer_load_dwordx4 v[{ZB+4*j}:{ZB+4*j+3}], v21, s[12:15], s{(29, 53)[j]} offen {ZFL}")
    stamp(k, 21)
    if E("ZWAIT", 0):
        k("s_waitcnt vmcnt(3)"); stamp(k, 22); k("s_waitcnt vmcnt(0)"); stamp(k, 23)
    def pdma():
        k(f"""s_mov_b32 m0, s46
        s_add_u32 s46, s46, 8192
        buffer_load_dwordx4 v3, s[12:15], s47 offen sc1 lds
        s_add_u32 s47, s47, 8192
        s_mov_b32 m0, s46
        s_add_u32 s46, s46, 8192
        buffer_load_dwordx4 v3, s[12:15], s47 offen sc1 lds
        s_add_u32 s47, s47, 8192
        s_mov_b32 m0, s46
        s_mov_b32 s55, 1
        s_cmp_lt_u32 s16, 4
        s_cbranch_scc0 f_pd{pdma.n}
        buffer_load_dwordx4 v3, s[12:15], s47 offen sc1 lds
        s_waitcnt vmcnt(3)
        f_pd{pdma.n}:""")
        pdma.n += 1
    pdma.n = 0
    for j in range(2):
        k(f"ds_read_b128 v[{CS+4*j}:{CS+4*j+3}], v12 offset:{j*1024}")
    FPF = E("FPF", 8)
    if FPF:
        k(f"""s_load_dwordx2 s[64:65], s[0:1], {A_WU}
        v_lshrrev_b32 v4, 3, v2
        v_mul_u32_u24 v4, 7168, v4
        v_and_b32 v5, 7, v0
        v_min_u32 v5, 6, v5
        v_lshl_add_u32 v13, v5, 7, v4
        s_lshl_b32 s70, s35, 3
        s_add_u32 s70, s70, s16
        s_lshr_b32 s71, s70, 6
        s_and_b32 s70, s70, 63
        s_mul_i32 s70, s70, {FPF}
        s_lshl_b32 s71, s71, 9
        s_add_u32 s70, s70, s71
        s_add_u32 s70, s70, {512 - 64*FPF}
        s_mul_i32 s70, s70, 7168
        s_mul_i32 s71, s34, 896
        s_add_u32 s70, s70, s71""")
    k(f"""s_mov_b32 s55, 0
    s_barrier
    s_cbranch_vccnz f_plate""")
    pdma()
    k(f"""s_cbranch_scc1 f_pgo
    s_waitcnt vmcnt(2)
    s_branch f_pgo
    f_plate:
    buffer_load_dwordx4 v[14:17], v{V70}, s[12:15], s75 offen sc1
    s_waitcnt vmcnt(1)
    f_pgo:
    s_waitcnt lgkmcnt(0)""")
    stamp(k, 10); stamp(k, 24); stamp(k, 30)
    k("s_cmp_eq_u32 s34, 0\ns_cbranch_scc1 f_g0")
    def pread(vec, base):
        return [f"ds_read_b128 v[{base+4*q}:{base+4*q+3}], v3 offset:{L_P+vec*4096+q*1024}" for q in range(4)]
    preads = pread(0, GA) + pread(4, WR)
    def modul(j, src):
        for i in range(4*j, 4*j + 4):
            b = i & 1
            k(f"v_pk_mul_f16 v{W+i}, v{src+i}, v{CS+(i>>1)} op_sel:[0,{b}] op_sel_hi:[1,{b}]")
    def st1(j, part):
        D, B = (D1R, BRE) if part == 0 else (D1I, BIM)
        cc = "0" if j == 0 else f"v[{D}:{D+15}]"
        k(f"v_mfma_f32_32x32x16_f16 v[{D}:{D+15}], v[{W+4*j}:{W+4*j+3}], v[{B+4*j}:{B+4*j+3}], {cc}")
    modul(0, ZA); modul(1, ZA)
    st1(0, 0); modul(2, ZA); st1(0, 1); modul(3, ZA)
    k("f_st1:")
    pr = list(preads)
    st1(1, 0); st1(1, 1)
    k("s_cmp_eq_u32 s55, 1\ns_cbranch_scc1 f_pk1\ns_waitcnt vmcnt(0)")
    cmp_recs(k, 14, 4, 4)
    k("s_cbranch_vccnz f_pk1")
    pdma()
    k("f_pk1:")
    for j in range(2, 4):
        for part in range(2): st1(j, part)
    k("s_cmp_eq_u32 s55, 1\ns_cbranch_scc1 f_pok")
    poll_recs(k, "f_px", 14, V70, 75, 4)
    pdma()
    k("f_pok:")
    stamp(k, 25); stamp(k, 31)
    k("s_waitcnt lgkmcnt(0)")
    Y = CS
    for j in range(4):
        vr = ZA + 8 * (j & 1); vi = vr + 4
        for h in range(2):
            pmul(k, vr + 2*h, D1R + 4*j + 2*h, TC + 4*j + 2*h)
            pmul(k, vi + 2*h, D1I + 4*j + 2*h, TC + 4*j + 2*h)
        for h in range(2):
            pfma(k, vr + 2*h, D1I + 4*j + 2*h, TS + 4*j + 2*h, vr + 2*h)
            pfma(k, vi + 2*h, D1R + 4*j + 2*h, TS + 4*j + 2*h, vi + 2*h, nega=True)
        for i in range(4):
            k(f"v_cvt_pk_f16_f32 v{W+4*j+i}, v{vr+i}, v{vi+i}")
        if j > 0:
            jj = j - 1
            cr = "0" if jj == 0 else f"v[{Y}:{Y+15}]"
            k(f"v_mfma_f32_32x32x16_f16 v[{Y}:{Y+15}], v[{W+4*jj}:{W+4*jj+3}], v[{BRE+4*jj}:{BRE+4*jj+3}], {cr}")
        if j == B2AT:
            stamp(k, 32); k("s_waitcnt vmcnt(0)"); stamp(k, 33); k("s_barrier"); stamp(k, 34)
            if E("ZCLEAN", 0):
                k.c("the spectrum row is consumed: push the dirty lines out now instead of at kernel end")
                for so in (28, 52, 29, 53):
                    k(f"buffer_store_dwordx4 v[{XA2}:{XA2+3}], v21, s[12:15], s{so} offen sc1")
            if FPF:
                k(f"""s_mov_b32 s66, {1024*3584*2}
                s_mov_b32 s67, 0x00020000""")
                msk = (1 << (8 * FPF)) - 1
                k(f"s_mov_b32 exec_lo, {msk & 0xffffffff}\ns_mov_b32 exec_hi, {msk >> 32}")
                k("buffer_load_dword v7, v13, s[64:67], s70 offen\ns_mov_b64 exec, -1")
        if j >= B2AT:
            for _ in range(4):
                if pr: k(pr.pop(0))
    k(f"v_mfma_f32_32x32x16_f16 v[{Y}:{Y+15}], v[{W+12}:{W+15}], v[{BRE+12}:{BRE+15}], v[{Y}:{Y+15}]")
    for x in pr: k(x)
    if E("ST11", 0):
        stamp(k, 11)
    k("s_waitcnt lgkmcnt(%d)" % (0 if E("ST11", 0) else 4))
    for i in range(8): pmul_s(k, GA + 2*i, GA + 2*i, 54)
    if E("WBL2", 0) == 1:
        k("""s_lshl_b32 s42, s35, 3
        s_add_u32 s42, s42, s16
        s_cmp_lg_u32 s42, 15
        s_cbranch_scc1 f_nwb
        buffer_wbl2 sc1
        f_nwb:""")
    YN, YM, YE = D1R, TC, ZA
    SBv, GBv = D1I, TS
    k("s_cmp_eq_u32 s30, 0\ns_cbranch_scc1 f_sp2")
    for q in range(4):
        k(f"ds_write_b128 v{YWQ[q]}, v[{Y+4*q}:{Y+4*q+3}]")
    def yreads(off):
        for q in range(4):
            k(f"ds_read_b128 v[{YN+4*q}:{YN+4*q+3}], v{YRA} offset:{off + (q>>1)*1024 + (q&1)*2048}")
        for q in range(4):
            k(f"ds_read_b128 v[{YM+4*q}:{YM+4*q+3}], v{YRM} offset:{off + (q>>1)*1024 + (q&1)*2048}")
        k(f"ds_read_b32 v{YE}, v{YRB} offset:{off}")
        k(f"ds_read_b32 v{YE+1}, v{YRC} offset:{off}")
    RQ = ZB
    def qsum():
        t = C1
        for i in range(4): padd(k, t + 2*i, WR + 4*i, WR + 4*i + 2)
        padd(k, t, t, t + 2); padd(k, t + 4, t + 4, t + 6); padd(k, t, t, t + 4)
        k(f"v_add_f32 v{RQ+3}, v{t}, v{t+1}")
        k(f"v_add_f32 v{RQ+7}, v{t}, v{t+1}")
    def mir(dst):
        for hf in range(2):
            for j in range(8):
                src = YE + hf if j == 0 else YM + 8 * (1 - hf) + 8 - j
                k(f"v_fmac_f32 v{dst+8*hf+j}, v{GA+8*hf+j}, v{src}")
    yreads(0)
    k("s_waitcnt lgkmcnt(14)")
    qsum()
    k("s_waitcnt lgkmcnt(6)")
    for i in range(8): pfma(k, XA2 + 2*i, GA + 2*i, YN + 2*i, XA2 + 2*i)
    k("s_waitcnt lgkmcnt(0)")
    mir(XB2)
    k("f_join:")
    stamp(k, 35)
    k.c("GO hint from one workgroup per replica")
    k(f"""s_or_b32 s42, s35, s16
    s_cmp_lg_u32 s42, 0
    s_cbranch_scc1 f_ngo
    s_lshl_b32 s42, 1, s34
    s_mov_b32 s43, 0
    s_mov_b32 s41, {WS_KEY+1024}
    s_mov_b64 exec, s[42:43]
    buffer_store_dword v1, v{FA}, s[12:15], s41 offen sc1
    s_mov_b64 exec, -1
    f_ngo:""")
    for x in pread(2, C1) + pread(1, SBv) + pread(3, GBv): k(x)
    T = W
    rows = ((XA2, BRE, D1R, T, 56), (XB2, BIM, TC, T + 8, 58))
    def sums23(src):
        for i in range(8):
            for n, (X2, Dd, Tt, t, sr) in enumerate(rows):
                x = src[n] + 2*i
                if i == 0:
                    pmul(k, t + 2, x, x); pmul(k, t + 4, x, WR)
                else:
                    pfma(k, t + 2, x, x, t + 2); pfma(k, t + 4, x, WR + 2*i, t + 4)
    for i in range(1, 8):
        for X2, Dd, Tt, t, sr in rows: padd(k, t, X2 if i == 1 else t, X2 + 2*i)
    sums23((XA2, XB2))
    for n, (X2, Dd, Tt, t, sr) in enumerate(rows):
        for j in range(3): k(f"v_add_f32 v{RQ+4*n+j}, v{t+2*j}, v{t+2*j+1}")
    def red(js):
        for j in js: k(f"v_permlane32_swap_b32 v{RQ+j}, v{RQ+4+j}")
        for j in js: k(f"v_add_f32 v{RQ+j}, v{RQ+j}, v{RQ+4+j}")
        regs = [RQ + j for j in js]
        row_allreduce(k, regs)
        for r in regs: k(f"v_add_f32_dpp v{r}, v{r}, v{r} row_bcast:15 row_mask:0xa bank_mask:0xf")
    red((0, 1, 2, 3))
    k.c("lanes 31 / 63 hold rows A / B")
    k(f"""v_mul_f32 v{RQ}, {f32(1.0/1024)}, v{RQ}
    v_mul_f32 v{RQ+1}, {f32(1.0/1024)}, v{RQ+1}
    v_mul_f32 v{RQ+4}, v{RQ}, v{RQ}
    v_fma_f32 v{RQ+2}, -v{RQ}, v{RQ+3}, v{RQ+2}
    v_sub_f32 v{RQ+1}, v{RQ+1}, v{RQ+4}
    v_mul_f32 v{RQ+5}, 4.0, v{RQ+1}
    v_cmp_gt_f32 vcc, v{RQ+4}, v{RQ+5}
    s_or_b32 s42, vcc_lo, vcc_hi
    s_bitcmp1_b32 s42, 31
    s_cbranch_scc1 f_slow2
    f_var2:""")
    round_bf16(k, RQ + 1, RQ + 1)
    k(f"v_add_f32 v{RQ+1}, {f32(1e-5)}, v{RQ+1}")
    round_bf16(k, RQ + 1, RQ + 1)
    k(f"v_sqrt_f32 v{RQ+1}, v{RQ+1}")
    round_bf16(k, RQ + 1, RQ + 1)
    k(f"""v_rcp_f32 v{RQ+1}, v{RQ+1}
    s_mov_b32 s42, 0x80000000
    s_mov_b32 exec_lo, s42
    s_mov_b32 exec_hi, s42
    v_mul_f32 v{RQ+2}, v{RQ+2}, v{RQ+1}
    v_ashrrev_i32 v{RQ+4}, 31, v{RQ+2}
    v_or_b32 v{RQ+4}, s42, v{RQ+4}
    v_xor_b32 v{RQ+2}, v{RQ+2}, v{RQ+4}
    v_min_u32 v{RQ+2}, 0xfffff000, v{RQ+2}
    v_and_or_b32 v{RQ+2}, v{RQ+2}, v22, v23
    ds_write_b32 v{KW}, v{RQ+2}
    s_mov_b64 exec, -1""")
    for n in range(2):
        k(f"v_readlane_b32 s{60+n}, v{RQ+2}, {31+32*n}")
        k(f"v_readlane_b32 s{56+2*n}, v{RQ}, {31+32*n}")
        k(f"v_readlane_b32 s{57+2*n}, v{RQ+1}, {31+32*n}")
    k("s_waitcnt lgkmcnt(0)")
    stamp(k, 12)
    k(f"""s_barrier
    ds_read_b32 v{YRA}, v{KR}
    s_lshl_b32 s42, s3, 1
    s_movk_i32 s43, 0xff00
    s_cmp_lg_u32 s16, 0
    s_waitcnt lgkmcnt(0)
    s_cbranch_scc1 f_nkey
    s_setprio 3
    v_mov_b32 v4, v{YRA}""")
    row_allreduce(k, [4], "v_max_u32")
    k(f"""v_cmp_eq_u32 vcc, v4, v{YRA}
    v_cndmask_b32_e64 v5, v{YRA}, 0, vcc
    v_and_b32 v4, s43, v4""")
    row_allreduce(k, [5], "v_max_u32")
    k(f"""v_or_b32 v4, s42, v4
    v_and_b32 v5, s43, v5
    v_or3_b32 v5, v5, s42, 1
    s_mov_b64 exec, 0xff
    buffer_store_dwordx2 v[4:5], v{FA}, s[12:15], s80 offen sc1
    {f"s_sub_u32 s80, s80, {WS_KEY - WS_KEY2}" if E("FKEY", 2) == 1 else ""}
    {f"buffer_store_dwordx2 v[4:5], v{FA}, s[12:15], s80 offen sc1" if E("FKEY", 2) == 1 else ""}
    s_mov_b64 exec, -1
    s_setprio 0
    f_nkey:""")
    HP = CS; OA, OBB = 10, 18
    def h2row(n):
        X2, Dd, Tt, t, sr = rows[n]
        for i in range(8): psub_s(k, Tt + 2*i, X2 + 2*i, sr)
        for i in range(8): pmul(k, Tt + 2*i, Tt + 2*i, C1 + 2*i)
        for i in range(8): pfma_s(k, Tt + 2*i, Tt + 2*i, sr + 1, SBv + 2*i)
    def outpack(n, with_h2=True):
        X2, Dd, Tt, t, sr = rows[n]
        XO = (OA, OBB)[n]
        if with_h2: h2row(n)
        for i in range(8): pfma(k, X2 + 2*i, GBv + 2*i, Tt + 2*i, X2 + 2*i)
        for i in range(8): k(f"v_cvt_pk_bf16_f32 v{XO+i}, v{X2+2*i}, v{X2+2*i+1}")
    k("v_mov_b32 v4, 0")
    for n in range(2):
        Tt = rows[n][2]; XO = (OA, OBB)[n]
        k(f"""s_movk_i32 s{62+n}, 0x100
        v_cmp_lt_u32 vcc, s{60+n}, v{YRA}
        s_and_b32 s42, vcc_lo, 0xffff
        s_bcnt1_i32_b32 s42, s42
        s_cmp_ge_u32 s42, 2
        s_cbranch_scc1 f_nc{n}
        s_setprio 2
        s_lshl_b32 s{62+n}, s3, 1
        s_add_u32 s{62+n}, s{62+n}, s42
        s_lshl_b32 s42, s{62+n}, 12
        s_add_u32 s42, s42, {WS_SLOT}
        s_lshl_b32 s43, s{62+n}, 2
        s_add_u32 s43, s43, {WS_TT}""")
        h2row(n)
        for i in range(8): k(f"v_cvt_pk_bf16_f32 v{HP+8*n+i}, v{Tt+2*i}, v{Tt+2*i+1}")
        for i in range(8): k(f"v_min_u32 v{HP+8*n+i}, -2, v{HP+8*n+i}")
        for j in range(2):
            k(f"buffer_store_dwordx4 v[{HP+8*n+4*j}:{HP+8*n+4*j+3}], v3, s[12:15], s42 offen offset:{j*1024} sc1")
        outpack(n, False)
        for i in range(8): k(f"v_min_u32 v{XO+i}, -2, v{XO+i}")
        for j in range(2):
            k(f"buffer_store_dwordx4 v[{XO+4*j}:{XO+4*j+3}], v3, s[12:15], s42 offen offset:{2048+j*1024} sc1")
        k(f"""v_mov_b32 v5, s{30+n}
        s_mov_b64 exec, 1
        buffer_store_dword v5, v4, s[12:15], s43 offen sc1
        s_mov_b64 exec, -1
        s_setprio 0
        f_nc{n}:""")
    stamp(k, 13)
    for n in range(2):
        k(f"s_cmp_lt_u32 s{62+n}, 0x100\ns_cbranch_scc1 f_op{n}")
        outpack(n)
        k(f"f_op{n}:")
    if E("WBL2", 0) == 2:
        k("""s_lshl_b32 s42, s35, 3
        s_add_u32 s42, s42, s16
        s_cmp_lg_u32 s42, 15
        s_cbranch_scc1 f_nwb
        buffer_wbl2 sc1
        f_nwb:""")
    if E("OWAIT", 1):
        def outst(n):
            XO = (OA, OBB)[n]
            for j in range(2):
                k(f"buffer_store_dwordx4 v[{XO+4*j}:{XO+4*j+3}], v3, s[24:27], s{18+n} offen offset:{j*1024} {os.environ.get('OFL', 'sc1')}")
        k.c("rows are written once the selection is known; the two selected rows are written by the reducers")
        HALF = E("HALF", 0)
        if HALF:
            if E("OSL", 0): k(f"s_sleep {E('OSL', 0)}")
            k("s_cmp_lt_u32 s62, 0x100\ns_cbranch_scc1 f_h0")
            outst(0)
            k("f_h0:")
        k(f"""v_mov_b32 v5, {L_KEY+104}
        s_cmp_lg_u32 s16, 0
        s_cbranch_scc1 f_nrs""")
        if E("FKEY", 2):
            if E("FKEY", 2) == 1: k(f"s_sub_u32 s74, s74, {WS_KEY - WS_KEY2}")
            k(f"s_sleep {E('FKS', 8)}")
            poll_keys(k, "f_kq", 32, 74, 4)
            top2(k, 32, 40, 41, 36)
            k("v_mov_b32 v28, 0xff\nv_and_b32 v29, s41, v28\nv_and_b32 v28, s40, v28")
        else:
            res_wait(k, "f_rs", 74, 4, 28, E("RSL", 4))
        k(f"""ds_write_b64 v5, v[28:29]
        s_waitcnt lgkmcnt(0)
        f_nrs:
        s_barrier
        ds_read_b64 v[28:29], v5
        s_waitcnt lgkmcnt(0)
        v_readfirstlane_b32 s40, v28
        v_readfirstlane_b32 s41, v29""")
        for n in range(2):
            if HALF and n == 0: k("s_cmp_ge_u32 s62, 0x100\ns_cbranch_scc1 f_e0")
            k(f"""s_cmp_eq_u32 s{62+n}, s40
            s_cbranch_scc1 f_e{n}
            s_cmp_eq_u32 s{62+n}, s41
            s_cbranch_scc1 f_e{n}""")
            outst(n)
            k(f"f_e{n}:")
    else:
        if E("OSL", 0): k(f"s_sleep {E('OSL', 0)}")
        def outst(n):
            XO = (OA, OBB)[n]
            for j in range(2):
                k(f"buffer_store_dwordx4 v[{XO+4*j}:{XO+4*j+3}], v3, s[24:27], s{18+n} offen offset:{j*1024} {os.environ.get('OFL', 'sc1')}")
        for n in range(2):
            k(f"s_cmp_lt_u32 s{62+n}, 0x100\ns_cbranch_scc1 f_o{n}")
            outst(n)
            k(f"f_o{n}:")
        k.c("candidate rows: learn the selection, the selected rows are written by the reducers")
        k("""s_min_u32 s42, s62, s63
        s_cmp_lt_u32 s42, 0x100
        s_cbranch_scc0 f_e1""")
        res_wait(k, "f_rs", 74, 4, 28, 4)
        for n in range(2):
            k(f"""s_cmp_ge_u32 s{62+n}, 0x100
            s_cbranch_scc1 f_e{n}
            s_cmp_eq_u32 s{62+n}, s40
            s_cbranch_scc1 f_e{n}
            s_cmp_eq_u32 s{62+n}, s41
            s_cbranch_scc1 f_e{n}""")
            outst(n)
            k(f"f_e{n}:")
    if E("WBL2", 0) == 3:
        k("""s_lshl_b32 s42, s35, 3
        s_add_u32 s42, s42, s16
        s_cmp_lg_u32 s42, 15
        s_cbranch_scc1 f_nwb
        s_waitcnt vmcnt(0)
        buffer_wbl2 sc1
        f_nwb:""")
    stamp_out(k, 0)
    k("s_endpgm")
    k.c("---- rare: two-pass variance / router score for LN2 ----")
    k("f_slow2:")
    k.c("here the bf16 rounding of x and of the mean matters: follow the reference's rounding steps")
    for X2, Dd, Tt, t, sr in rows:
        for i in range(8): rb2(k, X2 + 2*i, t)
        for i in range(1, 8): padd(k, t, X2 if i == 1 else t, X2 + 2*i)
    for n, (X2, Dd, Tt, t, sr) in enumerate(rows):
        k(f"v_add_f32 v{RQ+4*n}, v{t}, v{t+1}")
    red((0,))
    k(f"v_mul_f32 v{RQ+3}, {f32(1.0/1024)}, v{RQ}")
    round_bf16(k, RQ, RQ + 3)
    k(f"v_sub_f32 v{RQ+3}, v{RQ+3}, v{RQ}")
    for n in range(2): k(f"v_readlane_b32 s{56+2*n}, v{RQ}, {31+32*n}")
    for X2, Dd, Tt, t, sr in rows:
        for i in range(8): psub_s(k, Dd + 2*i, X2 + 2*i, sr)
    sums23((rows[0][1], rows[1][1]))
    for n, (X2, Dd, Tt, t, sr) in enumerate(rows):
        for j in (1, 2): k(f"v_add_f32 v{RQ+4*n+j}, v{t+2*j}, v{t+2*j+1}")
    red((1, 2))
    k(f"""v_mul_f32 v{RQ+1}, {f32(1.0/1024)}, v{RQ+1}
    v_fma_f32 v{RQ+1}, -v{RQ+3}, v{RQ+3}, v{RQ+1}
    v_max_f32 v{RQ+1}, 0, v{RQ+1}
    s_branch f_var2""")
    k.c("---- placement fallback: write-through ZF stores ----")
    k("f_slowst:\ns_waitcnt lgkmcnt(0)")
    for i in range(4):
        k(f"buffer_store_dwordx4 v[{O2+4*i}:{O2+4*i+3}], v{STA}, s[12:15], s73 offen offset:{i*256} sc1")
    k("s_branch f_std")
    k.c("---- rare: |mean| >> std, recompute the variance in two passes ----")
    k("f_slowvar:")
    U = 144
    k(f"v_lshlrev_b32 v{R+6}, 16, v55")
    k(f"v_readlane_b32 s68, v{R+6}, 31\nv_readlane_b32 s70, v{R+6}, 63")
    for jj in range(2):
        sr = 68 + 2 * jj
        for i in range(8):
            unpack_bf16(k, U, XW + jj * 8 + i)
            k(f"v_pk_add_f32 {P(U)}, {P(U)}, s[{sr}:{sr+1}] op_sel_hi:[1,0]")
            if i == 0: pmul(k, U + 2, U, U)
            else: pfma(k, U + 2, U, U, U + 2)
        k(f"v_add_f32 v{S+2+jj}, v{U+2}, v{U+3}")
    k(f"v_add_f32 v{R+6}, v{R+6}, v{S}")
    red1((2,))
    k(f"""v_mul_f32 v{S+2}, s46, v{S+2}
    v_fma_f32 v{S+2}, -v{R+6}, v{R+6}, v{S+2}
    v_max_f32 v{S+2}, 0, v{S+2}
    s_branch f_var""")
    k.c("---- group 0: spectra are stored for column pairs (d, d+512) ----")
    k("f_g0:\ns_cmp_eq_u32 s30, 0\ns_cbranch_scc1 f_sp")
    for i in range(8):
        k(f"v_pk_add_f16 v{W+i}, v{ZA+i}, v{ZB+i} neg_hi:[0,1]")
    modul(0, W); modul(1, W)
    st1(0, 0)
    for i in range(8):
        k(f"v_pk_add_f16 v{W+8+i}, v{ZA+i}, v{ZB+i} op_sel:[1,1] op_sel_hi:[0,0] neg_hi:[1,0]")
    st1(0, 1); modul(2, W); modul(3, W)
    k("s_branch f_st1")
    k("f_sp:")
    for j in range(2):
        k(f"ds_read_b128 v[{SAR+4*j}:{SAR+4*j+3}], v12 offset:{2048+j*1024}")
    k("s_mov_b32 s42, 0x05040100\ns_mov_b32 s43, 0x07060302")
    for i in range(8):
        k(f"v_perm_b32 v{W+i}, v{ZB+i}, v{ZA+i}, s42")
        k(f"v_perm_b32 v{W+8+i}, v{ZB+i}, v{ZA+i}, s43")
    for j in range(4): modul(j, W)
    k("s_waitcnt lgkmcnt(0)")
    for i in range(8):
        k(f"v_and_b32 v{ZA+i}, 0xffff, v{SAR+i}")
        k(f"v_lshrrev_b32 v{ZB+i}, 16, v{SAR+i}")
    for i in range(8):
        k(f"v_pk_add_f16 v{W+2*i}, v{W+2*i}, v{ZA+i}")
        k(f"v_pk_add_f16 v{W+2*i+1}, v{W+2*i+1}, v{ZB+i}")
    st1(0, 0); st1(0, 1)
    k("s_branch f_st1")
    k("f_sp2:")
    for j in range(4):
        cr = "0" if j == 0 else f"v[{D1R}:{D1R+15}]"
        k(f"v_mfma_f32_32x32x16_f16 v[{D1R}:{D1R+15}], v[{W+4*j}:{W+4*j+3}], v[{BIM+4*j}:{BIM+4*j+3}], {cr}")
    for q in range(4):
        k(f"ds_write_b128 v{YWQ[q]}, v[{Y+4*q}:{Y+4*q+3}]")
    for q in range(4):
        k(f"ds_write_b128 v{YWQ[q]}, v[{D1R+4*q}:{D1R+4*q+3}] offset:{8*4096}")
    k("s_waitcnt lgkmcnt(0)")
    yreads(0)
    qsum()
    k("s_waitcnt lgkmcnt(0)")
    for i in range(8): pfma(k, XA2 + 2*i, GA + 2*i, YN + 2*i, XA2 + 2*i)
    mir(XA2)
    yreads(8 * 4096)
    k("s_waitcnt lgkmcnt(0)")
    for i in range(8): pfma(k, XB2 + 2*i, GA + 2*i, YN + 2*i, XB2 + 2*i)
    mir(XB2)
    k("s_branch f_join")

def role_G(k):
    NON = 12
    k(f"""g_start:
    s_load_dwordx4 s[4:7], s[0:1], {A_C}
    s_load_dwordx4 s[24:27], s[0:1], {A_OUT}
    s_load_dwordx2 s[28:29], s[0:1], {A_WS}
    s_load_dwordx4 s[48:51], s[0:1], {A_WR}
    s_load_dwordx4 s[52:55], s[0:1], {A_WU}
    s_load_dwordx2 s[56:57], s[0:1], {A_X}
    s_memrealtime s[32:33]
    s_getpc_b64 s[36:37]
    g_pc:
    s_sub_u32 s36, s36, g_pc-{NAME}
    s_subb_u32 s37, s37, 0
    v_lshlrev_b32 v4, 7, v0
    v_min_u32 v4, code_end-{NAME}-4, v4
    s_cmp_ge_u32 s2, 64
    s_cbranch_scc1 g_npf
    global_load_dword v250, v4, s[36:37]
    g_npf:""")
    k.c("s35 = mm ; s64 = cluster (or X index) ; s65 = kq ; s66 = 1 for X ; GEMV tile [256 k][128 n]: s40 = ks, s41 = nchunk, s3 = gi")
    k(f"""s_lshr_b32 s35, s2, 4
    s_and_b32 s65, s35, 1
    s_lshr_b32 s40, s35, 1
    s_mul_i32 s64, s34, 7
    s_add_u32 s64, s64, s40
    s_lshl_b32 s41, s34, 1
    s_add_u32 s41, s41, s65
    s_cmp_ge_u32 s35, 14
    s_cselect_b32 s66, 1, 0
    s_cselect_b32 s64, s41, s64
    s_lshl_b32 s3, s35, 3
    s_add_u32 s3, s3, s34
    s_lshr_b32 s40, s3, 5
    s_and_b32 s41, s3, 31
    v_bfe_u32 v5, v0, 4, 2
    v_lshl_add_u32 v6, v1, 5, v5
    v_mul_u32_u24 v4, 12288, v6
    v_and_b32 v8, 15, v0
    v_lshl_add_u32 v4, v8, 4, v4
    v_and_b32 v7, 7, v0
    v_lshl_add_u32 v7, v7, 2, v6
    v_lshlrev_b32 v7, 1, v7
    s_mul_i32 s18, s40, {256*12288}
    s_lshl_b32 s19, s41, 8
    s_add_u32 s18, s18, s19
    s_add_u32 s18, s18, 4096
    s_lshl_b32 s19, s40, 9
    v_mov_b32 v104, -1
    v_mov_b32 v105, -1
    v_mov_b32 v106, -1
    v_mov_b32 v107, -1
    v_mov_b32 v14, 0
    v_lshlrev_b32 v109, 4, v0
    s_lshl_b32 s38, s3, 14
    s_add_u32 s38, s38, {WS_SENT}
    s_add_u32 s39, s38, 8192
    s_waitcnt lgkmcnt(0)""")
    srd(k, 20, 26, 256)
    srd(k, 12, 28, WS_SIZE)
    stamp(k, 1)
    k.c("nonce writer: X workgroup 0, wave 0")
    k(f"""s_lshl_b32 s42, s64, 3
    s_add_u32 s42, s42, s16
    s_cmp_eq_u32 s66, 0
    s_cselect_b32 s42, 1, s42
    s_cmp_lg_u32 s42, 0
    s_cbranch_scc1 g_non
    s_or_b32 s32, s32, 1
    s_lshl_b32 s33, s33, 3
    v_mov_b32 v12, s32
    v_mov_b32 v13, s33
    s_mov_b64 exec, 1
    buffer_store_dwordx2 v[12:13], v14, s[20:23], 0 offen sc1
    s_mov_b64 exec, -1
    g_non:""")
    srd(k, 8, 6, 1024 * 6144 * 2)
    if E("ASSIST", 1):
        srd(k, 60, 56, 2048 * 1024 * 2)
        k(f"""s_sub_u32 s68, 16, s34
        s_cmp_eq_u32 s34, 0
        s_cselect_b32 s68, 8, s68
        s_bitcmp1_b32 s35, 0
        s_cselect_b32 s68, s68, s34
        s_lshr_b32 s69, s35, 1
        s_lshl_b32 s69, s69, 4
        s_add_u32 s68, s68, s69
        s_lshl_b32 s68, s68, 11
        s_add_u32 s68, s68, 1024
        s_and_b32 s69, s35, 3
        s_mul_i32 s69, s69, {256*12288}
        s_lshl_b32 s70, s34, 2
        s_lshr_b32 s71, s35, 2
        s_add_u32 s70, s70, s71
        s_lshl_b32 s70, s70, 7
        s_add_u32 s69, s69, s70
        s_cmp_ge_u32 s16, 4
        s_cbranch_scc1 g_as1
        s_cmp_eq_u32 s16, 3
        s_cbranch_scc1 g_as2
        s_cmp_eq_u32 s16, 2
        s_cbranch_scc1 g_as3
        v_lshrrev_b32 v110, 3, v0
        v_lshlrev_b32 v110, 18, v110
        v_and_b32 v111, 7, v0
        v_lshl_add_u32 v110, v111, 7, v110
        buffer_load_dword v251, v110, s[60:63], s68 offen
        s_waitcnt vmcnt(0)
        s_branch g_as2
        g_as3:
        s_lshr_b32 s70, s8, 7
        s_sub_u32 s70, {E("CLS", 3) if E("WHELP", 1) else 0}, s70
        s_lshl_b32 s71, s34, 2
        s_sub_u32 s70, s70, s71
        s_and_b32 s70, s70, 7
        s_cmp_ge_u32 s70, {4 if E("WHELP", 1) else 0}
        s_cbranch_scc1 g_as2
        s_add_u32 s70, s70, s71
        s_lshl_b32 s70, s70, 7
        s_mul_i32 s71, s35, {64*12288}
        s_add_u32 s70, s70, s71
        v_mul_u32_u24 v110, 12288, v2
        buffer_load_dword v251, v110, s[8:11], s70 offen
        s_branch g_as2
        g_as1:
        v_and_b32 v110, 255, v0
        v_mul_u32_u24 v110, 12288, v110
        buffer_load_dword v251, v110, s[8:11], s69 offen
        g_as2:""")
    if E("GDEL", 0): k(f"s_sleep {E('GDEL', 0)}")
    else: k("s_barrier")
    if E("NOGEMV", 0): k("v_mov_b32 v4, 0x7ff00000")
    PFL = E("PFL", 0)
    pf = """buffer_store_dwordx4 v[104:107], v109, s[12:15], s38 offen sc1
    buffer_store_dwordx4 v[104:107], v109, s[12:15], s39 offen sc1"""
    if E("NOPF", 0): k("v_mov_b32 v109, 0x7ff00000")
    if not PFL: k(pf)
    srd(k, 44, 4, 2048)
    k("buffer_load_ushort v6, v7, s[44:47], s19 offen")
    W = 16
    for i in range(8):
        if GDEPTH: k(f"s_waitcnt vmcnt({GDEPTH-1})")
        k(f"buffer_load_dwordx4 v[{W+4*i}:{W+4*i+3}], v4, s[8:11], s18 offen {NTV}")
        if i < 7: k(f"s_add_u32 s18, s18, {4*12288}")
    if PFL: k(pf)
    ACC = 80; U = 88; SB = 10
    k("s_mov_b32 s26, 4194304\ns_mov_b32 s27, 0x00020000")
    for i in range(8): k(f"v_mov_b32 v{ACC+i}, 0")
    get_nonce_issue(k, 14, NON)
    L_GR = 131072 + 4096
    k(f"""v_lshlrev_b32 v7, 5, v8
    v_lshl_add_u32 v7, v5, 3, v7
    v_lshl_add_u32 v7, v1, 9, v7
    v_add_u32 v7, {L_GR}, v7
    v_lshlrev_b32 v108, 3, v2
    v_add_u32 v108, {L_GR}, v108
    v_lshlrev_b32 v15, 11, v2
    s_lshl_b32 s18, s40, 15
    s_lshl_b32 s19, s41, 10
    s_add_u32 s18, s18, s19
    s_add_u32 s18, s18, {WS_MODP}
    s_waitcnt vmcnt({9+2*PFL})
    v_lshlrev_b32 v6, 16, v6
    v_mul_f32 v9, {LOG2E}, v6
    v_exp_f32 v9, v9
    v_add_f32 v9, 1.0, v9
    v_rcp_f32 v9, v9
    v_mul_f32 v6, v6, v9""")
    round_bf16(k, 6, 6)
    stamp(k, 2)
    for i in range(8):
        k(f"v_mov_b32_dpp v{SB}, v6 row_newbcast:{i} {DPPM}")
        k(f"s_waitcnt vmcnt({8-i+2*PFL})")
        u = U + 8 * (i & 1)
        for j in range(4): unpack_bf16(k, u + 2*j, W + 4*i + j)
        for j in range(4):
            k(f"v_pk_fma_f32 {P(ACC+2*j)}, {P(u+2*j)}, {P(SB)}, {P(ACC+2*j)} op_sel_hi:[1,0,1]")
    for j in range(4): k(f"v_permlane32_swap_b32 v{ACC+j}, v{ACC+j+4}")
    for j in range(2): padd(k, ACC + 2*j, ACC + 2*j, ACC + 4 + 2*j)
    for j in range(2): k(f"v_permlane16_swap_b32 v{ACC+j}, v{ACC+j+2}")
    padd(k, ACC, ACC, ACC + 2)
    stamp(k, 3)
    k(f"""ds_write_b64 v7, v[{ACC}:{ACC+1}]
    s_waitcnt vmcnt(0)""")
    get_nonce_finish(k, "g_nn", 14, NON)
    k.c("M: w_down DMA may start before the partial sums are out (own LDS area)")
    srd(k, 56, 54, 1024 * 3584 * 2)
    k(f"""s_lshl_b32 s68, s16, 13
    s_lshl_b32 s42, s64, 6
    s_lshr_b32 s43, s16, 2
    s_lshl_b32 s43, s43, 5
    s_add_u32 s42, s42, s43
    s_and_b32 s43, s16, 1
    s_lshl_b32 s43, s43, 4
    s_add_u32 s42, s42, s43
    s_and_b32 s43, s16, 2
    s_lshl_b32 s43, s43, 1
    s_add_u32 s42, s42, s43
    s_lshl_b32 s67, s42, 11
    s_lshl_b32 s43, s65, 10
    s_add_u32 s67, s67, s43""")
    def wd():
        for d in range(0 if E("NOSTREAM", 0) else 8):
            rows = 8 * (d >> 2) + (d & 3)
            k(f"s_add_u32 s42, s67, {rows*2048}")
            k(f"s_add_u32 s43, s68, {d*1024}")
            k(f"s_mov_b32 m0, s43")
            if d: k(f"v_xor_b32 v8, {d*32}, v3")
            if DEPTH: k(f"s_waitcnt vmcnt({DEPTH-1})")
            k(f"buffer_load_dwordx4 v{8 if d else 3}, s[56:59], s42 offen {NTD} lds")
    EARLY = E("EARLY", 0)
    if E("HELP", 1):
        k.c("the line group whose address class streams slowly is pulled into L2 by all M workgroups of the die")
        k(f"""s_cmp_eq_u32 s66, 1
        s_cbranch_scc1 g_nh
        s_cmp_eq_u32 s65, 0
        s_cselect_b32 s8, s50, s52
        s_cselect_b32 s9, s51, s53
        s_mov_b32 s10, {1024*3584*2}
        s_lshr_b32 s42, s8, 7
        s_sub_u32 s42, {E("CLS", 3)}, s42
        s_add_u32 s42, s42, s34
        s_and_b32 s42, s42, 7
        s_cmp_eq_u32 s42, 7
        s_cbranch_scc1 g_nh
        s_mul_i32 s43, s34, 7
        s_add_u32 s42, s42, s43
        s_lshl_b32 s42, s42, 7
        s_lshr_b32 s43, s35, 1
        s_lshl_b32 s43, s43, 3
        s_add_u32 s43, s43, s16
        s_mul_i32 s43, s43, {19*7168}
        s_add_u32 s42, s42, s43
        v_mul_u32_u24 v8, 7168, v2
        s_mov_b64 exec, 0x7ffff
        buffer_load_dword v252, v8, s[8:11], s42 offen
        s_mov_b64 exec, -1
        g_nh:""")
    k(f"""s_cmp_eq_u32 s66, 1
    s_cbranch_scc1 g_ne
    s_cmp_ge_u32 s16, {EARLY}
    s_cbranch_scc1 g_ne""")
    wd()
    k(f"""g_ne:
    s_waitcnt lgkmcnt(0)
    s_barrier
    s_cmp_lg_u32 s16, 7
    s_cbranch_scc1 g_nr""")
    for i in range(4):
        k(f"ds_read2st64_b64 v[{16+4*i}:{19+4*i}], v108 offset0:{2*i} offset1:{2*i+1}")
    k("s_waitcnt lgkmcnt(0)")
    for i in range(4): padd(k, 16 + 4*i, 16 + 4*i, 18 + 4*i)
    padd(k, 16, 16, 20); padd(k, 24, 24, 28); padd(k, 16, 16, 24)
    k(f"""v_mov_b32 v18, v17
    v_mov_b32 v17, s32
    v_mov_b32 v19, s33
    buffer_store_dwordx4 v[16:19], v3, s[12:15], s18 offen sc1
    g_nr:""")
    stamp(k, 4)
    k(f"""s_barrier
    s_cmp_eq_u32 s66, 1
    s_cbranch_scc1 x_start""")
    k.c("================= M: weight stream =================")
    k(f"""s_getreg_b32 s39, hwreg(HW_REG_XCC_ID)
    s_and_b32 s39, s39, 7
    s_or_b32 s39, s39, s33
    s_lshl_b32 s38, s64, 1
    s_add_u32 s38, s38, s65
    s_lshl_b32 s38, s38, 7
    s_add_u32 s38, s38, {WS_MX}
    s_cmp_lg_u32 s16, 6
    s_cbranch_scc1 m_nx
    v_mov_b32 v13, s39
    s_mov_b64 exec, 1
    buffer_store_dwordx2 v[12:13], v14, s[12:15], s38 offen sc1
    s_mov_b64 exec, -1
    m_nx:
    s_xor_b32 s38, s38, 128""")
    srd(k, 8, 50, 1024 * 3584 * 2)
    srd(k, 44, 52, 1024 * 3584 * 2)
    L_H = 131072; L_A = 131072 + 2048
    if E("MW1", 0):
        k(f"""s_lshl_b32 s79, s34, 11
        s_add_u32 s79, s79, {WS_FL1}
        s_cmp_lg_u32 s16, 0
        s_cbranch_scc1 m_w1""")
        poll_recs(k, "m_pf", 24, 3, 79, 28, mask_hi=True)
        if E("ZASSIST", 1):
            k(f"""s_lshl_b32 s42, s34, 4
            s_add_u32 s42, s42, s35
            s_lshl_b32 s42, s42, 15
            s_add_u32 s42, s42, {WS_Z1 + 16384}
            s_add_u32 s43, s42, 8192
            v_lshlrev_b32 v8, 7, v2
            buffer_load_dword v253, v8, s[12:15], s42 offen sc1
            buffer_load_dword v254, v8, s[12:15], s43 offen sc1""")
        if E("MDEL", 8): k(f"s_sleep {E('MDEL', 8)}")
        k("m_w1:\ns_barrier")
    if E("MSTART", 0): k(f"s_sleep {E('MSTART', 0)}")
    else:
        E2 = E("E2", 0)
        if E2:
            k(f"s_cmp_lt_u32 s16, {8-E2}\ns_cbranch_scc1 m_e2")
            wd()
            k("m_e2:")
        k.c("hold the weight stream until the neighbour's first exchange is through (hint only, bounded)")
        k(f"""s_cmp_lg_u32 s16, 0
        s_cbranch_scc1 m_zlx
        s_lshl_b32 s42, s34, 4
        s_add_u32 s42, s42, s35
        s_lshl_b32 s42, s42, 7
        s_add_u32 s42, s42, {WS_ZL}
        s_mov_b32 s83, 0
        m_zl:
        buffer_load_dwordx2 v[16:17], v14, s[12:15], s42 offen sc1
        s_waitcnt vmcnt(0)
        v_readfirstlane_b32 s43, v16
        s_cmp_eq_u32 s43, s32
        s_cbranch_scc1 m_zlx
        s_sleep {E("ZLS", 3)}
        s_add_u32 s83, s83, 1
        s_cmp_lt_u32 s83, 32
        s_cbranch_scc1 m_zl
        m_zlx:
        s_barrier""")
    if E("E2", 0): k(f"s_cmp_ge_u32 s16, {8-E('E2', 0)}\ns_cbranch_scc1 m_l1")
    k(f"s_cmp_lt_u32 s16, {EARLY}\ns_cbranch_scc1 m_l1")
    wd()
    k(f"""m_l1:
    v_bfe_u32 v4, v0, 5, 1
    v_lshlrev_b32 v4, 3, v4
    v_bfe_u32 v5, v0, 3, 2
    v_add_u32 v4, v4, v5
    v_mul_u32_u24 v4, 7168, v4
    v_bfe_u32 v5, v0, 4, 2
    v_lshlrev_b32 v5, 1, v5
    v_xor_b32 v5, v5, v0
    v_and_b32 v5, 7, v5
    v_lshl_add_u32 v4, v5, 4, v4
    s_lshl_b32 s67, s65, 3
    s_add_u32 s67, s67, s16
    s_mul_i32 s67, s67, {64*7168}
    s_lshl_b32 s42, s64, 7
    s_add_u32 s67, s67, s42""")
    def gu(srdb, base):
        for ks in range(0 if E("NOSTREAM", 0) else 2):
            for d in range(4):
                rows = 32 * ks + 16 * (d & 1) + 4 * (d >> 1)
                k(f"s_add_u32 s42, s67, {rows*7168}")
                k(f"s_add_u32 s43, s68, {base + ks*4096 + d*1024}")
                k(f"s_mov_b32 m0, s43")
                if DEPTH: k(f"s_waitcnt vmcnt({DEPTH-1})")
                k(f"buffer_load_dwordx4 v4, s[{srdb}:{srdb+3}], s42 offen {NTG} lds")
    gu(8, 65536)
    stamp(k, 5)
    BD, BG, BU = 32, 64, 96
    k.c("v12/v21 gate/up tr addr ; v8..v11 down tr addr ; v17 A read ; v18 act write ; v19 act read ; v20 PART store")
    k(f"""v_lshrrev_b32 v6, 2, v2
    v_and_b32 v15, 3, v0
    v_bfe_u32 v7, v0, 3, 2
    v_xor_b32 v12, v7, v1
    v_and_b32 v12, 3, v12
    v_lshlrev_b32 v12, 5, v12
    v_lshl_add_u32 v12, v6, 7, v12
    v_lshl_add_u32 v12, v15, 3, v12
    v_lshrrev_b32 v16, 2, v1
    v_lshl_add_u32 v12, v16, 15, v12
    v_add_u32 v21, 65536, v12
    v_and_b32 v7, 7, v6
    v_lshlrev_b32 v8, 2, v1
    v_xor_b32 v8, v8, v7
    v_lshlrev_b32 v8, 5, v8
    v_lshl_add_u32 v8, v6, 10, v8
    v_lshl_add_u32 v8, v15, 3, v8
    v_xor_b32 v9, 32, v8
    v_xor_b32 v10, 64, v8
    v_xor_b32 v11, 96, v8
    v_bfe_u32 v7, v0, 4, 2
    v_and_b32 v6, 1, v0
    v_lshlrev_b32 v17, 10, v6
    v_lshl_add_u32 v17, v16, 9, v17
    v_lshl_add_u32 v17, v7, 4, v17
    v_add_u32 v17, {L_H}, v17
    v_lshlrev_b32 v19, 7, v6
    v_lshl_add_u32 v19, v7, 4, v19
    v_add_u32 v19, {L_A}, v19
    v_and_b32 v6, 15, v0
    v_lshlrev_b32 v18, 1, v6
    v_lshl_add_u32 v18, v1, 5, v18
    v_lshl_add_u32 v18, v7, 7, v18
    v_add_u32 v18, {L_A}, v18
    v_lshlrev_b32 v20, 2, v6
    v_lshl_add_u32 v20, v1, 14, v20
    v_lshl_add_u32 v20, v7, 12, v20
    v_cmp_eq_u32 s[60:61], 1, v7
    v_cmp_eq_u32 s[62:63], 2, v7
    v_cmp_eq_u32 s[72:73], 3, v7
    v_add_u32 v13, {L_H}, v3
    s_lshl_b32 s70, s65, 10
    s_add_u32 s70, s70, {WS_SLOT}
    s_lshl_b32 s74, s65, 17
    s_lshl_b32 s75, s64, 6
    s_add_u32 s74, s74, s75
    s_add_u32 s74, s74, {WS_PART}
    s_add_u32 s75, s74, {64*4096}
    s_lshl_b32 s69, s64, 2
    s_and_b32 s42, s16, 3
    s_add_u32 s69, s69, s42
    s_lshl_b32 s69, s69, 10
    s_add_u32 s81, s69, {WS_XA}
    s_add_u32 s82, s69, {WS_XB}
    s_lshl_b32 s76, s65, 1
    s_lshr_b32 s42, s16, 2
    s_add_u32 s76, s76, s42
    s_lshl_b32 s76, s76, 8
    s_add_u32 s77, s76, s82
    s_add_u32 s76, s76, s81
    s_lshl_b32 s78, s34, 11
    s_add_u32 s79, s78, {WS_FLX}
    s_add_u32 s78, s78, {WS_KEY}
    v_and_b32 v14, 0x70, v3
    s_waitcnt vmcnt(8)
    s_barrier""")
    for ks in range(2):
        for t in range(4):
            b_ = BD + (ks*4 + t)*4
            k(f"ds_read_b64_tr_b16 v[{b_}:{b_+1}], v{8+t} offset:{ks*32768}")
            k(f"ds_read_b64_tr_b16 v[{b_+2}:{b_+3}], v{8+t} offset:{ks*32768+16384}")
    k("s_waitcnt lgkmcnt(0)\ns_barrier")
    gu(44, 0)
    k("s_waitcnt vmcnt(8)\ns_barrier")
    k.c("wave 0: flag / hint / key loads ride behind the last weight loads")
    k(f"""s_cmp_lg_u32 s16, 0
    s_cbranch_scc1 m_n0
    v_lshlrev_b32 v9, 6, v2
    v_mov_b32 v22, 0
    s_waitcnt vmcnt({E("MLATE", 2)})
    buffer_load_dword v10, v9, s[12:15], s81 offen sc1
    buffer_load_dwordx4 v[28:31], v14, s[12:15], s79 offen sc1
    buffer_load_dwordx2 v[188:189], v22, s[12:15], s38 offen sc1
    {"buffer_load_dword v23, v22, s[12:15], s78 offen offset:1024 sc1" if E("RIDE", 1) else "v_mov_b32 v23, -1"}
    m_n0:""")
    for ks in range(8):
        k(f"ds_read_b64_tr_b16 v[{BG+4*ks}:{BG+4*ks+1}], v21 offset:{ks*4096}")
        k(f"ds_read_b64_tr_b16 v[{BG+4*ks+2}:{BG+4*ks+3}], v21 offset:{ks*4096+2048}")
    KB = 24; HA = 128; AG = 160
    k("s_waitcnt vmcnt(0)\ns_barrier")
    k(f"""v_mov_b32 v190, {L_A + 1024}
    s_cmp_lg_u32 s16, 0
    s_cbranch_scc1 m_n1
    v_xor_b32 v188, s32, v188
    v_xor_b32 v189, s39, v189
    v_or_b32 v188, v188, v189
    ds_write_b32 v190, v188""")
    cmp_recs(k, 28, 4, 9)
    k(f"""s_mov_b32 s71, 0
    s_cbranch_vccnz m_n1
    s_mov_b32 s71, 1
    v_cmp_eq_u32 vcc, -1, v23
    s_cbranch_vccnz m_n1
    buffer_load_dwordx4 v[{KB}:{KB+3}], v3, s[12:15], s78 offen sc1
    m_n1:""")
    for ks in range(8):
        k(f"ds_read_b64_tr_b16 v[{BU+4*ks}:{BU+4*ks+1}], v12 offset:{ks*4096}")
        k(f"ds_read_b64_tr_b16 v[{BU+4*ks+2}:{BU+4*ks+3}], v12 offset:{ks*4096+2048}")
    stamp(k, 6)
    k("s_cmp_lg_u32 s16, 0\ns_cbranch_scc1 m_nk\ns_cbranch_vccnz m_slowk\ns_waitcnt vmcnt(0)")
    chk_sent(k, range(KB, KB + 4), 9)
    k("s_cbranch_vccz m_pkx\ns_branch m_gox\nm_slowk:\ns_cmp_eq_u32 s71, 1\ns_cbranch_scc1 m_p1x")
    poll_recs(k, "m_p1", 24, 14, 79, 9)
    go_wait(k, "m_go", 78)
    poll_keys(k, "m_pk", KB, 78, 9)
    stamp(k, 13)
    top2(k, KB, 40, 41, 28)
    hl = """buffer_load_dwordx4 v[176:179], v3, s[12:15], s42 offen sc1
    buffer_load_dwordx4 v[180:183], v3, s[12:15], s43 offen sc1"""
    k(f"""s_and_b32 s40, s40, 0xff
    s_and_b32 s41, s41, 0xff
    s_lshl_b32 s42, s40, 12
    s_lshl_b32 s43, s41, 12
    s_add_u32 s42, s42, s70
    s_add_u32 s43, s43, s70
    s_mov_b32 s83, 0
    {hl}
    s_cmp_lg_u32 s35, 0
    s_cbranch_scc1 m_ph2
    v_mov_b32 v28, s40
    v_mov_b32 v29, s41
    s_mov_b64 exec, 1
    buffer_store_dwordx2 v[28:29], v22, s[12:15], s78 offen offset:1280 sc1
    s_mov_b64 exec, -1
    s_waitcnt vmcnt(1)
    s_branch m_ph3
    m_ph:
    {hl}
    m_ph2:
    s_waitcnt vmcnt(0)
    m_ph3:
    ds_write_b128 v13, v[176:179]
    ds_write_b128 v13, v[180:183] offset:1024""")
    chk_sent(k, range(176, 184), 9)
    k(f"""s_cbranch_vccz m_phx
    s_add_u32 s83, s83, 1
    s_cmp_lt_u32 s83, {SPIN}
    s_cbranch_scc1 m_ph
    m_phx:
    s_waitcnt lgkmcnt(0)""")
    stamp(k, 14)
    k("m_nk:\ns_barrier\nds_read_b32 v188, v190")
    for ks in range(8):
        k(f"ds_read_b128 v[{HA+4*ks}:{HA+4*ks+3}], v17 offset:{ks*64}")
    for ks in range(8):
        k(f"s_waitcnt lgkmcnt({7-ks})")
        for a_, b_ in ((AG, BG), (AG + 4, BU)):
            cc = "0" if ks == 0 else f"v[{a_}:{a_+3}]"
            k(f"v_mfma_f32_16x16x32_bf16 v[{a_}:{a_+3}], v[{HA+4*ks}:{HA+4*ks+3}], v[{b_+4*ks}:{b_+4*ks+3}], {cc}")
    PB = 184
    xb = f"s_mov_b64 exec, 0xffff\nbuffer_store_dwordx4 v[{PB}:{PB+3}], v3, s[12:15], s77 offen sc1\ns_mov_b64 exec, -1"
    k(f"""v_readfirstlane_b32 s71, v188
    v_min_u32 v{PB}, -2, v{AG}
    v_min_u32 v{PB+1}, -2, v{AG+1}
    v_min_u32 v{PB+2}, -2, v{AG+4}
    v_min_u32 v{PB+3}, -2, v{AG+5}
    s_mov_b64 exec, 0xffff
    buffer_store_dwordx4 v[{PB}:{PB+3}], v3, s[12:15], s76 offen
    s_cmp_eq_u32 s71, 0
    s_cbranch_scc1 m_same
    buffer_store_dwordx4 v[{PB}:{PB+3}], v3, s[12:15], s77 offen sc1
    m_same:
    s_cselect_b32 s82, s81, s82
    s_mov_b64 exec, -1
    s_cmp_ge_u32 s16, 4
    s_cbranch_scc1 m_na""")
    if SL3: k(f"s_sleep {SL3}")
    stamp(k, 15)
    R = 24
    k("s_mov_b32 s83, 0\nm_px:")
    for so in (81, 82):
        k(f"buffer_load_dwordx4 v[{R}:{R+3}], v3, s[12:15], s{so} offen sc1")
        k("s_waitcnt vmcnt(0)")
        chk_sent(k, range(R, R + 4), 9)
        k("s_cbranch_vccz m_pxx")
    k(f"""s_add_u32 s83, s83, 1
    s_cmp_lt_u32 s83, {SPIN}
    s_cbranch_scc1 m_px
    m_pxx:""")
    stamp(k, 16)
    k(f"v_permlane32_swap_b32 v{R}, v{R+2}")
    k(f"v_permlane32_swap_b32 v{R+1}, v{R+3}")
    padd(k, R, R, R + 2)
    k(f"v_permlane16_swap_b32 v{R}, v{R+1}")
    k(f"v_add_f32 v{R}, v{R}, v{R+1}")
    round_bf16(k, R, R)
    k(f"""v_mul_f32 v{R+1}, {LOG2E}, v{R}
    v_exp_f32 v{R+1}, v{R+1}
    v_mov_b32 v{R+2}, v{R}
    v_add_f32 v{R+1}, 1.0, v{R+1}
    v_rcp_f32 v{R+1}, v{R+1}
    v_mov_b32 v{R+3}, v{R}
    v_mul_f32 v{R+1}, v{R}, v{R+1}
    v_permlane32_swap_b32 v{R+2}, v{R+3}""")
    round_bf16(k, R + 1, R + 1)
    k(f"""v_mul_f32 v{R+1}, v{R+1}, v{R+3}
    v_cvt_pk_bf16_f32 v{R+1}, v{R+1}, v{R+1}
    ds_write_b16 v18, v{R+1}
    m_na:""")
    k("""s_waitcnt lgkmcnt(0)
    s_barrier""")
    for ks in range(2):
        k(f"ds_read_b128 v[{HA+4*ks}:{HA+4*ks+3}], v19 offset:{ks*64}")
    for ks in range(2):
        k(f"s_waitcnt lgkmcnt({1-ks})")
        for t in range(4):
            a_ = AG + 4 * t
            cc = "0" if ks == 0 else f"v[{a_}:{a_+3}]"
            b_ = BD + (ks*4 + t)*4
            k(f"v_mfma_f32_16x16x32_bf16 v[{a_}:{a_+3}], v[{HA+4*ks}:{HA+4*ks+3}], v[{b_}:{b_+3}], {cc}")
    for t, m_ in ((1, "s[60:61]"), (2, "s[62:63]"), (3, "s[72:73]")):
        for row in range(2):
            src = AG + row if t == 1 else 24 + row
            k(f"v_cndmask_b32 v{24+row}, v{src}, v{AG+4*t+row}, {m_}")
    for row in range(2):
        k(f"v_min_u32 v{24+row}, -2, v{24+row}")
    for row in range(2):
        k(f"buffer_store_dword v{24+row}, v20, s[12:15], s{74+row} offen sc1")
    if E("WBL2", 0) == 4:
        k("""s_lshl_b32 s42, s35, 3
        s_add_u32 s42, s42, s16
        s_cmp_lg_u32 s42, 15
        s_cbranch_scc1 m_nwb
        s_waitcnt vmcnt(0)
        buffer_wbl2 sc1
        m_nwb:""")
    stamp(k, 17)
    stamp_out(k, 0)
    k("s_endpgm")
    k.c("================= X: finalize ga/sb/cb/gb, then final reduction =================")
    k("x_start:")
    srd(k, 8, 48, 2048)
    k.c("s17 = j = wave*16 + xi ; finalize: vec = wave>>1, columns xi*64 + (wave&1)*32 + 2*(l>>2) + {0,1}, ks = l&3")
    k(f"""s_lshl_b32 s17, s64, 3
    s_add_u32 s17, s17, s16
    s_lshl_b32 s71, s64, 6
    s_and_b32 s70, s16, 1
    s_lshl_b32 s70, s70, 5
    s_add_u32 s70, s70, s71
    v_lshrrev_b32 v8, 2, v2
    v_lshlrev_b32 v4, 1, v8
    v_add_u32 v4, s70, v4
    v_and_b32 v5, 3, v0
    v_lshlrev_b32 v5, 15, v5
    v_lshl_add_u32 v8, v8, 4, v5
    s_lshr_b32 s72, s16, 1
    s_lshl_b32 s43, s72, 10
    s_add_u32 s43, s43, s70
    s_lshl_b32 s43, s43, 3
    s_add_u32 s43, s43, {WS_MODP}
    s_lshl_b32 s78, s34, 11
    s_add_u32 s78, s78, {WS_KEY}
    s_lshl_b32 s79, s64, 3
    s_add_u32 s79, s79, {WS_FLX}
    s_lshl_b32 s75, s72, 12
    s_add_u32 s75, s75, {WS_PAR}
    s_cmp_eq_u32 s72, 2
    s_cselect_b32 s72, 1.0, 0""")
    pos32(k, 6, 4, 7)
    k(f"""s_cmp_lg_u32 s16, 0
    s_cbranch_scc1 x_npw
    v_mov_b32 v20, 0
    v_mov_b32 v21, 0
    s_mov_b64 exec, 0xff
    buffer_store_dwordx2 v[20:21], v15, s[12:15], s79 offen sc1
    s_mov_b64 exec, -1
    x_npw:""")
    if E("PWX", 0):
        k(f"""s_mov_b32 exec_lo, 0x11111111
        s_mov_b32 exec_hi, 0x11111111
        s_mov_b32 s74, {WS_PAR + 4*4096}
        buffer_store_dwordx2 v[14:15], v6, s[12:15], s75 offen sc1
        s_cmp_eq_u32 s72, 0
        s_cbranch_scc1 x_npq
        buffer_store_dwordx2 v[14:15], v6, s[12:15], s74 offen sc1
        x_npq:
        s_mov_b64 exec, -1""")
    k(f"""v_lshlrev_b32 v9, 1, v4
    buffer_load_dword v22, v9, s[8:11], 0 offen
    s_mov_b32 s74, {WS_PAR + 4*4096}
    s_sleep {E("SLP", 6)}
    s_mov_b32 s83, 0
    x_pm:
    buffer_load_dwordx4 v[16:19], v8, s[12:15], s43 offen sc1
    s_waitcnt vmcnt(0)
    v_cmp_ne_u32 vcc, s32, v17
    v_cmp_ne_u32 s[68:69], s33, v19
    s_or_b64 vcc, vcc, s[68:69]
    s_cbranch_vccz x_pmx
    s_sleep {SL2}
    s_add_u32 s83, s83, 1
    s_cmp_lt_u32 s83, {SPIN}
    s_cbranch_scc1 x_pm
    x_pmx:
    v_mov_b32 v17, v18""")
    stamp(k, 5)
    for qp in ("[1,0,3,2]", "[2,3,0,1]"):
        for r in (16, 17): k(f"v_add_f32_dpp v{r}, v{r}, v{r} quad_perm:{qp} {DPPM}")
    rb2(k, 16, 18)
    k("v_add_f32 v16, s72, v16\nv_add_f32 v17, s72, v17")
    rb2(k, 16, 18)
    k(f"""s_mov_b32 exec_lo, 0x11111111
    s_mov_b32 exec_hi, 0x11111111
    buffer_store_dwordx2 v[16:17], v6, s[12:15], s75 offen sc1
    s_cmp_eq_u32 s72, 0
    s_cbranch_scc1 x_nq
    v_lshlrev_b32 v20, 16, v22
    v_and_b32 v21, 0xffff0000, v22
    v_pk_mul_f32 v[20:21], v[20:21], v[16:17]
    buffer_store_dwordx2 v[20:21], v6, s[12:15], s74 offen sc1
    x_nq:
    s_mov_b64 exec, -1
    s_waitcnt vmcnt(0)""")
    stamp(k, 6)
    k(f"""s_barrier
    s_cmp_lg_u32 s16, 0
    s_cbranch_scc1 x_nf
    s_mov_b64 exec, 0xff
    buffer_store_dwordx2 v[{NON}:{NON+1}], v15, s[12:15], s79 offen sc1
    s_mov_b64 exec, -1
    x_nf:
    s_and_b32 s18, s17, 63
    v_and_b32 v5, 3, v0
    v_lshlrev_b32 v5, 3, v5
    v_and_b32 v6, 1, v0
    v_lshlrev_b32 v6, 10, v6
    v_bfe_u32 v7, v0, 1, 1
    v_lshl_add_u32 v6, v7, 4, v6
    v_lshrrev_b32 v7, 4, v2
    v_lshl_add_u32 v6, v7, 2, v6
    v_lshl_add_u32 v5, v7, 1, v5
    v_and_b32 v86, -4, v5
    v_and_b32 v87, 2, v5
    v_lshlrev_b32 v87, 3, v87
    s_lshr_b32 s19, s18, 5
    s_lshl_b32 s19, s19, 11
    s_and_b32 s31, s18, 31
    s_lshl_b32 s31, s31, 5
    s_add_u32 s19, s19, s31
    s_add_u32 s31, s19, {WS_PAR + 3*4096}
    s_lshl_b32 s44, s17, 12
    s_add_u32 s44, s44, {WS_PART}
    v_cmp_gt_u32 vcc, 32, v2
    v_mov_b32 v7, 0x7ff00000
    v_cndmask_b32 v7, v7, v3, vcc""")
    for j in range(2):
        k(f"buffer_load_dwordx4 v[{40+4*j}:{43+4*j}], v3, s[8:11], 0 offen offset:{j*1024}")
    k("s_waitcnt vmcnt(0)")
    for i in range(8): unpack_bf16(k, 48 + 2*i, 40 + i)
    XPF = E("XPF", 0)
    if XPF:
        k.c("second X workgroup of the die helps the weight stream: last gate rows of both K halves")
        srd(k, 60, 50, 1024 * 3584 * 2)
        k(f"""s_cmp_eq_u32 s65, 0
        s_cbranch_scc1 x_nh
        v_lshrrev_b32 v90, 3, v2
        v_mul_u32_u24 v90, 7168, v90
        v_and_b32 v91, 7, v0
        v_min_u32 v91, 6, v91
        v_lshl_add_u32 v90, v91, 7, v90
        s_lshr_b32 s70, s16, 2
        s_lshl_b32 s70, s70, 9
        s_and_b32 s71, s16, 3
        s_mul_i32 s71, s71, {8*XPF}
        s_add_u32 s70, s70, s71
        s_add_u32 s70, s70, {512 - 32*XPF}
        s_mul_i32 s70, s70, 7168
        s_mul_i32 s71, s34, 896
        s_add_u32 s70, s70, s71""")
        for i in range(XPF):
            k(f"buffer_load_dword v{92+i}, v90, s[60:63], s70 offen\ns_add_u32 s70, s70, {8*7168}")
        k("x_nh:")
    k(f"s_cmp_lg_u32 s16, 0\ns_cbranch_scc1 x_ng\nv_and_b32 v9, 0x70, v3\ns_sub_u32 s79, s78, {WS_KEY-WS_FLX}\ns_sleep {E('XPS', 6)}")
    poll_recs(k, "x_px", 16, 9, 79, 20)
    if E("PTOUCH", 1):
        k(f"""v_lshlrev_b32 v9, 7, v2
        s_mov_b32 s42, {WS_PAR}
        s_mov_b32 s43, {WS_PAR + 8192}
        buffer_load_dword v24, v9, s[12:15], s42 offen sc1
        buffer_load_dword v25, v9, s[12:15], s43 offen sc1
        s_mov_b32 s42, {WS_PAR + 12288}
        buffer_load_dword v26, v9, s[12:15], s42 offen sc1""")
    res_wait(k, "x_r0", 78, 22, 16, 3)
    k("x_ng:\ns_barrier")
    res_wait(k, "x_r1", 78, 22, 16, 1)
    stamp(k, 13)
    k(f"""s_cmp_lt_u32 s17, 64
    s_cselect_b32 s40, s40, s41
    s_and_b32 s40, s40, 0xff
    s_lshl_b32 s42, s40, 12
    s_add_u32 s42, s42, {WS_SLOT}
    s_lshl_b32 s19, s18, 5
    s_add_u32 s43, s42, s19
    s_lshl_b32 s40, s40, 2
    s_add_u32 s40, s40, {WS_TT}
    buffer_load_dword v80, v6, s[12:15], s31 offen sc1
    s_mov_b32 s83, 0
    x_ps:""")
    for j in range(2):
        k(f"buffer_load_dwordx4 v[{32+4*j}:{35+4*j}], v3, s[12:15], s42 offen offset:{j*1024} sc1")
    k("""buffer_load_dword v40, v86, s[12:15], s43 offen offset:2048 sc1
    buffer_load_dword v41, v14, s[12:15], s40 offen sc1
    s_waitcnt vmcnt(0)""")
    chk_sent(k, range(32, 42), 9)
    k(f"""s_cbranch_vccz x_psx
    s_add_u32 s83, s83, 1
    s_cmp_lt_u32 s83, {SPIN}
    s_cbranch_scc1 x_ps
    x_psx:
    v_readfirstlane_b32 s41, v41""")
    for i in range(8): unpack_bf16(k, 64 + 2*i, 32 + i)
    k("""s_and_b32 s41, s41, 0x7ff
    s_lshl_b32 s41, s41, 11
    s_add_u32 s41, s41, s19""")
    pmul(k, 8, 48, 64)
    for i in range(1, 8): pfma(k, 8, 48 + 2*i, 64 + 2*i, 8)
    k("v_add_f32 v8, v8, v9")
    wave_reduce_to63(k, [8])
    round_bf16(k, 8, 8)
    k(f"""v_mul_f32 v8, {LOG2E}, v8
    v_exp_f32 v8, v8
    v_add_f32 v8, 1.0, v8
    v_rcp_f32 v8, v8""")
    round_bf16(k, 8, 8)
    k("v_readlane_b32 s46, v8, 63")
    k("v_lshrrev_b32 v44, v87, v40\nv_lshlrev_b32 v44, 16, v44\nv_mul_f32 v80, s46, v80")
    stamp(k, 14)
    L = 16
    k(f"s_sleep {SL4}")
    k(f"s_mov_b32 s83, 0\nx_p2:")
    for j in range(4):
        k(f"buffer_load_dwordx4 v[{L+4*j}:{L+4*j+3}], v{7 if j == 3 else 3}, s[12:15], s44 offen offset:{j*1024} sc1")
    k("s_waitcnt vmcnt(0)")
    chk_sent(k, range(L, L + 16), 12)
    k(f"""s_cbranch_vccz x_p3
    s_add_u32 s83, s83, 1
    s_cmp_lt_u32 s83, {SPIN}
    s_cbranch_scc1 x_p2
    x_p3:""")
    stamp(k, 17)
    for h in range(2):
        padd(k, L + 2*h, L + 2*h, L + 4 + 2*h); padd(k, L + 8 + 2*h, L + 8 + 2*h, L + 12 + 2*h)
    for h in range(2): padd(k, L + 2*h, L + 2*h, L + 8 + 2*h)
    k(f"v_permlane32_swap_b32 v{L}, v{L+2}\nv_permlane32_swap_b32 v{L+1}, v{L+3}")
    padd(k, L, L, L + 2)
    k(f"v_permlane16_swap_b32 v{L}, v{L+1}\nv_add_f32 v{L}, v{L}, v{L+1}")
    for sh in (4, 8): k(f"v_add_f32_dpp v{L}, v{L}, v{L} row_ror:{sh} {DPPM}")
    k(f"""v_fmac_f32 v44, v{L}, v80
    s_mov_b32 exec_lo, 0x000f000f
    s_mov_b32 exec_hi, 0x000f000f
    v_cvt_pk_bf16_f32 v44, v44, v44
    buffer_store_short v44, v5, s[24:27], s41 offen {os.environ.get("FST", "")}""")
    stamp_out(k, 0)

def gen():
    k = K(NAME)
    stamp_init(k)
    k("""s_cmp_ge_u32 s2, 256
    s_cbranch_scc1 k_done""")
    stamp(k, 0)
    k("""v_lshrrev_b32 v1, 6, v0
    v_and_b32 v2, 63, v0
    v_readfirstlane_b32 s16, v1
    v_lshlrev_b32 v3, 4, v2
    s_and_b32 s34, s2, 7
    s_bitcmp1_b32 s2, 3
    s_cbranch_scc1 g_start""")
    role_F(k)
    role_G(k)
    k("k_done:\ns_endpgm")
    return k

HEADER = """; adaLN + FNet mixing + MoD block, gfx950.  Generated by gen/gen17.py (hand-written generator).
"""
def tables():
    import numpy as np
    def h2(a, b):
        return int(np.float16(a).view(np.uint16)) | (int(np.float16(b).view(np.uint16)) << 16)
    def f4(a): return int(np.float32(a).view(np.uint32))
    cs = lambda x: (math.cos(2 * math.pi * x), math.sin(2 * math.pi * x))
    w = []
    for arr in range(4):
        for q in range(4):
            for l in range(64):
                n, h = l & 31, l >> 5
                for i in range(4):
                    idx = 8 * q + 4 * h + i
                    c, s_ = cs((idx * n % 32) / 32.0) if arr < 2 else cs(idx * n / 1024.0)
                    w.append((h2(c, s_), h2(-s_, c), f4(c), f4(s_))[arr])
    for d2 in range(2):
        for arr in range(8):
            for l in range(64):
                n, g = l & 15, l >> 4
                kd = (n & 7) + 0.5 * d2
                for j in range(4):
                    if arr < 2:
                        c, s_ = cs((4 * (g & 1) + j) * kd / 8.0)
                        v = (h2(c, s_), h2(-s_, c))[arr] if (n >> 3) == (g >> 1) else 0
                    elif arr < 4:
                        c, s_ = cs(((4 * g + j) * n % 16) / 16.0)
                        v = (h2(c, s_), h2(-s_, c))[arr - 2]
                    elif arr < 6:
                        c, s_ = cs((4 * g + j) * kd / 128.0)
                        v = (f4(c), f4(s_))[arr - 4]
                    else:
                        v = 0
                    w.append(v)
    t = ".p2align 8\n.type tables,@object\ntables:\n"
    for i in range(0, len(w), 8):
        t += ".long " + ",".join("0x%x" % x for x in w[i:i+8]) + "\n"
    return t + f".size tables, {4*len(w)}\n"

def main(out):
    k = gen()
    t = HEADER + f"; @launch grid=(256,1,1) block=(512,1,1) lds={LDS}\n"
    t += '.amdgcn_target "amdgcn-amd-amdhsa--gfx950"\n.text\n' + k.text() + 'code_end:\n' + tables()
    t += '.section .rodata,"a"\n' + k.desc()
    open(out, "w").write(t)
if __name__ == "__main__":
    main(sys.argv[1] if len(sys.argv) > 1 else "adaLN_cond__spectral_fnet__moe_arch_mod__prompt.s")
```

```python
import math
import numpy as np
cs = lambda x: (math.cos(2 * math.pi * x), math.sin(2 * math.pi * x))
def bfun(w, bsel): return (8 if w == 0 else 16 - w) if bsel else w
def T1(g0, w):
    t = np.zeros((4, 64, 2))
    for bsel in range(2):
        for alo in range(2):
            for l in range(64):
                m, g = l & 15, l >> 4
                a = g + 4 * alo; r = 16 * a + bfun(w, bsel)
                sg, comp = m >> 1, m & 1
                if not g0:
                    c, s = cs(r * sg % 128 / 128.0)
                    v = (c, s) if comp == 0 else (-s, c)
                elif sg == 0:
                    v = (1.0, 0.0) if comp == 0 else ((-1.0) ** a, 0.0)
                elif sg < 4:
                    c, s = cs(r * sg % 128 / 128.0)
                    v = (c, 0.0) if comp == 0 else (-s, 0.0)
                else:
                    c, s = cs(r * (2 * (sg - 4) + 1) % 256 / 256.0)
                    v = (0.0, c) if comp == 0 else (0.0, -s)
                t[2 * bsel + alo, l] = v
    return t
def T2(sp):
    t = np.zeros((8, 64, 2))
    for j in range(4):
        for l in range(64):
            n, g = l & 15, l >> 4
            b = bfun(2 * g + (j >> 1), j & 1)
            if not sp:
                c, s = cs(b * n % 16 / 16.0); re, im = (c, s), (-s, c)
            elif n == 0:
                re, im = (0.5, 0.0), (0.5 * (-1.0) ** b, 0.0)
            elif n < 8:
                c, s = cs(b * n % 16 / 16.0); re, im = (c, 0.0), (-s, 0.0)
            else:
                c, s = cs(b * (2 * (n - 8) + 1) % 32 / 32.0); re, im = (0.0, c), (0.0, -s)
            t[j, l] = re; t[4 + j, l] = im
    return t
def T3b(mmp):
    t = np.zeros((16, 64, 2))
    for n2l in range(4):
        for i in range(4):
            for l in range(64):
                k1, g = l & 15, l >> 4
                d = 64 * (4 * g + i) + 4 * mmp + n2l
                t[4 * n2l + i, l] = cs(d * k1 % 1024 / 1024.0)
    return t
def T4():
    t = np.zeros((64, 64, 2))
    for T in range(4):
        for j in range(4):
            for i in range(4):
                for l in range(64):
                    n, g = l & 15, l >> 4
                    t[16 * T + 4 * j + i, l] = cs((16 * j + 4 * g + i) * (n + 16 * T) % 64 / 64.0)
    return t
def rowid(c, mm, sg):
    if c: return c + 16 * (sg + 8 * mm)
    if sg == 0: return 128 * mm if mm < 8 else 64 + 128 * (mm - 8)
    if sg < 4: return 16 * (sg + 8 * mm)
    return 8 + 16 * (sg - 4 + 8 * mm)
def words(t):
    h = t.astype(np.float16).view(np.uint16).astype(np.uint32)
    w = h[..., 0] | (h[..., 1] << 16)
    return w.reshape(-1, 4, 64).transpose(0, 2, 1).reshape(-1).tolist()
```

```python
import math, sys, os
from asmgen import K, f32
from gen2 import (srd, P, padd, psub, pmul, pfma, pmul_s, pfma_s, psub_s, unpack_bf16, round_bf16, DPPM,
                  row_allreduce, wave_reduce_to63, chk_sent,
                  A_X, A_WR, A_WG, A_WU, A_WD, A_C, A_WM, A_OUT, A_DBG, A_WS, WS_SIZE)
import tabs
NAME = "adaLN_cond__spectral_fnet__moe_arch_mod__prompt_kernel"
E = lambda n, d: int(os.environ.get(n, str(d)))
ES = lambda n, d: os.environ.get(n, d)
SPIN = "0x40000"
WS_Z1   = 0x0000000
WS_SENT = 0x0400000
WS_PART = WS_SENT
WS_XA   = WS_SENT + 0x80000
WS_KEY  = WS_SENT + 0xB8000
WS_XB   = WS_SENT + 0xC0000
WS_TT   = 0x0634800
WS_SLOT = WS_SENT + 0x100000
WS_CAP  = 0x0600000
WS_MODP = 0x0610000
WS_PAR  = 0x0630000
WS_XR   = 0x0634000
WS_KR   = 0x0634400
WS_ZL   = 0x0638000
WS_MX   = 0x063C000
WS_EP   = 0x0650000
WS_STAMP = 0x2000000
NHASH = 0x9E3779B1
XP = 2064
L_S = 0; L_T4 = 33280; L_X = L_T4 + 16384; L_P = L_X + 32768; L_KEY = L_P + 5 * 4096; L_ST = L_KEY + 128
LDS = 131072 + 8192
LOG2E = f32(-math.log2(math.e))
ZMASK = E("ZMASK", 0x00030003)
TB_T4, TB_T1, TB_T2, TB_END = 0, 16384, 32768, 36864
ST = [int(x) for x in ES("ST", "").split(",") if x]
def stamp(k, i):
    if not ST: return
    if i == 0: k("s_memrealtime s[84:85]")
    elif i in ST: k(f"s_memrealtime s[{86+2*ST.index(i)}:{87+2*ST.index(i)}]")
def stamp_val(k, i, sreg):
    if i in ST: k(f"s_add_u32 s{86+2*ST.index(i)}, s{sreg}, s84")
def stamp_init(k):
    if ST:
        for j in range(8): k(f"s_mov_b32 s{84+2*j}, 0")
def stamp_out(k):
    if not ST: return
    k(f"""s_mov_b64 exec, -1
    s_waitcnt vmcnt(0)
    s_memrealtime s[98:99]
    s_waitcnt lgkmcnt(0)
    v_lshrrev_b32 v248, 6, v0
    v_lshlrev_b32 v248, 5, v248
    s_lshl_b32 s100, s2, 8
    s_add_u32 s100, s100, {WS_STAMP}""")
    for i in range(8): k(f"v_mov_b32 v{240+i}, s{84+2*i}")
    k("""s_mov_b64 exec, 1
    buffer_store_dwordx4 v[240:243], v248, s[12:15], s100 offen
    buffer_store_dwordx4 v[244:247], v248, s[12:15], s100 offen offset:16""")
def rb2(k, v, t):
    k(f"v_cvt_pk_bf16_f32 v{t}, v{v}, v{v+1}")
    unpack_bf16(k, v, t)
def spin(lab, sl):
    return (f"s_sleep {sl}\n" if sl else "") + f"s_add_u32 s83, s83, 1\ns_cmp_lt_u32 s83, {SPIN}\ns_cbranch_scc1 {lab}"
def nonce_issue(k, sp):
    k(f"s_mov_b32 s43, {WS_EP}\ns_load_dword s101, s[{sp}:{sp+1}], s43")
def nonce_finish(k):
    k(f"""s_mul_i32 s32, s101, {NHASH:#x}
    s_or_b32 s32, s32, 0x101
    s_and_b32 s32, s32, {~0x10404 & 0xffffffff:#x}
    s_and_b32 s56, s32, 0xff
    s_bfe_u32 s57, s32, 0x80008
    s_bfe_u32 s58, s32, 0x80010
    s_lshr_b32 s59, s32, 24""")
def chk_bytes(k, regs, acc):
    regs = list(regs)
    for i, r in enumerate(regs): k(f"v_xor_b32 v{r}, s{56 + (i & 3)}, v{r}")
    k(f"v_or3_b32 v{acc}, v{regs[0]}, v{regs[1]}, v{regs[2]}")
    regs = regs[3:]
    while len(regs) >= 2:
        k(f"v_or3_b32 v{acc}, v{acc}, v{regs[0]}, v{regs[1]}"); regs = regs[2:]
    if regs: k(f"v_or_b32 v{acc}, v{acc}, v{regs[0]}")
    k(f"v_and_b32 v{acc}, 0xff, v{acc}")
    k(f"v_cmp_ne_u32 vcc, 0, v{acc}")
def keys_issue(k, base, soff):
    for j in range(2):
        k(f"buffer_load_dwordx4 v[{base+4*j}:{base+4*j+3}], v3, s[12:15], s{soff} offen offset:{j*1024} sc1")
def keys_chk(k, base, tmp):
    k(f"v_xor_b32 v{tmp}, s32, v{base+2}")
    k(f"v_bitop3_b32 v{tmp}, v{tmp}, v{base+6}, s32 bitop3:0xf6")
    k(f"v_cmp_ne_u32 vcc, 0, v{tmp}")
def poll_keys(k, lab, base, soff, tmp):
    k(f"s_mov_b32 s83, 0\n{lab}:")
    keys_issue(k, base, soff)
    k("s_waitcnt vmcnt(0)")
    keys_chk(k, base, tmp)
    k(f"s_cbranch_vccz {lab}x\n{spin(lab, E('SL2', 4))}\n{lab}x:")
def top2(k, KB, s1, s2, tmp):
    m1, m2, c = tmp, tmp + 1, tmp + 2
    k(f"v_max_u32 v{m1}, v{KB}, v{KB+4}")
    k(f"v_min_u32 v{m2}, v{KB}, v{KB+4}")
    k(f"v_max3_u32 v{m2}, v{m2}, v{KB+1}, v{KB+5}")
    k(f"v_mov_b32 v{c}, v{m1}")
    wave_reduce_to63(k, [c], "v_max_u32")
    k(f"v_readlane_b32 s{s1}, v{c}, 63")
    k(f"v_cmp_eq_u32 vcc, s{s1}, v{m1}")
    k(f"v_cndmask_b32 v{c}, v{m1}, v{m2}, vcc")
    wave_reduce_to63(k, [c], "v_max_u32")
    k(f"v_readlane_b32 s{s2}, v{c}, 63")
def res_wait(k, lab, soff, vz, vd, sl):
    k(f"""v_mov_b32 v{vz}, 0
    s_mov_b32 s83, 0
    {lab}:
    buffer_load_dwordx2 v[{vd}:{vd+1}], v{vz}, s[12:15], s{soff} offen offset:2304 sc1
    s_waitcnt vmcnt(0)
    v_readfirstlane_b32 s40, v{vd}
    v_readfirstlane_b32 s41, v{vd+1}
    s_cmp_eq_u32 s41, s32
    s_cbranch_scc1 {lab}x
    {spin(lab, sl)}
    {lab}x:
    s_lshr_b32 s41, s40, 8
    s_and_b32 s40, s40, 0xff
    s_and_b32 s41, s41, 0xff""")

def role_F(k):
    ZL, PA, PB, BP, XA_, XB_, NAT, KW, KR_, FA, REC, PG, PS = 4, 5, 6, 7, 8, 9, 10, 11, 12, 13, 14, 15, 1
    EG, T1, T2, L, D, D3, T3, TB, XA2, XB2, T4 = 16, 20, 24, 32, 48, 80, 112, 144, 160, 176, 192
    PRA, RCL, WRL, PRB0, ZS, A0, A1, R0, R1 = 240, 244, 248, 16, 251, 252, 253, 254, 255
    T4L = "s_mov_b32 m0, s40\ns_nop 0\nglobal_load_lds_dwordx4 v79, s[62:63]\nglobal_load_lds_dwordx4 v79, s[62:63] offset:1024"
    T1L = f"""global_load_dwordx4 v[{T1}:{T1+3}], v77, s[62:63]
    global_load_dwordx4 v[{T2}:{T2+3}], v78, s[62:63]
    global_load_dwordx4 v[{T2+4}:{T2+7}], v78, s[62:63] offset:1024"""
    k(f"""s_add_u32 s62, s62, tables-k_pc
    s_addc_u32 s63, s63, 0
    s_lshl_b32 s43, s16, 11
    v_add_u32 v79, s43, v3
    s_add_u32 s40, s43, {L_T4}
    s_lshl_b32 s42, s16, 10
    {"" if E("T4POS", 1) else T4L}
    s_add_u32 s43, s42, {TB_T1}
    s_cmp_eq_u32 s34, 0
    s_cselect_b32 s68, 8192, 0
    s_add_u32 s43, s43, s68
    v_add_u32 v77, s43, v3
    s_or_b32 s69, s34, s16
    s_cselect_b32 s68, 0, 2048
    s_add_u32 s68, s68, {TB_T2}
    v_add_u32 v78, s68, v3
    {"" if E("T1POS", 0) else T1L}
    s_sub_u32 s17, 16, s34
    s_cmp_eq_u32 s34, 0
    s_cselect_b32 s17, 8, s17
    s_bitcmp1_b32 s35, 0
    s_cselect_b32 s17, s17, s34
    s_lshr_b32 s36, s35, 1
    s_lshl_b32 s36, s36, 4
    s_add_u32 s17, s17, s36
    s_lshl_b32 s36, s16, 8
    s_add_u32 s36, s36, s17
    s_lshl_b32 s36, s36, 11
    s_add_u32 s37, s36, {128*2048}
    s_mov_b32 s10, {2048*1024*2}
    s_mov_b32 s11, 0x00020000""")
    XW, AB, S, MB, R, BFR, D0, DA, OB = 32, 48, 52, 56, 60, 80, 96, 100, 176
    VO, XWA, TRA_, RT, MT, STW, MW, NON, VZ, SH, N_, G_ = 160, 161, 162, 163, 164, 165, 166, 167, 168, 169, 170, 171
    k.c("A-matrix base: lane m = 2k+comp, rows j = 4g+i")
    k(f"""v_and_b32 v{N_}, 15, v0
    v_bfe_u32 v{G_}, v0, 4, 2
    v_lshrrev_b32 v72, 1, v{N_}
    v_and_b32 v73, 1, v0
    v_cmp_eq_u32 vcc, 1, v{N_}
    v_mov_b32 v74, s17
    v_cndmask_b32_e64 v72, v72, 8, vcc
    v_cndmask_b32_e64 v74, v74, 0, vcc
    v_cndmask_b32_e64 v73, v73, 0, vcc
    v_lshl_add_u32 v74, v{G_}, 9, v74
    s_waitcnt lgkmcnt(0)
    s_mov_b32 s8, s4
    s_mov_b32 s9, s5""")
    stamp(k, 1)
    if E("FSTOP", 9) == 0: srd(k, 12, 6, WS_SIZE); stamp_out(k); k("s_endpgm")
    for h in range(2):
        for jj in range(2):
            k(f"buffer_load_dwordx4 v[{XW+8*jj+4*h}:{XW+8*jj+4*h+3}], v3, s[8:11], s{36+jj} offen offset:{h*1024}")
    nonce_issue(k, 6)
    srd(k, 12, 6, WS_SIZE)
    srd(k, 20, 52, 1024 * 3584 * 2)
    srd(k, 52, 48, 2048)
    k(f"""s_mov_b32 s26, 4194304
    s_mov_b32 s27, 0x00020000
    s_getreg_b32 s39, hwreg(HW_REG_XCC_ID)
    s_and_b32 s39, s39, 7
    v_mul_u32_u24 v74, v72, v74
    v_lshl_add_u32 v74, v73, 9, v74
    v_lshlrev_b32 v72, 7, v72""")
    for i in range(4):
        k(f"v_and_b32 v{AB+i}, 2047, v74")
        if i < 3: k("v_add_u32 v74, v74, v72")
    for i in range(4): k(f"v_cvt_f32_u32 v{AB+i}, v{AB+i}")
    for i in range(4): k(f"v_mul_f32 v{AB+i}, {f32(1.0/2048)}, v{AB+i}")
    for i in range(4): k(f"v_cos_f32 v{AB+i}, v{AB+i}")
    for i in range(4): k(f"v_mul_f32 v{AB+i}, {f32(1.0/16)}, v{AB+i}")
    k(f"""v_lshlrev_b32 v{VO}, 20, v{G_}
    v_lshl_add_u32 v{VO}, v1, 15, v{VO}
    v_lshl_add_u32 v{VO}, v{N_}, 4, v{VO}
    v_mul_u32_u24 v{XWA}, {2*XP}, v1
    v_add_u32 v{XWA}, v{XWA}, v3
    v_lshrrev_b32 v72, 2, v2
    v_mul_u32_u24 v{TRA_}, {XP}, v72
    v_and_b32 v72, 3, v0
    v_lshl_add_u32 v{TRA_}, v72, 7, v{TRA_}
    v_lshl_add_u32 v{TRA_}, v1, 3, v{TRA_}
    v_lshlrev_b32 v{RT}, 4, v{G_}
    v_add_u32 v{RT}, {L_ST}, v{RT}
    v_lshlrev_b32 v{MT}, 3, v{G_}
    v_add_u32 v{MT}, {L_ST+64}, v{MT}
    v_lshrrev_b32 v72, 5, v0
    v_lshlrev_b32 v{STW}, 2, v72
    v_add_u32 v{KW}, {L_KEY}, v{STW}
    v_add_u32 v{STW}, {L_ST}, v{STW}
    v_lshlrev_b32 v{MW}, 1, v72
    v_add_u32 v{MW}, {L_ST+64}, v{MW}
    v_mov_b32 v{VZ}, 0
    v_and_b32 v172, 255, v0
    v_lshlrev_b32 v172, 3, v172
    v_and_b32 v{SH}, 1, v0
    v_lshlrev_b32 v{SH}, 3, v{SH}
    s_lshl_b32 s3, s34, 4
    s_and_b32 s64, s35, 1
    s_lshl_b32 s64, s64, 3
    s_lshr_b32 s65, s35, 1
    s_add_u32 s64, s64, s65
    s_and_b32 s65, s16, 3
    s_xor_b32 s64, s64, s65
    s_add_u32 s64, s64, s3
    s_add_u32 s3, s3, s35
    s_lshl_b32 s64, s64, 8
    s_add_u32 s64, s64, {WS_Z1}
    s_add_u32 s65, s64, 262144
    s_add_u32 s66, s64, 524288
    s_add_u32 s67, s64, {524288+262144}
    s_mov_b32 s44, 0x3f803f80
    s_mov_b32 s46, {f32(1.0/1024)}
    s_mov_b32 s33, {ZMASK}""")
    k.c("row ids: s30 = t, s31 = mirror row")
    k(f"""s_lshl_b32 s60, s35, 3
    s_add_u32 s60, s60, s16
    s_lshl_b32 s30, s60, 4
    s_add_u32 s30, s30, s34
    s_cmp_lg_u32 s34, 0
    s_cbranch_scc1 f_g1
    s_cmp_ge_u32 s16, 4
    s_cselect_b32 s31, 56, 0
    s_sub_u32 s30, s30, s31
    s_cmp_lg_u32 s16, 0
    s_cbranch_scc1 f_g1
    s_cmp_ge_u32 s35, 8
    s_cselect_b32 s31, 960, 0
    s_sub_u32 s30, s30, s31
    f_g1:
    s_sub_u32 s31, 2048, s30
    s_cmp_eq_u32 s30, 0
    s_cselect_b32 s31, 1024, s31
    s_lshl_b32 s18, s30, 11
    s_lshl_b32 s19, s31, 11
    s_lshl_b32 s61, s34, 19
    s_add_u32 s61, s61, {WS_Z1}
    s_lshl_b32 s28, s60, 8
    s_add_u32 s28, s28, s61
    s_add_u32 s29, s28, 131072
    s_add_u32 s50, s28, 262144
    s_add_u32 s51, s28, 393216
    s_lshl_b32 s73, s35, 15
    s_add_u32 s73, s73, s61
    s_lshl_b32 s42, s16, 12
    s_add_u32 s72, s73, s42
    s_add_u32 s45, s42, {L_X}
    s_lshl_b32 s42, s16, 8
    s_add_u32 s74, s73, s42
    s_add_u32 s75, s74, 4096
    s_lshl_b32 s76, s34, 7
    s_add_u32 s77, s76, {WS_KR}
    s_add_u32 s76, s76, {WS_XR}
    s_lshl_b32 s78, s35, 3
    s_add_u32 s79, s78, s77
    s_add_u32 s78, s78, s76
    s_lshl_b32 s80, s3, 4
    s_add_u32 s80, s80, {WS_KEY}
    s_lshl_b32 s81, s34, 12
    s_add_u32 s81, s81, {WS_KEY}
    s_lshl_b32 s82, s35, 11
    s_add_u32 s82, s82, {WS_CAP}""")
    def tbase():
        k.c("base table (cos, sin)(d*k1/1024)")
        k(f"""v_cvt_f32_u32 v75, v{N_}
        s_lshl_b32 s42, s35, 2
        v_lshl_add_u32 v76, v{G_}, 8, s42
        v_mul_f32 v75, {f32(1.0/1024)}, v75
        v_cvt_f32_u32 v76, v76
        v_mul_f32 v76, v76, v75""")
        for n2l in range(4):
            for i in range(4):
                k(f"v_fmamk_f32 v{60+i}, v75, {f32(64.0*i + n2l)}, v76")
            for i in range(4): k(f"v_cos_f32 v{64+i}, v{60+i}")
            for i in range(4): k(f"v_sin_f32 v{68+i}, v{60+i}")
            for i in range(4): k(f"v_cvt_pk_f16_f32 v{TB+4*n2l+i}, v{64+i}, v{68+i}")
    if E("TBPOS", 0) == 0: tbase()
    def xc():
        k(f"""s_mov_b32 m0, s45
        s_add_u32 s43, s45, 2048
        buffer_load_dwordx4 v3, s[8:11], s18 offen lds
        buffer_load_dwordx4 v3, s[8:11], s18 offen offset:1024 lds
        s_mov_b32 m0, s43
        buffer_load_dwordx2 v[{WRL}:{WRL+1}], v172, s[52:55], 0 offen
        buffer_load_dwordx4 v3, s[8:11], s19 offen lds
        buffer_load_dwordx4 v3, s[8:11], s19 offen offset:1024 lds""")
    XPOS = E("XPOS", 5)
    NX = (5 if XPOS == 2 else 0) + 2 * (E("T4POS", 1) == 1) + 3 * (E("T1POS", 0) == 1)
    if E("T4POS", 1) == 1: k(T4L)
    if E("T1POS", 0) == 1: k(T1L)
    if XPOS == 2: xc()
    for h in range(2):
        for jj in range(2):
            u = 2*h + jj
            k(f"s_waitcnt vmcnt({3 - u + NX})")
            k(f"ds_write_b128 v{XWA}, v[{XW+8*jj+4*h}:{XW+8*jj+4*h+3}] offset:{L_S + jj*XP + h*1024}")
            for q in range(4):
                r = XW + 8*jj + 4*h + q
                first = (h == 0 and q == 0)
                k(f"v_dot2_f32_bf16 v{S+jj}, v{r}, s44, {'0' if first else f'v{S+jj}'}")
                k(f"v_dot2_f32_bf16 v{S+2+jj}, v{r}, v{r}, {'0' if first else f'v{S+2+jj}'}")
    stamp(k, 2)
    if XPOS == 0: xc()
    else: k("s_nop 2")
    def red1(js):
        for j in js: k(f"v_permlane32_swap_b32 v{S+j}, v{S+j+1}")
        for j in js: k(f"v_add_f32 v{S+j}, v{S+j}, v{S+j+1}")
        regs = [S + j for j in js]
        row_allreduce(k, regs)
        for r in regs: k(f"v_add_f32_dpp v{r}, v{r}, v{r} row_bcast:15 row_mask:0xa bank_mask:0xf")
    red1((0, 2))
    k.c("lanes 31 / 63 hold the two rows")
    V = S + 2
    k(f"""v_mul_f32 v{S}, s46, v{S}
    v_mul_f32 v{V}, s46, v{V}
    v_mul_f32 v{R+4}, v{S}, v{S}
    v_cvt_pk_bf16_f32 v{MB}, -v{S}, -v{S}
    v_sub_f32 v{V}, v{V}, v{R+4}
    v_mul_f32 v{R+6}, {f32(512.0)}, v{V}
    v_cmp_gt_f32 vcc, v{R+4}, v{R+6}
    s_or_b32 s68, vcc_lo, vcc_hi
    s_bitcmp1_b32 s68, 31
    s_cbranch_scc1 f_slowvar
    f_var:""")
    round_bf16(k, V, V)
    k(f"v_add_f32 v{V}, {f32(1e-5)}, v{V}")
    round_bf16(k, V, V)
    k(f"v_sqrt_f32 v{V}, v{V}")
    round_bf16(k, V, V)
    k(f"""v_rcp_f32 v{V}, v{V}
    s_mov_b32 exec_lo, 0x80000000
    s_mov_b32 exec_hi, 0x80000000
    ds_write_b16 v{MW}, v{MB}
    ds_write_b32 v{STW}, v{V}
    s_mov_b64 exec, -1
    s_waitcnt lgkmcnt(0)
    s_cmp_lg_u32 s16, 0
    s_cbranch_scc1 f_nxr""")
    nonce_finish(k)
    k(f"""v_mov_b32 v72, s32
    v_mov_b32 v73, s39
    s_mov_b64 exec, 1
    buffer_store_dwordx2 v[72:73], v{VZ}, s[12:15], s78 offen sc1
    s_mov_b64 exec, -1
    f_nxr:
    s_barrier""")
    stamp(k, 30)
    if E("FSTOP", 9) == 1: stamp_out(k); k("s_endpgm")
    k(f"""ds_read_b128 v[{R}:{R+3}], v{RT}
    ds_read_b64 v[{R+4}:{R+5}], v{MT}""")
    for ah in range(2):
        for q in range(4):
            u = ah * 4 + q
            k(f"ds_read_b64_tr_b16 v[{BFR+2*u}:{BFR+2*u+1}], v{TRA_} offset:{L_S + ah*64 + q*512}")
    if XPOS == 1: xc()
    nonce_finish(k)
    stamp(k, 31)
    k(f"v_lshrrev_b32 v{EG}, v{SH}, s32")
    for i in range(1, 4): k(f"v_lshrrev_b32 v{EG+i}, {2*i}, v{EG}")
    k("s_waitcnt lgkmcnt(8)")
    BM = R + 4; AH = 58
    for h in range(2): pmul(k, AB + 2*h, AB + 2*h, R + 2*h)
    for h in range(2): k(f"v_cvt_pk_bf16_f32 v{AH+h}, v{AB+2*h}, v{AB+2*h+1}")
    k(f"v_mfma_f32_16x16x16_bf16 v[{D0}:{D0+3}], v[{AH}:{AH+1}], v[{BM}:{BM+1}], 0")
    k("s_waitcnt lgkmcnt(0)")
    for u in range(8):
        k(f"v_mfma_f32_16x16x16_bf16 v[{DA+4*u}:{DA+4*u+3}], v[{AH}:{AH+1}], v[{BFR+2*u}:{BFR+2*u+1}], v[{D0}:{D0+3}]")
    for ah in range(2):
        for kp in range(2):
            o = OB + (2*ah + kp) * 4
            for q in range(4):
                u = ah * 4 + q
                k(f"v_cvt_pk_f16_f32 v{o+q}, v{DA+4*u+2*kp}, v{DA+4*u+2*kp+1}")
            for q in range(4): k(f"v_bfi_b32 v{o+q}, s33, v{EG+q}, v{o+q}")
            if ah + kp == 0: stamp(k, 32)
            k(f"buffer_store_dwordx4 v[{o}:{o+3}], v{VO}, s[12:15], s{64 + 2*kp + ah} offen sc1")
    stamp(k, 3)
    k("s_waitcnt vmcnt(4)\ns_barrier")
    k.c("================= wait 1: tables, x rows, addresses =================")
    n_, g_ = 48, 49
    k(f"""v_mov_b32 v{n_}, v{N_}
    v_mov_b32 v{g_}, v{G_}
    v_mov_b32 v50, s32
    v_mov_b32 v51, s39""")
    def zhint():
        k(f"""s_cmp_lg_u32 s16, {E("HW", 0)}
        s_cbranch_scc1 f_nzl
        s_lshl_b32 s68, s3, 7
        s_add_u32 s68, s68, {WS_ZL}
        v_mov_b32 v52, 0
        s_mov_b64 exec, 1
        buffer_store_dwordx2 v[50:51], v52, s[12:15], s68 offen sc1
        s_mov_b64 exec, -1
        f_nzl:""")
    if E("ZPOS", 0) == 0: zhint()
    for u in range(8):
        k(f"ds_read_b128 v[{T4+4*u}:{T4+4*u+3}], v3 offset:{L_T4 + u*1024}")
    stamp(k, 33)
    if E("TBPOS", 0) == 1: tbase()
    k(f"""v_lshlrev_b32 v{ZL}, 15, v{g_}
    v_lshl_add_u32 v{ZL}, v{n_}, 4, v{ZL}
    v_lshlrev_b32 v{ZS}, 13, v{g_}
    v_lshl_add_u32 v{ZS}, v{n_}, 4, v{ZS}
    v_lshl_add_u32 v{R0}, v1, 10, v{ZS}
    v_xor_b32 v{R1}, 64, v{R0}
    v_lshrrev_b32 v57, 1, v1
    v_lshlrev_b32 v{A0}, 13, v57
    v_and_b32 v57, 1, v1
    v_lshl_add_u32 v{A0}, v57, 3, v{A0}
    v_lshl_add_u32 v{A0}, v{g_}, 11, v{A0}
    v_and_b32 v57, 3, v0
    v_lshl_add_u32 v{A0}, v57, 8, v{A0}
    v_lshrrev_b32 v58, 2, v{n_}
    v_lshl_add_u32 v{A0}, v58, 4, v{A0}
    v_and_b32 v59, 1, v0
    v_lshl_add_u32 v{A0}, v59, 6, v{A0}
    v_xor_b32 v{A1}, 64, v{A0}
    v_lshl_add_u32 v57, v{g_}, 2, v57
    v_lshlrev_b32 v57, 4, v57
    v_lshl_add_u32 v250, v58, 8, v57
    v_add_u32 v{PA}, {L_P}, v3
    v_sub_u32 v{PB}, {L_P + 63*16}, v3
    v_lshl_add_u32 v57, v{n_}, 2, v{g_}
    v_lshl_add_u32 v{XA_}, v57, 3, s45
    s_add_u32 s43, s45, {2048+504}
    v_lshlrev_b32 v58, 3, v57
    v_sub_u32 v{XB_}, s43, v58
    v_add_u32 v57, 1, v57
    v_and_b32 v58, 3, v57
    v_and_b32 v57, 60, v57
    v_lshl_add_u32 v{BP}, v58, 6, v57
    v_add_u32 v{NAT}, s45, v3
    v_lshlrev_b32 v{KR_}, 2, v{n_}
    v_add_u32 v{KR_}, {L_KEY}, v{KR_}
    v_lshlrev_b32 v{FA}, 12, v2
    v_and_b32 v{REC}, 0x70, v3
    v_lshlrev_b32 v{PG}, 4, v0
    v_and_b32 v57, 3, v0
    v_bfe_u32 v58, v0, 2, 4
    v_lshl_add_u32 v57, v57, 4, v58
    v_bfe_u32 v58, v0, 6, 2
    v_lshl_add_u32 v57, v58, 6, v57
    v_lshrrev_b32 v58, 8, v0
    v_lshl_add_u32 v57, v58, 9, v57
    v_lshlrev_b32 v57, 4, v57
    v_add_u32 v{PS}, {L_P}, v57""")
    CAPA = 250; Z1A = 243
    k(f"s_and_b32 s42, s35, 3\ns_lshl_b32 s42, s42, 8\nv_xor_b32 v{Z1A}, s42, v3")
    CEN = 0x00020002 if ZMASK == 0x00030003 else 0
    k(f"s_mov_b32 s44, {CEN}")
    for i in range(4): k(f"v_and_b32 v{EG+i}, s33, v{EG+i}")
    for i in range(4): k(f"v_xor_b32 v{EG+i}, s44, v{EG+i}")
    XT = T3 + 16
    def xreads():
        for T in range(4):
            k(f"ds_read_b64 v[{XT+2*T}:{XT+2*T+1}], v{XA_} offset:{512*T}")
        for T in range(4):
            k(f"ds_read_b64 v[{XT+8+2*T}:{XT+8+2*T+1}], v{XB_} offset:{512*(3-T)}")
    if XPOS < 3: xreads()
    for i in range(32): k(f"v_mov_b32 v{D3+i}, 0")
    def xunpack():
        k("s_waitcnt lgkmcnt(0)")
        for i in range(8): unpack_bf16(k, XA2 + 2*i, XT + i)
        for i in range(8): unpack_bf16(k, XB2 + 2*i, XT + 8 + i)
    if XPOS < 3: xunpack()
    stamp(k, 34)
    if E("DRAIN", 0): k("s_waitcnt vmcnt(0)")
    if E("FB2", 1): k("s_barrier")
    stamp(k, 4)
    if E("FSTOP", 9) == 2: stamp_out(k); k("s_endpgm")
    CP = T3
    def cap_issue(lab, fl="sc1"):
        k(f"s_cmp_lg_u32 s34, 0\ns_cbranch_scc1 {lab}\ns_add_u32 s68, s82, 32768")
        for j in range(2):
            k(f"buffer_load_dwordx4 v[{CP+8+4*j}:{CP+8+4*j+3}], v{CAPA}, s[12:15], s68 offen offset:{j*1024} {fl}")
        k(f"{lab}:")
        for j in range(2):
            k(f"buffer_load_dwordx4 v[{CP+4*j}:{CP+4*j+3}], v{CAPA}, s[12:15], s82 offen offset:{j*1024} {fl}")
    if XPOS == 5: xc()
    if E("SLC0", 6): k(f"s_sleep {E('SLC0', 6)}")
    CORD = E("CORD", 0)
    if not CORD: cap_issue("f_ci0", ES("CFL", ""))
    k(f"buffer_load_dwordx4 v[{RCL}:{RCL+3}], v{REC}, s[12:15], s76 offen {ES('CFL', '')}")
    def z1_issue():
        for i in range(4):
            k(f"buffer_load_dwordx4 v[{L+4*i}:{L+4*i+3}], v{Z1A}, s[12:15], s72 offen offset:{i*1024} sc1")
    if E("SLF", 6): k(f"s_sleep {E('SLF', 6)}")
    if E("ZPOS", 0) == 1: zhint()
    z1_issue()
    stamp(k, 5)
    if XPOS == 5:
        k(f"s_waitcnt vmcnt({5 if CORD else 7})"); xreads(); xunpack()
    NY = 5 if XPOS == 3 else 0
    if XPOS == 3: xc()
    stamp(k, 35)
    k.c("s47: bit0 = stage 1 done, bit1 = table built")
    k(f"""s_mov_b32 s47, 0
    s_mov_b32 s83, 0
    {"s_branch f_s1" if CORD else f"s_waitcnt vmcnt({5+NY})"}
    f_c1:""")
    t = D
    chk_bytes(k, range(CP, CP + 8), t)
    k(f"""s_cmp_lg_u32 s34, 0
    s_cbranch_scc1 f_c1n
    s_mov_b64 s[68:69], vcc""")
    chk_bytes(k, range(CP + 8, CP + 16), t)
    k(f"""s_or_b64 vcc, vcc, s[68:69]
    f_c1n:
    s_cbranch_vccnz f_c1bad
    f_c1ok:""")
    stamp(k, 36)
    stamp_val(k, 52, 47)
    def capsum(b):
        padd(k, b, b, b + 4); padd(k, b + 2, b + 2, b + 6)
        for sh in (4, 8):
            for i in range(4): k(f"v_add_f32_dpp v{b+i}, v{b+i}, v{b+i} row_ror:{sh} {DPPM}")
        rb2(k, b, t); rb2(k, b + 2, t + 1)
    capsum(CP)
    for i in range(4): k(f"v_add_f32 v{CP+i}, 1.0, v{CP+i}")
    rb2(k, CP, t); rb2(k, CP + 2, t + 1)
    k(f"""v_max_f32_e64 v{t}, abs(v{CP}), abs(v{CP+1})
    v_max3_f32 v{t}, abs(v{CP+2}), abs(v{CP+3}), v{t}
    s_cmp_lg_u32 s34, 0
    s_cbranch_scc1 f_c1m
    v_mov_b32 v{t+2}, v{t}""")
    capsum(CP + 8)
    k(f"""v_max3_f32 v{t}, abs(v{CP+8}), abs(v{CP+9}), v{t+2}
    v_max3_f32 v{t}, abs(v{CP+10}), abs(v{CP+11}), v{t}
    f_c1m:
    s_nop 1""")
    for qp in ("[1,0,3,2]", "[2,3,0,1]"):
        k(f"v_max_f32_dpp v{t}, v{t}, v{t} quad_perm:{qp} {DPPM}")
    for g in range(4): k(f"v_readlane_b32 s{68+g}, v{t}, {16*g}")
    k(f"""s_max_u32 s68, s68, s69
    s_max_u32 s70, s70, s71
    s_max_u32 s68, s68, s70
    s_lshr_b32 s68, s68, 23
    s_sub_u32 s69, s68, 120
    s_sub_i32 s68, s68, 127
    s_max_i32 s68, s68, -100
    s_min_i32 s68, s68, 120
    s_cmp_le_u32 s69, 9
    s_cselect_b32 s68, 2, s68
    s_cselect_b32 s17, 0, 0x20000
    s_sub_i32 s69, 127, s68
    s_lshl_b32 s69, s69, 23""")
    for i in range(4): k(f"v_mul_f32 v{CP+i}, s69, v{CP+i}")
    for h in range(2): k(f"v_cvt_pk_f16_f32 v{t+h}, v{CP+2*h}, v{CP+2*h+1}")
    k(f"""s_lshl_b32 s70, s16, 28
    v_mov_b32 v{t+2}, s32
    v_mov_b32 v{t+3}, s68
    v_mov_b32 v{t+4}, s70
    s_mov_b64 exec, 1
    buffer_store_dwordx2 v[{t+2}:{t+3}], v{t+4}, s[12:15], s79 offen sc1
    s_mov_b64 exec, -1
    s_or_b32 s70, s34, s16
    s_cbranch_scc0 f_sa
    f_nkr:""")
    BC = t + 8
    for i in range(4):
        for h in range(2):
            k(f"v_mov_b32_dpp v{BC+2*i+h}, v{t+h} quad_perm:[{i},{i},{i},{i}] {DPPM}")
    for n2l in range(4):
        for i in range(4):
            b = n2l & 1
            k(f"v_pk_mul_f16 v{T3+8*n2l+i}, v{TB+4*n2l+i}, v{BC+2*i+(n2l>>1)} op_sel:[0,{b}] op_sel_hi:[1,{b}]")
            k(f"v_pk_mul_f16 v{T3+8*n2l+4+i}, v{TB+4*n2l+i}, v{BC+2*i+(n2l>>1)} op_sel:[1,{b}] op_sel_hi:[0,{b}] neg_lo:[1,0]")
    k(f"""s_bitset1_b32 s47, 1
    s_bitcmp1_b32 s47, 0
    s_cbranch_scc1 f_bar
    f_s1:
    s_mov_b32 s83, 0""")
    stamp(k, 6)
    k.c("================= phase B =================")
    k("f_z1:")
    LS = 224
    for bsel in range(2):
        Pq = L + 8 * bsel; Q = LS + 8 * bsel
        if CORD:
            k(f"s_waitcnt vmcnt(2)")
            if bsel == 0:
                cap_issue("f_ci0", ES("CFL", ""))
        else: k(f"s_waitcnt vmcnt({(3 if bsel == 0 else 1) + NY})")
        if bsel == 1: stamp(k, 7)
        for cc in range(4):
            for e in range(2): k(f"v_xor_b32 v{Q+2*cc+e}, v{Pq+4*e+cc}, v{EG+cc}")
        for cc in range(4):
            d = D + 16*bsel + 4*cc
            k(f"v_mfma_f32_16x16x16_f16 v[{d}:{d+3}], v[{T1+2*bsel}:{T1+2*bsel+1}], v[{Q+2*cc}:{Q+2*cc+1}], 0")
            for e in range(2):
                r = 2*cc + e
                if bsel == 0 and r == 0: k(f"v_xor_b32 v2, s44, v{Q}")
                else: k(f"v_bitop3_b32 v2, v2, v{Q+r}, s44 bitop3:0xf6")
    k(f"""v_and_b32 v2, s33, v2
    v_cmp_ne_u32 vcc, 0, v2
    s_cbranch_vccnz f_z1bad
    f_z1ok:""")
    for cc in range(4):
        for kdl in range(2):
            o = L + 4*cc + 2*kdl
            for bsel in range(2):
                d = D + 16*bsel + 4*cc + 2*kdl
                k(f"v_cvt_pk_f16_f32 v{o+bsel}, v{d}, v{d+1}")
            k(f"ds_write_b64 v{(A0, A1)[cc & 1]}, v[{o}:{o+1}] offset:{L_S + kdl*1024 + (cc>>1)*128}")
    stamp_val(k, 50, 83)
    if XPOS == 4: xc()
    k.c("same die for the whole group? (records not there yet count as no)")
    k(f"""v_xor_b32 v2, s32, v{RCL}
    v_bitop3_b32 v2, v2, v{RCL+2}, s32 bitop3:0xf6
    v_bitop3_b32 v2, v2, v{RCL+1}, s39 bitop3:0xf6
    v_bitop3_b32 v2, v2, v{RCL+3}, s39 bitop3:0xf6
    v_cmp_ne_u32 vcc, 0, v2""")
    for i in range(4): k(f"v_xor_b32 v{EG+i}, {ZMASK ^ CEN}, v{EG+i}")
    for i in range(4): k(f"v_mov_b32 v{PRA+i}, -1")
    k(f"""s_lshl_b32 s42, s3, 13
    s_add_u32 s42, s42, {WS_SLOT}
    buffer_store_dwordx4 v[{PRA}:{PRA+3}], v{PG}, s[12:15], s42 offen sc1""")
    k(f"""s_mov_b32 s38, vcc_lo
    s_bitset1_b32 s47, 0
    s_mov_b32 s83, 0
    {"s_waitcnt vmcnt(1)" if CORD else ""}
    s_bitcmp1_b32 s47, 1
    s_cbranch_scc0 f_c1
    f_bar:
    s_mov_b32 s42, {WS_PAR}
    s_mov_b32 s41, {WS_PAR+8192}
    s_waitcnt lgkmcnt(0)
    s_barrier""")
    stamp(k, 8)
    for n2l in range(4):
        k(f"ds_read_b128 v[{L+4*n2l}:{L+4*n2l+3}], v{(R0, R1)[n2l & 1]} offset:{L_S + n2l*256}")
    PPOS = E("PPOS", 2)
    def par_issue(fl="sc1"):
        k(f"buffer_load_dwordx4 v[{PRA}:{PRA+3}], v{PG}, s[12:15], s42 offen {fl}")
    def parb_issue(fl="sc1"):
        k(f"buffer_load_dwordx4 v[{PRB0}:{PRB0+3}], v{PG}, s[12:15], s41 offen {fl}")
    for u in range(8, 12): k(f"ds_read_b128 v[{T4+4*u}:{T4+4*u+3}], v3 offset:{L_T4 + u*1024}")
    if PPOS == 0: par_issue(ES("CFL", ""))
    X = TB
    k(f"v_xor_b32 v{EG+3}, s17, v{EG+3}")
    def s2(n):
        k(f"s_waitcnt lgkmcnt({7-n})")
        for part in range(2):
            d = D + 8*n + 4*part
            k(f"v_mfma_f32_16x16x32_f16 v[{d}:{d+3}], v[{L+4*n}:{L+4*n+3}], v[{T2+4*part}:{T2+4*part+3}], 0")
    def cv2(n):
        for i in range(4): k(f"v_cvt_pk_f16_f32 v{X+4*n+i}, v{D+8*n+i}, v{D+8*n+4+i}")
    def d1(n):
        for part in range(2):
            d = D3 + 8*n + 4*part
            k(f"v_mfma_f32_16x16x32_f16 v[{d}:{d+3}], v[{X+4*n}:{X+4*n+3}], v[{T3+8*n+4*part}:{T3+8*n+4*part+3}], v[{d}:{d+3}]")
    def cv3(n):
        for i in range(4): k(f"v_cvt_pk_f16_f32 v{L+4*i+n}, v{D3+8*n+i}, v{D3+8*n+4+i}")
        for i in range(4): k(f"v_bfi_b32 v{L+4*i+n}, s33, v{EG+n}, v{L+4*i+n}")
    for n in range(4): s2(n)
    cv2(0); cv2(1); d1(0); cv2(2); d1(1); cv2(3); d1(2); d1(3)
    if PPOS == 2: par_issue(ES("CFL", ""))
    for n in range(4): cv3(n)
    def zf_store(fl):
        for i in range(4):
            k(f"buffer_store_dwordx4 v[{L+4*i}:{L+4*i+3}], v{ZS}, s[12:15], s{74 + (i >> 1)} offen offset:{(i & 1)*2048} {fl}")
    k("s_cmp_lg_u32 s38, 0\ns_cbranch_scc1 f_slowst")
    zf_store("")
    k("f_std:")
    stamp(k, 9)
    k.c("================= wait 2: modulation vectors into LDS =================")
    k(f"v_xor_b32 v{EG+3}, s17, v{EG+3}")
    for i in range(4): k(f"v_xor_b32 v{EG+i}, s44, v{EG+i}")
    if PPOS == 1: par_issue(ES("CFL", ""))
    ZFL = ES("ZFL", "sc1 nt")
    def zf_issue():
        for j in range(4):
            k(f"buffer_load_dwordx4 v[{L+4*j}:{L+4*j+3}], v{ZL}, s[12:15], s{(28, 29, 50, 51)[j]} offen {ZFL}")
    ZE = E("ZE", 0)
    if ZE:
        assert PPOS != 1
        if E("SLZE", 0): k(f"s_sleep {E('SLZE', 0)}")
        zf_issue()
    k(f"s_mov_b32 s83, 0\ns_waitcnt vmcnt({5 if PPOS == 1 else 4 + 4*ZE})")
    if XPOS in (3, 4): xreads(); xunpack()
    if PPOS == 1: k("s_waitcnt vmcnt(0)")
    k("f_pp:")
    chk_bytes(k, range(PRA, PRA + 4), D)
    k(f"""s_cbranch_vccnz f_ppbad
    f_ppok:""")
    stamp_val(k, 53, 83)
    stamp_val(k, 55, 38)
    k(f"""    s_cmp_ge_u32 s16, 4
    s_cbranch_scc1 f_pv""")
    for i in range(4): k(f"v_mul_f32 v{PRA+i}, {f32(64.0)}, v{PRA+i}")
    k(f"""ds_write_b128 v{PS}, v[{PRA}:{PRA+3}]
    s_branch f_pw
    f_pv:
    ds_write_b128 v{PS}, v[{PRA}:{PRA+3}]""")
    for h in range(2): unpack_bf16(k, D + 4 + 2*h, WRL + h)
    for h in range(2): pmul(k, D + 4 + 2*h, D + 4 + 2*h, PRA + 2*h)
    k(f"""ds_write_b128 v{PS}, v[{D+4}:{D+7}] offset:8192
    f_pw:
    s_waitcnt lgkmcnt(0)""")
    stamp(k, 10)
    k("s_barrier")
    if E("SLZ", 0): k(f"s_sleep {E('SLZ', 0)}")
    if not ZE: zf_issue()
    GA_, GB_, VA, VB = 112, 128, 48, 64
    def pread(vec, base, row):
        return [f"ds_read_b128 v[{base+4*T}:{base+4*T+3}], v{(PA, PB)[row]} offset:{vec*4096 + (T, 3-T)[row]*1024}" for T in range(4)]
    for x in pread(4, VA, 0): k(x)
    for u in range(12, 16): k(f"ds_read_b128 v[{T4+4*u}:{T4+4*u+3}], v3 offset:{L_T4 + u*1024}")
    for x in pread(0, GA_, 0): k(x)
    k("s_waitcnt lgkmcnt(8)")
    for x in pread(0, GB_, 1) + pread(4, VB, 1): k(x)
    Y, YN, TT = 80, 96, 144
    for i in range(4): padd(k, TT + 2*i, VA + 4*i, VA + 4*i + 2)
    padd(k, TT, TT, TT + 2); padd(k, TT + 4, TT + 4, TT + 6); padd(k, TT, TT, TT + 4)
    k(f"v_add_f32 v{TT}, v{TT}, v{TT+1}")
    wave_reduce_to63(k, [TT])
    FPF = E("FPF", 0)
    if FPF:
        k.c("help for the weight stream: last rows of both K halves of w_up, this die's columns")
        k(f"""v_bfe_u32 v26, v0, 3, 3
        v_mul_u32_u24 v26, 7168, v26
        v_and_b32 v27, 7, v0
        v_min_u32 v27, 6, v27
        v_lshl_add_u32 v26, v27, 7, v26
        s_lshr_b32 s37, s60, 6
        s_and_b32 s36, s60, 63
        s_mul_i32 s36, s36, {FPF}
        s_lshl_b32 s37, s37, 9
        s_add_u32 s36, s36, s37
        s_add_u32 s36, s36, {512 - 64*FPF}
        s_mul_i32 s36, s36, 7168
        s_mul_i32 s37, s34, 896
        s_add_u32 s36, s36, s37""")
    k(f"""v_readlane_b32 s54, v{TT}, 63
    v_lshrrev_b32 v23, 5, v0
    v_mov_b32 v22, 0xffffff00
    s_mov_b64 s[70:71], 1
    s_mov_b32 s83, 0
    f_zf:
    s_waitcnt vmcnt(0) lgkmcnt(0)""")
    stamp(k, 11)
    k.c("================= phase C =================")
    def st4(dst, T, j):
        cc = "0" if j == 0 else f"v[{dst+4*T}:{dst+4*T+3}]"
        b = T4 + 16*T + 4*j
        k(f"v_mfma_f32_16x16x32_f16 v[{dst+4*T}:{dst+4*T+3}], v[{L+4*j}:{L+4*j+3}], v[{b}:{b+3}], {cc}")
    for r in range(8): k(f"v_xor_b32 v{L+r}, v{L+r}, v{EG+(r&3)}")
    for j in range(4):
        st4(Y, 0, j)
        if j < 2:
            for r in range(8 + 4*j, 12 + 4*j): k(f"v_xor_b32 v{L+r}, v{L+r}, v{EG+(r&3)}")
        else:
            for r in range(2*j - 4, 2*j - 2):
                if r == 0: k(f"v_xor_b32 v2, s44, v{L}")
                else: k(f"v_bitop3_b32 v2, v2, v{L+r}, s44 bitop3:0xf6")
    for j in range(4):
        st4(Y, 1, j)
        for r in range(4 + 3*j, 7 + 3*j): k(f"v_bitop3_b32 v2, v2, v{L+r}, s44 bitop3:0xf6")
    k(f"""v_and_b32 v2, s33, v2
    v_cmp_ne_u32 vcc, 0, v2
    s_cbranch_vccnz f_zfbad
    f_zfok:""")
    stamp_val(k, 51, 83)
    parb_issue(ES("CFL", ""))
    if FPF:
        msk = (1 << (8 * FPF)) - 1
        k(f"s_mov_b32 exec_lo, {msk & 0xffffffff}\ns_mov_b32 exec_hi, {msk >> 32}")
        k("buffer_load_dword v25, v26, s[20:23], s36 offen\ns_mov_b64 exec, -1")
    k("s_cmp_eq_u32 s30, 0\ns_cbranch_scc1 f_sp")
    RQ = 104
    tA, tB = TT, TT + 8
    def xa(T):
        for h in range(2): pfma(k, XA2 + 4*T + 2*h, GA_ + 4*T + 2*h, Y + 4*T + 2*h, XA2 + 4*T + 2*h)
    def xb(T):
        for s_ in range(1, 4): k(f"v_fmac_f32 v{XB2+4*T+s_}, v{GB_+4*T+s_}, v{Y+4*T+4-s_}")
    def bperm(T):
        k(f"v_cndmask_b32 v{YN+4+T}, v{Y+4*T}, v{Y+4*((T+1)&3)}, s[70:71]")
        k(f"ds_bpermute_b32 v{YN+T}, v{BP}, v{YN+4+T}")
    def acc(X2, V_, t, i, first):
        x = X2 + 2*i
        if first:
            pmul(k, t + 2, x, x); pmul(k, t + 4, x, V_ + 2*i)
        else:
            pfma(k, t + 2, x, x, t + 2); pfma(k, t + 4, x, V_ + 2*i, t + 4)
    def s1acc(X2, t, lst):
        pass
    st4(Y, 2, 0); xa(0); st4(Y, 2, 1); xb(0); st4(Y, 2, 2)
    acc(XA2, VA, tA, 0, True); st4(Y, 2, 3); acc(XA2, VA, tA, 1, False)
    st4(Y, 3, 0); bperm(0); xa(1); st4(Y, 3, 1); xb(1); st4(Y, 3, 2)
    acc(XA2, VA, tA, 2, False); st4(Y, 3, 3); acc(XA2, VA, tA, 3, False)
    acc(XB2, VB, tB, 1, True); acc(XB2, VB, tB, 3, False)
    padd(k, tA, XA2, XA2 + 2); padd(k, tB, XB2 + 2, XB2 + 6)
    bperm(1); xa(2); xb(2)
    padd(k, tA, tA, XA2 + 4); padd(k, tA, tA, XA2 + 6)
    acc(XA2, VA, tA, 4, False); acc(XA2, VA, tA, 5, False); acc(XB2, VB, tB, 5, False)
    bperm(2); bperm(3); xa(3); xb(3)
    C1A, C1B, SBA, SBB, GBA, GBB = 192, 208, 224, 240, 112, 128
    acc(XA2, VA, tA, 6, False); acc(XA2, VA, tA, 7, False); acc(XB2, VB, tB, 7, False)
    for i in range(4, 8): padd(k, tA, tA, XA2 + 2*i)
    padd(k, tB, tB, XB2 + 10); padd(k, tB, tB, XB2 + 14)
    k("s_waitcnt lgkmcnt(0)")
    for T in range(4): k(f"v_fmac_f32 v{XB2+4*T}, v{GB_+4*T}, v{YN+T}")
    late = pread(2, C1A, 0) + pread(2, C1B, 1)
    late2 = pread(1, SBA, 0) + pread(1, SBB, 1) + pread(3, GBA, 0) + pread(3, GBB, 1)
    for T in range(4):
        acc(XB2, VB, tB, 2*T, False); padd(k, tB, tB, XB2 + 4*T)
    k("f_join:")
    stamp(k, 12)
    for x in late: k(x)
    def stage_b(cnt):
        k(f"s_mov_b32 s83, 0\ns_waitcnt vmcnt({cnt})\nf_pb:")
        chk_bytes(k, range(PRB0, PRB0 + 4), 2)
        k(f"""s_cbranch_vccnz f_pbbad
        f_pbok:""")
        stamp_val(k, 54, 83)
        k(f"""        ds_write_b128 v{PS}, v[{PRB0}:{PRB0+3}] offset:4096""")
    PBPOS = E("PBPOS", 1)
    if PBPOS == 0: stage_b(1 if FPF else 0)
    else: k(f"s_cmp_lg_u32 s16, 0\ns_cbranch_scc1 f_ngo\ns_waitcnt vmcnt({1 if FPF else 0})")
    k.c("GO hint from one workgroup per replica")
    k(f"""s_or_b32 s42, s35, s16
    s_cmp_lg_u32 s42, 0
    s_cbranch_scc1 f_ngo
    v_mov_b32 v2, s32
    s_mov_b64 exec, 1
    buffer_store_dword v2, v{FA}, s[12:15], s81 offen offset:2048 sc1
    s_mov_b64 exec, -1
    f_ngo:""")
    rows = ((XA2, VA, tA, 64, C1A, SBA, GBA, XA_), (XB2, VB, tB, 66, C1B, SBB, GBB, XB_))
    for n in range(2):
        for j in range(3): k(f"v_add_f32 v{RQ+4*n+j}, v{rows[n][2]+2*j}, v{rows[n][2]+2*j+1}")
    def red(js):
        for j in js: k(f"v_permlane32_swap_b32 v{RQ+j}, v{RQ+4+j}")
        for j in js: k(f"v_add_f32 v{RQ+j}, v{RQ+j}, v{RQ+4+j}")
        regs = [RQ + j for j in js]
        row_allreduce(k, regs)
        for r in regs: k(f"v_add_f32_dpp v{r}, v{r}, v{r} row_bcast:15 row_mask:0xa bank_mask:0xf")
    red((0, 1, 2))
    k.c("lanes 31 / 63 hold rows A / B")
    k(f"""v_mul_f32 v{RQ}, s46, v{RQ}
    v_mul_f32 v{RQ+1}, s46, v{RQ+1}
    v_mul_f32 v{RQ+4}, v{RQ}, v{RQ}
    v_fma_f32 v{RQ+2}, -v{RQ}, s54, v{RQ+2}
    v_sub_f32 v{RQ+1}, v{RQ+1}, v{RQ+4}
    v_mul_f32 v{RQ+5}, 4.0, v{RQ+1}
    v_cmp_gt_f32 vcc, v{RQ+4}, v{RQ+5}
    s_or_b32 s42, vcc_lo, vcc_hi
    s_bitcmp1_b32 s42, 31
    s_cbranch_scc1 f_slow2
    f_var2:""")
    round_bf16(k, RQ + 1, RQ + 1)
    k(f"v_add_f32 v{RQ+1}, {f32(1e-5)}, v{RQ+1}")
    round_bf16(k, RQ + 1, RQ + 1)
    k(f"v_sqrt_f32 v{RQ+1}, v{RQ+1}")
    round_bf16(k, RQ + 1, RQ + 1)
    k(f"""v_rcp_f32 v{RQ+1}, v{RQ+1}
    s_mov_b32 s42, 0x80000000
    s_mov_b32 exec_lo, s42
    s_mov_b32 exec_hi, s42
    v_mul_f32 v{RQ+2}, v{RQ+2}, v{RQ+1}
    v_ashrrev_i32 v{RQ+4}, 31, v{RQ+2}
    v_or_b32 v{RQ+4}, s42, v{RQ+4}
    v_xor_b32 v{RQ+2}, v{RQ+2}, v{RQ+4}
    v_and_or_b32 v{RQ+2}, v{RQ+2}, v22, v23
    ds_write_b32 v{KW}, v{RQ+2}
    s_mov_b64 exec, -1""")
    for n in range(2):
        k(f"v_readlane_b32 s{60+n}, v{RQ+2}, {31+32*n}")
        k(f"v_readlane_b32 s{64+2*n}, v{RQ}, {31+32*n}")
        k(f"v_readlane_b32 s{65+2*n}, v{RQ+1}, {31+32*n}")
    k("s_waitcnt lgkmcnt(0)")
    stamp(k, 13)
    KV = 24
    k(f"""s_barrier
    ds_read_b32 v{KV}, v{KR_}
    s_lshl_b32 s42, s3, 1
    s_movk_i32 s43, 0xff00
    v_mov_b32 v30, s32
    v_mov_b32 v31, s32
    s_cmp_lg_u32 s16, 0
    s_waitcnt lgkmcnt(0)
    s_cbranch_scc1 f_nkey
    s_setprio 3
    v_mov_b32 v28, v{KV}""")
    row_allreduce(k, [28], "v_max_u32")
    k(f"""v_cmp_eq_u32 vcc, v28, v{KV}
    v_cndmask_b32_e64 v29, v{KV}, 0, vcc
    v_and_b32 v28, s43, v28""")
    row_allreduce(k, [29], "v_max_u32")
    k(f"""v_or_b32 v28, s42, v28
    v_and_b32 v29, s43, v29
    v_or3_b32 v29, v29, s42, 1
    s_mov_b64 exec, 0xff
    buffer_store_dwordx4 v[28:31], v{FA}, s[12:15], s80 offen sc1
    s_mov_b64 exec, -1
    s_setprio 0
    f_nkey:""")
    if PBPOS == 1:
        k(f"s_cmp_eq_u32 s16, 0\ns_cbranch_scc1 f_w0\ns_waitcnt vmcnt({1 if FPF else 0})\nf_w0:")
        stage_b(63)
        k("s_waitcnt lgkmcnt(0)\ns_barrier")
    for x in late2: k(x)
    HP = 80; OUTR = (32, 40)
    def h2row(n):
        X2, V_, t, sr, C1, SB, GB, XL = rows[n]
        for i in range(8): psub_s(k, V_ + 2*i, X2 + 2*i, sr)
        for i in range(8): pmul(k, V_ + 2*i, V_ + 2*i, C1 + 2*i)
        k("s_waitcnt lgkmcnt(0)")
        for i in range(8): pfma_s(k, V_ + 2*i, V_ + 2*i, sr + 1, SB + 2*i)
    def relayout(n, src, dst):
        XL = rows[n][7]
        for T in range(4):
            for h in range(2): k(f"v_cvt_pk_bf16_f32 v{HP+2*T+h}, v{src+4*T+2*h}, v{src+4*T+2*h+1}")
            k(f"ds_write_b64 v{XL}, v[{HP+2*T}:{HP+2*T+1}] offset:{512*(T, 3-T)[n]}")
        for j in range(2):
            k(f"ds_read_b128 v[{dst+4*j}:{dst+4*j+3}], v{NAT} offset:{n*2048 + j*1024}")
    def outval(n):
        X2, V_, t, sr, C1, SB, GB, XL = rows[n]
        for i in range(8): pfma(k, X2 + 2*i, GB + 2*i, V_ + 2*i, X2 + 2*i)
    k("v_mov_b32 v20, 0")
    for n in range(2):
        XO = OUTR[n]; HO = 88
        k(f"""s_movk_i32 s{62+n}, 0x100
        v_cmp_lt_u32 vcc, s{60+n}, v{KV}
        s_and_b32 s42, vcc_lo, 0xffff
        s_bcnt1_i32_b32 s42, s42
        s_cmp_ge_u32 s42, 2
        s_cbranch_scc1 f_nc{n}
        s_setprio 2
        s_lshl_b32 s{62+n}, s3, 1
        s_add_u32 s{62+n}, s{62+n}, s42
        s_lshl_b32 s42, s{62+n}, 12
        s_add_u32 s42, s42, {WS_SLOT}
        s_lshl_b32 s43, s{62+n}, 3
        s_add_u32 s43, s43, {WS_TT}""")
        h2row(n)
        relayout(n, rows[n][1], HO)
        outval(n)
        k("s_waitcnt lgkmcnt(0)")
        for i in range(8): k(f"v_min_u32 v{HO+i}, -2, v{HO+i}")
        for j in range(2):
            k(f"buffer_store_dwordx4 v[{HO+4*j}:{HO+4*j+3}], v3, s[12:15], s42 offen offset:{j*1024} sc1")
        relayout(n, rows[n][0], XO)
        k("s_waitcnt lgkmcnt(0)")
        for i in range(8): k(f"v_min_u32 v{XO+i}, -2, v{XO+i}")
        for j in range(2):
            k(f"buffer_store_dwordx4 v[{XO+4*j}:{XO+4*j+3}], v3, s[12:15], s42 offen offset:{2048+j*1024} sc1")
        k(f"""v_mov_b32 v30, s{30+n}
        s_mov_b64 exec, 1
        buffer_store_dwordx2 v[30:31], v20, s[12:15], s43 offen sc1
        s_mov_b64 exec, -1
        s_setprio 0
        f_nc{n}:""")
    stamp(k, 14)
    for n in range(2):
        k(f"s_cmp_lt_u32 s{62+n}, 0x100\ns_cbranch_scc1 f_op{n}")
        h2row(n); outval(n); relayout(n, rows[n][0], OUTR[n])
        k(f"f_op{n}:")
    k.c("rows are written once the selection is known; the two selected rows are written by the reducers")
    k(f"""v_mov_b32 v21, {L_KEY+104}
    s_cmp_lg_u32 s16, 0
    s_cbranch_scc1 f_nrs""")
    if E("FKEY", 0):
        k(f"s_sleep {E('FKS', 8)}")
        poll_keys(k, "f_kq", 96, 81, 2)
        top2(k, 96, 40, 41, 24)
        k("s_and_b32 s40, s40, 0xff\ns_and_b32 s41, s41, 0xff")
    else:
        res_wait(k, "f_rs", 81, 20, 28, E("RSL", 4))
    k(f"""v_mov_b32 v28, s40
    v_mov_b32 v29, s41
    ds_write_b64 v21, v[28:29]
    f_nrs:
    s_waitcnt lgkmcnt(0)
    s_barrier
    ds_read_b64 v[28:29], v21
    s_waitcnt lgkmcnt(0)
    v_readfirstlane_b32 s40, v28
    v_readfirstlane_b32 s41, v29""")
    for n in range(2):
        k(f"""s_cmp_eq_u32 s{62+n}, s40
        s_cbranch_scc1 f_e{n}
        s_cmp_eq_u32 s{62+n}, s41
        s_cbranch_scc1 f_e{n}""")
        for j in range(2):
            k(f"buffer_store_dwordx4 v[{OUTR[n]+4*j}:{OUTR[n]+4*j+3}], v3, s[24:27], s{18+n} offen offset:{j*1024} {ES('OFL', 'sc1')}")
        k(f"f_e{n}:")
    stamp_out(k)
    k("s_endpgm")
    k.c("---- retries ----")
    k(f"""f_c1bad:
    s_add_u32 s83, s83, 1
    s_cmp_ge_u32 s83, {SPIN}
    s_cbranch_scc1 f_c1ok
    s_bitcmp1_b32 s47, 0
    s_cbranch_scc0 f_c1b2
    s_sleep {E('SLC', 3)}
    f_c1b2:""")
    cap_issue("f_ci1")
    k(f"""s_waitcnt vmcnt(0)
    s_bitcmp1_b32 s47, 0
    s_cbranch_scc1 f_c1
    s_branch f_s1
    f_z1bad:
    s_add_u32 s83, s83, 1
    s_cmp_ge_u32 s83, {SPIN}
    s_cbranch_scc1 f_z1ok
    s_sleep {E('SLR1', 4)}""")
    z1_issue()
    k(f"""s_waitcnt vmcnt(0)
    s_branch f_z1
    f_ppbad:
    s_add_u32 s83, s83, 1
    s_cmp_ge_u32 s83, {SPIN}
    s_cbranch_scc1 f_ppok
    s_sleep {E('SLP2', 3)}""")
    par_issue()
    k(f"""s_waitcnt vmcnt(0)
    s_branch f_pp
    f_zfbad:""")
    for j in range(4): k(f"v_or_b32 v{L+4*j+3}, {0x20000}, v{L+4*j+3}")
    k(f"v_xor_b32 v2, s44, v{L}")
    for r in range(1, 16): k(f"v_bitop3_b32 v2, v2, v{L+r}, s44 bitop3:0xf6")
    k(f"""v_and_b32 v2, s33, v2
    v_cmp_ne_u32 vcc, 0, v2
    s_cbranch_vccz f_rare
    s_add_u32 s83, s83, 1
    s_cmp_ge_u32 s83, {SPIN}
    s_cbranch_scc1 f_zfok
    s_sleep {E('SLR2', 1)}""")
    zf_issue()
    k(f"""s_branch f_zf
    f_pbbad:
    s_add_u32 s83, s83, 1
    s_cmp_ge_u32 s83, {SPIN}
    s_cbranch_scc1 f_pbok
    s_sleep {E('SLP2', 3)}""")
    parb_issue()
    k("s_waitcnt vmcnt(0)\ns_branch f_pb")
    k.c("---- placement fallback: write-through stores ----")
    k("f_slowst:")
    zf_store("sc1")
    k("s_branch f_std")
    k.c("---- rare: the producers use different scales ----")
    k(f"""f_rare:
    v_bfe_u32 v{TT}, v0, 4, 2
    v_lshlrev_b32 v{TT}, 3, v{TT}""")
    k("s_mov_b32 s83, 0\nf_rz:")
    for j in range(4):
        k(f"buffer_load_dwordx2 v[{TT+8+2*j}:{TT+9+2*j}], v{TT}, s[12:15], s77 offen offset:{32*j} sc1")
    k(f"s_waitcnt vmcnt(0)\nv_xor_b32 v2, s32, v{TT+8}")
    for j in range(1, 4): k(f"v_bitop3_b32 v2, v2, v{TT+8+2*j}, s32 bitop3:0xf6")
    k(f"""v_cmp_ne_u32 vcc, 0, v2
    s_cbranch_vccz f_rzx
    {spin("f_rz", 2)}
    f_rzx:""")
    for j in range(4): k(f"v_mov_b32 v{TT+4+j}, v{TT+9+2*j}")
    k(f"""    v_max_i32 v{TT+1}, v{TT+4}, v{TT+5}
    v_max3_i32 v{TT+1}, v{TT+1}, v{TT+6}, v{TT+7}""")
    for g in range(4): k(f"v_readlane_b32 s{64+g}, v{TT+1}, {16*g}")
    k(f"""s_max_i32 s64, s64, s65
    s_max_i32 s66, s66, s67
    s_max_i32 s64, s64, s66
    s_add_i32 s66, s64, 125
    s_lshl_b32 s66, s66, 23
    s_mov_b32 s33, 0""")
    for i in range(4): k(f"v_mov_b32 v{EG+i}, 0")
    for j in range(4):
        k(f"v_subrev_u32 v{TT+4+j}, s64, v{TT+4+j}")
        k(f"v_ldexp_f32 v{TT+4+j}, 1.0, v{TT+4+j}")
        k(f"v_cvt_pk_f16_f32 v{TT+4+j}, v{TT+4+j}, v{TT+4+j}")
    for r in range(16): k(f"v_pk_mul_f16 v{L+r}, v{L+r}, v{TT+4+(r>>2)}")
    for i in range(16): pmul_s(k, GA_ + 2*i, GA_ + 2*i, 66)
    k("s_nop 1\ns_branch f_zf")
    k.c("---- rare: two-pass variance / router score for LN2 ----")
    k("f_slow2:")
    k.c("here the bf16 rounding of x and of the mean matters: follow the reference's rounding steps")
    for X2, V_, t, sr, C1, SB, GB, XL in rows:
        for i in range(8): rb2(k, X2 + 2*i, t)
        for i in range(1, 8): padd(k, t, X2 if i == 1 else t, X2 + 2*i)
    for n in range(2): k(f"v_add_f32 v{RQ+4*n}, v{rows[n][2]}, v{rows[n][2]+1}")
    red((0,))
    k(f"v_mul_f32 v{RQ+3}, s46, v{RQ}")
    round_bf16(k, RQ, RQ + 3)
    k(f"v_sub_f32 v{RQ+3}, v{RQ+3}, v{RQ}")
    for n in range(2): k(f"v_readlane_b32 s{64+2*n}, v{RQ}, {31+32*n}")
    for n, (X2, V_, t, sr, C1, SB, GB, XL) in enumerate(rows):
        Dd = (80, 32)[n]
        for i in range(8): psub_s(k, Dd + 2*i, X2 + 2*i, sr)
        for i in range(8): acc(Dd, V_, t, i, i == 0)
    for n in range(2):
        for j in (1, 2): k(f"v_add_f32 v{RQ+4*n+j}, v{rows[n][2]+2*j}, v{rows[n][2]+2*j+1}")
    red((1, 2))
    k(f"""v_mul_f32 v{RQ+1}, s46, v{RQ+1}
    v_fma_f32 v{RQ+1}, -v{RQ+3}, v{RQ+3}, v{RQ+1}
    v_max_f32 v{RQ+1}, 0, v{RQ+1}
    s_branch f_var2""")
    k.c("---- rare: |mean| >> std, recompute the variance in two passes ----")
    k("f_slowvar:")
    U = 100
    k(f"v_lshlrev_b32 v{R+6}, 16, v{MB}")
    k(f"v_readlane_b32 s68, v{R+6}, 31\nv_readlane_b32 s70, v{R+6}, 63")
    for jj in range(2):
        sr = 68 + 2 * jj
        for i in range(8):
            unpack_bf16(k, U, XW + jj * 8 + i)
            k(f"v_pk_add_f32 {P(U)}, {P(U)}, s[{sr}:{sr+1}] op_sel_hi:[1,0]")
            if i == 0: pmul(k, U + 2, U, U)
            else: pfma(k, U + 2, U, U, U + 2)
        k(f"v_add_f32 v{S+2+jj}, v{U+2}, v{U+3}")
    k(f"v_add_f32 v{R+6}, v{R+6}, v{S}")
    red1((2,))
    k(f"""v_mul_f32 v{S+2}, s46, v{S+2}
    v_fma_f32 v{S+2}, -v{R+6}, v{R+6}, v{S+2}
    v_max_f32 v{S+2}, 0, v{S+2}
    s_branch f_var""")
    k.c("---- group 0, wave 0: the shift vector enters the row 0 accumulators ----")
    k("f_sa:\ns_add_u32 s69, s69, %d" % (6 << 23))
    t = D
    SH_, SO = t + 2, T3 + 16
    for i in range(4): k(f"v_mul_f32 v{CP+8+i}, s69, v{CP+8+i}")
    for h in range(2): k(f"v_cvt_pk_f16_f32 v{SH_+h}, v{CP+8+2*h}, v{CP+8+2*h+1}")
    for i in range(4):
        for h in range(2):
            k(f"v_mov_b32_dpp v{BC+2*i+h}, v{SH_+h} quad_perm:[{i},{i},{i},{i}] {DPPM}")
    k(f"""v_and_b32 v{t+4}, 15, v0
    v_cmp_eq_u32 vcc, 0, v{t+4}
    v_mov_b32 v{t+5}, 0x3c00
    v_mov_b32 v{t+6}, 0xbc000000
    v_cndmask_b32 v{t+5}, 0, v{t+5}, vcc
    v_cndmask_b32 v{t+6}, 0, v{t+6}, vcc""")
    for n2l in range(4):
        b = n2l & 1
        o = SO + 8 * (n2l & 1)
        for part in range(2):
            for i in range(4):
                k(f"v_pk_mul_f16 v{o+4*part+i}, v{t+5+part}, v{BC+2*i+(n2l>>1)} op_sel:[0,{b}] op_sel_hi:[1,{b}]")
        for part in range(2):
            d = D3 + 8*n2l + 4*part
            k(f"v_mfma_f32_16x16x32_f16 v[{d}:{d+3}], v[{o+4*part}:{o+4*part+3}], v[{TB+4*n2l}:{TB+4*n2l+3}], 0")
    k("s_branch f_nkr")
    k.c("---- rows 0 and 1024 travel as one complex row ----")
    k("f_sp:")
    YI, YM, YE = 96, 32, 144
    for T in range(2, 4):
        for j in range(4): st4(Y, T, j)
    for r in range(16): k(f"v_pk_mul_f16 v{L+r}, v{L+r}, 1.0 op_sel:[1,0] op_sel_hi:[0,0] neg_hi:[1,0]")
    for T in range(4):
        for j in range(4): st4(YI, T, j)
    k(f"""v_subrev_u32 v2, s45, v{XA_}
    v_lshlrev_b32 v2, 1, v2
    v_add_u32 v20, s45, v2
    s_add_u32 s42, s45, 1008
    v_sub_u32 v21, s42, v2""")
    k.c("v20: own block (f32, natural order), v21: mirror block")
    for T in range(4): k(f"ds_write_b128 v20, v[{Y+4*T}:{Y+4*T+3}] offset:{1024*T}")
    for T in range(4):
        k(f"v_sub_u32 v{YE+4+T}, {4096-1024*T}, v2\nv_and_b32 v{YE+4+T}, 4095, v{YE+4+T}\nv_add_u32 v{YE+4+T}, s45, v{YE+4+T}")
    for T in range(4): k(f"ds_read_b128 v[{YM+4*T}:{YM+4*T+3}], v21 offset:{1024*(3-T)}")
    for T in range(4): k(f"ds_read_b32 v{YE+T}, v{YE+4+T}")
    k("s_waitcnt lgkmcnt(0)")
    for T in range(4):
        k(f"v_add_f32 v{Y+4*T}, v{Y+4*T}, v{YE+T}")
        for i in range(1, 4): k(f"v_add_f32 v{Y+4*T+i}, v{Y+4*T+i}, v{YM+4*T+4-i}")
    for T in range(4): xa(T)
    for T in range(4): k(f"ds_write_b128 v20, v[{YI+4*T}:{YI+4*T+3}] offset:{1024*T}")
    for T in range(4):
        k(f"v_add_u32 v{YE+4+T}, {1024*T+16}, v2\nv_and_b32 v{YE+4+T}, 4095, v{YE+4+T}\nv_add_u32 v{YE+4+T}, s45, v{YE+4+T}")
    for T in range(4): k(f"ds_read_b128 v[{YM+4*T}:{YM+4*T+3}], v21 offset:{1024*(3-T)}")
    for T in range(4): k(f"ds_read_b32 v{YE+T}, v{YE+4+T}")
    k("s_waitcnt lgkmcnt(0)")
    for T in range(4):
        k(f"v_add_f32 v{YM+4*T}, v{YM+4*T}, v{YE+T}")
        for s_ in range(1, 4): k(f"v_add_f32 v{YM+4*T+s_}, v{YM+4*T+s_}, v{YI+4*T+4-s_}")
    for i in range(8): pfma(k, XB2 + 2*i, GB_ + 2*i, YM + 2*i, XB2 + 2*i)
    for X2, V_, t_ in ((XA2, VA, tA), (XB2, VB, tB)):
        for i in range(8): acc(X2, V_, t_, i, i == 0)
        for i in range(1, 8): padd(k, t_, X2 if i == 1 else t_, X2 + 2*i)
    k("s_branch f_join")

class VM:
    def __init__(self, k): self.k = k; self.q = []
    def add(self, tag, n=1): self.q += [tag] * n
    def wait(self, tag, extra=""):
        idx = max(i for i, t in enumerate(self.q) if t == tag)
        n = len(self.q) - 1 - idx
        self.k(f"s_waitcnt vmcnt({n}) {extra}".strip())
        self.q = self.q[idx + 1:]

def role_G(k):
    L_SI = 131072; L_H = 131072 + 512; L_A = L_H + 2048
    k("g_start:")
    nonce_issue(k, 6)
    srd(k, 44, 20, 2048)
    k(f"""v_and_b32 v6, 127, v0
    v_lshlrev_b32 v6, 1, v6
    s_lshl_b32 s19, s34, 8
    buffer_load_ushort v110, v6, s[44:47], s19 offen""")
    k.c("s35 = mm ; s64 = cluster ; s65 = kq ; s66 = 1 for X ; s40 = ks")
    k(f"""s_and_b32 s65, s35, 1
    s_lshr_b32 s40, s35, 1
    s_mul_i32 s64, s34, 7
    s_add_u32 s64, s64, s40
    s_cmp_ge_u32 s35, 14
    s_cselect_b32 s66, 1, 0
    s_mov_b32 s40, s34
    v_bfe_u32 v5, v0, 5, 1
    v_lshlrev_b32 v5, 3, v5
    v_bfe_u32 v9, v0, 3, 2
    v_add_u32 v5, v5, v9
    v_lshlrev_b32 v9, 1, v7
    v_xor_b32 v9, v9, v0
    v_and_b32 v9, 7, v9
    v_lshlrev_b32 v9, 4, v9
    s_movk_i32 s42, 7168
    v_mad_u32_u24 v5, v5, s42, v9
    v_mov_b32 v104, -1
    v_mov_b32 v105, -1
    v_mov_b32 v106, -1
    v_mov_b32 v107, -1
    v_mov_b32 v14, 0
    s_lshl_b32 s38, s64, 12
    s_lshl_b32 s42, s16, 9
    s_add_u32 s38, s38, s42
    s_mul_i32 s42, s65, {WS_XB - WS_XA}
    s_add_u32 s38, s38, s42
    s_add_u32 s38, s38, {WS_XA}""")
    srd(k, 12, 6, WS_SIZE)
    if E("TOUCH", 1):
        k.c("first touch of the small hand-off lines (brings them on die; the values are not used)")
        k(f"""s_lshl_b32 s42, s35, 3
        s_add_u32 s42, s42, s34
        s_lshl_b32 s42, s42, 3
        s_add_u32 s42, s42, s16
        s_lshl_b32 s42, s42, 8
        s_add_u32 s42, s42, {WS_CAP}
        v_lshlrev_b32 v9, 7, v2
        s_mov_b64 exec, 3
        buffer_load_dword v251, v9, s[12:15], s42 offen
        s_mov_b64 exec, -1""")
    srd(k, 44, 50, 1024 * 3584 * 2)
    srd(k, 60, 52, 1024 * 3584 * 2)
    srd(k, 72, 54, 1024 * 3584 * 2)
    k("s_mov_b32 s26, 4194304\ns_mov_b32 s27, 0x00020000")
    k.c("s67 gate/up base ; s69 down base ; v12 block read ; v8..v11 down read ; v21..v24 down source")
    k(f"""s_lshl_b32 s67, s65, 4
    s_add_u32 s67, s67, s16
    s_mul_i32 s67, s67, {32*7168}
    s_lshl_b32 s42, s64, 7
    s_add_u32 s67, s67, s42
    s_lshl_b32 s42, s64, 6
    s_and_b32 s43, s16, 3
    s_lshl_b32 s43, s43, 3
    s_add_u32 s42, s42, s43
    s_and_b32 s43, s16, 4
    s_add_u32 s42, s42, s43
    s_lshl_b32 s69, s42, 11
    s_lshl_b32 s43, s65, 10
    s_add_u32 s69, s69, s43
    s_and_b32 s43, s16, 1
    s_lshl_b32 s43, s43, 7
    v_xor_b32 v21, s43, v3
    v_xor_b32 v22, 32, v21
    v_xor_b32 v23, 64, v21
    v_xor_b32 v24, 96, v21
    v_add_u32 v109, {L_SI}, v6""")
    vm = VM(k)
    for j in range(4): vm.add(j)
    vm.add("c")
    if E("TOUCH", 1): vm.add("t")
    RV = ((1, 0), (2, 4), (3, 5))
    order = ES("ORDER", "R0,R1,R2,D0,D1,G0,G1,U0,U1").split(",")
    NT = ES("NTW", "")
    def issue(j):
        ci, d = j >> 2, j & 3
        nm = order[ci]; kind, h = nm[0], int(nm[1]); slot = (ci % 4) * 32768
        if kind == "R" and d == 0:
            k(f"s_mul_i32 s70, s41, {(RV[h][1]-RV[h][0])*2048}\ns_add_u32 s70, s70, {RV[h][0]*2048}\ns_add_u32 s70, s70, s18")
            k(f"s_add_u32 s42, s17, {h}\ns_and_b32 s42, s42, 7\ns_lshl_b32 s42, s42, 8\ns_add_u32 s70, s70, s42")
        k(f"s_add_u32 s43, s68, {slot + d*1024}")
        k("s_mov_b32 m0, s43")
        if kind == "D":
            k(f"s_add_u32 s42, s69, {(32*h + d)*2048}")
        else:
            rows = 16 * (d & 1) + 4 * (d >> 1)
            if kind == "R": k(f"s_add_u32 s42, s70, {4*d*12288}")
            else: k(f"s_add_u32 s42, s67, {(256*h + rows)*7168}")
        if j - DEPTH in vm.q: vm.wait(j - DEPTH)
        va, sb = {"R": ((4, 31)[d >> 1], 8), "G": (5, 44), "U": (5, 60), "D": (21 + d, 72)}[kind]
        k(f"buffer_load_dwordx4 v{va}, s[{sb}:{sb+3}], s42 offen {NT} lds")
        vm.add(j)
    pf = """s_mov_b32 exec_hi, 0
    buffer_store_dwordx4 v[104:107], v3, s[12:15], s38 offen sc1
    s_mov_b64 exec, -1"""
    def silu_c():
        k(f"""v_lshlrev_b32 v110, 16, v110
        v_mul_f32 v111, {LOG2E}, v110
        v_exp_f32 v111, v111
        v_add_f32 v111, 1.0, v111
        v_rcp_f32 v111, v111
        v_mul_f32 v110, v110, v111
        v_cvt_pk_bf16_f32 v110, v110, v110
        ds_write_b16 v109, v110""")
    GST = E("GST", 0); DEPTH = E("DEPTH", 4); HOLD = E("HOLD", 99)
    def hold(p):
        k.c("hold the stream until the neighbour's first exchange is under way (hint only, bounded)")
        k(f"""s_cmp_lg_u32 s16, 0
        s_cbranch_scc1 {p}_zlx
        s_lshl_b32 s42, s34, 4
        s_add_u32 s42, s42, s35
        s_lshl_b32 s42, s42, 7
        s_add_u32 s42, s42, {WS_ZL}
        s_mov_b32 s83, 0
        {p}_zl:
        buffer_load_dword v16, v14, s[12:15], s42 offen sc1
        s_waitcnt vmcnt(0)
        v_readfirstlane_b32 s43, v16
        s_cmp_eq_u32 s43, s32
        s_cbranch_scc1 {p}_zlx
        s_sleep {E("ZLS", 3)}
        s_add_u32 s83, s83, 1
        s_cmp_lt_u32 s83, 32
        s_cbranch_scc1 {p}_zl
        {p}_zlx:
        {f"s_sleep {E('ZLD', 0)}" if E('ZLD', 0) else ""}
        s_barrier""")
    k(f"""v_lshrrev_b32 v6, 2, v2
    v_and_b32 v15, 3, v0
    v_bfe_u32 v16, v0, 3, 2
    v_xor_b32 v12, v16, v1
    v_and_b32 v12, 3, v12
    v_lshlrev_b32 v12, 5, v12
    v_lshl_add_u32 v12, v6, 7, v12
    v_lshl_add_u32 v12, v15, 3, v12
    v_lshrrev_b32 v16, 2, v1
    v_lshl_add_u32 v12, v16, 14, v12
    v_add_u32 v25, 65536, v12
    v_and_b32 v17, 7, v6
    v_lshlrev_b32 v8, 2, v1
    v_xor_b32 v8, v8, v17
    v_lshlrev_b32 v8, 5, v8
    v_lshl_add_u32 v8, v6, 10, v8
    v_lshl_add_u32 v8, v15, 3, v8
    v_xor_b32 v9, 32, v8
    v_xor_b32 v10, 64, v8
    v_xor_b32 v11, 96, v8
    v_and_b32 v6, 1, v0
    v_lshlrev_b32 v17, 10, v6
    v_lshl_add_u32 v17, v16, 8, v17
    v_lshl_add_u32 v17, v7, 4, v17
    v_add_u32 v17, {L_H}, v17
    v_lshlrev_b32 v19, 7, v6
    v_lshl_add_u32 v19, v7, 4, v19
    v_add_u32 v19, {L_A}, v19
    v_and_b32 v6, 15, v0
    v_lshlrev_b32 v18, 1, v6
    v_lshl_add_u32 v18, v1, 5, v18
    v_lshl_add_u32 v18, v7, 7, v18
    v_add_u32 v18, {L_A}, v18
    v_lshlrev_b32 v20, 2, v6
    v_lshl_add_u32 v20, v1, 14, v20
    v_lshl_add_u32 v20, v7, 12, v20
    v_lshlrev_b32 v26, 4, v7
    v_add_u32 v27, {L_SI}, v26
    v_lshlrev_b32 v28, 11, v7
    v_bfe_u32 v29, v0, 2, 3
    v_xor_b32 v29, v29, v1
    v_lshl_add_u32 v29, v29, 5, v28
    v_bfe_u32 v30, v0, 2, 2
    v_lshl_add_u32 v29, v30, 8, v29
    v_lshl_add_u32 v29, v15, 3, v29
    v_add_u32 v30, 65536, v29""")
    k.c("partial-sum destinations: s30 (ca|sa), s31 (others)")
    k(f"""s_lshl_b32 s30, s41, 15
    s_and_b32 s42, s16, 3
    s_lshl_b32 s42, s42, 13
    s_add_u32 s30, s30, s42
    s_lshl_b32 s42, s40, 8
    s_add_u32 s30, s30, s42
    s_lshl_b32 s42, s17, 1
    s_lshr_b32 s43, s16, 2
    s_add_u32 s42, s42, s43
    s_lshl_b32 s42, s42, 4
    s_add_u32 s30, s30, s42
    s_add_u32 s30, s30, {WS_CAP}
    s_lshl_b32 s31, s41, 5
    s_lshr_b32 s42, s16, 1
    s_add_u32 s31, s31, s42
    s_lshl_b32 s31, s31, 10
    s_lshl_b32 s42, s40, 7
    s_add_u32 s31, s31, s42
    s_and_b32 s42, s16, 1
    s_lshl_b32 s42, s42, 6
    s_add_u32 s31, s31, s42
    s_add_u32 s31, s31, {WS_MODP}
    s_movk_i32 s33, 0xff""")
    BD, BG, BU, SC, RB, RD, NB = 32, 64, 96, 128, 144, 160, 164
    def blockreads(ci, base):
        slot = (ci % 4) * 32768
        va, off = (12, slot) if slot < 65536 else (25, slot - 65536)
        for ks in range(4):
            k(f"ds_read_b64_tr_b16 v[{base+4*ks}:{base+4*ks+1}], v{va} offset:{off + ks*4096}")
            k(f"ds_read_b64_tr_b16 v[{base+4*ks+2}:{base+4*ks+3}], v{va} offset:{off + ks*4096 + 2048}")
    KB = 136; HA = 128; AG = 160
    def consume(ci, p):
        nm = order[ci]; kind, h = nm[0], int(nm[1])
        if ci == 8:
            k.c("wave 0: hint / pair loads ride behind the last weight loads")
            k(f"""s_cmp_lg_u32 s16, 0
            s_cbranch_scc1 m_n0
            v_lshlrev_b32 v30, 6, v2
            s_waitcnt vmcnt({E("MLATE", 2)})
            buffer_load_dword v31, v30, s[12:15], s81 offen sc1
            buffer_load_dwordx2 v[188:189], v14, s[12:15], s38 offen sc1
            buffer_load_dword v15, v14, s[12:15], s78 offen offset:2048 sc1
            m_n0:""")
        if ci == 0: vm.wait("c"); silu_c()
        if 4*ci + 3 in vm.q: vm.wait(4*ci + 3)
        if ci == 2 and "pf" in vm.q: vm.wait("pf")
        k("s_waitcnt lgkmcnt(0)\ns_barrier")
        stamp(k, 20 + ci)
        if kind == "R":
            if ci == 0:
                for ks in range(4): k(f"ds_read_b128 v[{SC+4*ks}:{SC+4*ks+3}], v27 offset:{ks*64}")
            slot = (ci % 4) * 32768
            va, off = (29, slot) if slot < 65536 else (30, slot - 65536)
            for ks in range(4):
                for e in range(2):
                    k(f"ds_read_b64_tr_b16 v[{RB+4*ks+2*e}:{RB+4*ks+2*e+1}], v{va} offset:{off + ks*8192 + e*1024}")
            if ci == 0:
                nonce_finish(k)
                for i in range(4): k(f"v_mov_b32 v{NB+i}, s{56+i}")
            for ks in range(4):
                k(f"s_waitcnt lgkmcnt({6-2*ks})")
                cc = "0" if ks == 0 else f"v[{RD}:{RD+3}]"
                k(f"v_mfma_f32_16x16x32_bf16 v[{RD}:{RD+3}], v[{RB+4*ks}:{RB+4*ks+3}], v[{SC+4*ks}:{SC+4*ks+3}], {cc}")
            if h > 0: k(f"s_add_u32 s42, s17, {h}\ns_and_b32 s42, s42, 7\ns_lshl_b32 s42, s42, 12\ns_add_u32 s42, s42, s31\ns_add_u32 s42, s42, {(h-1)*65536}")
            for i in range(4): k(f"v_bfi_b32 v{RD+i}, s33, v{NB+i}, v{RD+i}")
            if not E("NOST", 0):
                k(f"""s_mov_b32 exec_lo, 0x00010001
                s_mov_b32 exec_hi, 0x00010001
                buffer_store_dwordx4 v[{RD}:{RD+3}], v{28 if h == 0 else 26}, s[12:15], s{30 if h == 0 else 42} offen sc1
                s_mov_b64 exec, -1""")
                vm.add("st")
            stamp(k, 3 + ci)
            if ci == 0 and p == "m" and not E("NOPF", 0): k(pf); vm.add("pf")
            if ci == 2 and p == "m": msetup()
            return
        if ci == 8:
            k(f"""v_mov_b32 v190, {L_A + 1024}
            s_cmp_lg_u32 s16, 0
            s_cbranch_scc1 m_n1
            v_xor_b32 v188, s32, v188
            v_xor_b32 v189, s39, v189
            v_or_b32 v188, v188, v189
            ds_write_b32 v190, v188
            v_cmp_ne_u32 vcc, s32, v15
            s_cbranch_vccnz m_n1""")
            keys_issue(k, KB, 78)
            k("m_n1:")
        if kind == "D":
            slot = (ci % 4) * 32768
            if slot >= 65536:
                for t in range(4): k(f"v_add_u32 v{168+t}, 65536, v{8+t}")
            for t in range(4):
                b_ = BD + (h*4 + t)*4
                va, off = (8 + t, slot) if slot < 65536 else (168 + t, slot - 65536)
                k(f"ds_read_b64_tr_b16 v[{b_}:{b_+1}], v{va} offset:{off}")
                k(f"ds_read_b64_tr_b16 v[{b_+2}:{b_+3}], v{va} offset:{off+16384}")
        else:
            blockreads(ci, (BG if kind == "G" else BU) + 16*h)
    def stream(p):
        nonlocal DEPTH
        n = 36 if p == "m" else 12
        done = 0
        DEPTH = E("DEPTH", 4)
        for j in range(4, n):
            if j == 4 * HOLD and p == "m":
                while done < HOLD: consume(done, p); done += 1
                hold(p)
            DEPTH = int(ES("DEPTHS", "444466666")[j >> 2])
            issue(j)
            while done < (j + 1) // 4 and 4*done + 3 not in vm.q: consume(done, p); done += 1
        while done < n // 4: consume(done, p); done += 1
    def msetup():
        k.c("================= M: weight stream =================")
        k(f"""s_getreg_b32 s39, hwreg(HW_REG_XCC_ID)
        s_and_b32 s39, s39, 7
        s_lshl_b32 s38, s64, 1
        s_add_u32 s38, s38, s65
        s_lshl_b32 s38, s38, 7
        s_add_u32 s38, s38, {WS_MX}
        s_lshl_b32 s42, s16, 28
        v_mov_b32 v28, s32
        v_mov_b32 v29, s39
        v_mov_b32 v30, s42
        s_mov_b64 exec, 1
        buffer_store_dwordx2 v[28:29], v30, s[12:15], s38 offen sc1
        s_mov_b64 exec, -1
        s_xor_b32 s38, s38, 128""")
        vm.add("mx")
        if E("HELP", 3):
            k.c("the line group whose address class streams slowly is pulled into L2 by all M workgroups of the die")
            HM = E("HELP", 3)
            nl = {1: 19, 2: 10, 3: 5}[HM]
            k(f"""s_cmp_eq_u32 s65, {"s65" if HM > 1 else 0}
            s_cselect_b32 s8, s50, s52
            s_cselect_b32 s9, s51, s53
            s_mov_b32 s10, {1024*3584*2}
            s_lshr_b32 s42, s8, 7
            s_sub_u32 s42, {E("CLS", 3)}, s42
            s_add_u32 s42, s42, s34
            s_and_b32 s42, s42, 7
            s_cmp_eq_u32 s42, 7
            s_cselect_b32 s70, 0x1000000, 0
            s_mul_i32 s43, s34, 7
            s_add_u32 s42, s42, s43
            s_lshl_b32 s42, s42, 7
            s_lshr_b32 s43, s35, {0 if HM == 2 else 1}
            s_lshl_b32 s43, s43, 3
            s_add_u32 s43, s43, s16
            s_mul_i32 s43, s43, {nl*7168}
            s_add_u32 s42, s42, s43
            s_add_u32 s42, s42, s70""")
            if HM == 3: k(f"s_mul_i32 s43, s65, {512*7168}\ns_add_u32 s42, s42, s43\ns_add_u32 s42, s42, {232*7168}")
            k(f"""v_mul_u32_u24 v30, 7168, v2
            s_mov_b64 exec, {(1 << nl) - 1}
            buffer_load_dword v252, v30, s[8:11], s42 offen
            s_mov_b64 exec, -1""")
            vm.add("help")
        k(f"""v_cmp_eq_u32 s[4:5], 1, v7
        v_cmp_eq_u32 s[6:7], 2, v7
        v_cmp_eq_u32 s[28:29], 3, v7
        v_and_b32 v191, 3, v0
        v_lshlrev_b32 v191, 3, v191
        v_lshrrev_b32 v191, v191, s32
        v_add_u32 v13, {L_H}, v3
        s_lshl_b32 s71, s65, 10
        s_add_u32 s71, s71, {WS_SLOT}
        s_lshl_b32 s30, s65, 17
        s_lshl_b32 s31, s64, 6
        s_add_u32 s30, s30, s31
        s_add_u32 s30, s30, {WS_PART}
        s_add_u32 s31, s30, {64*4096}
        s_lshl_b32 s79, s64, 2
        s_and_b32 s42, s16, 3
        s_add_u32 s79, s79, s42
        s_lshl_b32 s79, s79, 10
        s_add_u32 s81, s79, {WS_XA}
        s_add_u32 s82, s79, {WS_XB}
        s_lshl_b32 s76, s65, 1
        s_lshr_b32 s42, s16, 2
        s_add_u32 s76, s76, s42
        s_lshl_b32 s76, s76, 8
        s_add_u32 s77, s76, s82
        s_add_u32 s76, s76, s81
        s_lshl_b32 s78, s34, 12
        s_add_u32 s78, s78, {WS_KEY}""")
    k("s_cmp_eq_u32 s66, 1\ns_cbranch_scc1 x_start")
    q0 = list(vm.q)
    stream("m")
    if E("GONLY", 0): stamp(k, 7); stamp_out(k); k("s_endpgm")
    stamp(k, 7)
    k("s_cmp_lg_u32 s16, 0\ns_cbranch_scc1 m_nk\ns_cbranch_vccnz m_slowk\ns_waitcnt vmcnt(0)")
    keys_chk(k, KB, 30)
    k(f"""s_cbranch_vccz m_pkx
    s_branch m_gox
    m_slowk:
    s_mov_b32 s83, 0
    m_go:
    buffer_load_dword v15, v14, s[12:15], s78 offen offset:2048 sc1
    s_waitcnt vmcnt(0)
    v_cmp_ne_u32 vcc, s32, v15
    s_cbranch_vccz m_gox
    {spin("m_go", E("SLG", 3))}
    m_gox:
    s_sleep {E("SLG2", 1)}""")
    poll_keys(k, "m_pk", KB, 78, 30)
    stamp(k, 13)
    top2(k, KB, 40, 41, 28)
    hl = """buffer_load_dwordx4 v[176:179], v3, s[12:15], s42 offen sc1
    buffer_load_dwordx4 v[180:183], v3, s[12:15], s43 offen sc1"""
    k(f"""s_and_b32 s40, s40, 0xff
    s_and_b32 s41, s41, 0xff
    s_lshl_b32 s42, s40, 12
    s_lshl_b32 s43, s41, 12
    s_add_u32 s42, s42, s71
    s_add_u32 s43, s43, s71
    s_mov_b32 s83, 0
    {hl}
    s_cmp_lg_u32 s35, 0
    s_cbranch_scc1 m_ph2
    s_lshl_b32 s41, s41, 8
    s_or_b32 s40, s40, s41
    v_mov_b32 v28, s40
    v_mov_b32 v29, s32
    s_mov_b64 exec, 1
    buffer_store_dwordx2 v[28:29], v14, s[12:15], s78 offen offset:2304 sc1
    s_mov_b64 exec, -1
    s_waitcnt vmcnt(1)
    s_branch m_ph3
    m_ph:
    {hl}
    m_ph2:
    s_waitcnt vmcnt(0)
    m_ph3:
    ds_write_b128 v13, v[176:179]
    ds_write_b128 v13, v[180:183] offset:1024""")
    chk_sent(k, range(176, 184), 30)
    k(f"""s_cbranch_vccz m_phx
    {spin("m_ph", 0)}
    m_phx:""")
    stamp(k, 14)
    k("m_nk:\ns_waitcnt lgkmcnt(0)\ns_barrier\nds_read_b32 v188, v190")
    for ks in range(8):
        k(f"ds_read_b128 v[{HA+4*ks}:{HA+4*ks+3}], v17 offset:{(ks>>2)*512 + (ks&3)*64}")
    for ks in range(8):
        k(f"s_waitcnt lgkmcnt({7-ks})")
        for a_, b_ in ((AG, BG), (AG + 4, BU)):
            cc = "0" if ks == 0 else f"v[{a_}:{a_+3}]"
            k(f"v_mfma_f32_16x16x32_bf16 v[{a_}:{a_+3}], v[{HA+4*ks}:{HA+4*ks+3}], v[{b_+4*ks}:{b_+4*ks+3}], {cc}")
    PB = 184
    k(f"""v_readfirstlane_b32 s70, v188
    v_min_u32 v{PB}, -2, v{AG}
    v_min_u32 v{PB+1}, -2, v{AG+1}
    v_min_u32 v{PB+2}, -2, v{AG+4}
    v_min_u32 v{PB+3}, -2, v{AG+5}
    s_mov_b64 exec, 0xffff
    buffer_store_dwordx4 v[{PB}:{PB+3}], v3, s[12:15], s76 offen
    s_cmp_eq_u32 s70, 0
    s_cbranch_scc1 m_same
    buffer_store_dwordx4 v[{PB}:{PB+3}], v3, s[12:15], s77 offen sc1
    m_same:
    s_cselect_b32 s82, s81, s82
    s_mov_b64 exec, -1
    s_cmp_ge_u32 s16, 4
    s_cbranch_scc1 m_na""")
    if E("SL3", 2): k(f"s_sleep {E('SL3', 2)}")
    stamp(k, 15)
    R = 24
    k("s_mov_b32 s83, 0\nm_px:")
    for so in (81, 82):
        k(f"buffer_load_dwordx4 v[{R}:{R+3}], v3, s[12:15], s{so} offen sc1")
        k("s_waitcnt vmcnt(0)")
        chk_sent(k, range(R, R + 4), 9)
        k("s_cbranch_vccz m_pxx")
    k(f"{spin('m_px', 0)}\nm_pxx:")
    stamp(k, 16)
    k(f"v_permlane32_swap_b32 v{R}, v{R+2}")
    k(f"v_permlane32_swap_b32 v{R+1}, v{R+3}")
    padd(k, R, R, R + 2)
    k(f"v_permlane16_swap_b32 v{R}, v{R+1}")
    k(f"v_add_f32 v{R}, v{R}, v{R+1}")
    round_bf16(k, R, R)
    k(f"""v_mul_f32 v{R+1}, {LOG2E}, v{R}
    v_exp_f32 v{R+1}, v{R+1}
    v_mov_b32 v{R+2}, v{R}
    v_add_f32 v{R+1}, 1.0, v{R+1}
    v_rcp_f32 v{R+1}, v{R+1}
    v_mov_b32 v{R+3}, v{R}
    v_mul_f32 v{R+1}, v{R}, v{R+1}
    v_permlane32_swap_b32 v{R+2}, v{R+3}""")
    round_bf16(k, R + 1, R + 1)
    k(f"""v_mul_f32 v{R+1}, v{R+1}, v{R+3}
    v_cvt_pk_bf16_f32 v{R+1}, v{R+1}, v{R+1}
    ds_write_b16 v18, v{R+1}
    m_na:
    s_waitcnt lgkmcnt(0)
    s_barrier""")
    for ks in range(2):
        k(f"ds_read_b128 v[{HA+4*ks}:{HA+4*ks+3}], v19 offset:{ks*64}")
    for ks in range(2):
        k(f"s_waitcnt lgkmcnt({1-ks})")
        for t in range(4):
            a_ = AG + 4 * t
            cc = "0" if ks == 0 else f"v[{a_}:{a_+3}]"
            b_ = BD + (ks*4 + t)*4
            k(f"v_mfma_f32_16x16x32_bf16 v[{a_}:{a_+3}], v[{HA+4*ks}:{HA+4*ks+3}], v[{b_}:{b_+3}], {cc}")
    for t, m_ in ((1, "s[4:5]"), (2, "s[6:7]"), (3, "s[28:29]")):
        for row in range(2):
            src = AG + row if t == 1 else 24 + row
            k(f"v_cndmask_b32 v{24+row}, v{src}, v{AG+4*t+row}, {m_}")
    for row in range(2):
        k(f"v_bfi_b32 v{24+row}, s33, v191, v{24+row}")
    for row in range(2):
        k(f"buffer_store_dword v{24+row}, v20, s[12:15], s{30+row} offen sc1")
    stamp(k, 17)
    stamp_out(k)
    k("s_endpgm")
    k.c("================= X: finalize ga/cb/sb/gb, then final reduction =================")
    k("x_start:")
    vm.q = list(q0)
    k.c("round = wave>>2 ; unit = (q*8+c)*4 + (wave&3)")
    k(f"""s_lshl_b32 s37, s34, 1
    s_add_u32 s37, s37, s65
    s_lshl_b32 s37, s37, 3
    s_add_u32 s37, s37, s16
    s_lshl_b32 s42, s37, 8
    s_add_u32 s42, s42, {WS_KEY}
    s_mov_b64 exec, 0xffff
    buffer_store_dwordx4 v[104:107], v3, s[12:15], s42 offen sc1
    s_mov_b64 exec, -1
    s_lshl_b32 s36, s37, 12
    s_add_u32 s36, s36, {WS_PART}
    s_lshl_b32 s76, s34, 3
    s_add_u32 s76, s76, s16
    s_lshl_b32 s77, s76, 10
    s_add_u32 s77, s77, {WS_MODP}
    s_lshl_b32 s79, s76, 7
    s_add_u32 s79, s79, {WS_PAR}
    s_lshr_b32 s71, s76, 5
    s_cmp_eq_u32 s71, 1
    s_cselect_b32 s80, 1.0, 0
    s_lshl_b32 s78, s34, 12
    s_add_u32 s78, s78, {WS_KEY}""")
    vm.add("kpf")
    stream("x")
    def finalize(lab, st):
        k(f"""v_lshlrev_b32 v8, 3, v7
        v_lshrrev_b32 v8, v8, s32
        s_mov_b32 s83, 0
        {lab}:
        buffer_load_dwordx4 v[16:19], v3, s[12:15], s77 offen sc1
        s_waitcnt vmcnt(0)""")
        chk_bytes(k, range(16, 20), 9)
        k(f"s_cbranch_vccz {lab}x\n{spin(lab, E('SLX', 4))}\n{lab}x:")
        stamp(k, st)
        k("v_permlane32_swap_b32 v16, v18\nv_permlane32_swap_b32 v17, v19")
        padd(k, 16, 16, 18)
        k(f"v_permlane16_swap_b32 v16, v17\nv_add_f32 v16, v16, v17\nv_add_f32_dpp v16, v16, v16 row_ror:8 {DPPM}")
        round_bf16(k, 16, 16)
        k("v_add_f32 v16, s80, v16")
        round_bf16(k, 16, 16)
        k(f"""v_bfi_b32 v16, s33, v8, v16
        v_mov_b32 v17, v16
        v_permlane16_swap_b32 v16, v17
        v_mov_b32 v18, v16
        v_mov_b32 v19, v17
        v_permlane32_swap_b32 v16, v18
        v_permlane32_swap_b32 v17, v19
        s_mov_b64 exec, 0xff
        buffer_store_dwordx4 v[16:19], v3, s[12:15], s79 offen sc1
        s_mov_b64 exec, -1""")
    k(f"s_cmp_eq_u32 s65, 1\ns_cbranch_scc1 x_na")
    if E("SLPA", 8): k(f"s_sleep {E('SLPA', 8)}")
    finalize("x_pa", 7)
    if E("PT", 0):
        k.c("pull the finished vectors into this die's L2")
        k(f"""s_sleep {E('PT', 0)}
        s_mov_b32 s42, {WS_PAR}
        v_lshlrev_b32 v9, 4, v0
        buffer_load_dwordx4 v[20:23], v9, s[12:15], s42 offen sc1""")
    k("s_add_u32 s77, s77, 65536\ns_add_u32 s79, s79, 8192\ns_mov_b32 s80, 0")
    if E("SLP", 24): k(f"s_sleep {E('SLP', 24)}")
    finalize("x_pb", 8)
    k("s_branch x_nb\nx_na:")
    XH = ES("XH", "U0,U1").split(",") if ES("XH", "U0,U1") else []
    if XH:
        k.c("the line group whose address class streams slowly is pulled into L2")
        k(f"""v_and_b32 v90, 255, v0
        v_lshrrev_b32 v91, 8, v0
        v_lshl_add_u32 v90, v91, 9, v90
        v_mul_u32_u24 v90, 7168, v90""")
        for i, nm in enumerate(XH):
            sb = 44 if nm[0] == "G" else 60
            k(f"""s_lshr_b32 s42, s{sb}, 7
            s_sub_u32 s42, {E("CLS", 3)}, s42
            s_add_u32 s42, s42, s34
            s_and_b32 s42, s42, 7
            s_cmp_eq_u32 s42, 7
            s_cselect_b32 s70, 0x1000000, 0
            s_mul_i32 s43, s34, 7
            s_add_u32 s42, s42, s43
            s_lshl_b32 s42, s42, 7
            s_add_u32 s42, s42, {int(nm[1])*256*7168}
            s_add_u32 s42, s42, s70
            buffer_load_dword v{92 + i}, v90, s[{sb}:{sb+3}], s42 offen
            s_barrier""")
    k("x_nb:\ns_mov_b32 s17, s37\ns_barrier")
    if E("XPF", 2) == 2:
        k(f"""v_lshlrev_b32 v9, 7, v2
        s_mov_b64 exec, 0xfffffff
        buffer_load_dword v251, v9, s[12:15], s36 offen
        s_mov_b64 exec, -1""")
    if E("XPF", 2) == 1:
        k(f"""buffer_store_dwordx4 v[104:107], v3, s[12:15], s36 offen sc1
        buffer_store_dwordx4 v[104:107], v3, s[12:15], s36 offen offset:1024 sc1
        buffer_store_dwordx4 v[104:107], v3, s[12:15], s36 offen offset:2048 sc1
        s_mov_b32 exec_hi, 0
        buffer_store_dwordx4 v[104:107], v3, s[12:15], s36 offen offset:3072 sc1
        s_mov_b64 exec, -1""")
    srd(k, 8, 48, 2048)
    k(f"""s_and_b32 s18, s17, 63
    v_and_b32 v5, 3, v0
    v_lshlrev_b32 v5, 3, v5
    v_lshl_add_u32 v5, v7, 1, v5
    v_lshlrev_b32 v6, 1, v5
    v_and_b32 v86, -4, v5
    v_and_b32 v87, 2, v5
    v_lshlrev_b32 v87, 3, v87
    s_lshl_b32 s31, s18, 6
    s_add_u32 s31, s31, {WS_PAR + 3*4096}
    v_cmp_gt_u32 vcc, 32, v2
    v_mov_b32 v7, 0x7ff00000
    v_cndmask_b32 v7, v7, v3, vcc""")
    for j in range(2):
        k(f"buffer_load_dwordx4 v[{40+4*j}:{43+4*j}], v3, s[8:11], 0 offen offset:{j*1024}")
    k("s_waitcnt vmcnt(0)")
    for i in range(8): unpack_bf16(k, 48 + 2*i, 40 + i)
    k(f"s_cmp_lg_u32 s16, 0\ns_cbranch_scc1 x_ng")
    res_wait(k, "x_r0", 78, 22, 16, 3)
    k("x_ng:\ns_barrier")
    res_wait(k, "x_r1", 78, 22, 16, 1)
    stamp(k, 13)
    k(f"""s_cmp_lt_u32 s17, 64
    s_cselect_b32 s40, s40, s41
    s_lshl_b32 s42, s40, 12
    s_add_u32 s42, s42, {WS_SLOT}
    s_lshl_b32 s19, s18, 5
    s_add_u32 s43, s42, s19
    s_lshl_b32 s40, s40, 3
    s_add_u32 s40, s40, {WS_TT}
    buffer_load_dword v80, v6, s[12:15], s31 offen sc1
    s_mov_b32 s83, 0
    x_ps:""")
    for j in range(2):
        k(f"buffer_load_dwordx4 v[{32+4*j}:{35+4*j}], v3, s[12:15], s42 offen offset:{j*1024} sc1")
    k("""buffer_load_dword v40, v86, s[12:15], s43 offen offset:2048 sc1
    buffer_load_dwordx2 v[42:43], v14, s[12:15], s40 offen sc1
    s_waitcnt vmcnt(0)
    v_cmp_ne_u32 s[68:69], s32, v43""")
    chk_sent(k, range(32, 41), 9)
    k(f"""s_or_b64 vcc, vcc, s[68:69]
    s_cbranch_vccz x_psx
    {spin("x_ps", 0)}
    x_psx:
    v_readfirstlane_b32 s41, v42
    v_and_b32 v80, 0xffff0000, v80""")
    for i in range(8): unpack_bf16(k, 64 + 2*i, 32 + i)
    k("""s_and_b32 s41, s41, 0x7ff
    s_lshl_b32 s41, s41, 11
    s_add_u32 s41, s41, s19""")
    pmul(k, 8, 48, 64)
    for i in range(1, 8): pfma(k, 8, 48 + 2*i, 64 + 2*i, 8)
    k("v_add_f32 v8, v8, v9")
    wave_reduce_to63(k, [8])
    round_bf16(k, 8, 8)
    k(f"""v_mul_f32 v8, {LOG2E}, v8
    v_exp_f32 v8, v8
    v_add_f32 v8, 1.0, v8
    v_rcp_f32 v8, v8""")
    round_bf16(k, 8, 8)
    k("v_readlane_b32 s46, v8, 63")
    k("v_lshrrev_b32 v44, v87, v40\nv_lshlrev_b32 v44, 16, v44\nv_mul_f32 v80, s46, v80")
    stamp(k, 14)
    L = 16
    k(f"s_sleep {E('SL4', 16)}")
    k(f"s_mov_b32 s83, 0\nx_p2:")
    for j in range(4):
        k(f"buffer_load_dwordx4 v[{L+4*j}:{L+4*j+3}], v{7 if j == 3 else 3}, s[12:15], s36 offen offset:{j*1024} sc1")
    k("s_waitcnt vmcnt(0)")
    k("s_mov_b32 exec_hi, 0")
    for i in range(4): k(f"v_xor_b32 v{L+12+i}, s{56+i}, v{L+12+i}")
    k("s_mov_b64 exec, -1")
    for i in range(12): k(f"v_xor_b32 v{L+i}, s{56+(i&3)}, v{L+i}")
    k(f"v_or3_b32 v12, v{L+12}, v{L+13}, v{L+14}\nv_or3_b32 v13, v{L+15}, v{L}, v{L+1}")
    for i in range(2, 12, 4):
        k(f"v_or3_b32 v12, v12, v{L+i}, v{L+i+1}")
        if i + 2 < 12: k(f"v_or3_b32 v13, v13, v{L+i+2}, v{L+i+3}")
    k("v_bitop3_b32 v12, v12, v13, s33 bitop3:0xa8\nv_cmp_ne_u32 vcc, 0, v12")
    k(f"""s_cbranch_vccz x_p3
    {spin("x_p2", 0)}
    x_p3:""")
    stamp(k, 17)
    for h in range(2):
        padd(k, L + 2*h, L + 2*h, L + 4 + 2*h); padd(k, L + 8 + 2*h, L + 8 + 2*h, L + 12 + 2*h)
    for h in range(2): padd(k, L + 2*h, L + 2*h, L + 8 + 2*h)
    k(f"v_permlane32_swap_b32 v{L}, v{L+2}\nv_permlane32_swap_b32 v{L+1}, v{L+3}")
    padd(k, L, L, L + 2)
    k(f"v_permlane16_swap_b32 v{L}, v{L+1}\nv_add_f32 v{L}, v{L}, v{L+1}")
    for sh in (4, 8): k(f"v_add_f32_dpp v{L}, v{L}, v{L} row_ror:{sh} {DPPM}")
    k(f"""v_fmac_f32 v44, v{L}, v80
    s_mov_b32 exec_lo, 0x000f000f
    s_mov_b32 exec_hi, 0x000f000f
    v_cvt_pk_bf16_f32 v44, v44, v44
    buffer_store_short v44, v5, s[24:27], s41 offen {ES("FST", "")}
    s_cmp_lg_u32 s17, 0
    s_cbranch_scc1 x_end
    s_add_u32 s101, s101, 1
    s_mov_b32 s43, {WS_EP}
    v_mov_b32 v8, s101
    s_mov_b64 exec, 1
    buffer_store_dword v8, v14, s[12:15], s43 offen sc1
    x_end:""")
    stamp_out(k)

def gen():
    k = K(NAME)
    stamp_init(k)
    k("""s_cmp_ge_u32 s2, 256
    s_cbranch_scc1 k_done""")
    stamp(k, 0)
    k(f"""s_load_dwordx2 s[4:5], s[0:1], {A_X}
    s_load_dwordx8 s[20:27], s[0:1], {A_C}
    s_load_dwordx2 s[6:7], s[0:1], {A_WS}
    s_load_dwordx8 s[48:55], s[0:1], {A_WR}
    s_getpc_b64 s[62:63]
    k_pc:
    v_lshrrev_b32 v1, 6, v0
    v_and_b32 v2, 63, v0
    v_readfirstlane_b32 s16, v1
    v_lshlrev_b32 v3, 4, v2
    s_and_b32 s34, s2, 7
    s_lshr_b32 s35, s2, 4
    s_bitcmp1_b32 s2, 3
    s_cbranch_scc0 f_start""")
    k.c("G head: code prefetch, first GEMV tile [128 k][128 n]: ks = c, s17 = block, s41 = vq")
    k(f"""s_lshl_b32 s40, s35, 3
    s_add_u32 s40, s40, s16
    s_lshl_b32 s40, s40, 9
    v_lshl_add_u32 v4, v2, 7, s40
    v_min_u32 v4, tab_end-k_pc-4, v4
    s_mov_b64 exec, 15
    global_load_dword v250, v4, s[62:63]
    s_mov_b64 exec, -1
    v_bfe_u32 v7, v0, 4, 2
    v_lshlrev_b32 v4, 1, v7
    v_xor_b32 v4, v4, v0
    v_and_b32 v4, 15, v4
    v_lshlrev_b32 v4, 4, v4
    s_movk_i32 s42, 12288
    v_mad_u32_u24 v4, v7, s42, v4
    v_xor_b32 v31, 0x80, v4
    s_and_b32 s17, s35, 7
    s_lshr_b32 s41, s35, 3
    s_lshl_b32 s18, s34, 3
    s_add_u32 s18, s18, s16
    s_mul_i32 s18, s18, {16*12288}
    s_lshl_b32 s68, s16, 12
    s_xor_b32 s70, s35, 8
    s_lshl_b32 s70, s70, 8
    s_add_u32 s70, s70, s18
    s_mov_b32 s10, {1024*6144*2}
    s_mov_b32 s11, 0x00020000
    s_mov_b32 m0, s68
    s_waitcnt lgkmcnt(0)
    s_mov_b32 s8, s22
    s_mov_b32 s9, s23""")
    if E("GDEL", 0): k(f"s_cmp_ge_u32 s35, {E('XND', 14)}\ns_cbranch_scc1 g_nd\ns_sleep {E('GDEL', 0)}\ng_nd:")
    stamp(k, 2)
    for d in range(4):
        k(f"buffer_load_dwordx4 v{(4, 31)[d >> 1]}, s[8:11], s70 offen offset:{d*1024} {ES('NTW', '')} lds")
        if d < 3: k(f"s_add_u32 s70, s70, {4*12288 - 1024}")
    k("s_branch g_start\nf_start:")
    role_F(k)
    role_G(k)
    k("k_done:\ns_endpgm")
    return k

HEADER = """; adaLN + FNet mixing + MoD block, gfx950.  Generated by gen/gen20.py (hand-written generator).
"""
def tables():
    w = tabs.words(tabs.T4())
    for g0 in (False, True):
        for wv in range(8): w += tabs.words(tabs.T1(g0, wv))
    for sp in (False, True): w += tabs.words(tabs.T2(sp))
    assert 4 * len(w) == TB_END
    t = ".p2align 8\n.type tables,@object\ntables:\n"
    for i in range(0, len(w), 8):
        t += ".long " + ",".join("0x%x" % x for x in w[i:i+8]) + "\n"
    return t + f"tab_end:\n.size tables, {4*len(w)}\n"

def main(out):
    k = gen()
    t = HEADER + f"; @launch grid=(256,1,1) block=(512,1,1) lds={LDS}\n"
    t += '.amdgcn_target "amdgcn-amd-amdhsa--gfx950"\n.text\n' + k.text() + 'code_end:\n' + tables()
    t += '.section .rodata,"a"\n' + k.desc()
    open(out, "w").write(t)
if __name__ == "__main__":
    main(sys.argv[1] if len(sys.argv) > 1 else "adaLN_cond__spectral_fnet__moe_arch_mod__prompt.s")
```

```python
import math, sys, os
from asmgen import K, f32
from gen2 import (srd, P, padd, psub, pmul, pfma, pmul_s, pfma_s, psub_s, unpack_bf16, round_bf16, DPPM,
                  row_allreduce, wave_reduce_to63, chk_sent,
                  A_X, A_WR, A_WG, A_WU, A_WD, A_C, A_WM, A_OUT, A_DBG, A_WS, WS_SIZE)
import tabs
NAME = "adaLN_cond__spectral_fnet__moe_arch_mod__prompt_kernel"
E = lambda n, d: int(os.environ.get(n, str(d)))
ES = lambda n, d: os.environ.get(n, d)
SPIN = "0x40000"
WS_Z1   = 0x0000000
WS_SENT = 0x0400000
WS_PART = WS_SENT
WS_XA   = WS_SENT + 0x80000
WS_KEY  = WS_SENT + 0xB8000
WS_XB   = WS_SENT + 0xC0000
WS_TT   = 0x0635800
WS_SLOT = WS_SENT + 0x100000
WS_CAP  = 0x0600000
WS_MODP = 0x0610000
WS_PAR  = 0x0630000
WS_XR   = 0x0635000
WS_KR   = 0x0635400
WS_ZL   = 0x0638000
WS_MX   = 0x063C000
WS_EP   = 0x0650000
WS_STAMP = 0x2000000
NHASH = 0x9E3779B1
XP = 2064
L_S = 0; L_T4 = 33280; L_X = L_T4 + 16384; L_P = L_X + 32768; L_KEY = L_P + 5 * 4096; L_ST = L_KEY + 128; L_T3 = L_ST + 256; L_K = L_T3 + 8192
LDS = 131072 + 8192
LOG2E = f32(-math.log2(math.e))
ZMASK = E("ZMASK", 0x00030003)
TB_T4, TB_T1, TB_T2, TB_END = 0, 16384, 32768, 36864
ST = [int(x) for x in ES("ST", "").split(",") if x]
def stamp(k, i):
    if not ST: return
    if i == 0: k("s_memrealtime s[84:85]")
    elif i in ST: k(f"s_memrealtime s[{86+2*ST.index(i)}:{87+2*ST.index(i)}]")
def stamp_val(k, i, sreg):
    if i in ST: k(f"s_add_u32 s{86+2*ST.index(i)}, s{sreg}, s84")
def stamp_init(k):
    if ST:
        for j in range(8): k(f"s_mov_b32 s{84+2*j}, 0")
def stamp_out(k):
    if not ST: return
    k(f"""s_mov_b64 exec, -1
    s_waitcnt vmcnt(0)
    s_memrealtime s[98:99]
    s_waitcnt lgkmcnt(0)
    v_lshrrev_b32 v248, 6, v0
    v_lshlrev_b32 v248, 5, v248
    s_lshl_b32 s100, s2, 8
    s_add_u32 s100, s100, {WS_STAMP}""")
    for i in range(8): k(f"v_mov_b32 v{240+i}, s{84+2*i}")
    k("""s_mov_b64 exec, 1
    buffer_store_dwordx4 v[240:243], v248, s[12:15], s100 offen
    buffer_store_dwordx4 v[244:247], v248, s[12:15], s100 offen offset:16""")
def rb2(k, v, t):
    k(f"v_cvt_pk_bf16_f32 v{t}, v{v}, v{v+1}")
    unpack_bf16(k, v, t)
def spin(lab, sl):
    return (f"s_sleep {sl}\n" if sl else "") + f"s_add_u32 s83, s83, 1\ns_cmp_lt_u32 s83, {SPIN}\ns_cbranch_scc1 {lab}"
def nonce_issue(k, sp):
    k(f"s_mov_b32 s43, {WS_EP}\ns_load_dword s101, s[{sp}:{sp+1}], s43")
def nonce_finish(k):
    k(f"""s_mul_i32 s32, s101, {NHASH:#x}
    s_or_b32 s32, s32, 0x101
    s_and_b32 s32, s32, {~0x10404 & 0xffffffff:#x}
    s_and_b32 s56, s32, 0xff
    s_bfe_u32 s57, s32, 0x80008
    s_bfe_u32 s58, s32, 0x80010
    s_lshr_b32 s59, s32, 24""")
def chk_bytes(k, regs, acc):
    regs = list(regs)
    for i, r in enumerate(regs): k(f"v_xor_b32 v{r}, s{56 + (i & 3)}, v{r}")
    k(f"v_or3_b32 v{acc}, v{regs[0]}, v{regs[1]}, v{regs[2]}")
    regs = regs[3:]
    while len(regs) >= 2:
        k(f"v_or3_b32 v{acc}, v{acc}, v{regs[0]}, v{regs[1]}"); regs = regs[2:]
    if regs: k(f"v_or_b32 v{acc}, v{acc}, v{regs[0]}")
    k(f"v_and_b32 v{acc}, 0xff, v{acc}")
    k(f"v_cmp_ne_u32 vcc, 0, v{acc}")
def keys_issue(k, base, soff):
    for j in range(2):
        k(f"buffer_load_dwordx4 v[{base+4*j}:{base+4*j+3}], v3, s[12:15], s{soff} offen offset:{j*1024} sc1")
def keys_chk(k, base, tmp):
    k(f"v_xor_b32 v{tmp}, s32, v{base+2}")
    k(f"v_bitop3_b32 v{tmp}, v{tmp}, v{base+6}, s32 bitop3:0xf6")
    k(f"v_cmp_ne_u32 vcc, 0, v{tmp}")
def poll_keys(k, lab, base, soff, tmp):
    k(f"s_mov_b32 s83, 0\n{lab}:")
    keys_issue(k, base, soff)
    k("s_waitcnt vmcnt(0)")
    keys_chk(k, base, tmp)
    k(f"s_cbranch_vccz {lab}x\n{spin(lab, E('SL2', 4))}\n{lab}x:")
def top2(k, KB, s1, s2, tmp):
    m1, m2, c = tmp, tmp + 1, tmp + 2
    k(f"v_max_u32 v{m1}, v{KB}, v{KB+4}")
    k(f"v_min_u32 v{m2}, v{KB}, v{KB+4}")
    k(f"v_max3_u32 v{m2}, v{m2}, v{KB+1}, v{KB+5}")
    k(f"v_mov_b32 v{c}, v{m1}")
    wave_reduce_to63(k, [c], "v_max_u32")
    k(f"v_readlane_b32 s{s1}, v{c}, 63")
    k(f"v_cmp_eq_u32 vcc, s{s1}, v{m1}")
    k(f"v_cndmask_b32 v{c}, v{m1}, v{m2}, vcc")
    wave_reduce_to63(k, [c], "v_max_u32")
    k(f"v_readlane_b32 s{s2}, v{c}, 63")
def res_wait(k, lab, soff, vz, vd, sl):
    k(f"""v_mov_b32 v{vz}, 0
    s_mov_b32 s83, 0
    {lab}:
    buffer_load_dwordx2 v[{vd}:{vd+1}], v{vz}, s[12:15], s{soff} offen offset:2304 sc1
    s_waitcnt vmcnt(0)
    v_readfirstlane_b32 s40, v{vd}
    v_readfirstlane_b32 s41, v{vd+1}
    s_cmp_eq_u32 s41, s32
    s_cbranch_scc1 {lab}x
    {spin(lab, sl)}
    {lab}x:
    s_lshr_b32 s41, s40, 8
    s_and_b32 s40, s40, 0xff
    s_and_b32 s41, s41, 0xff""")

def role_F(k):
    ZL, PA, PB, BP, XA_, XB_, NAT, KW, KR_, FA, ZS, PG, PS = 4, 5, 6, 7, 8, 9, 10, 11, 12, 13, 14, 15, 1
    EG, T1, T2, L, D, D3, T3, TB, XA2, XB2, T4 = 16, 20, 24, 32, 48, 80, 112, 144, 160, 176, 192
    PFR, PRA, RCL, PRB0, PRC, REC, A0, A1, R0, R1 = 240, 20, 244, 16, 24, 251, 252, 253, 254, 255
    T4L = "s_mov_b32 m0, s40\ns_nop 0\nglobal_load_lds_dwordx4 v79, s[62:63]\nglobal_load_lds_dwordx4 v79, s[62:63] offset:1024"
    T1L = f"""global_load_dwordx4 v[{T1}:{T1+3}], v77, s[62:63]
    global_load_dwordx4 v[{T2}:{T2+3}], v78, s[62:63]
    global_load_dwordx4 v[{T2+4}:{T2+7}], v78, s[62:63] offset:1024"""
    k(f"""s_add_u32 s62, s62, tables-k_pc
    s_addc_u32 s63, s63, 0
    s_lshl_b32 s43, s16, 11
    v_add_u32 v79, s43, v3
    s_add_u32 s40, s43, {L_T4}
    s_lshl_b32 s42, s16, 10
    {"" if E("T4POS", 1) else T4L}
    s_add_u32 s43, s42, {TB_T1}
    s_cmp_eq_u32 s34, 0
    s_cselect_b32 s68, 8192, 0
    s_add_u32 s43, s43, s68
    v_add_u32 v77, s43, v3
    s_or_b32 s69, s34, s16
    s_cselect_b32 s68, 0, 2048
    s_add_u32 s68, s68, {TB_T2}
    v_add_u32 v78, s68, v3
    {"" if E("T1POS", 1) else T1L}
    s_sub_u32 s17, 16, s34
    s_cmp_eq_u32 s34, 0
    s_cselect_b32 s17, 8, s17
    s_bitcmp1_b32 s35, 0
    s_cselect_b32 s17, s17, s34
    s_lshr_b32 s36, s35, 1
    s_lshl_b32 s36, s36, 4
    s_add_u32 s17, s17, s36
    s_lshl_b32 s36, s16, 8
    s_add_u32 s36, s36, s17
    s_lshl_b32 s36, s36, 11
    s_add_u32 s37, s36, {128*2048}
    s_mov_b32 s10, {2048*1024*2}
    s_mov_b32 s11, 0x00020000""")
    XW, AB, S, MB, R, BFR, D0, DA, OB = 32, 48, 52, 56, 60, 80, 96, 100, 176
    VO, XWA, TRA_, RT, MT, STW, MW, NON, VZ, SH, N_, G_ = 160, 161, 162, 163, 164, 165, 166, 167, 168, 169, 170, 171
    k.c("A-matrix base: lane m = 2k+comp, rows j = 4g+i")
    k(f"""v_and_b32 v{N_}, 15, v0
    v_bfe_u32 v{G_}, v0, 4, 2
    v_lshrrev_b32 v72, 1, v{N_}
    v_and_b32 v73, 1, v0
    v_cmp_eq_u32 vcc, 1, v{N_}
    v_mov_b32 v74, s17
    v_cndmask_b32_e64 v72, v72, 8, vcc
    v_cndmask_b32_e64 v74, v74, 0, vcc
    v_cndmask_b32_e64 v73, v73, 0, vcc
    v_lshl_add_u32 v74, v{G_}, 9, v74
    s_waitcnt lgkmcnt(0)
    s_mov_b32 s8, s4
    s_mov_b32 s9, s5""")
    stamp(k, 1)
    if E("FSTOP", 9) == 0: srd(k, 12, 6, WS_SIZE); stamp_out(k); k("s_endpgm")
    for h in range(2):
        for jj in range(2):
            k(f"buffer_load_dwordx4 v[{XW+8*jj+4*h}:{XW+8*jj+4*h+3}], v3, s[8:11], s{36+jj} offen offset:{h*1024}")
    nonce_issue(k, 6)
    srd(k, 12, 6, WS_SIZE)
    srd(k, 20, 52, 1024 * 3584 * 2)
    k(f"""s_mov_b32 s26, 4194304
    s_mov_b32 s27, 0x00020000
    s_getreg_b32 s39, hwreg(HW_REG_XCC_ID)
    s_and_b32 s39, s39, 7
    v_mul_u32_u24 v74, v72, v74
    v_lshl_add_u32 v74, v73, 9, v74
    v_lshlrev_b32 v72, 7, v72""")
    for i in range(4):
        k(f"v_and_b32 v{AB+i}, 2047, v74")
        if i < 3: k("v_add_u32 v74, v74, v72")
    for i in range(4): k(f"v_cvt_f32_u32 v{AB+i}, v{AB+i}")
    for i in range(4): k(f"v_mul_f32 v{AB+i}, {f32(1.0/2048)}, v{AB+i}")
    for i in range(4): k(f"v_cos_f32 v{AB+i}, v{AB+i}")
    for i in range(4): k(f"v_mul_f32 v{AB+i}, {f32(1.0/16)}, v{AB+i}")
    k(f"""v_lshlrev_b32 v{VO}, 20, v{G_}
    v_lshl_add_u32 v{VO}, v1, 15, v{VO}
    v_lshl_add_u32 v{VO}, v{N_}, 4, v{VO}
    v_mul_u32_u24 v{XWA}, {2*XP}, v1
    v_add_u32 v{XWA}, v{XWA}, v3
    v_lshrrev_b32 v72, 2, v2
    v_mul_u32_u24 v{TRA_}, {XP}, v72
    v_and_b32 v72, 3, v0
    v_lshl_add_u32 v{TRA_}, v72, 7, v{TRA_}
    v_lshl_add_u32 v{TRA_}, v1, 3, v{TRA_}
    v_lshlrev_b32 v{RT}, 4, v{G_}
    v_add_u32 v{RT}, {L_ST}, v{RT}
    v_lshlrev_b32 v{MT}, 3, v{G_}
    v_add_u32 v{MT}, {L_ST+64}, v{MT}
    v_lshrrev_b32 v72, 5, v0
    v_lshlrev_b32 v{STW}, 2, v72
    v_add_u32 v{KW}, {L_KEY}, v{STW}
    v_add_u32 v{STW}, {L_ST}, v{STW}
    v_lshlrev_b32 v{MW}, 1, v72
    v_add_u32 v{MW}, {L_ST+64}, v{MW}
    v_mov_b32 v{VZ}, 0
    v_and_b32 v{SH}, 1, v0
    v_lshlrev_b32 v{SH}, 3, v{SH}
    s_lshl_b32 s3, s34, 4
    s_and_b32 s64, s35, 1
    s_lshl_b32 s64, s64, 3
    s_lshr_b32 s65, s35, 1
    s_add_u32 s64, s64, s65
    s_and_b32 s65, s16, 3
    s_xor_b32 s64, s64, s65
    s_add_u32 s64, s64, s3
    s_add_u32 s3, s3, s35
    s_lshl_b32 s64, s64, 8
    s_add_u32 s64, s64, {WS_Z1}
    s_add_u32 s65, s64, 262144
    s_add_u32 s66, s64, 524288
    s_add_u32 s67, s64, {524288+262144}
    s_mov_b32 s44, 0x3f803f80
    s_mov_b32 s46, {f32(1.0/1024)}
    s_mov_b32 s33, {ZMASK}""")
    k.c("row ids: s30 = t, s31 = mirror row")
    k(f"""s_lshl_b32 s60, s35, 3
    s_add_u32 s60, s60, s16
    s_lshl_b32 s30, s60, 4
    s_add_u32 s30, s30, s34
    s_cmp_lg_u32 s34, 0
    s_cbranch_scc1 f_g1
    s_cmp_ge_u32 s16, 4
    s_cselect_b32 s31, 56, 0
    s_sub_u32 s30, s30, s31
    s_cmp_lg_u32 s16, 0
    s_cbranch_scc1 f_g1
    s_cmp_ge_u32 s35, 8
    s_cselect_b32 s31, 960, 0
    s_sub_u32 s30, s30, s31
    f_g1:
    s_sub_u32 s31, 2048, s30
    s_cmp_eq_u32 s30, 0
    s_cselect_b32 s31, 1024, s31
    s_lshl_b32 s18, s30, 11
    s_lshl_b32 s19, s31, 11
    s_lshl_b32 s61, s34, 19
    s_add_u32 s61, s61, {WS_Z1}
    s_lshl_b32 s28, s60, 8
    s_add_u32 s28, s28, s61
    s_add_u32 s29, s28, 131072
    s_add_u32 s50, s28, 262144
    s_add_u32 s51, s28, 393216
    s_lshl_b32 s73, s35, 15
    s_add_u32 s73, s73, s61
    s_lshl_b32 s42, s16, 12
    s_add_u32 s72, s73, s42
    s_add_u32 s45, s42, {L_X}
    s_lshl_b32 s42, s16, 8
    s_add_u32 s74, s73, s42
    s_add_u32 s75, s74, 4096
    s_lshl_b32 s76, s34, 7
    s_add_u32 s77, s76, {WS_KR}
    s_add_u32 s76, s76, {WS_XR}
    s_lshl_b32 s78, s35, 3
    s_add_u32 s79, s78, s77
    s_add_u32 s78, s78, s76
    s_lshl_b32 s80, s3, 4
    s_add_u32 s80, s80, {WS_KEY}
    s_lshl_b32 s81, s34, 12
    s_add_u32 s81, s81, {WS_KEY}
    s_lshl_b32 s82, s35, 11
    s_add_u32 s82, s82, {WS_CAP}""")
    k.c("base table (cos, sin)(d*k1/1024) of the column class wave&3")
    k(f"""v_cvt_f32_u32 v75, v{N_}
    s_lshl_b32 s42, s35, 2
    s_and_b32 s43, s16, 3
    s_add_u32 s42, s42, s43
    v_lshl_add_u32 v76, v{G_}, 8, s42
    v_mul_f32 v75, {f32(1.0/1024)}, v75
    v_cvt_f32_u32 v76, v76
    v_mul_f32 v60, v76, v75""")
    for i in range(1, 4): k(f"v_fmamk_f32 v{60+i}, v75, {f32(64.0*i)}, v60")
    for i in range(4): k(f"v_cos_f32 v{64+i}, v{60+i}")
    for i in range(4): k(f"v_sin_f32 v{68+i}, v{60+i}")
    for i in range(4): k(f"v_cvt_pk_f16_f32 v{TB+i}, v{64+i}, v{68+i}")
    def xc():
        k(f"""s_mov_b32 m0, s45
        s_add_u32 s43, s45, 2048
        buffer_load_dwordx4 v3, s[8:11], s18 offen lds
        buffer_load_dwordx4 v3, s[8:11], s18 offen offset:1024 lds
        s_mov_b32 m0, s43
        s_nop 0
        buffer_load_dwordx4 v3, s[8:11], s19 offen lds
        buffer_load_dwordx4 v3, s[8:11], s19 offen offset:1024 lds""")
    XPOS = E("XPOS", 5)
    NX = (4 if XPOS == 2 else 0) + 2 * (E("T4POS", 1) == 1) + 3 * (E("T1POS", 1) == 1)
    if E("T4POS", 1) == 1: k(T4L)
    if E("T1POS", 1) == 1: k(T1L)
    if XPOS == 2: xc()
    for h in range(2):
        for jj in range(2):
            u = 2*h + jj
            k(f"s_waitcnt vmcnt({3 - u + NX})")
            k(f"ds_write_b128 v{XWA}, v[{XW+8*jj+4*h}:{XW+8*jj+4*h+3}] offset:{L_S + jj*XP + h*1024}")
            for q in range(4):
                r = XW + 8*jj + 4*h + q
                first = (h == 0 and q == 0)
                k(f"v_dot2_f32_bf16 v{S+jj}, v{r}, s44, {'0' if first else f'v{S+jj}'}")
                k(f"v_dot2_f32_bf16 v{S+2+jj}, v{r}, v{r}, {'0' if first else f'v{S+2+jj}'}")
    stamp(k, 2)
    if XPOS == 0: xc()
    else: k("s_nop 2")
    def red1(js):
        for j in js: k(f"v_permlane32_swap_b32 v{S+j}, v{S+j+1}")
        for j in js: k(f"v_add_f32 v{S+j}, v{S+j}, v{S+j+1}")
        regs = [S + j for j in js]
        row_allreduce(k, regs)
        for r in regs: k(f"v_add_f32_dpp v{r}, v{r}, v{r} row_bcast:15 row_mask:0xa bank_mask:0xf")
    red1((0, 2))
    k.c("lanes 31 / 63 hold the two rows")
    V = S + 2
    k(f"""v_mul_f32 v{S}, s46, v{S}
    v_mul_f32 v{V}, s46, v{V}
    v_mul_f32 v{R+4}, v{S}, v{S}
    v_cvt_pk_bf16_f32 v{MB}, -v{S}, -v{S}
    v_sub_f32 v{V}, v{V}, v{R+4}
    v_mul_f32 v{R+6}, {f32(512.0)}, v{V}
    v_cmp_gt_f32 vcc, v{R+4}, v{R+6}
    s_or_b32 s68, vcc_lo, vcc_hi
    s_bitcmp1_b32 s68, 31
    s_cbranch_scc1 f_slowvar
    f_var:""")
    round_bf16(k, V, V)
    k(f"v_add_f32 v{V}, {f32(1e-5)}, v{V}")
    round_bf16(k, V, V)
    k(f"v_sqrt_f32 v{V}, v{V}")
    round_bf16(k, V, V)
    k(f"""v_rcp_f32 v{V}, v{V}
    s_mov_b32 exec_lo, 0x80000000
    s_mov_b32 exec_hi, 0x80000000
    ds_write_b16 v{MW}, v{MB}
    ds_write_b32 v{STW}, v{V}
    s_mov_b64 exec, -1
    s_waitcnt lgkmcnt(0)
    s_cmp_lg_u32 s16, 0
    s_cbranch_scc1 f_nxr""")
    nonce_finish(k)
    k(f"""v_mov_b32 v72, s32
    v_mov_b32 v73, s39
    v_mov_b32 v74, {L_K}
    s_mov_b64 exec, 1
    ds_write_b32 v74, v{VZ} offset:4
    buffer_store_dwordx2 v[72:73], v{VZ}, s[12:15], s78 offen sc1
    s_mov_b64 exec, -1
    s_waitcnt lgkmcnt(0)
    f_nxr:
    s_barrier""")
    stamp(k, 30)
    if E("FSTOP", 9) == 1: stamp_out(k); k("s_endpgm")
    k(f"""ds_read_b128 v[{R}:{R+3}], v{RT}
    ds_read_b64 v[{R+4}:{R+5}], v{MT}""")
    for ah in range(2):
        for q in range(4):
            u = ah * 4 + q
            k(f"ds_read_b64_tr_b16 v[{BFR+2*u}:{BFR+2*u+1}], v{TRA_} offset:{L_S + ah*64 + q*512}")
    if XPOS == 1: xc()
    nonce_finish(k)
    stamp(k, 31)
    k(f"v_lshrrev_b32 v{EG}, v{SH}, s32")
    for i in range(1, 4): k(f"v_lshrrev_b32 v{EG+i}, {2*i}, v{EG}")
    k("s_waitcnt lgkmcnt(8)")
    BM = R + 4; AH = 58
    for h in range(2): pmul(k, AB + 2*h, AB + 2*h, R + 2*h)
    for h in range(2): k(f"v_cvt_pk_bf16_f32 v{AH+h}, v{AB+2*h}, v{AB+2*h+1}")
    k(f"v_mfma_f32_16x16x16_bf16 v[{D0}:{D0+3}], v[{AH}:{AH+1}], v[{BM}:{BM+1}], 0")
    k("s_waitcnt lgkmcnt(0)")
    for u in range(8):
        k(f"v_mfma_f32_16x16x16_bf16 v[{DA+4*u}:{DA+4*u+3}], v[{AH}:{AH+1}], v[{BFR+2*u}:{BFR+2*u+1}], v[{D0}:{D0+3}]")
    for ah in range(2):
        for kp in range(2):
            o = OB + (2*ah + kp) * 4
            for q in range(4):
                u = ah * 4 + q
                k(f"v_cvt_pk_f16_f32 v{o+q}, v{DA+4*u+2*kp}, v{DA+4*u+2*kp+1}")
            for q in range(4): k(f"v_bfi_b32 v{o+q}, s33, v{EG+q}, v{o+q}")
            if ah + kp == 0: stamp(k, 32)
            k(f"buffer_store_dwordx4 v[{o}:{o+3}], v{VO}, s[12:15], s{64 + 2*kp + ah} offen sc1")
    stamp(k, 3)
    k("s_waitcnt vmcnt(4)\ns_barrier")
    k.c("================= wait 1: tables, x rows, addresses =================")
    n_, g_ = 48, 49
    k(f"""v_mov_b32 v{n_}, v{N_}
    v_mov_b32 v{g_}, v{G_}
    v_mov_b32 v50, s32
    v_mov_b32 v51, s39""")
    def zhint():
        k(f"""s_cmp_lg_u32 s16, {E("HW", 0)}
        s_cbranch_scc1 f_nzl
        s_lshl_b32 s68, s3, 7
        s_add_u32 s68, s68, {WS_ZL}
        v_mov_b32 v52, 0
        s_mov_b64 exec, 1
        buffer_store_dwordx2 v[50:51], v52, s[12:15], s68 offen sc1
        s_mov_b64 exec, -1
        f_nzl:""")
    if E("ZPOS", 0) == 0: zhint()
    for u in range(12):
        k(f"ds_read_b128 v[{T4+4*u}:{T4+4*u+3}], v3 offset:{L_T4 + u*1024}")
    stamp(k, 33)
    k(f"""v_lshlrev_b32 v{ZL}, 15, v{g_}
    v_lshl_add_u32 v{ZL}, v{n_}, 4, v{ZL}
    v_lshlrev_b32 v{ZS}, 13, v{g_}
    v_lshl_add_u32 v{ZS}, v{n_}, 4, v{ZS}
    v_lshl_add_u32 v{R0}, v1, 10, v{ZS}
    v_xor_b32 v{R1}, 64, v{R0}
    v_lshrrev_b32 v57, 1, v1
    v_lshlrev_b32 v{A0}, 13, v57
    v_and_b32 v57, 1, v1
    v_lshl_add_u32 v{A0}, v57, 3, v{A0}
    v_lshl_add_u32 v{A0}, v{g_}, 11, v{A0}
    v_and_b32 v57, 3, v0
    v_lshl_add_u32 v{A0}, v57, 8, v{A0}
    v_lshrrev_b32 v58, 2, v{n_}
    v_lshl_add_u32 v{A0}, v58, 4, v{A0}
    v_and_b32 v59, 1, v0
    v_lshl_add_u32 v{A0}, v59, 6, v{A0}
    v_xor_b32 v{A1}, 64, v{A0}
    v_lshl_add_u32 v57, v{g_}, 2, v57
    v_lshlrev_b32 v57, 4, v57
    v_lshl_add_u32 v250, v58, 8, v57
    v_add_u32 v{PA}, {L_P}, v3
    v_sub_u32 v{PB}, {L_P + 63*16}, v3
    v_lshl_add_u32 v57, v{n_}, 2, v{g_}
    v_lshl_add_u32 v{XA_}, v57, 3, s45
    s_add_u32 s43, s45, {2048+504}
    v_lshlrev_b32 v58, 3, v57
    v_sub_u32 v{XB_}, s43, v58
    v_add_u32 v57, 1, v57
    v_and_b32 v58, 3, v57
    v_and_b32 v57, 60, v57
    v_lshl_add_u32 v{BP}, v58, 6, v57
    v_add_u32 v{NAT}, s45, v3
    v_lshlrev_b32 v{KR_}, 2, v{n_}
    v_add_u32 v{KR_}, {L_KEY}, v{KR_}
    v_lshlrev_b32 v{FA}, 12, v2
    v_and_b32 v{REC}, 0x70, v3
    v_lshlrev_b32 v{PG}, 4, v0
    v_and_b32 v57, 3, v0
    v_bfe_u32 v58, v0, 2, 4
    v_lshl_add_u32 v57, v57, 4, v58
    v_bfe_u32 v58, v0, 6, 2
    v_lshl_add_u32 v57, v58, 6, v57
    v_lshrrev_b32 v58, 8, v0
    v_lshl_add_u32 v57, v58, 9, v57
    v_lshlrev_b32 v57, 4, v57
    v_add_u32 v{PS}, {L_P}, v57""")
    CAPA = 250; Z1A = 249; T3A = 248
    k(f"s_and_b32 s42, s35, 3\ns_lshl_b32 s42, s42, 8\nv_xor_b32 v{Z1A}, s42, v3")
    CEN = 0x00020002 if ZMASK == 0x00030003 else 0
    k(f"s_mov_b32 s44, {CEN}")
    for i in range(4): k(f"v_and_b32 v{EG+i}, s33, v{EG+i}")
    for i in range(4): k(f"v_xor_b32 v{EG+i}, s44, v{EG+i}")
    XT = D3 + 16
    def xreads():
        for T in range(4):
            k(f"ds_read_b64 v[{XT+2*T}:{XT+2*T+1}], v{XA_} offset:{512*T}")
        for T in range(4):
            k(f"ds_read_b64 v[{XT+8+2*T}:{XT+8+2*T+1}], v{XB_} offset:{512*(3-T)}")
    if XPOS < 3: xreads()
    FPJ = E("FPJ", 5); FPY = E("FPY", 0)
    k(f"""s_mov_b32 s41, {WS_PAR+8192}
    s_and_b32 s40, s16, 4
    s_lshl_b32 s40, s40, 10
    s_sub_u32 s40, {WS_PAR+16384}, s40
    s_lshl_b32 s54, s3, 13
    s_add_u32 s54, s54, {WS_SLOT}
    s_lshr_b32 s43, s60, 6
    {"s_and_b32 s55, s35, 7" if FPY else "s_and_b32 s55, s60, 63"}
    {"s_lshl_b32 s55, s55, 2" if FPY else ""}
    {"s_and_b32 s52, s16, 3" if FPY else ""}
    {"s_add_u32 s55, s55, s52" if FPY else ""}
    s_mul_i32 s55, s55, {FPJ}
    s_lshl_b32 s43, s43, 9
    s_add_u32 s55, s55, s43
    s_add_u32 s55, s55, {512 - (32 if FPY else 64)*FPJ - E("FPJO", 0)}
    s_mul_i32 s55, s55, 7168
    s_mul_i32 s43, s34, 896
    s_add_u32 s55, s55, s43
    s_mov_b32 s48, {((1 << (8 * FPJ)) - 1) & 0xffffffff}
    s_mov_b32 s49, {((1 << (8 * FPJ)) - 1) >> 32}
    s_cmp_lt_u32 s16, {4 if FPY else 0}
    s_cselect_b64 s[48:49], 0, s[48:49]
    s_mov_b32 s52, {WS_PAR}
    s_mov_b32 s53, {WS_PAR+4096}""")
    def xunpack():
        k("s_waitcnt lgkmcnt(0)")
        for i in range(8): unpack_bf16(k, XA2 + 2*i, XT + i)
        for i in range(8): unpack_bf16(k, XB2 + 2*i, XT + 8 + i)
    if XPOS < 3: xunpack()
    stamp(k, 34)
    if E("DRAIN", 0): k("s_waitcnt vmcnt(0)")
    if E("FB2", 1): k("s_barrier")
    stamp(k, 4)
    if E("FSTOP", 9) == 2: stamp_out(k); k("s_endpgm")
    CP = T3
    def cap_issue(lab, fl="sc1"):
        k(f"s_cmp_lg_u32 s34, 0\ns_cbranch_scc1 {lab}\ns_add_u32 s68, s82, 32768")
        for j in range(2):
            k(f"buffer_load_dwordx4 v[{CP+8+4*j}:{CP+8+4*j+3}], v{CAPA}, s[12:15], s68 offen offset:{j*1024} {fl}")
        k(f"{lab}:")
        for j in range(2):
            k(f"buffer_load_dwordx4 v[{CP+4*j}:{CP+4*j+3}], v{CAPA}, s[12:15], s82 offen offset:{j*1024} {fl}")
    assert XPOS == 5
    xc()
    k(f"buffer_load_dwordx4 v[{RCL}:{RCL+3}], v{REC}, s[12:15], s76 offen {ES('CFL', '')}")
    def z1_issue():
        for i in range(4):
            k(f"buffer_load_dwordx4 v[{L+4*i}:{L+4*i+3}], v{Z1A}, s[12:15], s72 offen offset:{i*1024} sc1")
    k.c("s47: bit0 = stage 1 done, bit1 = table built (waves 0-3 build one column class each)")
    TORD = E("TORD", 0)
    k(f"""v_add_u32 v{T3A}, {L_T3}, v3
    s_mov_b32 s47, 2
    s_mov_b32 s83, 0
    s_cmp_ge_u32 s16, 4
    s_cbranch_scc1 f_s0""")
    if E("SLC0", 4): k(f"s_sleep {E('SLC0', 4)}")
    cap_issue("f_ci0", ES("CFL", ""))
    if TORD:
        if E("SLF0", 0): k(f"s_sleep {E('SLF0', 0)}")
        z1_issue()
    k(f"""s_mov_b32 s47, 0
    s_waitcnt vmcnt({4 if TORD else 0})
    f_c1:""")
    t = D
    chk_bytes(k, range(CP, CP + 8), t)
    k(f"""s_cmp_lg_u32 s34, 0
    s_cbranch_scc1 f_c1n
    s_mov_b64 s[68:69], vcc""")
    chk_bytes(k, range(CP + 8, CP + 16), t)
    k(f"""s_or_b64 vcc, vcc, s[68:69]
    f_c1n:
    {"" if E("NOCHK", 0) & 1 else "s_cbranch_vccnz f_c1bad"}
    f_c1ok:""")
    stamp(k, 36)
    stamp_val(k, 52, 47)
    def capsum(b):
        padd(k, b, b, b + 4); padd(k, b + 2, b + 2, b + 6)
        for sh in (4, 8):
            for i in range(4): k(f"v_add_f32_dpp v{b+i}, v{b+i}, v{b+i} row_ror:{sh} {DPPM}")
        rb2(k, b, t); rb2(k, b + 2, t + 1)
    capsum(CP)
    for i in range(4): k(f"v_add_f32 v{CP+i}, 1.0, v{CP+i}")
    rb2(k, CP, t); rb2(k, CP + 2, t + 1)
    k(f"""v_max_f32_e64 v{t}, abs(v{CP}), abs(v{CP+1})
    v_max3_f32 v{t}, abs(v{CP+2}), abs(v{CP+3}), v{t}
    s_cmp_lg_u32 s34, 0
    s_cbranch_scc1 f_c1m
    v_mov_b32 v{t+2}, v{t}""")
    capsum(CP + 8)
    k(f"""v_max3_f32 v{t}, abs(v{CP+8}), abs(v{CP+9}), v{t+2}
    v_max3_f32 v{t}, abs(v{CP+10}), abs(v{CP+11}), v{t}
    f_c1m:
    s_nop 1""")
    for qp in ("[1,0,3,2]", "[2,3,0,1]"):
        k(f"v_max_f32_dpp v{t}, v{t}, v{t} quad_perm:{qp} {DPPM}")
    for g in range(4): k(f"v_readlane_b32 s{68+g}, v{t}, {16*g}")
    k(f"""s_max_u32 s68, s68, s69
    s_max_u32 s70, s70, s71
    s_max_u32 s68, s68, s70
    s_lshr_b32 s68, s68, 23
    s_sub_u32 s69, s68, 120
    s_sub_i32 s68, s68, 127
    s_max_i32 s68, s68, -100
    s_min_i32 s68, s68, 120
    s_cmp_le_u32 s69, 9
    s_cselect_b32 s68, 2, s68
    s_cselect_b32 s17, 0, 0x20000
    s_sub_i32 s69, 127, s68
    s_lshl_b32 s69, s69, 23""")
    def pick(b):
        k(f"""v_cndmask_b32 v{b}, v{b}, v{b+1}, s[64:65]
        v_cndmask_b32 v{b+2}, v{b+2}, v{b+3}, s[64:65]
        v_cndmask_b32 v{b}, v{b}, v{b+2}, s[66:67]""")
    k("""s_bitcmp1_b32 s16, 0
    s_cselect_b64 s[64:65], -1, 0
    s_bitcmp1_b32 s16, 1
    s_cselect_b64 s[66:67], -1, 0
    s_lshl_b32 s70, s16, 11""")
    pick(CP)
    BC = t + 8; TW = t + 16
    k(f"""v_mul_f32 v{CP}, s69, v{CP}
    v_add_u32 v{t+5}, s70, v{T3A}
    v_cvt_pk_f16_f32 v{t}, v{CP}, v{CP}
    s_nop 0""")
    for i in range(4): k(f"v_mov_b32_dpp v{BC+i}, v{t} quad_perm:[{i},{i},{i},{i}] {DPPM}")
    for i in range(4):
        k(f"v_pk_mul_f16 v{TW+i}, v{TB+i}, v{BC+i}")
        k(f"v_pk_mul_f16 v{TW+4+i}, v{TB+i}, v{BC+i} op_sel:[1,0] op_sel_hi:[0,1] neg_lo:[1,0]")
    k(f"""ds_write_b128 v{t+5}, v[{TW}:{TW+3}]
    ds_write_b128 v{t+5}, v[{TW+4}:{TW+7}] offset:1024
    s_cmp_lg_u32 s16, 0
    s_cbranch_scc1 f_nkr
    v_mov_b32 v{t+6}, s17
    s_mov_b32 s61, s68
    s_mov_b64 exec, 1
    ds_write_b32 v{T3A}, v{t+6} offset:8192
    s_mov_b64 exec, -1
    f_nkr:
    s_cmp_eq_u32 s34, 0
    s_cbranch_scc1 f_sa
    f_nsa:
    v_mov_b32 v{t+6}, 1
    s_mov_b64 exec, 1
    ds_add_u32 v{T3A}, v{t+6} offset:8196
    s_mov_b64 exec, -1
    s_bitset1_b32 s47, 1
    s_bitcmp1_b32 s47, 0
    s_cbranch_scc1 f_bar
    s_branch f_s1
    f_s0:""")
    if E("SLF", 8): k(f"s_sleep {E('SLF', 8)}")
    if not TORD: k("f_s1:")
    z1_issue()
    k("s_waitcnt vmcnt(4)")
    if TORD: k("f_s1:")
    k("s_mov_b32 s83, 0")
    stamp(k, 5)
    xreads()
    k.c("same die for the whole group? (records not there yet count as no)")
    k(f"""v_xor_b32 v2, s32, v{RCL}
    v_bitop3_b32 v2, v2, v{RCL+2}, s32 bitop3:0xf6
    v_bitop3_b32 v2, v2, v{RCL+1}, s39 bitop3:0xf6
    v_bitop3_b32 v2, v2, v{RCL+3}, s39 bitop3:0xf6
    v_cmp_ne_u32 vcc, 0, v2""")
    for i in range(4): k(f"v_mov_b32 v{PFR+i}, -1")
    k("s_mov_b32 s38, vcc_lo")
    KF = RCL + 1
    k(f"v_mov_b32 v{RCL}, {L_K}")
    def t3reads():
        for u in range(8): k(f"ds_read_b128 v[{T3+4*u}:{T3+4*u+3}], v{T3A} offset:{u*1024}")
        k(f"ds_read_b32 v{KF}, v{RCL}")
    def t3try(lab):
        k(f"""ds_read_b32 v{RCL+2}, v{RCL} offset:4
        s_waitcnt lgkmcnt(0)
        v_readfirstlane_b32 s43, v{RCL+2}
        s_cmp_lg_u32 s43, 4
        s_cbranch_scc1 {lab}""")
        t3reads()
        k(f"s_bitset1_b32 s47, 2\n{lab}:")
    xunpack()
    t3try("f_t1")
    stamp(k, 6)
    k.c("================= phase B =================")
    k("f_z1:")
    LS = D3
    for bsel in range(2):
        Pq = L + 8 * bsel; Q = LS + 8 * bsel
        k(f"s_waitcnt vmcnt({2 if bsel == 0 else 0})")
        if bsel == 1: stamp(k, 7)
        for cc in range(4):
            for e in range(2): k(f"v_xor_b32 v{Q+2*cc+e}, v{Pq+4*e+cc}, v{EG+cc}")
        for cc in range(4):
            d = D + 16*bsel + 4*cc
            k(f"v_mfma_f32_16x16x16_f16 v[{d}:{d+3}], v[{T1+2*bsel}:{T1+2*bsel+1}], v[{Q+2*cc}:{Q+2*cc+1}], 0")
            for e in range(2):
                r = 2*cc + e
                if bsel == 0 and r == 0: k(f"v_xor_b32 v2, s44, v{Q}")
                else: k(f"v_bitop3_b32 v2, v2, v{Q+r}, s44 bitop3:0xf6")
    k(f"""v_and_b32 v2, s33, v2
    v_cmp_ne_u32 vcc, 0, v2
    s_cbranch_vccnz f_z1bad
    f_z1ok:""")
    for cc in range(4):
        for kdl in range(2):
            o = L + 4*cc + 2*kdl
            for bsel in range(2):
                d = D + 16*bsel + 4*cc + 2*kdl
                k(f"v_cvt_pk_f16_f32 v{o+bsel}, v{d}, v{d+1}")
            k(f"ds_write_b64 v{(A0, A1)[cc & 1]}, v[{o}:{o+1}] offset:{L_S + kdl*1024 + (cc>>1)*128}")
    stamp_val(k, 50, 83)
    k(f"""s_bitset1_b32 s47, 0
    s_mov_b32 s83, 0
    s_bitcmp1_b32 s47, 1
    s_cbranch_scc0 f_c1
    s_bitcmp1_b32 s47, 2
    s_cbranch_scc1 f_bar""")
    t3try("f_bar")
    k(f"""s_waitcnt lgkmcnt(0)
    s_bitcmp1_b32 s47, 2
    s_barrier
    s_cbranch_scc0 f_t3l
    f_t3d:""")
    stamp(k, 8)
    for n2l in range(4):
        k(f"ds_read_b128 v[{L+4*n2l}:{L+4*n2l+3}], v{(R0, R1)[n2l & 1]} offset:{L_S + n2l*256}")
    k(f"buffer_store_dwordx4 v[{PFR}:{PFR+3}], v{PG}, s[12:15], s54 offen sc1")
    for i in range(4): k(f"v_xor_b32 v{EG+i}, {ZMASK ^ CEN}, v{EG+i}")
    PPOS = E("PPOS", 2)
    PRG = 24
    def par_issue(fl="sc1"):
        k(f"buffer_load_dwordx4 v[{PRA}:{PRA+3}], v{PG}, s[12:15], s52 offen {fl}")
    if PPOS == 0: par_issue(ES("CFL", ""))
    def parb_issue(fl="sc1"):
        k(f"buffer_load_dwordx4 v[{PRB0}:{PRB0+3}], v{PG}, s[12:15], s41 offen {fl}")
        k(f"buffer_load_dwordx4 v[{PRC}:{PRC+3}], v{PG}, s[12:15], s40 offen {fl}")
    X = TB
    def s2(n):
        k(f"s_waitcnt lgkmcnt({3-n})")
        for part in range(2):
            d = D + 8*n + 4*part
            k(f"v_mfma_f32_16x16x32_f16 v[{d}:{d+3}], v[{L+4*n}:{L+4*n+3}], v[{T2+4*part}:{T2+4*part+3}], 0")
    def cv2(n):
        for i in range(4): k(f"v_cvt_pk_f16_f32 v{X+4*n+i}, v{D+8*n+i}, v{D+8*n+4+i}")
    def d1(n):
        for part in range(2):
            d = D3 + 8*n + 4*part
            k(f"v_mfma_f32_16x16x32_f16 v[{d}:{d+3}], v[{X+4*n}:{X+4*n+3}], v[{T3+8*n+4*part}:{T3+8*n+4*part+3}], 0")
    def cv3(n):
        for i in range(4): k(f"v_cvt_pk_f16_f32 v{L+4*i+n}, v{D3+8*n+i}, v{D3+8*n+4+i}")
        for i in range(4): k(f"v_bfi_b32 v{L+4*i+n}, s33, v{EG+n}, v{L+4*i+n}")
    for n in range(4): s2(n)
    k(f"v_mov_b32 v2, v{KF}\nv_xor_b32 v{EG+3}, v{KF}, v{EG+3}")
    for u in range(12, 16): k(f"ds_read_b128 v[{T4+4*u}:{T4+4*u+3}], v3 offset:{L_T4 + u*1024}")
    if PPOS == 1: par_issue(ES("CFL", ""))
    cv2(0); cv2(1); d1(0); cv2(2); d1(1); cv2(3); d1(2); d1(3)
    k("s_cmp_eq_u32 s16, 0\ns_cbranch_scc1 f_sb\nf_nsb:")
    if PPOS == 2: par_issue(ES("CFL", ""))
    for n in range(4): cv3(n)
    def zf_store(fl):
        for i in range(4):
            k(f"buffer_store_dwordx4 v[{L+4*i}:{L+4*i+3}], v{ZS}, s[12:15], s{74 + (i >> 1)} offen offset:{(i & 1)*2048} {fl}")
    k("s_cmp_lg_u32 s38, 0\ns_cbranch_scc1 f_slowst")
    zf_store(ES("ZST", "nt"))
    k("f_std:")
    stamp(k, 9)
    k.c("================= wait 2: modulation vectors into LDS =================")
    ZFL = ES("ZFL", "sc1 nt")
    k(f"s_mov_b32 s83, 0\ns_waitcnt vmcnt(4)\nf_pp:")
    chk_bytes(k, range(PRA, PRA + 4), D)
    k(f"""s_cbranch_vccnz f_ppbad
    f_ppok:""")
    stamp_val(k, 53, 83)
    stamp_val(k, 55, 38)
    k(f"""ds_write_b128 v{PS}, v[{PRA}:{PRA+3}]
    s_cmp_ge_u32 s16, 4
    s_cbranch_scc1 f_pw""")
    padd(k, D, PRA, PRA + 2)
    k(f"v_add_f32 v{D}, v{D}, v{D+1}")
    wave_reduce_to63(k, [D])
    k(f"""s_mov_b32 exec_lo, 0
    s_mov_b32 exec_hi, 0x80000000
    ds_write_b32 v{KW}, v{D} offset:64
    s_mov_b64 exec, -1
    f_pw:
    s_waitcnt lgkmcnt(0)""")
    stamp(k, 10)
    k("s_barrier")
    for j in range(4):
        k(f"buffer_load_dwordx4 v[{L+4*j}:{L+4*j+3}], v{ZL}, s[12:15], s{(28, 29, 50, 51)[j]} offen {ZFL}")
    GA_, GB_, VA, VB = 112, 128, 48, 64
    V_V, V_SB, V_G, V_GB, V_C1 = 0, 1, 2, 3, 4
    def pread(vec, base, row):
        return [f"ds_read_b128 v[{base+4*T}:{base+4*T+3}], v{(PA, PB)[row]} offset:{vec*4096 + (T, 3-T)[row]*1024}" for T in range(4)]
    Y, YN, TT, QP = 80, 96, 144, 28
    prq = [x for q in zip(pread(V_G, GA_, 0), pread(V_G, GB_, 1), pread(V_V, VA, 0), pread(V_V, VB, 1)) for x in q]
    NPR = E("NPR", 8)
    for x in prq[:NPR]: k(x)
    k(f"v_xor_b32 v{EG+3}, v2, v{EG+3}")
    for i in range(4): k(f"v_xor_b32 v{EG+i}, s44, v{EG+i}")
    FPF = 1 if FPJ else 0
    k(f"""v_bfe_u32 v20, v0, 3, 3
    v_mul_u32_u24 v20, 7168, v20
    v_and_b32 v{TT+7}, 7, v0
    v_min_u32 v{TT+7}, 6, v{TT+7}
    v_lshl_add_u32 v{TT+7}, v{TT+7}, 7, v20
    v_mov_b32 v20, {L_KEY + 64}
    v_lshrrev_b32 v23, 5, v0
    v_mov_b32 v22, 0xffffff00
    v_mov_b32 v21, 0x20000
    s_mov_b64 s[70:71], 1
    s_mov_b32 s83, 1""")
    ZM = (72, 74, 78, 36)
    def st4(dst, T, j):
        cc = "0" if j == 0 else f"v[{dst+4*T}:{dst+4*T+3}]"
        b = T4 + 16*T + 4*j
        k(f"v_mfma_f32_16x16x32_f16 v[{dst+4*T}:{dst+4*T+3}], v[{L+4*j}:{L+4*j+3}], v[{b}:{b+3}], {cc}")
    def zstrip(j):
        for i in range(4): k(f"v_xor_b32 v{L+4*j+i}, v{L+4*j+i}, v{EG+i}")
    def zchk(j):
        r = L + 4*j; t_ = TT + j
        return [f"v_bitop3_b32 v{t_}, v{r+3}, v21, s44 bitop3:0x56",
                f"v_bitop3_b32 v{t_}, v{t_}, v{r}, s44 bitop3:0xf6",
                f"v_bitop3_b32 v{t_}, v{t_}, v{r+1}, s44 bitop3:0xf6",
                f"v_bitop3_b32 v{t_}, v{t_}, v{r+2}, s44 bitop3:0xf6",
                f"v_and_b32 v{t_}, s33, v{t_}",
                f"v_cmp_ne_u32 s[{ZM[j]}:{ZM[j]+1}], 0, v{t_}"]
    zalt = [f"v_bitop3_b32 v2, v{L+3}, v{L+7}, v21 bitop3:0x80", f"v_bitop3_b32 v2, v2, v{L+11}, v{L+15} bitop3:0x80", "v_cmp_eq_u32 vcc, 0, v2"]
    k("""s_mov_b32 s83, 0
    s_mov_b64 s[72:73], -1
    s_mov_b64 s[74:75], -1
    s_mov_b64 s[78:79], -1
    s_mov_b64 s[36:37], -1
    s_branch f_zp
    f_zr:""")
    k.c("lanes whose piece is not there yet fetch it again")
    for j in range(4):
        k(f"s_mov_b64 exec, s[{ZM[j]}:{ZM[j]+1}]")
        k(f"buffer_load_dwordx4 v[{L+4*j}:{L+4*j+3}], v{ZL}, s[12:15], s{(28, 29, 50, 51)[j]} offen {ZFL}")
    k(f"""f_zp:
    s_add_u32 s83, s83, 1
    s_cmp_lt_u32 s83, {SPIN}
    s_cselect_b64 s[68:69], -1, 0""")
    for j in range(4):
        k(f"s_mov_b64 exec, s[{ZM[j]}:{ZM[j]+1}]\ns_waitcnt vmcnt({3-j})")
        zstrip(j)
        for x in zchk(j): k(x)
        if j == 2: k("s_or_b64 s[64:65], s[72:73], s[74:75]")
    k("s_mov_b64 exec, -1")
    for x in zalt: k(x)
    k(f"""s_or_b64 s[66:67], s[78:79], s[36:37]
    s_or_b64 s[64:65], s[64:65], s[66:67]
    s_and_b64 s[64:65], s[64:65], s[68:69]
    s_cbranch_scc1 f_zr
    s_cbranch_vccnz f_rare
    f_zf:""")
    stamp(k, 11)
    k.c("================= phase C =================")
    rest = prq[NPR:] + [f"ds_read2_b32 v[{QP}:{QP+1}], v20 offset0:1 offset1:3", f"ds_read2_b32 v[{QP+2}:{QP+3}], v20 offset0:5 offset1:7"]
    for T in range(2):
        for j in range(4):
            st4(Y, T, j)
            for x in rest[:2]: k(x)
            rest = rest[2:]
    assert not rest
    k("f_zfok:")
    if 51 in ST: k("s_sub_u32 s83, s83, 1")
    stamp_val(k, 51, 83)
    PBJ = E("PBJ", 0)
    if not PBJ: parb_issue(ES("CFL", ""))
    def fpf(FPN=E("FPF", 0), off=E("FPO", 0)):
        msk = (1 << (8 * FPN)) - 1
        k.c("help for the weight stream: last rows of both K halves of w_up, this die's columns")
        k(f"""v_bfe_u32 v26, v0, 3, 3
        v_mul_u32_u24 v26, 7168, v26
        v_and_b32 v27, 7, v0
        v_min_u32 v27, 6, v27
        v_lshl_add_u32 v26, v27, 7, v26
        s_lshl_b32 s36, s35, 3
        s_add_u32 s36, s36, s16
        s_lshr_b32 s37, s36, 6
        s_and_b32 s36, s36, 63
        s_mul_i32 s36, s36, {FPN}
        s_lshl_b32 s37, s37, 9
        s_add_u32 s36, s36, s37
        s_add_u32 s36, s36, {512 - 64*FPN - off}
        s_mul_i32 s36, s36, 7168
        s_mul_i32 s37, s34, 896
        s_add_u32 s36, s36, s37""")
        k(f"s_mov_b32 exec_lo, {msk & 0xffffffff}\ns_mov_b32 exec_hi, {msk >> 32}")
        k("buffer_load_dword v25, v26, s[20:23], s36 offen\ns_mov_b64 exec, -1")
    FPOS = 1
    k(f"s_waitcnt lgkmcnt({18 - NPR if NPR >= 8 else 0})")
    k("s_cmp_eq_u32 s30, 0\ns_cbranch_scc1 f_sp")
    RQ = 104
    tA, tB = TT, TT + 8
    def xa(T):
        for h in range(2): pfma(k, XA2 + 4*T + 2*h, GA_ + 4*T + 2*h, Y + 4*T + 2*h, XA2 + 4*T + 2*h)
    def xb(T):
        for s_ in range(1, 4): k(f"v_fmac_f32 v{XB2+4*T+s_}, v{GB_+4*T+s_}, v{Y+4*T+4-s_}")
    def bperm(T):
        k(f"v_cndmask_b32 v{YN+4+T}, v{Y+4*T}, v{Y+4*((T+1)&3)}, s[70:71]")
        k(f"ds_bpermute_b32 v{YN+T}, v{BP}, v{YN+4+T}")
    def acc(X2, V_, t, i, first):
        x = X2 + 2*i
        if first:
            pmul(k, t + 2, x, x); pmul(k, t + 4, x, V_ + 2*i)
        else:
            pfma(k, t + 2, x, x, t + 2); pfma(k, t + 4, x, V_ + 2*i, t + 4)
    def s1acc(X2, t, lst):
        pass
    st4(Y, 2, 0); xa(0); st4(Y, 2, 1); xb(0); st4(Y, 2, 2)
    acc(XA2, VA, tA, 0, True); st4(Y, 2, 3); acc(XA2, VA, tA, 1, False)
    st4(Y, 3, 0); bperm(0); xa(1); st4(Y, 3, 1); xb(1); st4(Y, 3, 2)
    acc(XA2, VA, tA, 2, False); st4(Y, 3, 3); acc(XA2, VA, tA, 3, False)
    acc(XB2, VB, tB, 1, True); acc(XB2, VB, tB, 3, False)
    padd(k, tA, XA2, XA2 + 2); padd(k, tB, XB2 + 2, XB2 + 6)
    k("s_waitcnt lgkmcnt(1)")
    bperm(1); xa(2); xb(2)
    padd(k, tA, tA, XA2 + 4); padd(k, tA, tA, XA2 + 6)
    acc(XA2, VA, tA, 4, False); acc(XA2, VA, tA, 5, False); acc(XB2, VB, tB, 5, False)
    bperm(2); bperm(3); xa(3); xb(3)
    C1A, C1B, SBA, SBB, GBA, GBB = 192, 208, 224, 240, 112, 128
    acc(XA2, VA, tA, 6, False); acc(XA2, VA, tA, 7, False); acc(XB2, VB, tB, 7, False)
    for i in range(4, 8): padd(k, tA, tA, XA2 + 2*i)
    padd(k, tB, tB, XB2 + 10); padd(k, tB, tB, XB2 + 14)
    k("s_waitcnt lgkmcnt(0)")
    for T in range(4): k(f"v_fmac_f32 v{XB2+4*T}, v{GB_+4*T}, v{YN+T}")
    for T in range(4):
        acc(XB2, VB, tB, 2*T, False); padd(k, tB, tB, XB2 + 4*T)
    k("f_join:")
    if PBJ: parb_issue(ES("CFL", ""))
    padd(k, QP, QP, QP + 2)
    if FPJ:
        k("s_mov_b64 exec, s[48:49]")
        k(f"buffer_load_dword v{TT+6}, v{TT+7}, s[20:23], s55 offen\ns_mov_b64 exec, -1")
    stamp(k, 12)
    def stage_b(cnt):
        k(f"s_mov_b32 s83, 0\ns_waitcnt vmcnt({cnt})\nf_pb:")
        chk_bytes(k, list(range(PRB0, PRB0 + 4)) + list(range(PRC, PRC + 4)), 2)
        k(f"""{"" if E("NOCHK", 0) & 4 else "s_cbranch_vccnz f_pbbad"}
        f_pbok:""")
        stamp_val(k, 54, 83)
        k(f"""        ds_write_b128 v{PS}, v[{PRB0}:{PRB0+3}] offset:4096
        s_cmp_ge_u32 s16, 4
        s_cbranch_scc1 f_pbx
        ds_write_b128 v{PS}, v[{PRC}:{PRC+3}] offset:16384
        f_pbx:""")
    PBPOS = E("PBPOS", 1)
    if PBPOS == 0: stage_b(1 if FPF else 0)
    elif not PBJ: k(f"s_cmp_lg_u32 s16, 0\ns_cbranch_scc1 f_ngo\ns_waitcnt vmcnt({1 if FPF else 0})")
    k.c("GO hint from one workgroup per replica")
    GOPOS = E("GOPOS", 1)
    def gohint(lab):
        k(f"""s_or_b32 s42, s35, s16
        s_cmp_lg_u32 s42, 0
        s_cbranch_scc1 {lab}
        v_mov_b32 v2, s32
        s_mov_b64 exec, 1
        buffer_store_dword v2, v{FA}, s[12:15], s81 offen offset:2048 sc1
        s_mov_b64 exec, -1
        {lab}:""")
    if GOPOS == 0: gohint("f_ngo")
    else: k("f_ngo:")
    rows = ((XA2, VA, tA, 64, C1A, SBA, GBA, XA_), (XB2, VB, tB, 66, C1B, SBB, GBB, XB_))
    for n in range(2):
        for j in range(3): k(f"v_add_f32 v{RQ+4*n+j}, v{rows[n][2]+2*j}, v{rows[n][2]+2*j+1}")
    def red(js):
        for j in js: k(f"v_permlane32_swap_b32 v{RQ+j}, v{RQ+4+j}")
        for j in js: k(f"v_add_f32 v{RQ+j}, v{RQ+j}, v{RQ+4+j}")
        regs = [RQ + j for j in js]
        row_allreduce(k, regs)
        for r in regs: k(f"v_add_f32_dpp v{r}, v{r}, v{r} row_bcast:15 row_mask:0xa bank_mask:0xf")
    k(f"v_add_f32 v{QP}, v{QP}, v{QP+1}")
    red((0, 1, 2))
    k.c("lanes 31 / 63 hold rows A / B")
    k(f"""v_mul_f32 v{RQ}, s46, v{RQ}
    v_mul_f32 v{RQ+1}, s46, v{RQ+1}
    v_mul_f32 v{RQ+4}, v{RQ}, v{RQ}
    v_fma_f32 v{RQ+2}, -v{RQ}, v{QP}, v{RQ+2}
    v_sub_f32 v{RQ+1}, v{RQ+1}, v{RQ+4}
    v_mul_f32 v{RQ+5}, 4.0, v{RQ+1}
    v_cmp_gt_f32 vcc, v{RQ+4}, v{RQ+5}
    s_or_b32 s42, vcc_lo, vcc_hi
    s_bitcmp1_b32 s42, 31
    s_cbranch_scc1 f_slow2
    f_var2:""")
    round_bf16(k, RQ + 1, RQ + 1)
    k(f"v_add_f32 v{RQ+1}, {f32(1e-5)}, v{RQ+1}")
    round_bf16(k, RQ + 1, RQ + 1)
    k(f"v_sqrt_f32 v{RQ+1}, v{RQ+1}")
    round_bf16(k, RQ + 1, RQ + 1)
    k(f"""v_rcp_f32 v{RQ+1}, v{RQ+1}
    s_mov_b32 s42, 0x80000000
    s_mov_b32 exec_lo, s42
    s_mov_b32 exec_hi, s42
    v_mul_f32 v{RQ+2}, v{RQ+2}, v{RQ+1}
    v_ashrrev_i32 v{RQ+4}, 31, v{RQ+2}
    v_or_b32 v{RQ+4}, s42, v{RQ+4}
    v_xor_b32 v{RQ+2}, v{RQ+2}, v{RQ+4}
    v_and_or_b32 v{RQ+2}, v{RQ+2}, v22, v23
    ds_write_b32 v{KW}, v{RQ+2}
    s_mov_b64 exec, -1""")
    for n in range(2):
        k(f"v_readlane_b32 s{60+n}, v{RQ+2}, {31+32*n}")
        k(f"v_readlane_b32 s{64+2*n}, v{RQ}, {31+32*n}")
        k(f"v_readlane_b32 s{65+2*n}, v{RQ+1}, {31+32*n}")
    k("s_waitcnt lgkmcnt(0)")
    stamp(k, 13)
    KV = 21
    k(f"""s_barrier
    ds_read_b32 v{KV}, v{KR_}
    s_lshl_b32 s42, s3, 1
    s_movk_i32 s43, 0xff00
    v_mov_b32 v30, s32
    v_mov_b32 v31, s32
    s_cmp_lg_u32 s16, 0
    s_waitcnt lgkmcnt(0)
    s_cbranch_scc1 f_nkey
    s_setprio 3
    v_mov_b32 v28, v{KV}""")
    row_allreduce(k, [28], "v_max_u32")
    k(f"""v_cmp_eq_u32 vcc, v28, v{KV}
    v_cndmask_b32_e64 v29, v{KV}, 0, vcc
    v_and_b32 v28, s43, v28""")
    row_allreduce(k, [29], "v_max_u32")
    k(f"""v_or_b32 v28, s42, v28
    v_and_b32 v29, s43, v29
    v_or3_b32 v29, v29, s42, 1
    s_mov_b64 exec, 0xff
    buffer_store_dwordx4 v[28:31], v{FA}, s[12:15], s80 offen sc1
    s_mov_b64 exec, -1
    s_setprio 0
    f_nkey:""")
    if GOPOS == 1: gohint("f_ng1")
    if PBPOS == 1:
        k(f"s_cmp_eq_u32 s16, 0\ns_cbranch_scc1 f_w0\ns_waitcnt vmcnt({1 if FPF else 0})\nf_w0:")
        if PBJ: k(f"s_waitcnt vmcnt({2 if FPF else 1})")
        stage_b(63)
        k("s_waitcnt lgkmcnt(0)\ns_barrier")
    if GOPOS == 2: gohint("f_ng2")
    if E("FPF", 0) and FPOS == 1: fpf()
    HP = 80; OUTR = (32, 40)
    def h2row(n):
        X2, V_, t, sr, C1, SB, GB, XL = rows[n]
        for x in pread(V_C1, C1, n) + pread(V_SB, SB, n) + pread(V_GB, GB, n): k(x)
        for i in range(8): psub_s(k, V_ + 2*i, X2 + 2*i, sr)
        k("s_waitcnt lgkmcnt(8)")
        for i in range(8): pmul(k, V_ + 2*i, V_ + 2*i, C1 + 2*i)
        k("s_waitcnt lgkmcnt(4)")
        for i in range(8): pfma_s(k, V_ + 2*i, V_ + 2*i, sr + 1, SB + 2*i)
    def relayout(n, src, dst):
        XL = rows[n][7]
        for T in range(4):
            for h in range(2): k(f"v_cvt_pk_bf16_f32 v{HP+2*T+h}, v{src+4*T+2*h}, v{src+4*T+2*h+1}")
            k(f"ds_write_b64 v{XL}, v[{HP+2*T}:{HP+2*T+1}] offset:{512*(T, 3-T)[n]}")
        for j in range(2):
            k(f"ds_read_b128 v[{dst+4*j}:{dst+4*j+3}], v{NAT} offset:{n*2048 + j*1024}")
    def outval(n, cnt):
        X2, V_, t, sr, C1, SB, GB, XL = rows[n]
        k(f"s_waitcnt lgkmcnt({cnt})")
        for i in range(8): pfma(k, X2 + 2*i, GB + 2*i, V_ + 2*i, X2 + 2*i)
    k("v_mov_b32 v20, 0")
    for n in range(2):
        XO = OUTR[n]; HO = 88
        k(f"""s_movk_i32 s{62+n}, 0x100
        v_cmp_lt_u32 vcc, s{60+n}, v{KV}
        s_and_b32 s42, vcc_lo, 0xffff
        s_bcnt1_i32_b32 s42, s42
        s_cmp_ge_u32 s42, 2
        s_cbranch_scc1 f_nc{n}
        s_setprio 2
        s_lshl_b32 s{62+n}, s3, 1
        s_add_u32 s{62+n}, s{62+n}, s42
        s_lshl_b32 s42, s{62+n}, 12
        s_add_u32 s42, s42, {WS_SLOT}
        s_lshl_b32 s43, s{62+n}, 3
        s_add_u32 s43, s43, {WS_TT}""")
        h2row(n)
        relayout(n, rows[n][1], HO)
        outval(n, 6)
        k("s_waitcnt lgkmcnt(0)")
        for i in range(8): k(f"v_min_u32 v{HO+i}, -2, v{HO+i}")
        for j in range(2):
            k(f"buffer_store_dwordx4 v[{HO+4*j}:{HO+4*j+3}], v3, s[12:15], s42 offen offset:{j*1024} sc1")
        relayout(n, rows[n][0], XO)
        k("s_waitcnt lgkmcnt(0)")
        for i in range(8): k(f"v_min_u32 v{XO+i}, -2, v{XO+i}")
        for j in range(2):
            k(f"buffer_store_dwordx4 v[{XO+4*j}:{XO+4*j+3}], v3, s[12:15], s42 offen offset:{2048+j*1024} sc1")
        k(f"""v_mov_b32 v30, s{30+n}
        s_mov_b64 exec, 1
        buffer_store_dwordx2 v[30:31], v20, s[12:15], s43 offen sc1
        s_mov_b64 exec, -1
        s_setprio 0
        f_nc{n}:""")
    stamp(k, 14)
    if GOPOS == 3: gohint("f_ng3")
    if E("FPG", 0):
        k("s_barrier")
        fpf(E("FPG", 0), 0)
    for n in range(2):
        k(f"s_cmp_lt_u32 s{62+n}, 0x100\ns_cbranch_scc1 f_op{n}")
        h2row(n); outval(n, 0); relayout(n, rows[n][0], OUTR[n])
        k(f"f_op{n}:")
    if E("ZEV", 0) == 1:
        for j in range(4):
            if E("ZPACE", 0): k(f"s_waitcnt vmcnt({E('ZPACE', 0)-1})")
            k(f"buffer_load_dwordx4 v[{48+4*j}:{51+4*j}], v{ZL}, s[12:15], s{(28, 29, 50, 51)[j]} offen sc1 nt")
    OMODE = E("OMODE", 0); OPACE = E("OPACE", 0)
    def outst(n):
        for j in range(0 if E("NOOUT", 0) else 2):
            if OPACE: k(f"s_waitcnt vmcnt({OPACE-1})")
            k(f"buffer_store_dwordx4 v[{OUTR[n]+4*j}:{OUTR[n]+4*j+3}], v3, s[24:27], s{18+n} offen offset:{j*1024} {ES('OFL', 'sc1')}")
    if OMODE:
        if E("OSL", 0): k(f"s_sleep {E('OSL', 0)}")
        k("s_waitcnt lgkmcnt(0)")
        for n in range(OMODE):
            k(f"s_cmp_lt_u32 s{62+n}, 0x100\ns_cbranch_scc1 f_oq{n}")
            outst(n)
            k(f"f_oq{n}:")
    k.c("rows are written once the selection is known; the two selected rows are written by the reducers")
    k(f"""v_mov_b32 v21, {L_KEY+104}
    s_cmp_lg_u32 s16, 0
    s_cbranch_scc1 f_nrs""")
    if E("FKEY", 0):
        k(f"s_sleep {E('FKS', 8)}")
        poll_keys(k, "f_kq", 96, 81, 2)
        top2(k, 96, 40, 41, 24)
        k("s_and_b32 s40, s40, 0xff\ns_and_b32 s41, s41, 0xff")
    else:
        res_wait(k, "f_rs", 81, 20, 28, E("RSL", 4))
    k(f"""v_mov_b32 v28, s40
    v_mov_b32 v29, s41
    ds_write_b64 v21, v[28:29]
    f_nrs:
    s_waitcnt lgkmcnt(0)
    s_barrier
    ds_read_b64 v[28:29], v21
    s_waitcnt lgkmcnt(0)
    v_readfirstlane_b32 s40, v28
    v_readfirstlane_b32 s41, v29""")
    for n in range(2):
        if n < OMODE: k(f"s_cmp_ge_u32 s{62+n}, 0x100\ns_cbranch_scc1 f_e{n}")
        k(f"""s_cmp_eq_u32 s{62+n}, s40
        s_cbranch_scc1 f_e{n}
        s_cmp_eq_u32 s{62+n}, s41
        s_cbranch_scc1 f_e{n}""")
        outst(n)
        k(f"f_e{n}:")
    if E("ZEV", 0) == 2:
        for j in range(4):
            k(f"buffer_load_dwordx4 v[{48+4*j}:{51+4*j}], v{ZL}, s[12:15], s{(28, 29, 50, 51)[j]} offen sc1 nt")
    stamp_out(k)
    k("s_endpgm")
    k.c("---- retries ----")
    k("f_t3l:")
    t3reads()
    k("s_branch f_t3d")
    k(f"""f_c1bad:
    s_add_u32 s83, s83, 1
    s_cmp_ge_u32 s83, {SPIN}
    s_cbranch_scc1 f_c1ok
    s_bitcmp1_b32 s47, 0
    s_cbranch_scc0 f_c1b2
    s_sleep {E('SLC', 3)}
    f_c1b2:""")
    cap_issue("f_ci1")
    k(f"""s_bitcmp1_b32 s47, 0
    s_cbranch_scc0 f_s1
    s_waitcnt vmcnt(0)
    s_branch f_c1
    f_z1bad:
    s_add_u32 s83, s83, 1
    s_cmp_ge_u32 s83, {SPIN}
    s_cbranch_scc1 f_z1ok
    s_sleep {E('SLR1', 4)}""")
    z1_issue()
    k(f"""s_branch f_z1
    f_ppbad:
    s_add_u32 s83, s83, 1
    s_cmp_ge_u32 s83, {SPIN}
    s_cbranch_scc1 f_ppok
    s_sleep {E('SLP2', 3)}""")
    par_issue()
    k(f"""s_waitcnt vmcnt(0)
    s_branch f_pp
    f_pbbad:
    s_add_u32 s83, s83, 1
    s_cmp_ge_u32 s83, {SPIN}
    s_cbranch_scc1 f_pbok
    s_sleep {E('SLP2', 3)}""")
    parb_issue()
    k("s_waitcnt vmcnt(0)\ns_branch f_pb")
    k.c("---- placement fallback: write-through stores ----")
    k("f_slowst:")
    zf_store("sc1")
    k("s_branch f_std")
    k.c("---- rare: the producers use different scales ----")
    k("f_rare:")
    for j in range(4): k(f"v_or_b32 v{L+4*j+3}, v21, v{L+4*j+3}")
    k(f"""    v_bfe_u32 v{TT}, v0, 4, 2
    v_lshlrev_b32 v{TT}, 3, v{TT}""")
    for x in prq[NPR:] + [f"ds_read2_b32 v[{QP}:{QP+1}], v20 offset0:1 offset1:3", f"ds_read2_b32 v[{QP+2}:{QP+3}], v20 offset0:5 offset1:7"]: k(x)
    k("s_mov_b32 s83, 0\ns_waitcnt lgkmcnt(0)\nf_rz:")
    for j in range(4):
        k(f"buffer_load_dwordx2 v[{TT+8+2*j}:{TT+9+2*j}], v{TT}, s[12:15], s77 offen offset:{32*j} sc1")
    k(f"s_waitcnt vmcnt(0)\nv_xor_b32 v2, s32, v{TT+8}")
    for j in range(1, 4): k(f"v_bitop3_b32 v2, v2, v{TT+8+2*j}, s32 bitop3:0xf6")
    k(f"""v_cmp_ne_u32 vcc, 0, v2
    s_cbranch_vccz f_rzx
    {spin("f_rz", 2)}
    f_rzx:""")
    for j in range(4): k(f"v_mov_b32 v{TT+4+j}, v{TT+9+2*j}")
    k(f"""    v_max_i32 v{TT+1}, v{TT+4}, v{TT+5}
    v_max3_i32 v{TT+1}, v{TT+1}, v{TT+6}, v{TT+7}""")
    for g in range(4): k(f"v_readlane_b32 s{64+g}, v{TT+1}, {16*g}")
    k(f"""s_max_i32 s64, s64, s65
    s_max_i32 s66, s66, s67
    s_max_i32 s64, s64, s66
    s_add_i32 s66, s64, 125
    s_lshl_b32 s66, s66, 23
    s_nop 0""")
    for j in range(4):
        k(f"v_subrev_u32 v{TT+4+j}, s64, v{TT+4+j}")
        k(f"v_ldexp_f32 v{TT+4+j}, 1.0, v{TT+4+j}")
        k(f"v_cvt_pk_f16_f32 v{TT+4+j}, v{TT+4+j}, v{TT+4+j}")
    for r in range(16): k(f"v_pk_mul_f16 v{L+r}, v{L+r}, v{TT+4+(r>>2)}")
    for i in range(16): pmul_s(k, GA_ + 2*i, GA_ + 2*i, 66)
    for T in range(2):
        for j in range(4): st4(Y, T, j)
    k("s_nop 7\ns_branch f_zfok")
    k.c("---- rare: two-pass variance / router score for LN2 ----")
    k("f_slow2:")
    k.c("here the bf16 rounding of x and of the mean matters: follow the reference's rounding steps")
    for X2, V_, t, sr, C1, SB, GB, XL in rows:
        for i in range(8): rb2(k, X2 + 2*i, t)
        for i in range(1, 8): padd(k, t, X2 if i == 1 else t, X2 + 2*i)
    for n in range(2): k(f"v_add_f32 v{RQ+4*n}, v{rows[n][2]}, v{rows[n][2]+1}")
    red((0,))
    k(f"v_mul_f32 v{RQ+3}, s46, v{RQ}")
    round_bf16(k, RQ, RQ + 3)
    k(f"v_sub_f32 v{RQ+3}, v{RQ+3}, v{RQ}")
    for n in range(2): k(f"v_readlane_b32 s{64+2*n}, v{RQ}, {31+32*n}")
    for n, (X2, V_, t, sr, C1, SB, GB, XL) in enumerate(rows):
        Dd = (80, 32)[n]
        for i in range(8): psub_s(k, Dd + 2*i, X2 + 2*i, sr)
        for i in range(8): acc(Dd, V_, t, i, i == 0)
    for n in range(2):
        for j in (1, 2): k(f"v_add_f32 v{RQ+4*n+j}, v{rows[n][2]+2*j}, v{rows[n][2]+2*j+1}")
    red((1, 2))
    k(f"""v_mul_f32 v{RQ+1}, s46, v{RQ+1}
    v_fma_f32 v{RQ+1}, -v{RQ+3}, v{RQ+3}, v{RQ+1}
    v_max_f32 v{RQ+1}, 0, v{RQ+1}
    s_branch f_var2""")
    k.c("---- rare: |mean| >> std, recompute the variance in two passes ----")
    k("f_slowvar:")
    U = 100
    k(f"v_lshlrev_b32 v{R+6}, 16, v{MB}")
    k(f"v_readlane_b32 s68, v{R+6}, 31\nv_readlane_b32 s70, v{R+6}, 63")
    for jj in range(2):
        sr = 68 + 2 * jj
        for i in range(8):
            unpack_bf16(k, U, XW + jj * 8 + i)
            k(f"v_pk_add_f32 {P(U)}, {P(U)}, s[{sr}:{sr+1}] op_sel_hi:[1,0]")
            if i == 0: pmul(k, U + 2, U, U)
            else: pfma(k, U + 2, U, U, U + 2)
        k(f"v_add_f32 v{S+2+jj}, v{U+2}, v{U+3}")
    k(f"v_add_f32 v{R+6}, v{R+6}, v{S}")
    red1((2,))
    k(f"""v_mul_f32 v{S+2}, s46, v{S+2}
    v_fma_f32 v{S+2}, -v{R+6}, v{R+6}, v{S+2}
    v_max_f32 v{S+2}, 0, v{S+2}
    s_branch f_var""")
    k.c("---- group 0, wave 0: the shift vector enters the row 0 accumulators ----")
    k("f_sa:\ns_add_u32 s69, s69, %d" % (6 << 23))
    t = D
    pick(CP + 8)
    k(f"""v_mul_f32 v{CP+8}, s69, v{CP+8}
    v_and_b32 v{t+4}, 15, v0
    v_cvt_pk_f16_f32 v{t}, v{CP+8}, v{CP+8}
    v_cmp_eq_u32 vcc, 0, v{t+4}
    v_mov_b32 v{t+6}, 0x3c00
    v_mov_b32 v{t+7}, 0xbc000000
    v_cndmask_b32 v{t+6}, 0, v{t+6}, vcc
    v_cndmask_b32 v{t+7}, 0, v{t+7}, vcc""")
    for i in range(4): k(f"v_mov_b32_dpp v{BC+i}, v{t} quad_perm:[{i},{i},{i},{i}] {DPPM}")
    SO = t + 24
    for part in range(2):
        for i in range(4): k(f"v_pk_mul_f16 v{SO+4*part+i}, v{t+6+part}, v{BC+i}")
    for part in range(2):
        k(f"v_mfma_f32_16x16x32_f16 v[{CP+4*part}:{CP+4*part+3}], v[{SO+4*part}:{SO+4*part+3}], v[{TB}:{TB+3}], 0")
    k(f"""s_lshl_b32 s70, s16, 7
    v_add_u32 v{t+4}, s70, v{KR_}
    s_mov_b64 exec, 0xffff
    ds_write2_b32 v{t+4}, v{CP}, v{CP+4} offset0:0 offset1:16
    s_mov_b64 exec, -1
    s_branch f_nsa
    f_sb:""")
    k.lines = [l.replace(f"v_add_u32 v{t+4}, s70, v{KR_}", f"v_add3_u32 v{t+4}, s70, v{KR_}, v{t+5}") for l in k.lines]
    i0 = max(i for i, l in enumerate(k.lines) if "v_add3_u32" in l)
    k.lines.insert(i0, f"    v_mov_b32 v{t+5}, {L_K + 16 - L_KEY}")
    k(f"""v_mov_b32 v{D}, s32
    v_mov_b32 v{D+1}, s61
    v_mov_b32 v{D+2}, 0
    s_mov_b64 exec, 1
    buffer_store_dwordx2 v[{D}:{D+1}], v{D+2}, s[12:15], s79 offen sc1
    s_mov_b64 exec, -1
    s_cmp_lg_u32 s34, 0
    s_cbranch_scc1 f_sb2
    s_mov_b64 exec, 0xffff""")
    for u in range(8): k(f"ds_read_b32 v{D+8+u}, v{KR_} offset:{L_K + 16 - L_KEY + u*64}")
    k("s_waitcnt lgkmcnt(0)")
    for u in range(8): k(f"v_add_f32 v{D3+4*u}, v{D3+4*u}, v{D+8+u}")
    k("s_mov_b64 exec, -1\nf_sb2:")
    k("s_branch f_nsb")
    k.c("---- rows 0 and 1024 travel as one complex row ----")
    k("f_sp:\ns_waitcnt lgkmcnt(0)")
    YI, YM, YE = 96, 32, 152
    for T in range(2, 4):
        for j in range(4): st4(Y, T, j)
    for r in range(16): k(f"v_pk_mul_f16 v{L+r}, v{L+r}, 1.0 op_sel:[1,0] op_sel_hi:[0,0] neg_hi:[1,0]")
    for T in range(4):
        for j in range(4): st4(YI, T, j)
    k(f"""v_subrev_u32 v2, s45, v{XA_}
    v_lshlrev_b32 v2, 1, v2
    v_add_u32 v20, s45, v2
    s_add_u32 s42, s45, 1008
    v_sub_u32 v21, s42, v2""")
    k.c("v20: own block (f32, natural order), v21: mirror block")
    for T in range(4): k(f"ds_write_b128 v20, v[{Y+4*T}:{Y+4*T+3}] offset:{1024*T}")
    for T in range(4):
        k(f"v_sub_u32 v{YE+4+T}, {4096-1024*T}, v2\nv_and_b32 v{YE+4+T}, 4095, v{YE+4+T}\nv_add_u32 v{YE+4+T}, s45, v{YE+4+T}")
    for T in range(4): k(f"ds_read_b128 v[{YM+4*T}:{YM+4*T+3}], v21 offset:{1024*(3-T)}")
    for T in range(4): k(f"ds_read_b32 v{YE+T}, v{YE+4+T}")
    k("s_waitcnt lgkmcnt(0)")
    for T in range(4):
        k(f"v_add_f32 v{Y+4*T}, v{Y+4*T}, v{YE+T}")
        for i in range(1, 4): k(f"v_add_f32 v{Y+4*T+i}, v{Y+4*T+i}, v{YM+4*T+4-i}")
    for T in range(4): xa(T)
    for T in range(4): k(f"ds_write_b128 v20, v[{YI+4*T}:{YI+4*T+3}] offset:{1024*T}")
    for T in range(4):
        k(f"v_add_u32 v{YE+4+T}, {1024*T+16}, v2\nv_and_b32 v{YE+4+T}, 4095, v{YE+4+T}\nv_add_u32 v{YE+4+T}, s45, v{YE+4+T}")
    for T in range(4): k(f"ds_read_b128 v[{YM+4*T}:{YM+4*T+3}], v21 offset:{1024*(3-T)}")
    for T in range(4): k(f"ds_read_b32 v{YE+T}, v{YE+4+T}")
    k("s_waitcnt lgkmcnt(0)")
    for T in range(4):
        k(f"v_add_f32 v{YM+4*T}, v{YM+4*T}, v{YE+T}")
        for s_ in range(1, 4): k(f"v_add_f32 v{YM+4*T+s_}, v{YM+4*T+s_}, v{YI+4*T+4-s_}")
    for i in range(8): pfma(k, XB2 + 2*i, GB_ + 2*i, YM + 2*i, XB2 + 2*i)
    for X2, V_, t_ in ((XA2, VA, tA), (XB2, VB, tB)):
        for i in range(8): acc(X2, V_, t_, i, i == 0)
        for i in range(1, 8): padd(k, t_, X2 if i == 1 else t_, X2 + 2*i)
    k("s_branch f_join")

class VM:
    def __init__(self, k): self.k = k; self.q = []
    def add(self, tag, n=1): self.q += [tag] * n
    def wait(self, tag, extra=""):
        idx = max(i for i, t in enumerate(self.q) if t == tag)
        n = len(self.q) - 1 - idx
        self.k(f"s_waitcnt vmcnt({n}) {extra}".strip())
        self.q = self.q[idx + 1:]

def role_G(k):
    L_SI = 131072; L_H = 131072 + 512; L_A = L_H + 2048
    k("g_start:")
    nonce_issue(k, 6)
    srd(k, 44, 20, 2048)
    k(f"""v_and_b32 v6, 127, v0
    v_lshlrev_b32 v6, 1, v6
    s_lshl_b32 s19, s34, 8
    buffer_load_ushort v110, v6, s[44:47], s19 offen""")
    k.c("s35 = mm ; s64 = cluster ; s65 = kq ; s66 = 1 for X ; s40 = ks")
    k(f"""s_and_b32 s65, s35, 1
    s_lshr_b32 s40, s35, 1
    s_mul_i32 s64, s34, 7
    s_add_u32 s64, s64, s40
    s_cmp_ge_u32 s35, 14
    s_cselect_b32 s66, 1, 0
    s_mov_b32 s40, s34
    v_bfe_u32 v5, v0, 5, 1
    v_lshlrev_b32 v5, 3, v5
    v_bfe_u32 v9, v0, 3, 2
    v_add_u32 v5, v5, v9
    v_lshlrev_b32 v9, 1, v7
    v_xor_b32 v9, v9, v0
    v_and_b32 v9, 7, v9
    v_lshlrev_b32 v9, 4, v9
    s_movk_i32 s42, 7168
    v_mad_u32_u24 v5, v5, s42, v9
    v_mov_b32 v104, -1
    v_mov_b32 v105, -1
    v_mov_b32 v106, -1
    v_mov_b32 v107, -1
    v_mov_b32 v14, 0
    s_lshl_b32 s38, s64, 12
    s_lshl_b32 s42, s16, 9
    s_add_u32 s38, s38, s42
    s_mul_i32 s42, s65, {WS_XB - WS_XA}
    s_add_u32 s38, s38, s42
    s_add_u32 s38, s38, {WS_XA}""")
    srd(k, 12, 6, WS_SIZE)
    if E("TOUCH", 1):
        k.c("first touch of the small hand-off lines (brings them on die; the values are not used)")
        k(f"""s_lshl_b32 s42, s35, 3
        s_add_u32 s42, s42, s34
        s_lshl_b32 s42, s42, 3
        s_add_u32 s42, s42, s16
        s_lshl_b32 s42, s42, 8
        s_add_u32 s42, s42, {WS_CAP}
        v_lshlrev_b32 v9, 7, v2
        s_mov_b64 exec, 3
        buffer_load_dword v251, v9, s[12:15], s42 offen
        s_mov_b64 exec, -1""")
    srd(k, 44, 50, 1024 * 3584 * 2)
    srd(k, 60, 52, 1024 * 3584 * 2)
    srd(k, 72, 54, 1024 * 3584 * 2)
    k("s_mov_b32 s26, 4194304\ns_mov_b32 s27, 0x00020000")
    k.c("s67 gate/up base ; s69 down base ; v12 block read ; v8..v11 down read ; v21..v24 down source")
    k(f"""s_lshl_b32 s67, s65, 4
    s_add_u32 s67, s67, s16
    s_mul_i32 s67, s67, {32*7168}
    s_lshl_b32 s42, s64, 7
    s_add_u32 s67, s67, s42
    s_lshl_b32 s42, s64, 6
    s_and_b32 s43, s16, 3
    s_lshl_b32 s43, s43, 3
    s_add_u32 s42, s42, s43
    s_and_b32 s43, s16, 4
    s_add_u32 s42, s42, s43
    s_lshl_b32 s69, s42, 11
    s_lshl_b32 s43, s65, 10
    s_add_u32 s69, s69, s43
    s_and_b32 s43, s16, 1
    s_lshl_b32 s43, s43, 7
    v_xor_b32 v21, s43, v3
    v_xor_b32 v22, 32, v21
    v_xor_b32 v23, 64, v21
    v_xor_b32 v24, 96, v21
    v_add_u32 v109, {L_SI}, v6""")
    vm = VM(k)
    for j in range(4): vm.add(j)
    vm.add("c")
    if E("TOUCH", 1): vm.add("t")
    RV = ((1, 0), (4, 2), (3, 5))
    order = ES("ORDER", "R0,R1,R2,D0,D1,G0,G1,U0,U1").split(",")
    NT = ES("NTW", "")
    def issue(j):
        ci, d = j >> 2, j & 3
        nm = order[ci]; kind, h = nm[0], int(nm[1]); slot = (ci % 4) * 32768
        if kind == "R" and d == 0:
            k(f"s_mul_i32 s70, s41, {(RV[h][1]-RV[h][0])*2048}\ns_add_u32 s70, s70, {RV[h][0]*2048}\ns_add_u32 s70, s70, s18")
            k(f"s_add_u32 s42, s17, {h}\ns_and_b32 s42, s42, 7\ns_lshl_b32 s42, s42, 8\ns_add_u32 s70, s70, s42")
        k(f"s_add_u32 s43, s68, {slot + d*1024}")
        k("s_mov_b32 m0, s43")
        if kind == "D":
            k(f"s_add_u32 s42, s69, {(32*h + d)*2048}")
        else:
            rows = 16 * (d & 1) + 4 * (d >> 1)
            if kind == "R": k(f"s_add_u32 s42, s70, {4*d*12288}")
            else: k(f"s_add_u32 s42, s67, {(256*h + rows)*7168}")
        if j - DEPTH in vm.q: vm.wait(j - DEPTH)
        va, sb = {"R": ((4, 31)[d >> 1], 8), "G": (5, 44), "U": (5, 60), "D": (21 + d, 72)}[kind]
        if ci >= 9 - E("MCUT", 0): k("s_mov_b32 s42, 0")
        k(f"buffer_load_dwordx4 v{va}, s[{sb}:{sb+3}], s42 offen {NT} lds")
        vm.add(j)
    pf = """s_mov_b32 exec_hi, 0
    buffer_store_dwordx4 v[104:107], v3, s[12:15], s38 offen sc1
    s_mov_b64 exec, -1"""
    def silu_c():
        k(f"""v_lshlrev_b32 v110, 16, v110
        v_mul_f32 v111, {LOG2E}, v110
        v_exp_f32 v111, v111
        v_add_f32 v111, 1.0, v111
        v_rcp_f32 v111, v111
        v_mul_f32 v110, v110, v111
        v_cvt_pk_bf16_f32 v110, v110, v110
        ds_write_b16 v109, v110""")
    GST = E("GST", 0); DEPTH = E("DEPTH", 4); HOLD = E("HOLD", 99)
    def hold(p):
        if E("HSL", 0):
            k(f"s_sleep {E('HSL', 0)}"); return
        k.c("hold the stream until the neighbour's first exchange is under way (hint only, bounded)")
        k(f"""s_cmp_lg_u32 s16, 0
        s_cbranch_scc1 {p}_zlx
        s_lshl_b32 s42, s34, 4
        s_add_u32 s42, s42, s35
        s_lshl_b32 s42, s42, 7
        s_add_u32 s42, s42, {WS_ZL}
        s_mov_b32 s83, 0
        {p}_zl:
        buffer_load_dword v16, v14, s[12:15], s42 offen sc1
        s_waitcnt vmcnt(0)
        v_readfirstlane_b32 s43, v16
        s_cmp_eq_u32 s43, s32
        s_cbranch_scc1 {p}_zlx
        s_sleep {E("ZLS", 3)}
        s_add_u32 s83, s83, 1
        s_cmp_lt_u32 s83, 32
        s_cbranch_scc1 {p}_zl
        {p}_zlx:
        {f"s_sleep {E('ZLD', 0)}" if E('ZLD', 0) else ""}
        s_barrier""")
    k(f"""v_lshrrev_b32 v6, 2, v2
    v_and_b32 v15, 3, v0
    v_bfe_u32 v16, v0, 3, 2
    v_xor_b32 v12, v16, v1
    v_and_b32 v12, 3, v12
    v_lshlrev_b32 v12, 5, v12
    v_lshl_add_u32 v12, v6, 7, v12
    v_lshl_add_u32 v12, v15, 3, v12
    v_lshrrev_b32 v16, 2, v1
    v_lshl_add_u32 v12, v16, 14, v12
    v_add_u32 v25, 65536, v12
    v_and_b32 v17, 7, v6
    v_lshlrev_b32 v8, 2, v1
    v_xor_b32 v8, v8, v17
    v_lshlrev_b32 v8, 5, v8
    v_lshl_add_u32 v8, v6, 10, v8
    v_lshl_add_u32 v8, v15, 3, v8
    v_xor_b32 v9, 32, v8
    v_xor_b32 v10, 64, v8
    v_xor_b32 v11, 96, v8
    v_and_b32 v6, 1, v0
    v_lshlrev_b32 v17, 10, v6
    v_lshl_add_u32 v17, v16, 8, v17
    v_lshl_add_u32 v17, v7, 4, v17
    v_add_u32 v17, {L_H}, v17
    v_lshlrev_b32 v19, 7, v6
    v_lshl_add_u32 v19, v7, 4, v19
    v_add_u32 v19, {L_A}, v19
    v_and_b32 v6, 15, v0
    v_lshlrev_b32 v18, 1, v6
    v_lshl_add_u32 v18, v1, 5, v18
    v_lshl_add_u32 v18, v7, 7, v18
    v_add_u32 v18, {L_A}, v18
    v_lshlrev_b32 v20, 2, v6
    v_lshl_add_u32 v20, v1, 14, v20
    v_lshl_add_u32 v20, v7, 12, v20
    v_lshlrev_b32 v26, 4, v7
    v_add_u32 v27, {L_SI}, v26
    v_lshlrev_b32 v28, 11, v7
    v_bfe_u32 v29, v0, 2, 3
    v_xor_b32 v29, v29, v1
    v_lshl_add_u32 v29, v29, 5, v28
    v_bfe_u32 v30, v0, 2, 2
    v_lshl_add_u32 v29, v30, 8, v29
    v_lshl_add_u32 v29, v15, 3, v29
    v_add_u32 v30, 65536, v29""")
    k.c("partial-sum destinations: s30 (ca|sa), s31 (others)")
    k(f"""s_lshl_b32 s30, s41, 15
    s_and_b32 s42, s16, 3
    s_lshl_b32 s42, s42, 13
    s_add_u32 s30, s30, s42
    s_lshl_b32 s42, s40, 8
    s_add_u32 s30, s30, s42
    s_lshl_b32 s42, s17, 1
    s_lshr_b32 s43, s16, 2
    s_add_u32 s42, s42, s43
    s_lshl_b32 s42, s42, 4
    s_add_u32 s30, s30, s42
    s_add_u32 s30, s30, {WS_CAP}
    s_lshl_b32 s31, s41, 5
    s_lshr_b32 s42, s16, 1
    s_add_u32 s31, s31, s42
    s_lshl_b32 s31, s31, 10
    s_lshl_b32 s42, s40, 7
    s_add_u32 s31, s31, s42
    s_and_b32 s42, s16, 1
    s_lshl_b32 s42, s42, 6
    s_add_u32 s31, s31, s42
    s_add_u32 s31, s31, {WS_MODP}
    s_movk_i32 s33, 0xff""")
    BD, BG, BU, SC, RB, RD, NB = 32, 64, 96, 128, 144, 160, 164
    def blockreads(ci, base):
        slot = (ci % 4) * 32768
        va, off = (12, slot) if slot < 65536 else (25, slot - 65536)
        for ks in range(4):
            k(f"ds_read_b64_tr_b16 v[{base+4*ks}:{base+4*ks+1}], v{va} offset:{off + ks*4096}")
            k(f"ds_read_b64_tr_b16 v[{base+4*ks+2}:{base+4*ks+3}], v{va} offset:{off + ks*4096 + 2048}")
    KB = 136; HA = 128; AG = 160
    KRIDE = E("KRIDE", 0)
    def consume(ci, p):
        nm = order[ci]; kind, h = nm[0], int(nm[1])
        if ci == 8:
            k.c("wave 0: hint / pair loads ride behind the last weight loads")
            k(f"""s_cmp_lg_u32 s16, 0
            s_cbranch_scc1 m_n0
            v_lshlrev_b32 v30, 6, v2
            s_waitcnt vmcnt({E("MLATE", 2)})
            buffer_load_dword v31, v30, s[12:15], s81 offen sc1
            buffer_load_dwordx2 v[188:189], v14, s[12:15], s38 offen sc1
            buffer_load_dword v15, v14, s[12:15], s78 offen offset:2048 sc1""")
            if KRIDE: keys_issue(k, KB, 78)
            k("m_n0:")
        if ci == 0: vm.wait("c"); silu_c()
        if 4*ci + 3 in vm.q: vm.wait(4*ci + 3)
        if ci == 2 and "pf" in vm.q: vm.wait("pf")
        k("s_waitcnt lgkmcnt(0)\ns_barrier")
        stamp(k, 20 + ci)
        if kind == "R":
            if ci == 0:
                for ks in range(4): k(f"ds_read_b128 v[{SC+4*ks}:{SC+4*ks+3}], v27 offset:{ks*64}")
            slot = (ci % 4) * 32768
            va, off = (29, slot) if slot < 65536 else (30, slot - 65536)
            for ks in range(4):
                for e in range(2):
                    k(f"ds_read_b64_tr_b16 v[{RB+4*ks+2*e}:{RB+4*ks+2*e+1}], v{va} offset:{off + ks*8192 + e*1024}")
            if ci == 0:
                nonce_finish(k)
                for i in range(4): k(f"v_mov_b32 v{NB+i}, s{56+i}")
            for ks in range(4):
                k(f"s_waitcnt lgkmcnt({6-2*ks})")
                cc = "0" if ks == 0 else f"v[{RD}:{RD+3}]"
                k(f"v_mfma_f32_16x16x32_bf16 v[{RD}:{RD+3}], v[{RB+4*ks}:{RB+4*ks+3}], v[{SC+4*ks}:{SC+4*ks+3}], {cc}")
            if h > 0: k(f"s_add_u32 s42, s17, {h}\ns_and_b32 s42, s42, 7\ns_lshl_b32 s42, s42, 12\ns_add_u32 s42, s42, s31\ns_add_u32 s42, s42, {(h-1)*65536}")
            for i in range(4): k(f"v_bfi_b32 v{RD+i}, s33, v{NB+i}, v{RD+i}")
            if not E("NOST", 0):
                k(f"""s_mov_b32 exec_lo, 0x00010001
                s_mov_b32 exec_hi, 0x00010001
                buffer_store_dwordx4 v[{RD}:{RD+3}], v{28 if h == 0 else 26}, s[12:15], s{30 if h == 0 else 42} offen sc1
                s_mov_b64 exec, -1""")
                vm.add("st")
            stamp(k, 3 + ci)
            if ci == 0 and p == "m" and not E("NOPF", 0): k(pf); vm.add("pf")
            if ci == 2 and p == "m": msetup()
            return
        if ci == 8:
            k(f"""v_mov_b32 v190, {L_A + 1024}
            s_cmp_lg_u32 s16, 0
            s_cbranch_scc1 m_n1
            v_xor_b32 v188, s32, v188
            v_xor_b32 v189, s39, v189
            v_or_b32 v188, v188, v189
            ds_write_b32 v190, v188""")
            if KRIDE:
                keys_chk(k, KB, 30)
                k("s_cbranch_vccz m_n1")
            k("""v_cmp_ne_u32 vcc, s32, v15
            s_cbranch_vccnz m_n1""")
            keys_issue(k, KB, 78)
            k("m_n1:")
        if kind == "D":
            slot = (ci % 4) * 32768
            if slot >= 65536:
                for t in range(4): k(f"v_add_u32 v{168+t}, 65536, v{8+t}")
            for t in range(4):
                b_ = BD + (h*4 + t)*4
                va, off = (8 + t, slot) if slot < 65536 else (168 + t, slot - 65536)
                k(f"ds_read_b64_tr_b16 v[{b_}:{b_+1}], v{va} offset:{off}")
                k(f"ds_read_b64_tr_b16 v[{b_+2}:{b_+3}], v{va} offset:{off+16384}")
        else:
            blockreads(ci, (BG if kind == "G" else BU) + 16*h)
    def stream(p):
        nonlocal DEPTH
        n = 36 if p == "m" else 12
        done = 0
        DEPTH = E("DEPTH", 4)
        for j in range(4, n):
            if j == 4 * HOLD and p == "m":
                while done < HOLD: consume(done, p); done += 1
                hold(p)
            if j == 4 and E("GAP", 0) and p == "m":
                if E("GAP", 0) == 1: consume(0, p); done = 1
                else: vm.wait(E("GAP", 0))
            DEPTH = int(ES("DEPTHS", "444466666")[j >> 2])
            issue(j)
            while done < (j + 1) // 4 and 4*done + 3 not in vm.q: consume(done, p); done += 1
        while done < n // 4: consume(done, p); done += 1
    def msetup():
        k.c("================= M: weight stream =================")
        k(f"""s_getreg_b32 s39, hwreg(HW_REG_XCC_ID)
        s_and_b32 s39, s39, 7
        s_lshl_b32 s38, s64, 1
        s_add_u32 s38, s38, s65
        s_lshl_b32 s38, s38, 7
        s_add_u32 s38, s38, {WS_MX}
        s_lshl_b32 s42, s16, 28
        v_mov_b32 v28, s32
        v_mov_b32 v29, s39
        v_mov_b32 v30, s42
        s_mov_b64 exec, 1
        buffer_store_dwordx2 v[28:29], v30, s[12:15], s38 offen sc1
        s_mov_b64 exec, -1
        s_xor_b32 s38, s38, 128""")
        vm.add("mx")
        if E("HELP", 2):
            k.c("the line group whose address class streams slowly is pulled into L2 by all M workgroups of the die")
            HM = E("HELP", 2)
            nl = {1: 19, 2: 10, 3: 5}[HM]
            k(f"""s_cmp_eq_u32 s65, {"s65" if HM > 1 else 0}
            s_cselect_b32 s8, s50, s52
            s_cselect_b32 s9, s51, s53
            s_mov_b32 s10, {1024*3584*2}
            s_lshr_b32 s42, s8, 7
            s_sub_u32 s42, {E("CLS", 3)}, s42
            s_add_u32 s42, s42, s34
            s_and_b32 s42, s42, 7
            s_cmp_eq_u32 s42, 7
            s_cselect_b32 s70, 0x1000000, 0
            s_mul_i32 s43, s34, 7
            s_add_u32 s42, s42, s43
            s_lshl_b32 s42, s42, 7
            s_lshr_b32 s43, s35, {0 if HM == 2 else 1}
            s_lshl_b32 s43, s43, 3
            s_add_u32 s43, s43, s16
            s_mul_i32 s43, s43, {nl*7168}
            s_add_u32 s42, s42, s43
            s_add_u32 s42, s42, s70""")
            if HM == 3: k(f"s_mul_i32 s43, s65, {512*7168}\ns_add_u32 s42, s42, s43\ns_add_u32 s42, s42, {232*7168}")
            k(f"""v_mul_u32_u24 v30, 7168, v2
            s_mov_b64 exec, {(1 << nl) - 1}
            buffer_load_dword v252, v30, s[8:11], s42 offen
            s_mov_b64 exec, -1""")
            vm.add("help")
        k(f"""v_cmp_eq_u32 s[4:5], 1, v7
        v_cmp_eq_u32 s[6:7], 2, v7
        v_cmp_eq_u32 s[28:29], 3, v7
        v_and_b32 v191, 3, v0
        v_lshlrev_b32 v191, 3, v191
        v_lshrrev_b32 v191, v191, s32
        v_add_u32 v13, {L_H}, v3
        s_lshl_b32 s71, s65, 10
        s_add_u32 s71, s71, {WS_SLOT}
        s_lshl_b32 s30, s65, 17
        s_lshl_b32 s31, s64, 6
        s_add_u32 s30, s30, s31
        s_add_u32 s30, s30, {WS_PART}
        s_add_u32 s31, s30, {64*4096}
        s_lshl_b32 s79, s64, 2
        s_and_b32 s42, s16, 3
        s_add_u32 s79, s79, s42
        s_lshl_b32 s79, s79, 10
        s_add_u32 s81, s79, {WS_XA}
        s_add_u32 s82, s79, {WS_XB}
        s_lshl_b32 s76, s65, 1
        s_lshr_b32 s42, s16, 2
        s_add_u32 s76, s76, s42
        s_lshl_b32 s76, s76, 8
        s_add_u32 s77, s76, s82
        s_add_u32 s76, s76, s81
        s_lshl_b32 s78, s34, 12
        s_add_u32 s78, s78, {WS_KEY}""")
    k("s_cmp_eq_u32 s66, 1\ns_cbranch_scc1 x_start")
    q0 = list(vm.q)
    stream("m")
    if E("GONLY", 0): stamp(k, 7); stamp_out(k); k("s_endpgm")
    stamp(k, 7)
    k("s_cmp_lg_u32 s16, 0\ns_cbranch_scc1 m_nk\ns_cbranch_vccnz m_slowk\ns_waitcnt vmcnt(0)")
    keys_chk(k, KB, 30)
    k(f"""s_cbranch_vccz m_pkx
    s_branch m_gox
    m_slowk:
    s_mov_b32 s83, 0
    m_go:
    buffer_load_dword v15, v14, s[12:15], s78 offen offset:2048 sc1
    s_waitcnt vmcnt(0)
    v_cmp_ne_u32 vcc, s32, v15
    s_cbranch_vccz m_gox
    {spin("m_go", E("SLG", 3))}
    m_gox:
    s_sleep {E("SLG2", 1)}""")
    poll_keys(k, "m_pk", KB, 78, 30)
    stamp(k, 13)
    top2(k, KB, 40, 41, 28)
    hl = """buffer_load_dwordx4 v[176:179], v3, s[12:15], s42 offen sc1
    buffer_load_dwordx4 v[180:183], v3, s[12:15], s43 offen sc1"""
    k(f"""s_and_b32 s40, s40, 0xff
    s_and_b32 s41, s41, 0xff
    s_lshl_b32 s42, s40, 12
    s_lshl_b32 s43, s41, 12
    s_add_u32 s42, s42, s71
    s_add_u32 s43, s43, s71
    s_mov_b32 s83, 0
    {hl}
    s_cmp_lg_u32 s35, {99 if E("XKEY", 0) else 0}
    s_cbranch_scc1 m_ph2
    s_lshl_b32 s41, s41, 8
    s_or_b32 s40, s40, s41
    v_mov_b32 v28, s40
    v_mov_b32 v29, s32
    s_mov_b64 exec, 1
    buffer_store_dwordx2 v[28:29], v14, s[12:15], s78 offen offset:2304 sc1
    s_mov_b64 exec, -1
    s_waitcnt vmcnt(1)
    s_branch m_ph3
    m_ph:
    {hl}
    m_ph2:
    s_waitcnt vmcnt(0)
    m_ph3:
    ds_write_b128 v13, v[176:179]
    ds_write_b128 v13, v[180:183] offset:1024""")
    chk_sent(k, range(176, 184), 30)
    k(f"""s_cbranch_vccz m_phx
    {spin("m_ph", 0)}
    m_phx:""")
    stamp(k, 14)
    k("m_nk:\ns_waitcnt lgkmcnt(0)\ns_barrier\nds_read_b32 v188, v190")
    for ks in range(8):
        k(f"ds_read_b128 v[{HA+4*ks}:{HA+4*ks+3}], v17 offset:{(ks>>2)*512 + (ks&3)*64}")
    for ks in range(8):
        k(f"s_waitcnt lgkmcnt({7-ks})")
        for a_, b_ in ((AG, BG), (AG + 4, BU)):
            cc = "0" if ks == 0 else f"v[{a_}:{a_+3}]"
            k(f"v_mfma_f32_16x16x32_bf16 v[{a_}:{a_+3}], v[{HA+4*ks}:{HA+4*ks+3}], v[{b_+4*ks}:{b_+4*ks+3}], {cc}")
    PB = 184
    k(f"""v_readfirstlane_b32 s70, v188
    v_min_u32 v{PB}, -2, v{AG}
    v_min_u32 v{PB+1}, -2, v{AG+1}
    v_min_u32 v{PB+2}, -2, v{AG+4}
    v_min_u32 v{PB+3}, -2, v{AG+5}
    s_mov_b64 exec, 0xffff
    buffer_store_dwordx4 v[{PB}:{PB+3}], v3, s[12:15], s76 offen
    s_cmp_eq_u32 s70, 0
    s_cbranch_scc1 m_same
    buffer_store_dwordx4 v[{PB}:{PB+3}], v3, s[12:15], s77 offen sc1
    m_same:
    s_cselect_b32 s82, s81, s82
    s_mov_b64 exec, -1
    s_cmp_ge_u32 s16, 4
    s_cbranch_scc1 m_na""")
    if E("SL3", 2): k(f"s_sleep {E('SL3', 2)}")
    stamp(k, 15)
    R = 24
    k("s_mov_b32 s83, 0\nm_px:")
    for so in (81, 82):
        k(f"buffer_load_dwordx4 v[{R}:{R+3}], v3, s[12:15], s{so} offen sc1")
        k("s_waitcnt vmcnt(0)")
        chk_sent(k, range(R, R + 4), 9)
        k("s_cbranch_vccz m_pxx")
    k(f"{spin('m_px', 0)}\nm_pxx:")
    stamp(k, 16)
    k(f"v_permlane32_swap_b32 v{R}, v{R+2}")
    k(f"v_permlane32_swap_b32 v{R+1}, v{R+3}")
    padd(k, R, R, R + 2)
    k(f"v_permlane16_swap_b32 v{R}, v{R+1}")
    k(f"v_add_f32 v{R}, v{R}, v{R+1}")
    round_bf16(k, R, R)
    k(f"""v_mul_f32 v{R+1}, {LOG2E}, v{R}
    v_exp_f32 v{R+1}, v{R+1}
    v_mov_b32 v{R+2}, v{R}
    v_add_f32 v{R+1}, 1.0, v{R+1}
    v_rcp_f32 v{R+1}, v{R+1}
    v_mov_b32 v{R+3}, v{R}
    v_mul_f32 v{R+1}, v{R}, v{R+1}
    v_permlane32_swap_b32 v{R+2}, v{R+3}""")
    round_bf16(k, R + 1, R + 1)
    k(f"""v_mul_f32 v{R+1}, v{R+1}, v{R+3}
    v_cvt_pk_bf16_f32 v{R+1}, v{R+1}, v{R+1}
    ds_write_b16 v18, v{R+1}
    m_na:
    s_waitcnt lgkmcnt(0)
    s_barrier""")
    for ks in range(2):
        k(f"ds_read_b128 v[{HA+4*ks}:{HA+4*ks+3}], v19 offset:{ks*64}")
    for ks in range(2):
        k(f"s_waitcnt lgkmcnt({1-ks})")
        for t in range(4):
            a_ = AG + 4 * t
            cc = "0" if ks == 0 else f"v[{a_}:{a_+3}]"
            b_ = BD + (ks*4 + t)*4
            k(f"v_mfma_f32_16x16x32_bf16 v[{a_}:{a_+3}], v[{HA+4*ks}:{HA+4*ks+3}], v[{b_}:{b_+3}], {cc}")
    for t, m_ in ((1, "s[4:5]"), (2, "s[6:7]"), (3, "s[28:29]")):
        for row in range(2):
            src = AG + row if t == 1 else 24 + row
            k(f"v_cndmask_b32 v{24+row}, v{src}, v{AG+4*t+row}, {m_}")
    for row in range(2):
        k(f"v_bfi_b32 v{24+row}, s33, v191, v{24+row}")
    for row in range(2):
        k(f"buffer_store_dword v{24+row}, v20, s[12:15], s{30+row} offen sc1")
    stamp(k, 17)
    stamp_out(k)
    k("s_endpgm")
    k.c("================= X: finalize ga/cb/sb/gb, then final reduction =================")
    k("x_start:")
    vm.q = list(q0)
    k.c("round = wave>>2 ; unit = (q*8+c)*4 + (wave&3)")
    k(f"""s_lshl_b32 s37, s34, 1
    s_add_u32 s37, s37, s65
    s_lshl_b32 s37, s37, 3
    s_add_u32 s37, s37, s16
    s_lshl_b32 s42, s37, 8
    s_add_u32 s42, s42, {WS_KEY}
    s_mov_b64 exec, 0xffff
    buffer_store_dwordx4 v[104:107], v3, s[12:15], s42 offen sc1
    s_mov_b64 exec, -1
    s_lshl_b32 s36, s37, 12
    s_add_u32 s36, s36, {WS_PART}
    s_lshl_b32 s76, s34, 3
    s_add_u32 s76, s76, s16
    s_lshl_b32 s77, s76, 10
    s_add_u32 s77, s77, {WS_MODP}
    s_lshl_b32 s79, s76, 7
    s_add_u32 s79, s79, {WS_PAR}
    s_lshr_b32 s71, s76, 5
    s_cmp_eq_u32 s71, 0
    s_cselect_b32 s80, 1.0, 0
    s_lshl_b32 s78, s34, 12
    s_add_u32 s78, s78, {WS_KEY}""")
    vm.add("kpf")
    stream("x")
    def xhelp(XH):
        XH = XH.split(',') if XH else []
        if XH:
            k.c("the line group whose address class streams slowly is pulled into L2")
            k(f"""v_and_b32 v90, 255, v0
            v_lshrrev_b32 v91, 8, v0
            v_lshl_add_u32 v90, v91, 9, v90
            v_mul_u32_u24 v90, 7168, v90""")
            for i, nm in enumerate(XH):
                sb = 44 if nm[0] == "G" else 60
                k(f"""s_lshr_b32 s42, s{sb}, 7
                s_sub_u32 s42, {E("CLS", 3)}, s42
                s_add_u32 s42, s42, s34
                s_and_b32 s42, s42, 7
                s_cmp_eq_u32 s42, 7
                s_cselect_b32 s70, 0x1000000, 0
                s_mul_i32 s43, s34, 7
                s_add_u32 s42, s42, s43
                s_lshl_b32 s42, s42, 7
                s_add_u32 s42, s42, {int(nm[1])*256*7168}
                s_add_u32 s42, s42, s70
                buffer_load_dword v{92 + i}, v90, s[{sb}:{sb+3}], s42 offen
                s_barrier""")
    def finalize(lab, st):
        k(f"""v_lshlrev_b32 v8, 3, v7
        v_lshrrev_b32 v8, v8, s32
        s_mov_b32 s83, 0
        {lab}:
        buffer_load_dwordx4 v[16:19], v3, s[12:15], s77 offen sc1
        s_waitcnt vmcnt(0)""")
        chk_bytes(k, range(16, 20), 9)
        k(f"s_cbranch_vccz {lab}x\n{spin(lab, E('SLX', 4))}\n{lab}x:")
        stamp(k, st)
        k("v_permlane32_swap_b32 v16, v18\nv_permlane32_swap_b32 v17, v19")
        padd(k, 16, 16, 18)
        k(f"v_permlane16_swap_b32 v16, v17\nv_add_f32 v16, v16, v17\nv_add_f32_dpp v16, v16, v16 row_ror:8 {DPPM}")
        round_bf16(k, 16, 16)
        k("v_add_f32 v16, s80, v16")
        round_bf16(k, 16, 16)
        def put(b, so):
            k(f"""v_bfi_b32 v{b}, s33, v8, v{b}
            v_mov_b32 v{b+1}, v{b}
            v_permlane16_swap_b32 v{b}, v{b+1}
            v_mov_b32 v{b+2}, v{b}
            v_mov_b32 v{b+3}, v{b+1}
            v_permlane32_swap_b32 v{b}, v{b+2}
            v_permlane32_swap_b32 v{b+1}, v{b+3}
            s_mov_b64 exec, 0xff
            buffer_store_dwordx4 v[{b}:{b+3}], v3, s[12:15], s{so} offen sc1
            s_mov_b64 exec, -1""")
        if st == 7:
            k("v_mul_f32 v20, v16, v10")
            put(20, 79)
            k("s_cmp_eq_u32 s80, 0\ns_cbranch_scc1 x_nc\ns_add_u32 s42, s79, 16384")
            put(16, 42)
            k("x_nc:")
        else: put(16, 79)
    k(f"s_cmp_eq_u32 s65, 1\ns_cbranch_scc1 x_na")
    srd(k, 8, 48, 2048)
    k.c("factor: w_r for the (1+cb) columns, 64 for the ga columns")
    k(f"""v_and_b32 v10, 7, v0
    v_lshl_add_u32 v10, v10, 2, v7
    v_lshlrev_b32 v10, 1, v10
    s_lshl_b32 s42, s76, 6
    buffer_load_ushort v10, v10, s[8:11], s42 offen
    s_cmp_eq_u32 s80, 0
    s_cselect_b32 s42, {f32(64.0)}, 0
    s_waitcnt vmcnt(0)
    v_lshl_or_b32 v10, v10, 16, s42""")
    if E("SLPA", 0): k(f"s_sleep {E('SLPA', 0)}")
    finalize("x_pa", 7)
    if E("PT", 0):
        k.c("pull the finished vectors into this die's L2")
        k(f"""s_sleep {E('PT', 0)}
        s_mov_b32 s42, {WS_PAR}
        v_lshlrev_b32 v9, 4, v0
        buffer_load_dwordx4 v[20:23], v9, s[12:15], s42 offen sc1""")
    k("s_add_u32 s77, s77, 65536\ns_add_u32 s79, s79, 8192\ns_mov_b32 s80, 0")
    if E("SLP", 24): k(f"s_sleep {E('SLP', 24)}")
    finalize("x_pb", 8)
    if ES("XH0", ""): k("s_barrier")
    xhelp(ES("XH0", ""))
    k("s_branch x_nb\nx_na:")
    xhelp(ES("XH", "U0"))
    k("x_nb:\ns_mov_b32 s17, s37\ns_barrier")
    if E("XPF", 2) == 2:
        k(f"""v_lshlrev_b32 v9, 7, v2
        s_mov_b64 exec, 0xfffffff
        buffer_load_dword v251, v9, s[12:15], s36 offen
        s_mov_b64 exec, -1""")
    if E("XPF", 2) == 1:
        k(f"""buffer_store_dwordx4 v[104:107], v3, s[12:15], s36 offen sc1
        buffer_store_dwordx4 v[104:107], v3, s[12:15], s36 offen offset:1024 sc1
        buffer_store_dwordx4 v[104:107], v3, s[12:15], s36 offen offset:2048 sc1
        s_mov_b32 exec_hi, 0
        buffer_store_dwordx4 v[104:107], v3, s[12:15], s36 offen offset:3072 sc1
        s_mov_b64 exec, -1""")
    srd(k, 8, 48, 2048)
    k(f"""s_and_b32 s18, s17, 63
    v_and_b32 v5, 3, v0
    v_lshlrev_b32 v5, 3, v5
    v_lshl_add_u32 v5, v7, 1, v5
    v_lshlrev_b32 v6, 1, v5
    v_and_b32 v86, -4, v5
    v_and_b32 v87, 2, v5
    v_lshlrev_b32 v87, 3, v87
    s_lshl_b32 s31, s18, 6
    s_add_u32 s31, s31, {WS_PAR + 3*4096}
    v_cmp_gt_u32 vcc, 32, v2
    v_mov_b32 v7, 0x7ff00000
    v_cndmask_b32 v7, v7, v3, vcc""")
    for j in range(2):
        k(f"buffer_load_dwordx4 v[{40+4*j}:{43+4*j}], v3, s[8:11], 0 offen offset:{j*1024}")
    k("s_waitcnt vmcnt(0)")
    for i in range(8): unpack_bf16(k, 48 + 2*i, 40 + i)
    k(f"s_cmp_lg_u32 s16, 0\ns_cbranch_scc1 x_ng")
    if E("XKEY", 0):
        k(f"""s_mov_b32 s83, 0
        x_go:
        buffer_load_dword v15, v14, s[12:15], s78 offen offset:2048 sc1
        s_waitcnt vmcnt(0)
        v_cmp_ne_u32 vcc, s32, v15
        s_cbranch_vccz x_gox
        {spin("x_go", E("SLG", 3))}
        x_gox:
        s_sleep {E("SLXK", 8)}""")
        poll_keys(k, "x_pk", 16, 78, 30)
        top2(k, 16, 40, 41, 28)
        k(f"""s_and_b32 s40, s40, 0xff
        s_and_b32 s41, s41, 0xff
        s_lshl_b32 s41, s41, 8
        s_or_b32 s40, s40, s41
        v_mov_b32 v28, s40
        v_mov_b32 v29, s32
        ds_write_b32 v14, v28
        s_cmp_lg_u32 s65, 0
        s_cbranch_scc1 x_ng
        s_mov_b64 exec, 1
        buffer_store_dwordx2 v[28:29], v14, s[12:15], s78 offen offset:2304 sc1
        s_mov_b64 exec, -1
        x_ng:
        s_waitcnt lgkmcnt(0)
        s_barrier
        ds_read_b32 v28, v14
        s_waitcnt lgkmcnt(0)
        v_readfirstlane_b32 s40, v28
        s_lshr_b32 s41, s40, 8
        s_and_b32 s40, s40, 0xff
        s_sleep {E("SLXS", 12)}""")
    else:
        res_wait(k, "x_r0", 78, 22, 16, 3)
        k("x_ng:\ns_barrier")
        res_wait(k, "x_r1", 78, 22, 16, 1)
    stamp(k, 13)
    k(f"""s_cmp_lt_u32 s17, 64
    s_cselect_b32 s40, s40, s41
    s_lshl_b32 s42, s40, 12
    s_add_u32 s42, s42, {WS_SLOT}
    s_lshl_b32 s19, s18, 5
    s_add_u32 s43, s42, s19
    s_lshl_b32 s40, s40, 3
    s_add_u32 s40, s40, {WS_TT}
    buffer_load_dword v80, v6, s[12:15], s31 offen sc1
    s_mov_b32 s83, 0
    x_ps:""")
    for j in range(2):
        k(f"buffer_load_dwordx4 v[{32+4*j}:{35+4*j}], v3, s[12:15], s42 offen offset:{j*1024} sc1")
    k("""buffer_load_dword v40, v86, s[12:15], s43 offen offset:2048 sc1
    buffer_load_dwordx2 v[42:43], v14, s[12:15], s40 offen sc1
    s_waitcnt vmcnt(0)
    v_cmp_ne_u32 s[68:69], s32, v43""")
    chk_sent(k, range(32, 41), 9)
    k(f"""s_or_b64 vcc, vcc, s[68:69]
    s_cbranch_vccz x_psx
    {spin("x_ps", 0)}
    x_psx:
    v_readfirstlane_b32 s41, v42
    v_and_b32 v80, 0xffff0000, v80""")
    for i in range(8): unpack_bf16(k, 64 + 2*i, 32 + i)
    k("""s_and_b32 s41, s41, 0x7ff
    s_lshl_b32 s41, s41, 11
    s_add_u32 s41, s41, s19""")
    pmul(k, 8, 48, 64)
    for i in range(1, 8): pfma(k, 8, 48 + 2*i, 64 + 2*i, 8)
    k("v_add_f32 v8, v8, v9")
    wave_reduce_to63(k, [8])
    round_bf16(k, 8, 8)
    k(f"""v_mul_f32 v8, {LOG2E}, v8
    v_exp_f32 v8, v8
    v_add_f32 v8, 1.0, v8
    v_rcp_f32 v8, v8""")
    round_bf16(k, 8, 8)
    k("v_readlane_b32 s46, v8, 63")
    k("v_lshrrev_b32 v44, v87, v40\nv_lshlrev_b32 v44, 16, v44\nv_mul_f32 v80, s46, v80")
    stamp(k, 14)
    L = 16
    k(f"s_sleep {E('SL4', 16)}")
    def pld(j): return f"buffer_load_dwordx4 v[{L+4*j}:{L+4*j+3}], v3, s[12:15], s36 offen offset:{j*1024} sc1"
    XM = (60, 62, 64, 66)
    k("""s_mov_b32 s83, 0
    s_mov_b64 s[60:61], -1
    s_mov_b64 s[62:63], -1
    s_mov_b64 s[64:65], -1
    s_mov_b32 s66, -1
    s_mov_b32 s67, 0""")
    for i in range(4): k(f"v_mov_b32 v{L+12+i}, 0")
    k("x_p2:")
    for j in range(4): k(f"s_mov_b64 exec, s[{XM[j]}:{XM[j]+1}]\n" + pld(j))
    for j in range(4):
        r = L + 4*j
        k(f"s_mov_b64 exec, s[{XM[j]}:{XM[j]+1}]\ns_waitcnt vmcnt({3-j})")
        for i in range(4): k(f"v_xor_b32 v{r+i}, s{56+i}, v{r+i}")
        k(f"""v_or3_b32 v12, v{r}, v{r+1}, v{r+2}
        v_bitop3_b32 v12, v12, v{r+3}, s33 bitop3:0xa8
        v_cmp_ne_u32 s[{XM[j]}:{XM[j]+1}], 0, v12""")
    k(f"""s_mov_b64 exec, -1
    s_add_u32 s83, s83, 1
    s_cmp_lt_u32 s83, {SPIN}
    s_cselect_b64 s[68:69], -1, 0
    s_or_b64 s[70:71], s[60:61], s[62:63]
    s_or_b64 s[72:73], s[64:65], s[66:67]
    s_or_b64 s[70:71], s[70:71], s[72:73]
    s_and_b64 s[70:71], s[70:71], s[68:69]
    s_cbranch_scc1 x_p2""")
    stamp(k, 17)
    for h in range(2):
        padd(k, L + 2*h, L + 2*h, L + 4 + 2*h); padd(k, L + 8 + 2*h, L + 8 + 2*h, L + 12 + 2*h)
    for h in range(2): padd(k, L + 2*h, L + 2*h, L + 8 + 2*h)
    k(f"v_permlane32_swap_b32 v{L}, v{L+2}\nv_permlane32_swap_b32 v{L+1}, v{L+3}")
    padd(k, L, L, L + 2)
    k(f"v_permlane16_swap_b32 v{L}, v{L+1}\nv_add_f32 v{L}, v{L}, v{L+1}")
    for sh in (4, 8): k(f"v_add_f32_dpp v{L}, v{L}, v{L} row_ror:{sh} {DPPM}")
    k(f"""v_fmac_f32 v44, v{L}, v80
    s_mov_b32 exec_lo, 0x000f000f
    s_mov_b32 exec_hi, 0x000f000f
    v_cvt_pk_bf16_f32 v44, v44, v44
    buffer_store_short v44, v5, s[24:27], s41 offen {ES("FST", "")}
    s_cmp_lg_u32 s17, 0
    s_cbranch_scc1 x_end
    s_add_u32 s101, s101, 1
    s_mov_b32 s43, {WS_EP}
    v_mov_b32 v8, s101
    s_mov_b64 exec, 1
    buffer_store_dword v8, v14, s[12:15], s43 offen sc1
    x_end:""")
    stamp_out(k)

def gen():
    k = K(NAME)
    stamp_init(k)
    k("""s_cmp_ge_u32 s2, 256
    s_cbranch_scc1 k_done""")
    stamp(k, 0)
    k(f"""s_load_dwordx2 s[4:5], s[0:1], {A_X}
    s_load_dwordx8 s[20:27], s[0:1], {A_C}
    s_load_dwordx2 s[6:7], s[0:1], {A_WS}
    s_load_dwordx8 s[48:55], s[0:1], {A_WR}
    s_getpc_b64 s[62:63]
    k_pc:
    v_lshrrev_b32 v1, 6, v0
    v_and_b32 v2, 63, v0
    v_readfirstlane_b32 s16, v1
    v_lshlrev_b32 v3, 4, v2
    s_and_b32 s34, s2, 7
    s_lshr_b32 s35, s2, 4
    s_bitcmp1_b32 s2, 3
    s_cbranch_scc0 f_start""")
    k.c("G head: code prefetch, first GEMV tile [128 k][128 n]: ks = c, s17 = block, s41 = vq")
    k(f"""s_lshl_b32 s40, s35, 3
    s_add_u32 s40, s40, s16
    s_lshl_b32 s40, s40, 9
    v_lshl_add_u32 v4, v2, 7, s40
    v_min_u32 v4, tab_end-k_pc-4, v4
    s_mov_b64 exec, 15
    global_load_dword v250, v4, s[62:63]
    s_mov_b64 exec, -1
    v_bfe_u32 v7, v0, 4, 2
    v_lshlrev_b32 v4, 1, v7
    v_xor_b32 v4, v4, v0
    v_and_b32 v4, 15, v4
    v_lshlrev_b32 v4, 4, v4
    s_movk_i32 s42, 12288
    v_mad_u32_u24 v4, v7, s42, v4
    v_xor_b32 v31, 0x80, v4
    s_and_b32 s17, s35, 7
    s_lshr_b32 s41, s35, 3
    s_lshl_b32 s18, s34, 3
    s_add_u32 s18, s18, s16
    s_mul_i32 s18, s18, {16*12288}
    s_lshl_b32 s68, s16, 12
    s_xor_b32 s70, s35, 8
    s_lshl_b32 s70, s70, 8
    s_add_u32 s70, s70, s18
    s_mov_b32 s10, {1024*6144*2}
    s_mov_b32 s11, 0x00020000
    s_mov_b32 m0, s68
    s_waitcnt lgkmcnt(0)
    s_mov_b32 s8, s22
    s_mov_b32 s9, s23""")
    if E("GDEL", 0): k(f"s_cmp_ge_u32 s35, {E('XND', 14)}\ns_cbranch_scc1 g_nd\ns_sleep {E('GDEL', 0)}\ng_nd:")
    stamp(k, 2)
    for d in range(4):
        k(f"buffer_load_dwordx4 v{(4, 31)[d >> 1]}, s[8:11], s70 offen offset:{d*1024} {ES('NTW', '')} lds")
        if d < 3: k(f"s_add_u32 s70, s70, {4*12288 - 1024}")
    k("s_branch g_start\nf_start:")
    role_F(k)
    role_G(k)
    k("k_done:\ns_endpgm")
    return k

HEADER = """; adaLN + FNet mixing + MoD block, gfx950.  Generated by gen/gen23.py (hand-written generator).
"""
def tables():
    w = tabs.words(tabs.T4())
    for g0 in (False, True):
        for wv in range(8): w += tabs.words(tabs.T1(g0, wv))
    for sp in (False, True): w += tabs.words(tabs.T2(sp))
    assert 4 * len(w) == TB_END
    t = ".p2align 8\n.type tables,@object\ntables:\n"
    for i in range(0, len(w), 8):
        t += ".long " + ",".join("0x%x" % x for x in w[i:i+8]) + "\n"
    return t + f"tab_end:\n.size tables, {4*len(w)}\n"

def main(out):
    k = gen()
    t = HEADER + f"; @launch grid=(256,1,1) block=(512,1,1) lds={LDS}\n"
    t += '.amdgcn_target "amdgcn-amd-amdhsa--gfx950"\n.text\n' + k.text() + 'code_end:\n' + tables()
    t += '.section .rodata,"a"\n' + k.desc()
    open(out, "w").write(t)
if __name__ == "__main__":
    main(sys.argv[1] if len(sys.argv) > 1 else "adaLN_cond__spectral_fnet__moe_arch_mod__prompt.s")
```

```python
import math, sys, os
from asmgen import K, f32
from gen2 import (srd, P, padd, psub, pmul, pfma, pmul_s, pfma_s, psub_s, unpack_bf16, round_bf16, DPPM,
                  row_allreduce, wave_reduce_to63, chk_sent,
                  A_X, A_WR, A_WG, A_WU, A_WD, A_C, A_WM, A_OUT, A_DBG, A_WS, WS_SIZE)
import tabs
NAME = "adaLN_cond__spectral_fnet__moe_arch_mod__prompt_kernel"
E = lambda n, d: int(os.environ.get(n, str(d)))
ES = lambda n, d: os.environ.get(n, d)
SPIN = "0x40000"
WS_Z1   = 0x0000000
WS_SENT = 0x0400000
WS_PART = WS_SENT
WS_XA   = WS_SENT + 0x80000
WS_KEY  = WS_SENT + 0xB8000
WS_XB   = WS_SENT + 0xC0000
WS_TT   = 0x0636000
WS_SLOT = WS_SENT + 0x100000
WS_CAP  = 0x0600000
WS_MODP = 0x0610000
WS_PAR  = 0x0630000
WS_XR   = 0x0635000
WS_KR   = 0x0635400
WS_ZL   = 0x0638000
WS_MX   = 0x063C000
WS_EP   = 0x0650000
WS_STAMP = 0x2000000
NHASH = 0x9E3779B1
XP = 2064
L_S = 0; L_T4 = 33280; L_X = L_T4 + 16384; L_P = L_X + 32768; L_KEY = L_P + 5 * 4096; L_ST = L_KEY + 128; L_T3 = L_ST + 256; L_K = L_T3 + 8192
LDS = 131072 + 8192
LOG2E = f32(-math.log2(math.e))
ZMASK = E("ZMASK", 0x00030003)
TB_T4, TB_T1, TB_T2, TB_END = 0, 16384, 32768, 36864
ST = [int(x) for x in ES("ST", "").split(",") if x]
def stamp(k, i):
    if not ST: return
    if i == 0: k("s_memrealtime s[84:85]")
    elif i in ST: k(f"s_memrealtime s[{86+2*ST.index(i)}:{87+2*ST.index(i)}]")
def stamp_val(k, i, sreg):
    if i in ST: k(f"s_add_u32 s{86+2*ST.index(i)}, s{sreg}, s84")
def stamp_init(k):
    if ST:
        for j in range(8): k(f"s_mov_b32 s{84+2*j}, 0")
def stamp_out(k):
    if not ST: return
    k(f"""s_mov_b64 exec, -1
    s_waitcnt vmcnt(0)
    s_memrealtime s[98:99]
    s_waitcnt lgkmcnt(0)
    v_lshrrev_b32 v248, 6, v0
    v_lshlrev_b32 v248, 5, v248
    s_lshl_b32 s100, s2, 8
    s_add_u32 s100, s100, {WS_STAMP}""")
    for i in range(8): k(f"v_mov_b32 v{240+i}, s{84+2*i}")
    k("""s_mov_b64 exec, 1
    buffer_store_dwordx4 v[240:243], v248, s[12:15], s100 offen
    buffer_store_dwordx4 v[244:247], v248, s[12:15], s100 offen offset:16""")
def rb2(k, v, t):
    k(f"v_cvt_pk_bf16_f32 v{t}, v{v}, v{v+1}")
    unpack_bf16(k, v, t)
def spin(lab, sl):
    return (f"s_sleep {sl}\n" if sl else "") + f"s_add_u32 s83, s83, 1\ns_cmp_lt_u32 s83, {SPIN}\ns_cbranch_scc1 {lab}"
def nonce_issue(k, sp):
    k(f"s_mov_b32 s43, {WS_EP}\ns_load_dword s101, s[{sp}:{sp+1}], s43")
def nonce_finish(k):
    k(f"""s_mul_i32 s32, s101, {NHASH:#x}
    s_or_b32 s32, s32, 0x101
    s_and_b32 s32, s32, {~0x10404 & 0xffffffff:#x}
    s_and_b32 s56, s32, 0xff
    s_bfe_u32 s57, s32, 0x80008
    s_bfe_u32 s58, s32, 0x80010
    s_lshr_b32 s59, s32, 24""")
def chk_bytes(k, regs, acc):
    regs = list(regs)
    for i, r in enumerate(regs): k(f"v_xor_b32 v{r}, s{56 + (i & 3)}, v{r}")
    k(f"v_or3_b32 v{acc}, v{regs[0]}, v{regs[1]}, v{regs[2]}")
    regs = regs[3:]
    while len(regs) >= 2:
        k(f"v_or3_b32 v{acc}, v{acc}, v{regs[0]}, v{regs[1]}"); regs = regs[2:]
    if regs: k(f"v_or_b32 v{acc}, v{acc}, v{regs[0]}")
    k(f"v_and_b32 v{acc}, 0xff, v{acc}")
    k(f"v_cmp_ne_u32 vcc, 0, v{acc}")
def keys_issue(k, base, soff):
    for j in range(2):
        k(f"buffer_load_dwordx4 v[{base+4*j}:{base+4*j+3}], v3, s[12:15], s{soff} offen offset:{j*1024} sc1")
def keys_chk(k, base, tmp):
    k(f"v_xor_b32 v{tmp}, s32, v{base+2}")
    k(f"v_bitop3_b32 v{tmp}, v{tmp}, v{base+6}, s32 bitop3:0xf6")
    k(f"v_cmp_ne_u32 vcc, 0, v{tmp}")
def poll_keys(k, lab, base, soff, tmp):
    k(f"s_mov_b32 s83, 0\n{lab}:")
    keys_issue(k, base, soff)
    k("s_waitcnt vmcnt(0)")
    keys_chk(k, base, tmp)
    k(f"s_cbranch_vccz {lab}x\n{spin(lab, E('SL2', 4))}\n{lab}x:")
def top2(k, KB, s1, s2, tmp):
    m1, m2, c = tmp, tmp + 1, tmp + 2
    k(f"v_max_u32 v{m1}, v{KB}, v{KB+4}")
    k(f"v_min_u32 v{m2}, v{KB}, v{KB+4}")
    k(f"v_max3_u32 v{m2}, v{m2}, v{KB+1}, v{KB+5}")
    k(f"v_mov_b32 v{c}, v{m1}")
    wave_reduce_to63(k, [c], "v_max_u32")
    k(f"v_readlane_b32 s{s1}, v{c}, 63")
    k(f"v_cmp_eq_u32 vcc, s{s1}, v{m1}")
    k(f"v_cndmask_b32 v{c}, v{m1}, v{m2}, vcc")
    wave_reduce_to63(k, [c], "v_max_u32")
    k(f"v_readlane_b32 s{s2}, v{c}, 63")
def res_wait(k, lab, soff, vz, vd, sl):
    k(f"""v_mov_b32 v{vz}, 0
    s_mov_b32 s83, 0
    {lab}:
    buffer_load_dwordx2 v[{vd}:{vd+1}], v{vz}, s[12:15], s{soff} offen offset:2304 sc1
    s_waitcnt vmcnt(0)
    v_readfirstlane_b32 s40, v{vd}
    v_readfirstlane_b32 s41, v{vd+1}
    s_cmp_eq_u32 s41, s32
    s_cbranch_scc1 {lab}x
    {spin(lab, sl)}
    {lab}x:
    s_lshr_b32 s41, s40, 8
    s_and_b32 s40, s40, 0xff
    s_and_b32 s41, s41, 0xff""")

def role_F(k):
    ZL, PA, PB, BP, XA_, XB_, NAT, KW, KR_, FA, ZS, PG, PS = 4, 5, 6, 7, 8, 9, 10, 11, 12, 13, 14, 15, 1
    EG, T1, T2, L, D, D3, T3, TB, XA2, XB2, T4 = 16, 20, 24, 32, 48, 80, 112, 144, 160, 176, 192
    PFR, PRA, RCL, PRB0, PRC, REC, A0, A1, R0, R1 = 240, 20, 244, 96, 100, 251, 252, 253, 254, 255
    T4L = "s_mov_b32 m0, s40\ns_nop 0\nglobal_load_lds_dwordx4 v79, s[62:63]\nglobal_load_lds_dwordx4 v79, s[62:63] offset:1024"
    T1L = f"""global_load_dwordx4 v[{T1}:{T1+3}], v77, s[62:63]
    global_load_dwordx4 v[{T2}:{T2+3}], v78, s[62:63]
    global_load_dwordx4 v[{T2+4}:{T2+7}], v78, s[62:63] offset:1024"""
    k(f"""s_add_u32 s62, s62, tables-k_pc
    s_addc_u32 s63, s63, 0
    s_lshl_b32 s43, s16, 11
    v_add_u32 v79, s43, v3
    s_add_u32 s40, s43, {L_T4}
    s_lshl_b32 s42, s16, 10
    {"" if E("T4POS", 1) else T4L}
    s_add_u32 s43, s42, {TB_T1}
    s_cmp_eq_u32 s34, 0
    s_cselect_b32 s68, 8192, 0
    s_add_u32 s43, s43, s68
    v_add_u32 v77, s43, v3
    s_or_b32 s69, s34, s16
    s_cselect_b32 s68, 0, 2048
    s_add_u32 s68, s68, {TB_T2}
    v_add_u32 v78, s68, v3
    {"" if E("T1POS", 1) else T1L}
    s_sub_u32 s17, 16, s34
    s_cmp_eq_u32 s34, 0
    s_cselect_b32 s17, 8, s17
    s_bitcmp1_b32 s35, 0
    s_cselect_b32 s17, s17, s34
    s_lshr_b32 s36, s35, 1
    s_lshl_b32 s36, s36, 4
    s_add_u32 s17, s17, s36
    s_lshl_b32 s36, s16, 8
    s_add_u32 s36, s36, s17
    s_lshl_b32 s36, s36, 11
    s_add_u32 s37, s36, {128*2048}
    s_mov_b32 s10, {2048*1024*2}
    s_mov_b32 s11, 0x00020000""")
    XW, AB, S, MB, R, BFR, D0, DA, OB = 32, 48, 52, 56, 60, 80, 96, 100, 176
    VO, XWA, TRA_, RT, MT, STW, MW, NON, VZ, SH, N_, G_ = 160, 161, 162, 163, 164, 165, 166, 167, 168, 169, 170, 171
    k.c("A-matrix base: lane m = 2k+comp, rows j = 4g+i")
    k(f"""v_and_b32 v{N_}, 15, v0
    v_bfe_u32 v{G_}, v0, 4, 2
    v_lshrrev_b32 v72, 1, v{N_}
    v_and_b32 v73, 1, v0
    v_cmp_eq_u32 vcc, 1, v{N_}
    v_mov_b32 v74, s17
    v_cndmask_b32_e64 v72, v72, 8, vcc
    v_cndmask_b32_e64 v74, v74, 0, vcc
    v_cndmask_b32_e64 v73, v73, 0, vcc
    v_lshl_add_u32 v74, v{G_}, 9, v74
    s_waitcnt lgkmcnt(0)
    s_mov_b32 s8, s4
    s_mov_b32 s9, s5""")
    stamp(k, 1)
    if E("FSTOP", 9) == 0: srd(k, 12, 6, WS_SIZE); stamp_out(k); k("s_endpgm")
    for h in range(2):
        for jj in range(2):
            k(f"buffer_load_dwordx4 v[{XW+8*jj+4*h}:{XW+8*jj+4*h+3}], v3, s[8:11], s{36+jj} offen offset:{h*1024}")
    nonce_issue(k, 6)
    srd(k, 12, 6, WS_SIZE)
    srd(k, 20, 52, 1024 * 3584 * 2)
    k(f"""s_mov_b32 s26, 4194304
    s_mov_b32 s27, 0x00020000
    s_getreg_b32 s39, hwreg(HW_REG_XCC_ID)
    s_and_b32 s39, s39, 7
    v_mul_u32_u24 v74, v72, v74
    v_lshl_add_u32 v74, v73, 9, v74
    v_lshlrev_b32 v72, 7, v72""")
    for i in range(4):
        k(f"v_and_b32 v{AB+i}, 2047, v74")
        if i < 3: k("v_add_u32 v74, v74, v72")
    for i in range(4): k(f"v_cvt_f32_u32 v{AB+i}, v{AB+i}")
    for i in range(4): k(f"v_mul_f32 v{AB+i}, {f32(1.0/2048)}, v{AB+i}")
    for i in range(4): k(f"v_cos_f32 v{AB+i}, v{AB+i}")
    for i in range(4): k(f"v_mul_f32 v{AB+i}, {f32(1.0/16)}, v{AB+i}")
    k(f"""v_lshlrev_b32 v{VO}, 20, v{G_}
    v_lshl_add_u32 v{VO}, v1, 15, v{VO}
    v_lshl_add_u32 v{VO}, v{N_}, 4, v{VO}
    v_mul_u32_u24 v{XWA}, {2*XP}, v1
    v_add_u32 v{XWA}, v{XWA}, v3
    v_lshrrev_b32 v72, 2, v2
    v_mul_u32_u24 v{TRA_}, {XP}, v72
    v_and_b32 v72, 3, v0
    v_lshl_add_u32 v{TRA_}, v72, 7, v{TRA_}
    v_lshl_add_u32 v{TRA_}, v1, 3, v{TRA_}
    v_lshlrev_b32 v{RT}, 4, v{G_}
    v_add_u32 v{RT}, {L_ST}, v{RT}
    v_lshlrev_b32 v{MT}, 3, v{G_}
    v_add_u32 v{MT}, {L_ST+64}, v{MT}
    v_lshrrev_b32 v72, 5, v0
    v_lshlrev_b32 v{STW}, 2, v72
    v_add_u32 v{KW}, {L_KEY}, v{STW}
    v_add_u32 v{STW}, {L_ST}, v{STW}
    v_lshlrev_b32 v{MW}, 1, v72
    v_add_u32 v{MW}, {L_ST+64}, v{MW}
    v_mov_b32 v{VZ}, 0
    v_and_b32 v{SH}, 1, v0
    v_lshlrev_b32 v{SH}, 3, v{SH}
    s_lshl_b32 s3, s34, 4
    s_and_b32 s64, s35, 1
    s_lshl_b32 s64, s64, 3
    s_lshr_b32 s65, s35, 1
    s_add_u32 s64, s64, s65
    s_and_b32 s65, s16, 3
    s_xor_b32 s64, s64, s65
    s_add_u32 s64, s64, s3
    s_add_u32 s3, s3, s35
    s_lshl_b32 s64, s64, 8
    s_add_u32 s64, s64, {WS_Z1}
    s_add_u32 s65, s64, 262144
    s_add_u32 s66, s64, 524288
    s_add_u32 s67, s64, {524288+262144}
    s_mov_b32 s44, 0x3f803f80
    s_mov_b32 s46, {f32(1.0/1024)}
    s_mov_b32 s33, {ZMASK}""")
    k.c("row ids: s30 = t, s31 = mirror row")
    k(f"""s_lshl_b32 s60, s35, 3
    s_add_u32 s60, s60, s16
    s_lshl_b32 s30, s60, 4
    s_add_u32 s30, s30, s34
    s_cmp_lg_u32 s34, 0
    s_cbranch_scc1 f_g1
    s_cmp_ge_u32 s16, 4
    s_cselect_b32 s31, 56, 0
    s_sub_u32 s30, s30, s31
    s_cmp_lg_u32 s16, 0
    s_cbranch_scc1 f_g1
    s_cmp_ge_u32 s35, 8
    s_cselect_b32 s31, 960, 0
    s_sub_u32 s30, s30, s31
    f_g1:
    s_sub_u32 s31, 2048, s30
    s_cmp_eq_u32 s30, 0
    s_cselect_b32 s31, 1024, s31
    s_lshl_b32 s18, s30, 11
    s_lshl_b32 s19, s31, 11
    s_lshl_b32 s61, s34, 19
    s_add_u32 s61, s61, {WS_Z1}
    s_lshl_b32 s28, s60, 8
    s_add_u32 s28, s28, s61
    s_add_u32 s29, s28, 131072
    s_add_u32 s50, s28, 262144
    s_add_u32 s51, s28, 393216
    s_lshl_b32 s73, s35, 15
    s_add_u32 s73, s73, s61
    s_lshl_b32 s42, s16, 12
    s_add_u32 s72, s73, s42
    s_add_u32 s45, s42, {L_X}
    s_lshl_b32 s42, s16, 8
    s_add_u32 s74, s73, s42
    s_add_u32 s75, s74, 4096
    s_lshl_b32 s76, s34, 7
    s_add_u32 s77, s76, {WS_KR}
    s_add_u32 s76, s76, {WS_XR}
    s_lshl_b32 s78, s35, 3
    s_add_u32 s79, s78, s77
    s_add_u32 s78, s78, s76
    s_lshl_b32 s80, s3, 4
    s_add_u32 s80, s80, {WS_KEY}
    s_lshl_b32 s81, s34, 12
    s_add_u32 s81, s81, {WS_KEY}
    s_lshl_b32 s82, s35, 11
    s_add_u32 s82, s82, {WS_CAP}""")
    k.c("base table (cos, sin)(d*k1/1024) of the column class wave&3")
    k(f"""v_cvt_f32_u32 v75, v{N_}
    s_lshl_b32 s42, s35, 2
    s_and_b32 s43, s16, 3
    s_add_u32 s42, s42, s43
    v_lshl_add_u32 v76, v{G_}, 8, s42
    v_mul_f32 v75, {f32(1.0/1024)}, v75
    v_cvt_f32_u32 v76, v76
    v_mul_f32 v60, v76, v75""")
    for i in range(1, 4): k(f"v_fmamk_f32 v{60+i}, v75, {f32(64.0*i)}, v60")
    for i in range(4): k(f"v_cos_f32 v{64+i}, v{60+i}")
    for i in range(4): k(f"v_sin_f32 v{68+i}, v{60+i}")
    for i in range(4): k(f"v_cvt_pk_f16_f32 v{TB+i}, v{64+i}, v{68+i}")
    def xc():
        k(f"""s_mov_b32 m0, s45
        s_add_u32 s43, s45, 2048
        buffer_load_dwordx4 v3, s[8:11], s18 offen lds
        buffer_load_dwordx4 v3, s[8:11], s18 offen offset:1024 lds
        s_mov_b32 m0, s43
        s_nop 0
        buffer_load_dwordx4 v3, s[8:11], s19 offen lds
        buffer_load_dwordx4 v3, s[8:11], s19 offen offset:1024 lds""")
    XPOS = E("XPOS", 5)
    NX = (4 if XPOS == 2 else 0) + 2 * (E("T4POS", 1) == 1) + 3 * (E("T1POS", 1) == 1)
    if E("T4POS", 1) == 1: k(T4L)
    if E("T1POS", 1) == 1: k(T1L)
    if XPOS == 2: xc()
    k("s_waitcnt lgkmcnt(0)")
    nonce_finish(k)
    k(f"v_lshrrev_b32 v{EG}, v{SH}, s32")
    for i in range(1, 4): k(f"v_lshrrev_b32 v{EG+i}, {2*i}, v{EG}")
    k(f"""v_mov_b32 v72, s32
    v_mov_b32 v73, s39
    v_mov_b32 v74, {L_K}
    s_cmp_eq_u32 s16, 0
    s_cselect_b64 exec, 1, 0
    ds_write_b32 v74, v{VZ} offset:4
    buffer_store_dwordx2 v[72:73], v{VZ}, s[12:15], s78 offen sc1
    s_mov_b64 exec, -1""")
    NX += 1
    for h in range(2):
        for jj in range(2):
            u = 2*h + jj
            k(f"s_waitcnt vmcnt({3 - u + NX})")
            k(f"ds_write_b128 v{XWA}, v[{XW+8*jj+4*h}:{XW+8*jj+4*h+3}] offset:{L_S + jj*XP + h*1024}")
            for q in range(4):
                r = XW + 8*jj + 4*h + q
                first = (h == 0 and q == 0)
                k(f"v_dot2_f32_bf16 v{S+jj}, v{r}, s44, {'0' if first else f'v{S+jj}'}")
                k(f"v_dot2_f32_bf16 v{S+2+jj}, v{r}, v{r}, {'0' if first else f'v{S+2+jj}'}")
    stamp(k, 2)
    if XPOS == 0: xc()
    else: k("s_nop 2")
    def red1(js):
        for j in js: k(f"v_permlane32_swap_b32 v{S+j}, v{S+j+1}")
        for j in js: k(f"v_add_f32 v{S+j}, v{S+j}, v{S+j+1}")
        regs = [S + j for j in js]
        row_allreduce(k, regs)
        for r in regs: k(f"v_add_f32_dpp v{r}, v{r}, v{r} row_bcast:15 row_mask:0xa bank_mask:0xf")
    AB2 = E("AB2", 0)
    def trreads():
        for ah in range(2):
            for q in range(4):
                u = ah * 4 + q
                k(f"ds_read_b64_tr_b16 v[{BFR+2*u}:{BFR+2*u+1}], v{TRA_} offset:{L_S + ah*64 + q*512}")
    if AB2 == 1:
        k("s_waitcnt lgkmcnt(0)\ns_barrier"); trreads()
    red1((0, 2))
    if AB2 == 2:
        k("s_waitcnt lgkmcnt(0)\ns_barrier"); trreads()
    k.c("lanes 31 / 63 hold the two rows")
    V = S + 2
    k(f"""v_mul_f32 v{S}, s46, v{S}
    v_mul_f32 v{V}, s46, v{V}
    v_mul_f32 v{R+4}, v{S}, v{S}
    v_cvt_pk_bf16_f32 v{MB}, -v{S}, -v{S}
    v_sub_f32 v{V}, v{V}, v{R+4}
    v_mul_f32 v{R+6}, {f32(512.0)}, v{V}
    v_cmp_gt_f32 vcc, v{R+4}, v{R+6}
    s_or_b32 s68, vcc_lo, vcc_hi
    s_bitcmp1_b32 s68, 31
    s_cbranch_scc1 f_slowvar
    f_var:""")
    round_bf16(k, V, V)
    k(f"v_add_f32 v{V}, {f32(1e-5)}, v{V}")
    round_bf16(k, V, V)
    k(f"v_sqrt_f32 v{V}, v{V}")
    round_bf16(k, V, V)
    k(f"""v_rcp_f32 v{V}, v{V}
    s_mov_b32 exec_lo, 0x80000000
    s_mov_b32 exec_hi, 0x80000000
    ds_write_b16 v{MW}, v{MB}
    ds_write_b32 v{STW}, v{V}
    s_mov_b64 exec, -1
    s_waitcnt lgkmcnt(0)
    s_barrier""")
    stamp(k, 30)
    if E("FSTOP", 9) == 1: stamp_out(k); k("s_endpgm")
    k(f"""ds_read_b128 v[{R}:{R+3}], v{RT}
    ds_read_b64 v[{R+4}:{R+5}], v{MT}""")
    if not AB2: trreads()
    if XPOS == 1: xc()
    k(f"s_waitcnt lgkmcnt({0 if AB2 else 8})")
    BM = R + 4; AH = 58
    for h in range(2): pmul(k, AB + 2*h, AB + 2*h, R + 2*h)
    for h in range(2): k(f"v_cvt_pk_bf16_f32 v{AH+h}, v{AB+2*h}, v{AB+2*h+1}")
    k(f"v_mfma_f32_16x16x16_bf16 v[{D0}:{D0+3}], v[{AH}:{AH+1}], v[{BM}:{BM+1}], 0")
    k("s_waitcnt lgkmcnt(0)")
    for u in range(8):
        k(f"v_mfma_f32_16x16x16_bf16 v[{DA+4*u}:{DA+4*u+3}], v[{AH}:{AH+1}], v[{BFR+2*u}:{BFR+2*u+1}], v[{D0}:{D0+3}]")
    for ah in range(2):
        for kp in range(2):
            o = OB + (2*ah + kp) * 4
            for q in range(4):
                u = ah * 4 + q
                k(f"v_cvt_pk_f16_f32 v{o+q}, v{DA+4*u+2*kp}, v{DA+4*u+2*kp+1}")
            for q in range(4): k(f"v_bfi_b32 v{o+q}, s33, v{EG+q}, v{o+q}")
            if ah + kp == 0: stamp(k, 32)
            k(f"buffer_store_dwordx4 v[{o}:{o+3}], v{VO}, s[12:15], s{64 + 2*kp + ah} offen sc1")
    stamp(k, 3)
    k("s_waitcnt vmcnt(4)\ns_barrier")
    k.c("================= wait 1: tables, x rows, addresses =================")
    n_, g_ = 48, 49
    k(f"""v_mov_b32 v{n_}, v{N_}
    v_mov_b32 v{g_}, v{G_}
    v_mov_b32 v50, s32
    v_mov_b32 v51, s39""")
    def zhint():
        k(f"""s_cmp_lg_u32 s16, {E("HW", 0)}
        s_cbranch_scc1 f_nzl
        s_lshl_b32 s68, s3, 7
        s_add_u32 s68, s68, {WS_ZL}
        v_mov_b32 v52, 0
        s_mov_b64 exec, 1
        buffer_store_dwordx2 v[50:51], v52, s[12:15], s68 offen sc1
        s_mov_b64 exec, -1
        f_nzl:""")
    if E("ZPOS", 0) == 0: zhint()
    for u in range(12):
        k(f"ds_read_b128 v[{T4+4*u}:{T4+4*u+3}], v3 offset:{L_T4 + u*1024}")
    stamp(k, 33)
    k(f"""v_lshlrev_b32 v{ZL}, 15, v{g_}
    v_lshl_add_u32 v{ZL}, v{n_}, 4, v{ZL}
    v_lshlrev_b32 v{ZS}, 13, v{g_}
    v_lshl_add_u32 v{ZS}, v{n_}, 4, v{ZS}
    v_lshl_add_u32 v{R0}, v1, 10, v{ZS}
    v_xor_b32 v{R1}, 64, v{R0}
    v_lshrrev_b32 v57, 1, v1
    v_lshlrev_b32 v{A0}, 13, v57
    v_and_b32 v57, 1, v1
    v_lshl_add_u32 v{A0}, v57, 3, v{A0}
    v_lshl_add_u32 v{A0}, v{g_}, 11, v{A0}
    v_and_b32 v57, 3, v0
    v_lshl_add_u32 v{A0}, v57, 8, v{A0}
    v_lshrrev_b32 v58, 2, v{n_}
    v_lshl_add_u32 v{A0}, v58, 4, v{A0}
    v_and_b32 v59, 1, v0
    v_lshl_add_u32 v{A0}, v59, 6, v{A0}
    v_xor_b32 v{A1}, 64, v{A0}
    v_lshl_add_u32 v57, v{g_}, 2, v57
    v_lshlrev_b32 v57, 4, v57
    v_lshl_add_u32 v250, v58, 8, v57
    v_add_u32 v{PA}, {L_P}, v3
    v_sub_u32 v{PB}, {L_P + 63*16}, v3
    v_lshl_add_u32 v57, v{n_}, 2, v{g_}
    v_lshl_add_u32 v{XA_}, v57, 3, s45
    s_add_u32 s43, s45, {2048+504}
    v_lshlrev_b32 v58, 3, v57
    v_sub_u32 v{XB_}, s43, v58
    v_add_u32 v57, 1, v57
    v_and_b32 v58, 3, v57
    v_and_b32 v57, 60, v57
    v_lshl_add_u32 v{BP}, v58, 6, v57
    v_add_u32 v{NAT}, s45, v3
    v_lshlrev_b32 v{KR_}, 2, v{n_}
    v_add_u32 v{KR_}, {L_KEY}, v{KR_}
    v_lshlrev_b32 v{FA}, 12, v2
    v_and_b32 v{REC}, 0x70, v3
    v_lshlrev_b32 v{PG}, 4, v0
    v_and_b32 v57, 3, v0
    v_bfe_u32 v58, v0, 2, 4
    v_lshl_add_u32 v57, v57, 4, v58
    v_bfe_u32 v58, v0, 6, 2
    v_lshl_add_u32 v57, v58, 6, v57
    v_lshrrev_b32 v58, 8, v0
    v_lshl_add_u32 v57, v58, 9, v57
    v_lshlrev_b32 v57, 4, v57
    v_add_u32 v{PS}, {L_P}, v57""")
    CAPA = 250; Z1A = 249; T3A = 248
    k(f"s_and_b32 s42, s35, 3\ns_lshl_b32 s42, s42, 8\nv_xor_b32 v{Z1A}, s42, v3")
    CEN = 0x00020002 if ZMASK == 0x00030003 else 0
    k(f"s_mov_b32 s44, {CEN}")
    for i in range(4): k(f"v_and_b32 v{EG+i}, s33, v{EG+i}")
    for i in range(4): k(f"v_xor_b32 v{EG+i}, s44, v{EG+i}")
    XT = D3 + 16
    def xreads():
        for T in range(4):
            k(f"ds_read_b64 v[{XT+2*T}:{XT+2*T+1}], v{XA_} offset:{512*T}")
        for T in range(4):
            k(f"ds_read_b64 v[{XT+8+2*T}:{XT+8+2*T+1}], v{XB_} offset:{512*(3-T)}")
    if XPOS < 3: xreads()
    FPJ = E("FPJ", 5); FPY = E("FPY", 0)
    k(f"""s_mov_b32 s41, {WS_PAR+8192}
    s_and_b32 s40, s16, 4
    s_lshl_b32 s40, s40, 10
    s_sub_u32 s40, {WS_PAR+16384}, s40
    s_lshl_b32 s54, s3, 13
    s_add_u32 s54, s54, {WS_SLOT}
    s_lshr_b32 s43, s60, 6
    {"s_and_b32 s55, s35, 7" if FPY else "s_and_b32 s55, s60, 63"}
    {"s_lshl_b32 s55, s55, 2" if FPY else ""}
    {"s_and_b32 s52, s16, 3" if FPY else ""}
    {"s_add_u32 s55, s55, s52" if FPY else ""}
    s_mul_i32 s55, s55, {FPJ}
    s_lshl_b32 s43, s43, 9
    s_add_u32 s55, s55, s43
    s_add_u32 s55, s55, {512 - (32 if FPY else 64)*FPJ - E("FPJO", 0)}
    s_mul_i32 s55, s55, 7168
    s_mul_i32 s43, s34, 896
    s_add_u32 s55, s55, s43
    s_mov_b32 s48, {((1 << (8 * FPJ)) - 1) & 0xffffffff}
    s_mov_b32 s49, {((1 << (8 * FPJ)) - 1) >> 32}
    s_cmp_lt_u32 s16, {4 if FPY else 0}
    s_cselect_b64 s[48:49], 0, s[48:49]
    s_mov_b32 s52, {WS_PAR}
    s_mov_b32 s53, {WS_PAR+4096}""")
    def xunpack():
        k("s_waitcnt lgkmcnt(0)")
        for i in range(8): unpack_bf16(k, XA2 + 2*i, XT + i)
        for i in range(8): unpack_bf16(k, XB2 + 2*i, XT + 8 + i)
    if XPOS < 3: xunpack()
    stamp(k, 34)
    if E("DRAIN", 0): k("s_waitcnt vmcnt(0)")
    if E("FB2", 1): k("s_barrier")
    stamp(k, 4)
    if E("FSTOP", 9) == 2: stamp_out(k); k("s_endpgm")
    CP = T3
    def cap_issue(lab, fl="sc1"):
        k(f"s_cmp_lg_u32 s34, 0\ns_cbranch_scc1 {lab}\ns_add_u32 s68, s82, 32768")
        for j in range(2):
            k(f"buffer_load_dwordx4 v[{CP+8+4*j}:{CP+8+4*j+3}], v{CAPA}, s[12:15], s68 offen offset:{j*1024} {fl}")
        k(f"{lab}:")
        for j in range(2):
            k(f"buffer_load_dwordx4 v[{CP+4*j}:{CP+4*j+3}], v{CAPA}, s[12:15], s82 offen offset:{j*1024} {fl}")
    assert XPOS == 5
    xc()
    k(f"buffer_load_dwordx4 v[{RCL}:{RCL+3}], v{REC}, s[12:15], s76 offen {ES('CFL', '')}")
    def z1_issue():
        for i in range(4):
            k(f"buffer_load_dwordx4 v[{L+4*i}:{L+4*i+3}], v{Z1A}, s[12:15], s72 offen offset:{i*1024} sc1")
    k.c("s47: bit0 = stage 1 done, bit1 = table built (waves 0-3 build one column class each)")
    TORD = E("TORD", 0)
    k(f"""v_add_u32 v{T3A}, {L_T3}, v3
    s_mov_b32 s47, 2
    s_mov_b32 s83, 0
    s_cmp_ge_u32 s16, 4
    s_cbranch_scc1 f_s0""")
    if TORD == 2: k("s_mov_b32 s47, 0\ns_branch f_s0")
    if E("SLC0", 4): k(f"s_sleep {E('SLC0', 4)}")
    cap_issue("f_ci0", ES("CFL", ""))
    if TORD == 1:
        if E("SLF0", 0): k(f"s_sleep {E('SLF0', 0)}")
        z1_issue()
    k(f"""s_mov_b32 s47, 0
    s_waitcnt vmcnt({4 if TORD else 0})
    f_c1:""")
    t = D
    chk_bytes(k, range(CP, CP + 8), t)
    k(f"""s_cmp_lg_u32 s34, 0
    s_cbranch_scc1 f_c1n
    s_mov_b64 s[68:69], vcc""")
    chk_bytes(k, range(CP + 8, CP + 16), t)
    k(f"""s_or_b64 vcc, vcc, s[68:69]
    f_c1n:
    {"" if E("NOCHK", 0) & 1 else "s_cbranch_vccnz f_c1bad"}
    f_c1ok:""")
    stamp(k, 36)
    stamp_val(k, 52, 47)
    def capsum(b):
        padd(k, b, b, b + 4); padd(k, b + 2, b + 2, b + 6)
        for sh in (4, 8):
            for i in range(4): k(f"v_add_f32_dpp v{b+i}, v{b+i}, v{b+i} row_ror:{sh} {DPPM}")
        rb2(k, b, t); rb2(k, b + 2, t + 1)
    capsum(CP)
    for i in range(4): k(f"v_add_f32 v{CP+i}, 1.0, v{CP+i}")
    rb2(k, CP, t); rb2(k, CP + 2, t + 1)
    k(f"""v_max_f32_e64 v{t}, abs(v{CP}), abs(v{CP+1})
    v_max3_f32 v{t}, abs(v{CP+2}), abs(v{CP+3}), v{t}
    s_cmp_lg_u32 s34, 0
    s_cbranch_scc1 f_c1m
    v_mov_b32 v{t+2}, v{t}""")
    capsum(CP + 8)
    k(f"""v_max3_f32 v{t}, abs(v{CP+8}), abs(v{CP+9}), v{t+2}
    v_max3_f32 v{t}, abs(v{CP+10}), abs(v{CP+11}), v{t}
    f_c1m:
    s_nop 1""")
    for qp in ("[1,0,3,2]", "[2,3,0,1]"):
        k(f"v_max_f32_dpp v{t}, v{t}, v{t} quad_perm:{qp} {DPPM}")
    for g in range(4): k(f"v_readlane_b32 s{68+g}, v{t}, {16*g}")
    k(f"""s_max_u32 s68, s68, s69
    s_max_u32 s70, s70, s71
    s_max_u32 s68, s68, s70
    s_lshr_b32 s68, s68, 23
    s_sub_u32 s69, s68, 120
    s_sub_i32 s68, s68, 127
    s_max_i32 s68, s68, -100
    s_min_i32 s68, s68, 120
    s_cmp_le_u32 s69, 9
    s_cselect_b32 s68, 2, s68
    s_cselect_b32 s17, 0, 0x20000
    s_sub_i32 s69, 127, s68
    s_lshl_b32 s69, s69, 23""")
    def pick(b):
        k(f"""v_cndmask_b32 v{b}, v{b}, v{b+1}, s[64:65]
        v_cndmask_b32 v{b+2}, v{b+2}, v{b+3}, s[64:65]
        v_cndmask_b32 v{b}, v{b}, v{b+2}, s[66:67]""")
    k("""s_bitcmp1_b32 s16, 0
    s_cselect_b64 s[64:65], -1, 0
    s_bitcmp1_b32 s16, 1
    s_cselect_b64 s[66:67], -1, 0
    s_lshl_b32 s70, s16, 11""")
    pick(CP)
    BC = t + 8; TW = t + 16
    k(f"""v_mul_f32 v{CP}, s69, v{CP}
    v_add_u32 v{t+5}, s70, v{T3A}
    v_cvt_pk_f16_f32 v{t}, v{CP}, v{CP}
    s_nop 0""")
    for i in range(4): k(f"v_mov_b32_dpp v{BC+i}, v{t} quad_perm:[{i},{i},{i},{i}] {DPPM}")
    for i in range(4):
        k(f"v_pk_mul_f16 v{TW+i}, v{TB+i}, v{BC+i}")
        k(f"v_pk_mul_f16 v{TW+4+i}, v{TB+i}, v{BC+i} op_sel:[1,0] op_sel_hi:[0,1] neg_lo:[1,0]")
    k(f"""ds_write_b128 v{t+5}, v[{TW}:{TW+3}]
    ds_write_b128 v{t+5}, v[{TW+4}:{TW+7}] offset:1024
    s_cmp_lg_u32 s16, 0
    s_cbranch_scc1 f_nkr
    v_mov_b32 v{t+6}, s17
    s_mov_b32 s61, s68
    s_mov_b64 exec, 1
    ds_write_b32 v{T3A}, v{t+6} offset:8192
    s_mov_b64 exec, -1
    f_nkr:
    s_cmp_eq_u32 s34, 0
    s_cbranch_scc1 f_sa
    f_nsa:
    v_mov_b32 v{t+6}, 1
    s_mov_b64 exec, 1
    ds_add_u32 v{T3A}, v{t+6} offset:8196
    s_mov_b64 exec, -1
    s_bitset1_b32 s47, 1
    s_bitcmp1_b32 s47, 0
    s_cbranch_scc1 f_bar
    s_branch f_s1
    f_s0:""")
    if E("SLF", 8): k(f"s_sleep {E('SLF', 8)}")
    if not TORD: k("f_s1:")
    z1_issue()
    k("s_waitcnt vmcnt(4)")
    if TORD: k("f_s1:")
    k("s_mov_b32 s83, 0")
    stamp(k, 5)
    xreads()
    k.c("same die for the whole group? (records not there yet count as no)")
    k(f"""v_xor_b32 v2, s32, v{RCL}
    v_bitop3_b32 v2, v2, v{RCL+2}, s32 bitop3:0xf6
    v_bitop3_b32 v2, v2, v{RCL+1}, s39 bitop3:0xf6
    v_bitop3_b32 v2, v2, v{RCL+3}, s39 bitop3:0xf6
    v_cmp_ne_u32 vcc, 0, v2""")
    k("s_mov_b32 s38, vcc_lo")
    KF = RCL + 1
    k(f"v_mov_b32 v{RCL}, {L_K}")
    def t3reads():
        for u in range(8): k(f"ds_read_b128 v[{T3+4*u}:{T3+4*u+3}], v{T3A} offset:{u*1024}")
        k(f"ds_read_b32 v{KF}, v{RCL}")
    def t3try(lab):
        k(f"""ds_read_b32 v{RCL+2}, v{RCL} offset:4
        s_waitcnt lgkmcnt(0)
        v_readfirstlane_b32 s43, v{RCL+2}
        s_cmp_lg_u32 s43, 4
        s_cbranch_scc1 {lab}""")
        t3reads()
        k(f"s_bitset1_b32 s47, 2\n{lab}:")
    xunpack()
    if TORD == 2:
        if E("SLC2", 0): k(f"s_sleep {E('SLC2', 0)}")
        k("s_cmp_lt_u32 s16, 4\ns_cselect_b64 exec, -1, 0")
        cap_issue("f_ci2", ES("CFL", ""))
        k("s_mov_b64 exec, -1")
    else: t3try("f_t1")
    stamp(k, 6)
    k.c("================= phase B =================")
    k("f_z1:")
    LS = D3
    for bsel in range(2):
        Pq = L + 8 * bsel; Q = LS + 8 * bsel
        k(f"s_waitcnt vmcnt({(2 if bsel == 0 else 0) + (2 if TORD == 2 else 0)})")
        if bsel == 1: stamp(k, 7)
        for cc in range(4):
            for e in range(2): k(f"v_xor_b32 v{Q+2*cc+e}, v{Pq+4*e+cc}, v{EG+cc}")
        for cc in range(4):
            d = D + 16*bsel + 4*cc
            k(f"v_mfma_f32_16x16x16_f16 v[{d}:{d+3}], v[{T1+2*bsel}:{T1+2*bsel+1}], v[{Q+2*cc}:{Q+2*cc+1}], 0")
            for e in range(2):
                r = 2*cc + e
                if bsel == 0 and r == 0: k(f"v_xor_b32 v2, s44, v{Q}")
                else: k(f"v_bitop3_b32 v2, v2, v{Q+r}, s44 bitop3:0xf6")
    k(f"""v_and_b32 v2, s33, v2
    v_cmp_ne_u32 vcc, 0, v2
    s_cbranch_vccnz f_z1bad
    f_z1ok:""")
    for cc in range(4):
        for kdl in range(2):
            o = L + 4*cc + 2*kdl
            for bsel in range(2):
                d = D + 16*bsel + 4*cc + 2*kdl
                k(f"v_cvt_pk_f16_f32 v{o+bsel}, v{d}, v{d+1}")
            k(f"ds_write_b64 v{(A0, A1)[cc & 1]}, v[{o}:{o+1}] offset:{L_S + kdl*1024 + (cc>>1)*128}")
    stamp_val(k, 50, 83)
    k(f"""s_bitset1_b32 s47, 0
    s_mov_b32 s83, 0
    {"s_waitcnt vmcnt(0)" if TORD == 2 else ""}
    s_bitcmp1_b32 s47, 1
    s_cbranch_scc0 f_c1
    s_bitcmp1_b32 s47, 2
    s_cbranch_scc1 f_bar""")
    t3try("f_bar")
    k(f"""s_waitcnt lgkmcnt(0)
    s_bitcmp1_b32 s47, 2
    s_barrier
    s_cbranch_scc0 f_t3l
    f_t3d:""")
    stamp(k, 8)
    for n2l in range(4):
        k(f"ds_read_b128 v[{L+4*n2l}:{L+4*n2l+3}], v{(R0, R1)[n2l & 1]} offset:{L_S + n2l*256}")
    for i in range(4): k(f"v_xor_b32 v{EG+i}, {ZMASK ^ CEN}, v{EG+i}")
    PPOS = E("PPOS", 2)
    PRG = 24
    def par_issue(fl="sc1"):
        k(f"buffer_load_dwordx4 v[{PRA}:{PRA+3}], v{PG}, s[12:15], s52 offen {fl}")
    if PPOS == 0: par_issue(ES("CFL", ""))
    def parb_issue(fl="sc1"):
        k(f"buffer_load_dwordx4 v[{PRB0}:{PRB0+3}], v{PG}, s[12:15], s41 offen {fl}")
        k(f"buffer_load_dwordx4 v[{PRC}:{PRC+3}], v{PG}, s[12:15], s40 offen {fl}")
    X = TB
    def s2(n):
        k(f"s_waitcnt lgkmcnt({3-n})")
        for part in range(2):
            d = D + 8*n + 4*part
            k(f"v_mfma_f32_16x16x32_f16 v[{d}:{d+3}], v[{L+4*n}:{L+4*n+3}], v[{T2+4*part}:{T2+4*part+3}], 0")
    def cv2(n):
        for i in range(4): k(f"v_cvt_pk_f16_f32 v{X+4*n+i}, v{D+8*n+i}, v{D+8*n+4+i}")
    def d1(n):
        for part in range(2):
            d = D3 + 8*n + 4*part
            k(f"v_mfma_f32_16x16x32_f16 v[{d}:{d+3}], v[{X+4*n}:{X+4*n+3}], v[{T3+8*n+4*part}:{T3+8*n+4*part+3}], 0")
    def cv3(n):
        for i in range(4): k(f"v_cvt_pk_f16_f32 v{L+4*i+n}, v{D3+8*n+i}, v{D3+8*n+4+i}")
        for i in range(4): k(f"v_bfi_b32 v{L+4*i+n}, s33, v{EG+n}, v{L+4*i+n}")
    for n in range(4): s2(n)
    k(f"v_mov_b32 v2, v{KF}\nv_xor_b32 v{EG+3}, v{KF}, v{EG+3}")
    for u in range(12, 16): k(f"ds_read_b128 v[{T4+4*u}:{T4+4*u+3}], v3 offset:{L_T4 + u*1024}")
    if PPOS == 1: par_issue(ES("CFL", ""))
    cv2(0); cv2(1); d1(0); cv2(2); d1(1); cv2(3); d1(2); d1(3)
    k("s_cmp_eq_u32 s16, 0\ns_cbranch_scc1 f_sb\nf_nsb:")
    if PPOS == 2: par_issue(ES("CFL", ""))
    for n in range(4): cv3(n)
    def zf_store(fl):
        for i in range(4):
            k(f"buffer_store_dwordx4 v[{L+4*i}:{L+4*i+3}], v{ZS}, s[12:15], s{74 + (i >> 1)} offen offset:{(i & 1)*2048} {fl}")
    k("s_cmp_lg_u32 s38, 0\ns_cbranch_scc1 f_slowst")
    zf_store(ES("ZST", "nt"))
    k("f_std:")
    stamp(k, 9)
    k.c("================= wait 2: modulation vectors into LDS =================")
    ZFL = ES("ZFL", "sc1 nt")
    k(f"s_mov_b32 s83, 0\ns_waitcnt vmcnt(4)\nf_pp:")
    chk_bytes(k, range(PRA, PRA + 4), D)
    k(f"""s_cbranch_vccnz f_ppbad
    f_ppok:""")
    stamp_val(k, 53, 83)
    stamp_val(k, 55, 38)
    k(f"""ds_write_b128 v{PS}, v[{PRA}:{PRA+3}]
    s_cmp_ge_u32 s16, 4
    s_cbranch_scc1 f_pw""")
    padd(k, D, PRA, PRA + 2)
    k(f"v_add_f32 v{D}, v{D}, v{D+1}")
    wave_reduce_to63(k, [D])
    k(f"""s_mov_b32 exec_lo, 0
    s_mov_b32 exec_hi, 0x80000000
    ds_write_b32 v{KW}, v{D} offset:64
    s_mov_b64 exec, -1
    f_pw:
    s_waitcnt lgkmcnt(0)""")
    stamp(k, 10)
    k("s_barrier")
    for j in range(4):
        k(f"buffer_load_dwordx4 v[{L+4*j}:{L+4*j+3}], v{ZL}, s[12:15], s{(28, 29, 50, 51)[j]} offen {ZFL}")
    GA_, GB_, VA, VB = 112, 128, 48, 64
    V_V, V_SB, V_G, V_GB, V_C1 = 0, 1, 2, 3, 4
    def pread(vec, base, row):
        return [f"ds_read_b128 v[{base+4*T}:{base+4*T+3}], v{(PA, PB)[row]} offset:{vec*4096 + (T, 3-T)[row]*1024}" for T in range(4)]
    Y, YN, TT, QP = 80, 96, 144, 28
    prq = [x for q in zip(pread(V_G, GA_, 0), pread(V_G, GB_, 1), pread(V_V, VA, 0), pread(V_V, VB, 1)) for x in q]
    NPR = E("NPR", 8)
    for x in prq[:NPR]: k(x)
    k(f"v_xor_b32 v{EG+3}, v2, v{EG+3}")
    for i in range(4): k(f"v_xor_b32 v{EG+i}, s44, v{EG+i}")
    FPF = 1 if FPJ else 0
    k(f"""v_bfe_u32 v20, v0, 3, 3
    v_mul_u32_u24 v20, 7168, v20
    v_and_b32 v{TT+7}, 7, v0
    v_min_u32 v{TT+7}, 6, v{TT+7}
    v_lshl_add_u32 v{TT+7}, v{TT+7}, 7, v20
    v_mov_b32 v20, {L_KEY + 64}
    v_lshrrev_b32 v23, 5, v0
    v_mov_b32 v22, 0xffffff00
    v_mov_b32 v21, 0x20000
    s_mov_b64 s[70:71], 1
    s_mov_b32 s83, 1""")
    ZM = (72, 74, 78, 36)
    def st4(dst, T, j):
        cc = "0" if j == 0 else f"v[{dst+4*T}:{dst+4*T+3}]"
        b = T4 + 16*T + 4*j
        k(f"v_mfma_f32_16x16x32_f16 v[{dst+4*T}:{dst+4*T+3}], v[{L+4*j}:{L+4*j+3}], v[{b}:{b+3}], {cc}")
    def zstrip(j):
        for i in range(4): k(f"v_xor_b32 v{L+4*j+i}, v{L+4*j+i}, v{EG+i}")
    def zchk(j):
        r = L + 4*j; t_ = TT + j
        return [f"v_bitop3_b32 v{t_}, v{r+3}, v21, s44 bitop3:0x56",
                f"v_bitop3_b32 v{t_}, v{t_}, v{r}, s44 bitop3:0xf6",
                f"v_bitop3_b32 v{t_}, v{t_}, v{r+1}, s44 bitop3:0xf6",
                f"v_bitop3_b32 v{t_}, v{t_}, v{r+2}, s44 bitop3:0xf6",
                f"v_and_b32 v{t_}, s33, v{t_}",
                f"v_cmp_ne_u32 s[{ZM[j]}:{ZM[j]+1}], 0, v{t_}"]
    zalt = [f"v_bitop3_b32 v2, v{L+3}, v{L+7}, v21 bitop3:0x80", f"v_bitop3_b32 v2, v2, v{L+11}, v{L+15} bitop3:0x80", "v_cmp_eq_u32 vcc, 0, v2"]
    k("""s_mov_b32 s83, 0
    s_mov_b64 s[72:73], -1
    s_mov_b64 s[74:75], -1
    s_mov_b64 s[78:79], -1
    s_mov_b64 s[36:37], -1
    s_branch f_zp
    f_zr:""")
    k.c("lanes whose piece is not there yet fetch it again")
    for j in range(4):
        k(f"s_mov_b64 exec, s[{ZM[j]}:{ZM[j]+1}]")
        k(f"buffer_load_dwordx4 v[{L+4*j}:{L+4*j+3}], v{ZL}, s[12:15], s{(28, 29, 50, 51)[j]} offen {ZFL}")
    k(f"""f_zp:
    s_add_u32 s83, s83, 1
    s_cmp_lt_u32 s83, {SPIN}
    s_cselect_b64 s[68:69], -1, 0""")
    for j in range(4):
        k(f"s_mov_b64 exec, s[{ZM[j]}:{ZM[j]+1}]\ns_waitcnt vmcnt({3-j})")
        zstrip(j)
        for x in zchk(j): k(x)
        if j == 2: k("s_or_b64 s[64:65], s[72:73], s[74:75]")
    k("s_mov_b64 exec, -1")
    for x in zalt: k(x)
    k(f"""s_or_b64 s[66:67], s[78:79], s[36:37]
    s_or_b64 s[64:65], s[64:65], s[66:67]
    s_and_b64 s[64:65], s[64:65], s[68:69]
    s_cbranch_scc1 f_zr
    s_cbranch_vccnz f_rare
    f_zf:""")
    stamp(k, 11)
    k.c("================= phase C =================")
    rest = prq[NPR:] + [f"ds_read2_b32 v[{QP}:{QP+1}], v20 offset0:1 offset1:3", f"ds_read2_b32 v[{QP+2}:{QP+3}], v20 offset0:5 offset1:7"]
    for T in range(2):
        for j in range(4):
            st4(Y, T, j)
            for x in rest[:2]: k(x)
            rest = rest[2:]
    assert not rest
    k("f_zfok:")
    if 51 in ST: k("s_sub_u32 s83, s83, 1")
    stamp_val(k, 51, 83)
    def fpf(FPN=E("FPF", 0), off=E("FPO", 0)):
        msk = (1 << (8 * FPN)) - 1
        k.c("help for the weight stream: last rows of both K halves of w_up, this die's columns")
        k(f"""v_bfe_u32 v26, v0, 3, 3
        v_mul_u32_u24 v26, 7168, v26
        v_and_b32 v27, 7, v0
        v_min_u32 v27, 6, v27
        v_lshl_add_u32 v26, v27, 7, v26
        s_lshl_b32 s36, s35, 3
        s_add_u32 s36, s36, s16
        s_lshr_b32 s37, s36, 6
        s_and_b32 s36, s36, 63
        s_mul_i32 s36, s36, {FPN}
        s_lshl_b32 s37, s37, 9
        s_add_u32 s36, s36, s37
        s_add_u32 s36, s36, {512 - 64*FPN - off}
        s_mul_i32 s36, s36, 7168
        s_mul_i32 s37, s34, 896
        s_add_u32 s36, s36, s37""")
        k(f"s_mov_b32 exec_lo, {msk & 0xffffffff}\ns_mov_b32 exec_hi, {msk >> 32}")
        k("buffer_load_dword v25, v26, s[20:23], s36 offen\ns_mov_b64 exec, -1")
    FPOS = 1
    k(f"s_waitcnt lgkmcnt({18 - NPR if NPR >= 8 else 0})")
    k("s_cmp_eq_u32 s30, 0\ns_cbranch_scc1 f_sp")
    RQ = 104
    tA, tB = TT, TT + 8
    def xa(T):
        for h in range(2): pfma(k, XA2 + 4*T + 2*h, GA_ + 4*T + 2*h, Y + 4*T + 2*h, XA2 + 4*T + 2*h)
    def xb(T):
        for s_ in range(1, 4): k(f"v_fmac_f32 v{XB2+4*T+s_}, v{GB_+4*T+s_}, v{Y+4*T+4-s_}")
    def bperm(T):
        k(f"v_cndmask_b32 v{YN+4+T}, v{Y+4*T}, v{Y+4*((T+1)&3)}, s[70:71]")
        k(f"ds_bpermute_b32 v{YN+T}, v{BP}, v{YN+4+T}")
    def acc(X2, V_, t, i, first):
        x = X2 + 2*i
        if first:
            pmul(k, t + 2, x, x); pmul(k, t + 4, x, V_ + 2*i)
        else:
            pfma(k, t + 2, x, x, t + 2); pfma(k, t + 4, x, V_ + 2*i, t + 4)
    def s1acc(X2, t, lst):
        pass
    st4(Y, 2, 0); xa(0); st4(Y, 2, 1); xb(0); st4(Y, 2, 2)
    acc(XA2, VA, tA, 0, True); st4(Y, 2, 3); acc(XA2, VA, tA, 1, False)
    st4(Y, 3, 0); bperm(0); xa(1); st4(Y, 3, 1); xb(1); st4(Y, 3, 2)
    acc(XA2, VA, tA, 2, False); st4(Y, 3, 3); acc(XA2, VA, tA, 3, False)
    acc(XB2, VB, tB, 1, True); acc(XB2, VB, tB, 3, False)
    padd(k, tA, XA2, XA2 + 2); padd(k, tB, XB2 + 2, XB2 + 6)
    k("s_waitcnt lgkmcnt(1)")
    bperm(1); xa(2); xb(2)
    padd(k, tA, tA, XA2 + 4); padd(k, tA, tA, XA2 + 6)
    acc(XA2, VA, tA, 4, False); acc(XA2, VA, tA, 5, False); acc(XB2, VB, tB, 5, False)
    bperm(2); bperm(3); xa(3); xb(3)
    C1A, C1B, SBA, SBB, GBA, GBB = 192, 208, 224, 240, 112, 128
    acc(XA2, VA, tA, 6, False); acc(XA2, VA, tA, 7, False); acc(XB2, VB, tB, 7, False)
    for i in range(4, 8): padd(k, tA, tA, XA2 + 2*i)
    padd(k, tB, tB, XB2 + 10); padd(k, tB, tB, XB2 + 14)
    k("s_waitcnt lgkmcnt(0)")
    for T in range(4): k(f"v_fmac_f32 v{XB2+4*T}, v{GB_+4*T}, v{YN+T}")
    for T in range(4):
        acc(XB2, VB, tB, 2*T, False); padd(k, tB, tB, XB2 + 4*T)
    k("f_join:")
    padd(k, QP, QP, QP + 2)
    if FPJ:
        k("s_mov_b64 exec, s[48:49]")
        k(f"buffer_load_dword v{TT+6}, v{TT+7}, s[20:23], s55 offen\ns_mov_b64 exec, -1")
    stamp(k, 12)
    def stage_b(cnt):
        k(f"s_mov_b32 s83, 0\ns_waitcnt vmcnt({cnt})\nf_pb:")
        chk_bytes(k, list(range(PRB0, PRB0 + 4)) + list(range(PRC, PRC + 4)), 2)
        k(f"""{"" if E("NOCHK", 0) & 4 else "s_cbranch_vccnz f_pbbad"}
        f_pbok:""")
        stamp_val(k, 54, 83)
        k(f"""        ds_write_b128 v{PS}, v[{PRB0}:{PRB0+3}] offset:4096
        s_cmp_ge_u32 s16, 4
        s_cbranch_scc1 f_pbx
        ds_write_b128 v{PS}, v[{PRC}:{PRC+3}] offset:16384
        f_pbx:""")
    k.c("GO hint from one workgroup per replica")
    GOPOS = E("GOPOS", 1)
    def gohint(lab):
        k(f"""s_or_b32 s42, s35, s16
        s_cmp_lg_u32 s42, 0
        s_cbranch_scc1 {lab}
        v_mov_b32 v2, s32
        s_mov_b64 exec, 1
        buffer_store_dword v2, v{FA}, s[12:15], s81 offen offset:2048 sc1
        s_mov_b64 exec, -1
        {lab}:""")
    if GOPOS == 0: gohint("f_ngo")
    else: k("f_ngo:")
    rows = ((XA2, VA, tA, 64, C1A, SBA, GBA, XA_), (XB2, VB, tB, 66, C1B, SBB, GBB, XB_))
    for n in range(2):
        for j in range(3): k(f"v_add_f32 v{RQ+4*n+j}, v{rows[n][2]+2*j}, v{rows[n][2]+2*j+1}")
    def red(js):
        for j in js: k(f"v_permlane32_swap_b32 v{RQ+j}, v{RQ+4+j}")
        for j in js: k(f"v_add_f32 v{RQ+j}, v{RQ+j}, v{RQ+4+j}")
        regs = [RQ + j for j in js]
        row_allreduce(k, regs)
        for r in regs: k(f"v_add_f32_dpp v{r}, v{r}, v{r} row_bcast:15 row_mask:0xa bank_mask:0xf")
    k(f"v_add_f32 v{QP}, v{QP}, v{QP+1}")
    red((0, 1, 2))
    k.c("lanes 31 / 63 hold rows A / B")
    k(f"""v_mul_f32 v{RQ}, s46, v{RQ}
    v_mul_f32 v{RQ+1}, s46, v{RQ+1}
    v_mul_f32 v{RQ+4}, v{RQ}, v{RQ}
    v_fma_f32 v{RQ+2}, -v{RQ}, v{QP}, v{RQ+2}
    v_sub_f32 v{RQ+1}, v{RQ+1}, v{RQ+4}
    v_mul_f32 v{RQ+5}, 4.0, v{RQ+1}
    v_cmp_gt_f32 vcc, v{RQ+4}, v{RQ+5}
    s_or_b32 s42, vcc_lo, vcc_hi
    s_bitcmp1_b32 s42, 31
    s_cbranch_scc1 f_slow2
    f_var2:""")
    round_bf16(k, RQ + 1, RQ + 1)
    k(f"v_add_f32 v{RQ+1}, {f32(1e-5)}, v{RQ+1}")
    round_bf16(k, RQ + 1, RQ + 1)
    k(f"v_sqrt_f32 v{RQ+1}, v{RQ+1}")
    round_bf16(k, RQ + 1, RQ + 1)
    k(f"""v_rcp_f32 v{RQ+1}, v{RQ+1}
    s_mov_b32 s42, 0x80000000
    s_mov_b32 exec_lo, s42
    s_mov_b32 exec_hi, s42
    v_mul_f32 v{RQ+2}, v{RQ+2}, v{RQ+1}
    v_ashrrev_i32 v{RQ+4}, 31, v{RQ+2}
    v_or_b32 v{RQ+4}, s42, v{RQ+4}
    v_xor_b32 v{RQ+2}, v{RQ+2}, v{RQ+4}
    v_and_or_b32 v{RQ+2}, v{RQ+2}, v22, v23
    ds_write_b32 v{KW}, v{RQ+2}
    s_mov_b64 exec, -1""")
    k("s_waitcnt lgkmcnt(0)")
    stamp(k, 13)
    KV = 21
    k(f"""s_barrier
    ds_read_b32 v{KV}, v{KR_}""")
    for n in range(2):
        k(f"v_readlane_b32 s{60+n}, v{RQ+2}, {31+32*n}")
        k(f"v_readlane_b32 s{64+2*n}, v{RQ}, {31+32*n}")
        k(f"v_readlane_b32 s{65+2*n}, v{RQ+1}, {31+32*n}")
    k(f"""    s_lshl_b32 s42, s3, 1
    s_movk_i32 s43, 0xff00
    v_mov_b32 v30, s32
    v_mov_b32 v31, s32
    s_cmp_lg_u32 s16, 0
    s_waitcnt lgkmcnt(0)
    s_cbranch_scc1 f_nkey
    s_setprio 3
    v_max_u32_dpp v28, v{KV}, v{KV} row_ror:8 {DPPM}""")
    for sh in (4, 2, 1): k(f"v_max_u32_dpp v28, v28, v28 row_ror:{sh} {DPPM}")
    k(f"""v_cmp_eq_u32 vcc, v28, v{KV}
    v_cndmask_b32_e64 v29, v{KV}, 0, vcc
    v_and_or_b32 v28, v28, v22, s42
    s_add_u32 s42, s42, 1""")
    row_allreduce(k, [29], "v_max_u32")
    k(f"""v_and_or_b32 v29, v29, v22, s42
    s_mov_b64 exec, 0xff
    buffer_store_dwordx4 v[28:31], v{FA}, s[12:15], s80 offen sc1
    s_mov_b64 exec, -1
    s_setprio 0""")
    stamp(k, 40)
    if 41 in ST: k("s_waitcnt vmcnt(0)"); stamp(k, 41)
    k("f_nkey:")
    if GOPOS == 1: gohint("f_ng1")
    HP = 80; OUTR = (32, 40)
    def nrow(n):
        X2, V_, t, sr, C1, SB, GB, XL = rows[n]
        for i in range(8): psub_s(k, V_ + 2*i, X2 + 2*i, sr)
        for i in range(8): pmul_s(k, V_ + 2*i, V_ + 2*i, sr + 1)
    def relayout(n, src, dst, cvt):
        XL = rows[n][7]
        for T in range(4):
            for h in range(2): k(f"{cvt} v{HP+2*T+h}, v{src+4*T+2*h}, v{src+4*T+2*h+1}")
            k(f"ds_write_b64 v{XL}, v[{HP+2*T}:{HP+2*T+1}] offset:{512*(T, 3-T)[n]}")
        for j in range(2):
            k(f"ds_read_b128 v[{dst+4*j}:{dst+4*j+3}], v{NAT} offset:{n*2048 + j*1024}")
    for n in range(2):
        HO = 88
        k(f"""s_movk_i32 s{62+n}, 0x100
        v_cmp_lt_u32 vcc, s{60+n}, v{KV}
        s_and_b32 s42, vcc_lo, 0xffff
        s_bcnt1_i32_b32 s42, s42
        s_cmp_ge_u32 s42, 2
        s_cbranch_scc1 f_nc{n}
        s_setprio 2""")
        nrow(n)
        relayout(n, rows[n][1], HO, "v_cvt_pk_f16_f32")
        k(f"""s_lshl_b32 s{62+n}, s3, 1
        s_add_u32 s{62+n}, s{62+n}, s42
        s_lshl_b32 s42, s{62+n}, 11
        s_add_u32 s42, s42, {WS_SLOT}
        s_lshl_b32 s43, s{62+n}, 4
        s_add_u32 s43, s43, {WS_TT}
        s_lshl_b32 s68, s{30+n}, 8
        s_or_b32 s68, s68, s56
        s_andn2_b32 s69, s{64+2*n}, 0xff
        s_or_b32 s69, s69, s57
        s_andn2_b32 s70, s{65+2*n}, 0xff
        s_or_b32 s70, s70, s58
        s_andn2_b32 s71, s{60+n}, 0xff
        s_or_b32 s71, s71, s59
        s_waitcnt lgkmcnt(0)""")
        for i in range(8): k(f"v_bfi_b32 v{HO+i}, s33, v{EG+(i&3)}, v{HO+i}")
        for j in range(2):
            k(f"buffer_store_dwordx4 v[{HO+4*j}:{HO+4*j+3}], v3, s[12:15], s42 offen offset:{j*1024} sc1")
        for i in range(4): k(f"v_mov_b32 v{24+i}, s{68+i}")
        k(f"""s_mov_b64 exec, 1
        buffer_store_dwordx4 v[24:27], v3, s[12:15], s43 offen sc1
        s_mov_b64 exec, -1
        s_setprio 0
        f_nc{n}:""")
    stamp(k, 14)
    if E("FPG", 0):
        k("s_barrier")
        fpf(E("FPG", 0), E("FPGO", 0))
    parb_issue(ES("CFL", ""))
    for n in range(2):
        k(f"s_cmp_lt_u32 s{62+n}, 0x100\ns_cbranch_scc1 f_op{n}")
        nrow(n)
        k(f"f_op{n}:")
    stage_b(0)
    k("s_waitcnt lgkmcnt(0)\ns_barrier")
    for n in range(2):
        X2, V_, t, sr, C1, SB, GB, XL = rows[n]
        for x in pread(V_C1, C1, n) + pread(V_SB, SB, n) + pread(V_GB, GB, n): k(x)
        k("s_waitcnt lgkmcnt(4)")
        for i in range(8): pfma(k, V_ + 2*i, V_ + 2*i, C1 + 2*i, SB + 2*i)
        k("s_waitcnt lgkmcnt(0)")
        for i in range(8): pfma(k, X2 + 2*i, GB + 2*i, V_ + 2*i, X2 + 2*i)
        relayout(n, X2, OUTR[n], "v_cvt_pk_bf16_f32")
    if E("ZEV", 0) == 1:
        for j in range(4):
            if E("ZPACE", 0): k(f"s_waitcnt vmcnt({E('ZPACE', 0)-1})")
            k(f"buffer_load_dwordx4 v[{48+4*j}:{51+4*j}], v{ZL}, s[12:15], s{(28, 29, 50, 51)[j]} offen sc1 nt")
    OMODE = E("OMODE", 0); OPACE = E("OPACE", 2)
    def outst(n):
        for j in range(0 if E("NOOUT", 0) else 2):
            if OPACE: k(f"s_waitcnt vmcnt({OPACE-1})")
            k(f"buffer_store_dwordx4 v[{OUTR[n]+4*j}:{OUTR[n]+4*j+3}], v3, s[24:27], s{18+n} offen offset:{j*1024} {ES('OFL', 'sc1')}")
    if OMODE:
        if E("OSL", 0): k(f"s_sleep {E('OSL', 0)}")
        k("s_waitcnt lgkmcnt(0)")
        for n in range(OMODE):
            k(f"s_cmp_lt_u32 s{62+n}, 0x100\ns_cbranch_scc1 f_oq{n}")
            outst(n)
            k(f"f_oq{n}:")
    k.c("rows are written once the selection is known; the two selected rows are written by the reducers")
    k(f"""v_mov_b32 v21, {L_KEY+104}
    s_cmp_lg_u32 s16, 0
    s_cbranch_scc1 f_nrs""")
    if E("FKEY", 1):
        k(f"s_sleep {E('FKS', 8)}")
        poll_keys(k, "f_kq", 96, 81, 2)
        top2(k, 96, 40, 41, 24)
        k("s_and_b32 s40, s40, 0xff\ns_and_b32 s41, s41, 0xff")
    else:
        res_wait(k, "f_rs", 81, 20, 28, E("RSL", 4))
    k(f"""v_mov_b32 v28, s40
    v_mov_b32 v29, s41
    ds_write_b64 v21, v[28:29]
    f_nrs:
    s_waitcnt lgkmcnt(0)
    s_barrier
    ds_read_b64 v[28:29], v21
    s_waitcnt lgkmcnt(0)
    v_readfirstlane_b32 s40, v28
    v_readfirstlane_b32 s41, v29""")
    for n in range(2):
        if n < OMODE: k(f"s_cmp_ge_u32 s{62+n}, 0x100\ns_cbranch_scc1 f_e{n}")
        k(f"""s_cmp_eq_u32 s{62+n}, s40
        s_cbranch_scc1 f_e{n}
        s_cmp_eq_u32 s{62+n}, s41
        s_cbranch_scc1 f_e{n}""")
        outst(n)
        k(f"f_e{n}:")
    if E("ZEV", 0) == 2:
        for j in range(4):
            k(f"buffer_load_dwordx4 v[{48+4*j}:{51+4*j}], v{ZL}, s[12:15], s{(28, 29, 50, 51)[j]} offen sc1 nt")
    stamp_out(k)
    k("s_endpgm")
    k.c("---- retries ----")
    k("f_t3l:")
    t3reads()
    k("s_branch f_t3d")
    k(f"""f_c1bad:
    s_add_u32 s83, s83, 1
    s_cmp_ge_u32 s83, {SPIN}
    s_cbranch_scc1 f_c1ok
    s_bitcmp1_b32 s47, 0
    s_cbranch_scc0 f_c1b2
    s_sleep {E('SLC', 3)}
    f_c1b2:""")
    cap_issue("f_ci1")
    k(f"""s_bitcmp1_b32 s47, 0
    s_cbranch_scc0 f_s1
    s_waitcnt vmcnt(0)
    s_branch f_c1
    f_z1bad:
    s_add_u32 s83, s83, 1
    s_cmp_ge_u32 s83, {SPIN}
    s_cbranch_scc1 f_z1ok
    s_sleep {E('SLR1', 4)}""")
    z1_issue()
    k(f"""s_waitcnt vmcnt(0)
    s_branch f_z1
    f_ppbad:
    s_add_u32 s83, s83, 1
    s_cmp_ge_u32 s83, {SPIN}
    s_cbranch_scc1 f_ppok
    s_sleep {E('SLP2', 3)}""")
    par_issue()
    k(f"""s_waitcnt vmcnt(0)
    s_branch f_pp
    f_pbbad:
    s_add_u32 s83, s83, 1
    s_cmp_ge_u32 s83, {SPIN}
    s_cbranch_scc1 f_pbok
    s_sleep {E('SLP2', 3)}""")
    parb_issue()
    k("s_waitcnt vmcnt(0)\ns_branch f_pb")
    k.c("---- placement fallback: write-through stores ----")
    k("f_slowst:")
    zf_store("sc1")
    k("s_branch f_std")
    k.c("---- rare: the producers use different scales ----")
    k("f_rare:")
    for j in range(4): k(f"v_or_b32 v{L+4*j+3}, v21, v{L+4*j+3}")
    k(f"""    v_bfe_u32 v{TT}, v0, 4, 2
    v_lshlrev_b32 v{TT}, 3, v{TT}""")
    for x in prq[NPR:] + [f"ds_read2_b32 v[{QP}:{QP+1}], v20 offset0:1 offset1:3", f"ds_read2_b32 v[{QP+2}:{QP+3}], v20 offset0:5 offset1:7"]: k(x)
    k("s_mov_b32 s83, 0\ns_waitcnt lgkmcnt(0)\nf_rz:")
    for j in range(4):
        k(f"buffer_load_dwordx2 v[{TT+8+2*j}:{TT+9+2*j}], v{TT}, s[12:15], s77 offen offset:{32*j} sc1")
    k(f"s_waitcnt vmcnt(0)\nv_xor_b32 v2, s32, v{TT+8}")
    for j in range(1, 4): k(f"v_bitop3_b32 v2, v2, v{TT+8+2*j}, s32 bitop3:0xf6")
    k(f"""v_cmp_ne_u32 vcc, 0, v2
    s_cbranch_vccz f_rzx
    {spin("f_rz", 2)}
    f_rzx:""")
    for j in range(4): k(f"v_mov_b32 v{TT+4+j}, v{TT+9+2*j}")
    k(f"""    v_max_i32 v{TT+1}, v{TT+4}, v{TT+5}
    v_max3_i32 v{TT+1}, v{TT+1}, v{TT+6}, v{TT+7}""")
    for g in range(4): k(f"v_readlane_b32 s{64+g}, v{TT+1}, {16*g}")
    k(f"""s_max_i32 s64, s64, s65
    s_max_i32 s66, s66, s67
    s_max_i32 s64, s64, s66
    s_add_i32 s66, s64, 125
    s_lshl_b32 s66, s66, 23
    s_nop 0""")
    for j in range(4):
        k(f"v_subrev_u32 v{TT+4+j}, s64, v{TT+4+j}")
        k(f"v_ldexp_f32 v{TT+4+j}, 1.0, v{TT+4+j}")
        k(f"v_cvt_pk_f16_f32 v{TT+4+j}, v{TT+4+j}, v{TT+4+j}")
    for r in range(16): k(f"v_pk_mul_f16 v{L+r}, v{L+r}, v{TT+4+(r>>2)}")
    for i in range(16): pmul_s(k, GA_ + 2*i, GA_ + 2*i, 66)
    for T in range(2):
        for j in range(4): st4(Y, T, j)
    k("s_nop 7\ns_branch f_zfok")
    k.c("---- rare: two-pass variance / router score for LN2 ----")
    k("f_slow2:")
    k.c("here the bf16 rounding of x and of the mean matters: follow the reference's rounding steps")
    for X2, V_, t, sr, C1, SB, GB, XL in rows:
        for i in range(8): rb2(k, X2 + 2*i, t)
        for i in range(1, 8): padd(k, t, X2 if i == 1 else t, X2 + 2*i)
    for n in range(2): k(f"v_add_f32 v{RQ+4*n}, v{rows[n][2]}, v{rows[n][2]+1}")
    red((0,))
    k(f"v_mul_f32 v{RQ+3}, s46, v{RQ}")
    round_bf16(k, RQ, RQ + 3)
    k(f"v_sub_f32 v{RQ+3}, v{RQ+3}, v{RQ}")
    for n in range(2): k(f"v_readlane_b32 s{64+2*n}, v{RQ}, {31+32*n}")
    for n, (X2, V_, t, sr, C1, SB, GB, XL) in enumerate(rows):
        Dd = (80, 32)[n]
        for i in range(8): psub_s(k, Dd + 2*i, X2 + 2*i, sr)
        for i in range(8): acc(Dd, V_, t, i, i == 0)
    for n in range(2):
        for j in (1, 2): k(f"v_add_f32 v{RQ+4*n+j}, v{rows[n][2]+2*j}, v{rows[n][2]+2*j+1}")
    red((1, 2))
    k(f"""v_mul_f32 v{RQ+1}, s46, v{RQ+1}
    v_fma_f32 v{RQ+1}, -v{RQ+3}, v{RQ+3}, v{RQ+1}
    v_max_f32 v{RQ+1}, 0, v{RQ+1}
    s_branch f_var2""")
    k.c("---- rare: |mean| >> std, recompute the variance in two passes ----")
    k("f_slowvar:")
    U = 100
    k(f"v_lshlrev_b32 v{R+6}, 16, v{MB}")
    k(f"v_readlane_b32 s68, v{R+6}, 31\nv_readlane_b32 s70, v{R+6}, 63")
    for jj in range(2):
        sr = 68 + 2 * jj
        for i in range(8):
            unpack_bf16(k, U, XW + jj * 8 + i)
            k(f"v_pk_add_f32 {P(U)}, {P(U)}, s[{sr}:{sr+1}] op_sel_hi:[1,0]")
            if i == 0: pmul(k, U + 2, U, U)
            else: pfma(k, U + 2, U, U, U + 2)
        k(f"v_add_f32 v{S+2+jj}, v{U+2}, v{U+3}")
    k(f"v_add_f32 v{R+6}, v{R+6}, v{S}")
    red1((2,))
    k(f"""v_mul_f32 v{S+2}, s46, v{S+2}
    v_fma_f32 v{S+2}, -v{R+6}, v{R+6}, v{S+2}
    v_max_f32 v{S+2}, 0, v{S+2}
    s_branch f_var""")
    k.c("---- group 0, wave 0: the shift vector enters the row 0 accumulators ----")
    k("f_sa:\ns_add_u32 s69, s69, %d" % (6 << 23))
    t = D
    pick(CP + 8)
    k(f"""v_mul_f32 v{CP+8}, s69, v{CP+8}
    v_and_b32 v{t+4}, 15, v0
    v_cvt_pk_f16_f32 v{t}, v{CP+8}, v{CP+8}
    v_cmp_eq_u32 vcc, 0, v{t+4}
    v_mov_b32 v{t+6}, 0x3c00
    v_mov_b32 v{t+7}, 0xbc000000
    v_cndmask_b32 v{t+6}, 0, v{t+6}, vcc
    v_cndmask_b32 v{t+7}, 0, v{t+7}, vcc""")
    for i in range(4): k(f"v_mov_b32_dpp v{BC+i}, v{t} quad_perm:[{i},{i},{i},{i}] {DPPM}")
    SO = t + 24
    for part in range(2):
        for i in range(4): k(f"v_pk_mul_f16 v{SO+4*part+i}, v{t+6+part}, v{BC+i}")
    for part in range(2):
        k(f"v_mfma_f32_16x16x32_f16 v[{CP+4*part}:{CP+4*part+3}], v[{SO+4*part}:{SO+4*part+3}], v[{TB}:{TB+3}], 0")
    k(f"""s_lshl_b32 s70, s16, 7
    v_add_u32 v{t+4}, s70, v{KR_}
    s_mov_b64 exec, 0xffff
    ds_write2_b32 v{t+4}, v{CP}, v{CP+4} offset0:0 offset1:16
    s_mov_b64 exec, -1
    s_branch f_nsa
    f_sb:""")
    k.lines = [l.replace(f"v_add_u32 v{t+4}, s70, v{KR_}", f"v_add3_u32 v{t+4}, s70, v{KR_}, v{t+5}") for l in k.lines]
    i0 = max(i for i, l in enumerate(k.lines) if "v_add3_u32" in l)
    k.lines.insert(i0, f"    v_mov_b32 v{t+5}, {L_K + 16 - L_KEY}")
    k(f"""v_mov_b32 v{D}, s32
    v_mov_b32 v{D+1}, s61
    v_mov_b32 v{D+2}, 0
    s_mov_b64 exec, 1
    buffer_store_dwordx2 v[{D}:{D+1}], v{D+2}, s[12:15], s79 offen sc1
    s_mov_b64 exec, -1
    s_cmp_lg_u32 s34, 0
    s_cbranch_scc1 f_sb2
    s_mov_b64 exec, 0xffff""")
    for u in range(8): k(f"ds_read_b32 v{D+8+u}, v{KR_} offset:{L_K + 16 - L_KEY + u*64}")
    k("s_waitcnt lgkmcnt(0)")
    for u in range(8): k(f"v_add_f32 v{D3+4*u}, v{D3+4*u}, v{D+8+u}")
    k("s_mov_b64 exec, -1\nf_sb2:")
    k("s_branch f_nsb")
    k.c("---- rows 0 and 1024 travel as one complex row ----")
    k("f_sp:\ns_waitcnt lgkmcnt(0)")
    YI, YM, YE = 96, 32, 152
    for T in range(2, 4):
        for j in range(4): st4(Y, T, j)
    for r in range(16): k(f"v_pk_mul_f16 v{L+r}, v{L+r}, 1.0 op_sel:[1,0] op_sel_hi:[0,0] neg_hi:[1,0]")
    for T in range(4):
        for j in range(4): st4(YI, T, j)
    k(f"""v_subrev_u32 v2, s45, v{XA_}
    v_lshlrev_b32 v2, 1, v2
    v_add_u32 v20, s45, v2
    s_add_u32 s42, s45, 1008
    v_sub_u32 v21, s42, v2""")
    k.c("v20: own block (f32, natural order), v21: mirror block")
    for T in range(4): k(f"ds_write_b128 v20, v[{Y+4*T}:{Y+4*T+3}] offset:{1024*T}")
    for T in range(4):
        k(f"v_sub_u32 v{YE+4+T}, {4096-1024*T}, v2\nv_and_b32 v{YE+4+T}, 4095, v{YE+4+T}\nv_add_u32 v{YE+4+T}, s45, v{YE+4+T}")
    for T in range(4): k(f"ds_read_b128 v[{YM+4*T}:{YM+4*T+3}], v21 offset:{1024*(3-T)}")
    for T in range(4): k(f"ds_read_b32 v{YE+T}, v{YE+4+T}")
    k("s_waitcnt lgkmcnt(0)")
    for T in range(4):
        k(f"v_add_f32 v{Y+4*T}, v{Y+4*T}, v{YE+T}")
        for i in range(1, 4): k(f"v_add_f32 v{Y+4*T+i}, v{Y+4*T+i}, v{YM+4*T+4-i}")
    for T in range(4): xa(T)
    for T in range(4): k(f"ds_write_b128 v20, v[{YI+4*T}:{YI+4*T+3}] offset:{1024*T}")
    for T in range(4):
        k(f"v_add_u32 v{YE+4+T}, {1024*T+16}, v2\nv_and_b32 v{YE+4+T}, 4095, v{YE+4+T}\nv_add_u32 v{YE+4+T}, s45, v{YE+4+T}")
    for T in range(4): k(f"ds_read_b128 v[{YM+4*T}:{YM+4*T+3}], v21 offset:{1024*(3-T)}")
    for T in range(4): k(f"ds_read_b32 v{YE+T}, v{YE+4+T}")
    k("s_waitcnt lgkmcnt(0)")
    for T in range(4):
        k(f"v_add_f32 v{YM+4*T}, v{YM+4*T}, v{YE+T}")
        for s_ in range(1, 4): k(f"v_add_f32 v{YM+4*T+s_}, v{YM+4*T+s_}, v{YI+4*T+4-s_}")
    for i in range(8): pfma(k, XB2 + 2*i, GB_ + 2*i, YM + 2*i, XB2 + 2*i)
    for X2, V_, t_ in ((XA2, VA, tA), (XB2, VB, tB)):
        for i in range(8): acc(X2, V_, t_, i, i == 0)
        for i in range(1, 8): padd(k, t_, X2 if i == 1 else t_, X2 + 2*i)
    k("s_branch f_join")

class VM:
    def __init__(self, k): self.k = k; self.q = []
    def add(self, tag, n=1): self.q += [tag] * n
    def wait(self, tag, extra=""):
        idx = max(i for i, t in enumerate(self.q) if t == tag)
        n = len(self.q) - 1 - idx
        self.k(f"s_waitcnt vmcnt({n}) {extra}".strip())
        self.q = self.q[idx + 1:]

def role_G(k):
    L_SI = 131072; L_H = 131072 + 512; L_A = L_H + 2048
    k("g_start:")
    nonce_issue(k, 6)
    srd(k, 44, 20, 2048)
    k(f"""v_and_b32 v6, 127, v0
    v_lshlrev_b32 v6, 1, v6
    s_lshl_b32 s19, s34, 8
    buffer_load_ushort v110, v6, s[44:47], s19 offen""")
    k.c("s35 = mm ; s64 = cluster ; s65 = kq ; s66 = 1 for X ; s40 = ks")
    k(f"""s_and_b32 s65, s35, 1
    s_lshr_b32 s40, s35, 1
    s_mul_i32 s64, s34, 7
    s_add_u32 s64, s64, s40
    s_cmp_ge_u32 s35, 14
    s_cselect_b32 s66, 1, 0
    s_mov_b32 s40, s34
    v_bfe_u32 v5, v0, 5, 1
    v_lshlrev_b32 v5, 3, v5
    v_bfe_u32 v9, v0, 3, 2
    v_add_u32 v5, v5, v9
    v_lshlrev_b32 v9, 1, v7
    v_xor_b32 v9, v9, v0
    v_and_b32 v9, 7, v9
    v_lshlrev_b32 v9, 4, v9
    s_movk_i32 s42, 7168
    v_mad_u32_u24 v5, v5, s42, v9
    v_mov_b32 v104, -1
    v_mov_b32 v105, -1
    v_mov_b32 v106, -1
    v_mov_b32 v107, -1
    v_mov_b32 v14, 0
    s_lshl_b32 s38, s64, 12
    s_lshl_b32 s42, s16, 9
    s_add_u32 s38, s38, s42
    s_mul_i32 s42, s65, {WS_XB - WS_XA}
    s_add_u32 s38, s38, s42
    s_add_u32 s38, s38, {WS_XA}""")
    srd(k, 12, 6, WS_SIZE)
    if E("TOUCH", 1):
        k.c("first touch of the small hand-off lines (brings them on die; the values are not used)")
        k(f"""s_lshl_b32 s42, s35, 3
        s_add_u32 s42, s42, s34
        s_lshl_b32 s42, s42, 3
        s_add_u32 s42, s42, s16
        s_lshl_b32 s42, s42, 8
        s_add_u32 s42, s42, {WS_CAP}
        v_lshlrev_b32 v9, 7, v2
        s_mov_b64 exec, 3
        buffer_load_dword v251, v9, s[12:15], s42 offen
        s_mov_b64 exec, -1""")
    srd(k, 44, 50, 1024 * 3584 * 2)
    srd(k, 60, 52, 1024 * 3584 * 2)
    srd(k, 72, 54, 1024 * 3584 * 2)
    k("s_mov_b32 s26, 4194304\ns_mov_b32 s27, 0x00020000")
    k.c("s67 gate/up base ; s69 down base ; v12 block read ; v8..v11 down read ; v21..v24 down source")
    k(f"""s_lshl_b32 s67, s65, 4
    s_add_u32 s67, s67, s16
    s_mul_i32 s67, s67, {32*7168}
    s_lshl_b32 s42, s64, 7
    s_add_u32 s67, s67, s42
    s_lshl_b32 s42, s64, 6
    s_and_b32 s43, s16, 3
    s_lshl_b32 s43, s43, 3
    s_add_u32 s42, s42, s43
    s_and_b32 s43, s16, 4
    s_add_u32 s42, s42, s43
    s_lshl_b32 s69, s42, 11
    s_lshl_b32 s43, s65, 10
    s_add_u32 s69, s69, s43
    s_and_b32 s43, s16, 1
    s_lshl_b32 s43, s43, 7
    v_xor_b32 v21, s43, v3
    v_xor_b32 v22, 32, v21
    v_xor_b32 v23, 64, v21
    v_xor_b32 v24, 96, v21
    v_add_u32 v109, {L_SI}, v6""")
    vm = VM(k)
    for j in range(4): vm.add(j)
    vm.add("c")
    if E("TOUCH", 1): vm.add("t")
    RV = ((1, 0), (4, 2), (3, 5))
    order = ES("ORDER", "R0,R1,R2,D0,D1,G0,G1,U0,U1").split(",")
    NT = ES("NTW", "")
    def issue(j):
        ci, d = j >> 2, j & 3
        nm = order[ci]; kind, h = nm[0], int(nm[1]); slot = (ci % 4) * 32768
        if kind == "R" and d == 0:
            k(f"s_mul_i32 s70, s41, {(RV[h][1]-RV[h][0])*2048}\ns_add_u32 s70, s70, {RV[h][0]*2048}\ns_add_u32 s70, s70, s18")
            k(f"s_add_u32 s42, s17, {h}\ns_and_b32 s42, s42, 7\ns_lshl_b32 s42, s42, 8\ns_add_u32 s70, s70, s42")
        k(f"s_add_u32 s43, s68, {slot + d*1024}")
        k("s_mov_b32 m0, s43")
        if kind == "D":
            k(f"s_add_u32 s42, s69, {(32*h + d)*2048}")
        else:
            rows = 16 * (d & 1) + 4 * (d >> 1)
            if kind == "R": k(f"s_add_u32 s42, s70, {4*d*12288}")
            else: k(f"s_add_u32 s42, s67, {(256*h + rows)*7168}")
        if j - DEPTH in vm.q: vm.wait(j - DEPTH)
        va, sb = {"R": ((4, 31)[d >> 1], 8), "G": (5, 44), "U": (5, 60), "D": (21 + d, 72)}[kind]
        if ci >= 9 - E("MCUT", 0): k("s_mov_b32 s42, 0")
        k(f"buffer_load_dwordx4 v{va}, s[{sb}:{sb+3}], s42 offen {NT} lds")
        vm.add(j)
    pf = """s_mov_b32 exec_hi, 0
    buffer_store_dwordx4 v[104:107], v3, s[12:15], s38 offen sc1
    s_mov_b64 exec, -1"""
    def silu_c():
        k(f"""v_lshlrev_b32 v110, 16, v110
        v_mul_f32 v111, {LOG2E}, v110
        v_exp_f32 v111, v111
        v_add_f32 v111, 1.0, v111
        v_rcp_f32 v111, v111
        v_mul_f32 v110, v110, v111
        v_cvt_pk_bf16_f32 v110, v110, v110
        ds_write_b16 v109, v110""")
    GST = E("GST", 0); DEPTH = E("DEPTH", 4); HOLD = E("HOLD", 99)
    def hold(p):
        if E("HSL", 0):
            k(f"s_sleep {E('HSL', 0)}"); return
        k.c("hold the stream until the neighbour's first exchange is under way (hint only, bounded)")
        k(f"""s_cmp_lg_u32 s16, 0
        s_cbranch_scc1 {p}_zlx
        s_lshl_b32 s42, s34, 4
        s_add_u32 s42, s42, s35
        s_lshl_b32 s42, s42, 7
        s_add_u32 s42, s42, {WS_ZL}
        s_mov_b32 s83, 0
        {p}_zl:
        buffer_load_dword v16, v14, s[12:15], s42 offen sc1
        s_waitcnt vmcnt(0)
        v_readfirstlane_b32 s43, v16
        s_cmp_eq_u32 s43, s32
        s_cbranch_scc1 {p}_zlx
        s_sleep {E("ZLS", 3)}
        s_add_u32 s83, s83, 1
        s_cmp_lt_u32 s83, 32
        s_cbranch_scc1 {p}_zl
        {p}_zlx:
        {f"s_sleep {E('ZLD', 0)}" if E('ZLD', 0) else ""}
        s_barrier""")
    k(f"""v_lshrrev_b32 v6, 2, v2
    v_and_b32 v15, 3, v0
    v_bfe_u32 v16, v0, 3, 2
    v_xor_b32 v12, v16, v1
    v_and_b32 v12, 3, v12
    v_lshlrev_b32 v12, 5, v12
    v_lshl_add_u32 v12, v6, 7, v12
    v_lshl_add_u32 v12, v15, 3, v12
    v_lshrrev_b32 v16, 2, v1
    v_lshl_add_u32 v12, v16, 14, v12
    v_add_u32 v25, 65536, v12
    v_and_b32 v17, 7, v6
    v_lshlrev_b32 v8, 2, v1
    v_xor_b32 v8, v8, v17
    v_lshlrev_b32 v8, 5, v8
    v_lshl_add_u32 v8, v6, 10, v8
    v_lshl_add_u32 v8, v15, 3, v8
    v_xor_b32 v9, 32, v8
    v_xor_b32 v10, 64, v8
    v_xor_b32 v11, 96, v8
    v_and_b32 v6, 1, v0
    v_lshlrev_b32 v17, 10, v6
    v_lshl_add_u32 v17, v16, 8, v17
    v_lshl_add_u32 v17, v7, 4, v17
    v_add_u32 v17, {L_H}, v17
    v_lshlrev_b32 v19, 7, v6
    v_lshl_add_u32 v19, v7, 4, v19
    v_add_u32 v19, {L_A}, v19
    v_and_b32 v6, 15, v0
    v_lshlrev_b32 v18, 1, v6
    v_lshl_add_u32 v18, v1, 5, v18
    v_lshl_add_u32 v18, v7, 7, v18
    v_add_u32 v18, {L_A}, v18
    v_lshlrev_b32 v20, 2, v6
    v_lshl_add_u32 v20, v1, 14, v20
    v_lshl_add_u32 v20, v7, 12, v20
    v_lshlrev_b32 v26, 4, v7
    v_add_u32 v27, {L_SI}, v26
    v_lshlrev_b32 v28, 11, v7
    v_bfe_u32 v29, v0, 2, 3
    v_xor_b32 v29, v29, v1
    v_lshl_add_u32 v29, v29, 5, v28
    v_bfe_u32 v30, v0, 2, 2
    v_lshl_add_u32 v29, v30, 8, v29
    v_lshl_add_u32 v29, v15, 3, v29
    v_add_u32 v30, 65536, v29""")
    k.c("partial-sum destinations: s30 (ca|sa), s31 (others)")
    k(f"""s_lshl_b32 s30, s41, 15
    s_and_b32 s42, s16, 3
    s_lshl_b32 s42, s42, 13
    s_add_u32 s30, s30, s42
    s_lshl_b32 s42, s40, 8
    s_add_u32 s30, s30, s42
    s_lshl_b32 s42, s17, 1
    s_lshr_b32 s43, s16, 2
    s_add_u32 s42, s42, s43
    s_lshl_b32 s42, s42, 4
    s_add_u32 s30, s30, s42
    s_add_u32 s30, s30, {WS_CAP}
    s_lshl_b32 s31, s41, 5
    s_lshr_b32 s42, s16, 1
    s_add_u32 s31, s31, s42
    s_lshl_b32 s31, s31, 10
    s_lshl_b32 s42, s40, 7
    s_add_u32 s31, s31, s42
    s_and_b32 s42, s16, 1
    s_lshl_b32 s42, s42, 6
    s_add_u32 s31, s31, s42
    s_add_u32 s31, s31, {WS_MODP}
    s_movk_i32 s33, 0xff""")
    BD, BG, BU, SC, RB, RD, NB = 32, 64, 96, 128, 144, 160, 164
    def blockreads(ci, base):
        slot = (ci % 4) * 32768
        va, off = (12, slot) if slot < 65536 else (25, slot - 65536)
        for ks in range(4):
            k(f"ds_read_b64_tr_b16 v[{base+4*ks}:{base+4*ks+1}], v{va} offset:{off + ks*4096}")
            k(f"ds_read_b64_tr_b16 v[{base+4*ks+2}:{base+4*ks+3}], v{va} offset:{off + ks*4096 + 2048}")
    KB = 136; HA = 128; AG = 160
    KRIDE = 0
    PM = 192; ET = 208
    def pm_issue(fl):
        for u in range(4):
            k(f"buffer_load_dwordx4 v[{PM+4*u}:{PM+4*u+3}], v212, s[12:15], s{(36, 37)[u >> 1]} offen offset:{(u & 1)*16} {fl}")
    def consume(ci, p):
        nm = order[ci]; kind, h = nm[0], int(nm[1])
        if ci == 0: vm.wait("c"); silu_c()
        if 4*ci + 3 in vm.q: vm.wait(4*ci + 3)
        if ci == 2 and "pf" in vm.q: vm.wait("pf")
        k("s_waitcnt lgkmcnt(0)\ns_barrier")
        stamp(k, 20 + ci)
        if kind == "R":
            if ci == 0:
                for ks in range(4): k(f"ds_read_b128 v[{SC+4*ks}:{SC+4*ks+3}], v27 offset:{ks*64}")
            slot = (ci % 4) * 32768
            va, off = (29, slot) if slot < 65536 else (30, slot - 65536)
            for ks in range(4):
                for e in range(2):
                    k(f"ds_read_b64_tr_b16 v[{RB+4*ks+2*e}:{RB+4*ks+2*e+1}], v{va} offset:{off + ks*8192 + e*1024}")
            if ci == 0:
                nonce_finish(k)
                for i in range(4): k(f"v_mov_b32 v{NB+i}, s{56+i}")
            for ks in range(4):
                k(f"s_waitcnt lgkmcnt({6-2*ks})")
                cc = "0" if ks == 0 else f"v[{RD}:{RD+3}]"
                k(f"v_mfma_f32_16x16x32_bf16 v[{RD}:{RD+3}], v[{RB+4*ks}:{RB+4*ks+3}], v[{SC+4*ks}:{SC+4*ks+3}], {cc}")
            if h > 0: k(f"s_add_u32 s42, s17, {h}\ns_and_b32 s42, s42, 7\ns_lshl_b32 s42, s42, 12\ns_add_u32 s42, s42, s31\ns_add_u32 s42, s42, {(h-1)*65536}")
            for i in range(4): k(f"v_bfi_b32 v{RD+i}, s33, v{NB+i}, v{RD+i}")
            if not E("NOST", 0):
                k(f"""s_mov_b32 exec_lo, 0x00010001
                s_mov_b32 exec_hi, 0x00010001
                buffer_store_dwordx4 v[{RD}:{RD+3}], v{28 if h == 0 else 26}, s[12:15], s{30 if h == 0 else 42} offen sc1
                s_mov_b64 exec, -1""")
                vm.add("st")
            stamp(k, 3 + ci)
            pass
            if ci == 2 and p == "m": msetup()
            return
        frags(ci)
    def frags(ci):
        nm = order[ci]; kind, h = nm[0], int(nm[1])
        if kind == "D":
            slot = (ci % 4) * 32768
            if slot >= 65536:
                for t in range(4): k(f"v_add_u32 v{168+t}, 65536, v{8+t}")
            for t in range(4):
                b_ = BD + (h*4 + t)*4
                va, off = (8 + t, slot) if slot < 65536 else (168 + t, slot - 65536)
                k(f"ds_read_b64_tr_b16 v[{b_}:{b_+1}], v{va} offset:{off}")
                k(f"ds_read_b64_tr_b16 v[{b_+2}:{b_+3}], v{va} offset:{off+16384}")
        else:
            blockreads(ci, (BG if kind == "G" else BU) + 16*h)
    def stream(p):
        nonlocal DEPTH
        n = 36 if p == "m" else 12
        done = 0
        DEPTH = E("DEPTH", 4)
        for j in range(4, n):
            if j == 4 * HOLD and p == "m":
                while done < HOLD: consume(done, p); done += 1
                hold(p)
            if j == 4 and E("GAP", 0) and p == "m":
                if E("GAP", 0) == 1: consume(0, p); done = 1
                else: vm.wait(E("GAP", 0))
            DEPTH = int(ES("DEPTHS", "444466666")[j >> 2])
            if j == E("AUXJ", 32) and p == "m":
                k.c("wave 0: side loads ride in the stream")
                k("""v_lshlrev_b32 v30, 6, v2
                s_cmp_eq_u32 s16, 0
                s_cselect_b64 exec, -1, 0
                buffer_load_dword v31, v30, s[12:15], s81 offen sc1
                buffer_load_dwordx2 v[188:189], v14, s[12:15], s38 offen sc1""")
                pm_issue("")
                vm.add("aux", 6)
                k("s_mov_b64 exec, -1")
            if j == E("GOJ", 34) and p == "m":
                k("""s_cmp_eq_u32 s16, 0
                s_cselect_b64 exec, -1, 0
                buffer_load_dword v15, v14, s[12:15], s78 offen offset:2048 sc1
                s_mov_b64 exec, -1""")
                vm.add("go")
            issue(j)
            while done < (j + 1) // 4 and 4*done + 3 not in vm.q: consume(done, p); done += 1
        while done < min(n // 4, 8): consume(done, p); done += 1
    def msetup():
        k.c("================= M: weight stream =================")
        k(f"""s_getreg_b32 s39, hwreg(HW_REG_XCC_ID)
        s_and_b32 s39, s39, 7
        s_lshl_b32 s38, s64, 1
        s_add_u32 s38, s38, s65
        s_lshl_b32 s38, s38, 7
        s_add_u32 s38, s38, {WS_MX}
        s_lshl_b32 s42, s16, 28
        v_mov_b32 v28, s32
        v_mov_b32 v29, s39
        v_mov_b32 v30, s42
        s_mov_b64 exec, 1
        buffer_store_dwordx2 v[28:29], v30, s[12:15], s38 offen sc1
        s_mov_b64 exec, -1
        s_xor_b32 s38, s38, 128""")
        vm.add("mx")
        if E("HELP", 3):
            k.c("the line group whose address class streams slowly is pulled into L2 by all M workgroups of the die")
            HM = E("HELP", 3)
            nl = {1: 19, 2: 10, 3: 5}[HM]
            k(f"""s_cmp_eq_u32 s65, {"s65" if HM > 1 else 0}
            s_cselect_b32 s8, s50, s52
            s_cselect_b32 s9, s51, s53
            s_mov_b32 s10, {1024*3584*2}
            s_lshr_b32 s42, s8, 7
            s_sub_u32 s42, {E("CLS", 3)}, s42
            s_add_u32 s42, s42, s34
            s_and_b32 s42, s42, 7
            s_cmp_eq_u32 s42, 7
            s_cselect_b32 s70, 0x1000000, 0
            s_mul_i32 s43, s34, 7
            s_add_u32 s42, s42, s43
            s_lshl_b32 s42, s42, 7
            s_lshr_b32 s43, s35, {0 if HM == 2 else 1}
            s_lshl_b32 s43, s43, 3
            s_add_u32 s43, s43, s16
            s_mul_i32 s43, s43, {nl*7168}
            s_add_u32 s42, s42, s43
            s_add_u32 s42, s42, s70""")
            if HM == 3: k(f"s_mul_i32 s43, s65, {512*7168}\ns_add_u32 s42, s42, s43\ns_add_u32 s42, s42, {232*7168}")
            k(f"""v_mul_u32_u24 v30, 7168, v2
            s_mov_b64 exec, {(1 << nl) - 1}
            buffer_load_dword v252, v30, s[8:11], s42 offen
            s_mov_b64 exec, -1""")
            vm.add("help")
        k(f"""v_cmp_eq_u32 s[4:5], 1, v7
        v_cmp_eq_u32 s[6:7], 2, v7
        v_cmp_eq_u32 s[28:29], 3, v7
        v_and_b32 v191, 3, v0
        v_lshlrev_b32 v191, 3, v191
        v_lshrrev_b32 v191, v191, s32
        v_lshlrev_b32 v212, 5, v2
        s_lshl_b32 s36, s65, 11
        s_add_u32 s37, s36, {WS_PAR + 2*4096}
        s_add_u32 s36, s36, {WS_PAR + 4*4096}
        s_mov_b32 s18, {ZMASK}
        s_mov_b32 s19, 0x00020002
        v_and_b32 v{ET}, 1, v0
        v_lshlrev_b32 v{ET}, 3, v{ET}
        s_not_b32 s42, s32
        v_lshrrev_b32 v{ET}, v{ET}, s42
        v_lshrrev_b32 v{ET+1}, 2, v{ET}
        v_lshrrev_b32 v{ET+2}, 4, v{ET}
        v_lshrrev_b32 v{ET+3}, 6, v{ET}
        v_and_b32 v{ET}, s18, v{ET}
        v_and_b32 v{ET+1}, s18, v{ET+1}
        v_and_b32 v{ET+2}, s18, v{ET+2}
        v_and_b32 v{ET+3}, s18, v{ET+3}
        v_mov_b32 v216, s56
        v_mov_b32 v217, s57
        v_mov_b32 v218, s58
        v_mov_b32 v219, s59
        v_add_u32 v13, {L_H}, v3
        s_lshl_b32 s71, s65, 10
        s_add_u32 s71, s71, {WS_SLOT}
        s_lshl_b32 s30, s65, 17
        s_lshl_b32 s31, s64, 6
        s_add_u32 s30, s30, s31
        s_add_u32 s30, s30, {WS_PART}
        s_add_u32 s31, s30, {64*4096}
        s_lshl_b32 s79, s64, 2
        s_and_b32 s42, s16, 3
        s_add_u32 s79, s79, s42
        s_lshl_b32 s79, s79, 10
        s_add_u32 s81, s79, {WS_XA}
        s_add_u32 s82, s79, {WS_XB}
        s_lshl_b32 s76, s65, 1
        s_lshr_b32 s42, s16, 2
        s_add_u32 s76, s76, s42
        s_lshl_b32 s76, s76, 8
        s_add_u32 s77, s76, s82
        s_add_u32 s76, s76, s81
        s_lshl_b32 s78, s34, 12
        s_add_u32 s78, s78, {WS_KEY}""")
    k("s_cmp_eq_u32 s66, 1\ns_cbranch_scc1 x_start")
    q0 = list(vm.q)
    stream("m")
    if E("GONLY", 0): stamp(k, 7); stamp_out(k); k("s_endpgm")
    stamp(k, 7)
    k(f"v_mov_b32 v190, {L_A + 1024}\ns_cmp_lg_u32 s16, 0\ns_cbranch_scc1 m_nk\ns_mov_b32 s83, 0")
    if "aux" in vm.q: vm.wait("aux")
    k("""v_xor_b32 v188, s32, v188
    v_xor_b32 v189, s39, v189
    v_or_b32 v188, v188, v189
    ds_write_b32 v190, v188
    m_pm:""")
    chk_bytes(k, range(PM, PM + 16), 30)
    k(f"""s_cbranch_vccz m_pmx
    s_sleep 4""")
    pm_issue("sc1")
    k(f"""s_waitcnt vmcnt(0)
    {spin("m_pm", 0)}
    m_pmx:
    s_mov_b32 s83, 0""")
    vm.wait("go")
    k(f"""m_go:
    v_cmp_ne_u32 vcc, s32, v15
    s_cbranch_vccz m_gox
    s_sleep {E("SLG", 3)}
    buffer_load_dword v15, v14, s[12:15], s78 offen offset:2048 sc1
    s_waitcnt vmcnt(0)
    {spin("m_go", 0)}
    m_gox:""")
    if E("SLG2", 0): k(f"s_sleep {E('SLG2', 0)}")
    stamp(k, 40)
    def kbody(b0, cnt, last):
        k(f"""s_waitcnt vmcnt({cnt})
        v_max_u32 v28, v{b0}, v{b0+4}
        v_xor_b32 v31, s32, v{b0+2}
        v_bitop3_b32 v31, v31, v{b0+6}, s32 bitop3:0xf6
        v_max_u32_dpp v30, v28, v28 row_ror:8 {DPPM}
        v_cmp_ne_u32 vcc, 0, v31
        v_min_u32 v29, v{b0}, v{b0+4}
        v_max_u32_dpp v30, v30, v30 row_ror:4 {DPPM}
        v_max3_u32 v29, v29, v{b0+1}, v{b0+5}
        s_and_b64 vcc, vcc, s[20:21]
        v_max_u32_dpp v30, v30, v30 row_ror:2 {DPPM}
        {last}""")
    cnt3 = f"s_add_u32 s83, s83, 1\ns_cmp_lt_u32 s83, {SPIN}\ns_cselect_b64 s[20:21], -1, 0"
    if E("KD", 2) == 1:
        k(f"s_mov_b32 s83, 0\ns_branch m_pk\nm_pk0:\ns_sleep {E('SL2', 4)}\nm_pk:")
        keys_issue(k, KB, 78)
        k(cnt3)
        kbody(KB, 0, "s_cbranch_scc1 m_pk0")
    else:
        k("s_mov_b32 s83, 0")
        keys_issue(k, KB, 78)
        k(f"s_sleep {E('KST', 4)}\nm_pk:")
        keys_issue(k, KB + 8, 78)
        k(cnt3)
        kbody(KB, 2, "s_cbranch_scc0 m_pkx")
        if E("KSL", 0): k(f"s_sleep {E('KSL', 0)}")
        keys_issue(k, KB, 78)
        kbody(KB + 8, 2, "s_cbranch_scc0 m_pkx")
        if E("KSL", 0): k(f"s_sleep {E('KSL', 0)}")
        k("s_branch m_pk\nm_pkx:\ns_nop 0")
    stamp(k, 13)
    stamp_val(k, 42, 83)
    k(f"""v_max_u32_dpp v30, v30, v30 row_ror:1 {DPPM}
    v_max_u32_dpp v30, v30, v30 row_bcast:15 row_mask:0xa bank_mask:0xf
    v_max_u32_dpp v30, v30, v30 row_bcast:31 row_mask:0xc bank_mask:0xf
    v_readlane_b32 s40, v30, 63
    s_and_b32 s42, s40, 0xff
    s_lshl_b32 s42, s42, 11
    v_cmp_eq_u32 vcc, s40, v28
    s_add_u32 s42, s42, s71
    buffer_load_dwordx4 v[176:179], v3, s[12:15], s42 offen sc1
    v_cndmask_b32 v30, v28, v29, vcc""")
    wave_reduce_to63(k, [30], "v_max_u32")
    hl = """buffer_load_dwordx4 v[176:179], v3, s[12:15], s42 offen sc1
    buffer_load_dwordx4 v[180:183], v3, s[12:15], s43 offen sc1"""
    k(f"""v_readlane_b32 s41, v30, 63
    s_and_b32 s41, s41, 0xff
    s_lshl_b32 s43, s41, 11
    s_add_u32 s43, s43, s71
    buffer_load_dwordx4 v[180:183], v3, s[12:15], s43 offen sc1
    s_and_b32 s40, s40, 0xff
    s_mov_b32 s83, 0
    s_lshl_b32 s41, s41, 8
    s_or_b32 s40, s40, s41
    v_mov_b32 v28, s40
    v_mov_b32 v29, s32
    s_cmp_eq_u32 s35, {99 if E("XKEY", 0) else 0}
    s_cselect_b64 exec, 1, 0
    buffer_store_dwordx2 v[28:29], v14, s[12:15], s78 offen offset:2304 sc1
    s_mov_b64 exec, -1
    s_barrier""")
    frags(8)
    k("m_ph:")
    for r in range(2):
        b0 = 176 + 4*r; f0 = 220 + 8*r
        k(f"s_waitcnt vmcnt({2-r})")
        for i in range(4): k(f"v_xor_b32 v{b0+i}, v{b0+i}, v{ET+i}")
        for e in range(8):
            k(f"v_fma_mix_f32 v{f0+e}, v{b0+(e>>1)}, v{PM+e}, v{PM+8+e} op_sel:[{e&1},0,0] op_sel_hi:[1,0,0]")
        for i in range(4): k(f"v_cvt_pk_bf16_f32 v{236+4*r+i}, v{f0+2*i}, v{f0+2*i+1}")
        k(f"ds_write_b128 v13, v[{236+4*r}:{239+4*r}] offset:{1024*r}")
        for i in range(4):
            k("v_xor_b32 v30, s19, v176" if r + i == 0 else f"v_bitop3_b32 v30, v30, v{b0+i}, s19 bitop3:0xf6")
    k("v_and_b32 v30, s18, v30\nv_cmp_ne_u32 vcc, 0, v30")
    k(f"""s_cbranch_vccnz m_phb
    m_phx:""")
    stamp(k, 14)
    k("m_nk2:\ns_waitcnt lgkmcnt(0)\ns_barrier\nds_read_b32 v188, v190")
    for ks in range(8):
        k(f"ds_read_b128 v[{HA+4*ks}:{HA+4*ks+3}], v17 offset:{(ks>>2)*512 + (ks&3)*64}")
    for ks in range(8):
        k(f"s_waitcnt lgkmcnt({7-ks})")
        for a_, b_ in ((AG, BG), (AG + 4, BU)):
            cc = "0" if ks == 0 else f"v[{a_}:{a_+3}]"
            k(f"v_mfma_f32_16x16x32_bf16 v[{a_}:{a_+3}], v[{HA+4*ks}:{HA+4*ks+3}], v[{b_+4*ks}:{b_+4*ks+3}], {cc}")
    PB = 184
    k(f"""v_readfirstlane_b32 s70, v188
    s_mov_b32 s83, 0
    s_cmp_eq_u32 s70, 0
    s_cselect_b32 s82, s81, s82
    s_cselect_b64 s[20:21], 0, 0xffff
    v_bfi_b32 v{PB}, s33, v216, v{AG}
    v_bfi_b32 v{PB+1}, s33, v217, v{AG+1}
    v_bfi_b32 v{PB+2}, s33, v218, v{AG+4}
    v_bfi_b32 v{PB+3}, s33, v219, v{AG+5}
    s_mov_b64 exec, 0xffff
    buffer_store_dwordx4 v[{PB}:{PB+3}], v3, s[12:15], s76 offen
    s_mov_b64 exec, s[20:21]
    buffer_store_dwordx4 v[{PB}:{PB+3}], v3, s[12:15], s77 offen sc1
    s_mov_b64 exec, -1
    s_cmp_ge_u32 s16, 4
    s_cbranch_scc1 m_na""")
    if E("SL3", 2): k(f"s_sleep {E('SL3', 2)}")
    stamp(k, 15)
    R = 24
    k(f"""m_px:
    buffer_load_dwordx4 v[{R}:{R+3}], v3, s[12:15], s81 offen sc1
    s_mov_b32 s42, s81
    s_mov_b32 s81, s82
    s_mov_b32 s82, s42
    s_add_u32 s83, s83, 1
    s_cmp_lt_u32 s83, {SPIN}
    s_cselect_b64 s[20:21], -1, 0
    s_waitcnt vmcnt(0)""")
    for i in range(4): k(f"v_xor_b32 v{R+i}, s{56+i}, v{R+i}")
    k(f"""v_or3_b32 v9, v{R}, v{R+1}, v{R+2}
    v_bitop3_b32 v9, v9, v{R+3}, s33 bitop3:0xa8
    v_permlane32_swap_b32 v{R}, v{R+2}
    v_cmp_ne_u32 vcc, 0, v9
    v_permlane32_swap_b32 v{R+1}, v{R+3}
    s_and_b64 vcc, vcc, s[20:21]""")
    padd(k, R, R, R + 2)
    k("s_cbranch_scc1 m_px")
    stamp(k, 16)
    k(f"v_permlane16_swap_b32 v{R}, v{R+1}")
    k(f"v_add_f32 v{R}, v{R}, v{R+1}")
    round_bf16(k, R, R)
    k(f"""v_mul_f32 v{R+1}, {LOG2E}, v{R}
    v_exp_f32 v{R+1}, v{R+1}
    v_mov_b32 v{R+2}, v{R}
    v_add_f32 v{R+1}, 1.0, v{R+1}
    v_rcp_f32 v{R+1}, v{R+1}
    v_mov_b32 v{R+3}, v{R}
    v_mul_f32 v{R+1}, v{R}, v{R+1}
    v_permlane32_swap_b32 v{R+2}, v{R+3}""")
    round_bf16(k, R + 1, R + 1)
    k(f"""v_mul_f32 v{R+1}, v{R+1}, v{R+3}
    v_cvt_pk_bf16_f32 v{R+1}, v{R+1}, v{R+1}
    ds_write_b16 v18, v{R+1}
    m_na:
    s_waitcnt lgkmcnt(0)
    s_barrier""")
    for ks in range(2):
        k(f"ds_read_b128 v[{HA+4*ks}:{HA+4*ks+3}], v19 offset:{ks*64}")
    for ks in range(2):
        k(f"s_waitcnt lgkmcnt({1-ks})")
        for t in range(4):
            a_ = AG + 4 * t
            cc = "0" if ks == 0 else f"v[{a_}:{a_+3}]"
            b_ = BD + (ks*4 + t)*4
            k(f"v_mfma_f32_16x16x32_bf16 v[{a_}:{a_+3}], v[{HA+4*ks}:{HA+4*ks+3}], v[{b_}:{b_+3}], {cc}")
    for t, m_ in ((1, "s[4:5]"), (2, "s[6:7]"), (3, "s[28:29]")):
        for row in range(2):
            src = AG + row if t == 1 else 24 + row
            k(f"v_cndmask_b32 v{24+row}, v{src}, v{AG+4*t+row}, {m_}")
    for row in range(2):
        k(f"v_bfi_b32 v{24+row}, s33, v191, v{24+row}")
    for row in range(2):
        k(f"buffer_store_dword v{24+row}, v20, s[12:15], s{30+row} offen sc1")
    stamp(k, 17)
    stamp_out(k)
    k("s_endpgm")
    k("m_nk:\ns_waitcnt vmcnt(0)")
    stamp(k, 18)
    k("s_barrier")
    frags(8)
    k(f"""s_branch m_nk2
    m_phb:
    s_add_u32 s83, s83, 1
    s_cmp_ge_u32 s83, {SPIN}
    s_cbranch_scc1 m_phx
    {hl}
    s_waitcnt vmcnt(0)
    s_branch m_ph""")
    k.c("================= X: finalize ga/cb/sb/gb, then final reduction =================")
    k("x_start:")
    vm.q = list(q0)
    k.c("round = wave>>2 ; unit = (q*8+c)*4 + (wave&3)")
    k(f"""s_lshl_b32 s37, s34, 1
    s_add_u32 s37, s37, s65
    s_lshl_b32 s37, s37, 3
    s_add_u32 s37, s37, s16
    s_lshl_b32 s42, s37, 8
    s_add_u32 s42, s42, {WS_KEY}
    s_mov_b64 exec, 0xffff
    buffer_store_dwordx4 v[104:107], v3, s[12:15], s42 offen sc1
    s_mov_b64 exec, -1
    s_lshl_b32 s36, s37, 12
    s_add_u32 s36, s36, {WS_PART}
    s_lshl_b32 s76, s34, 3
    s_add_u32 s76, s76, s16
    s_lshl_b32 s77, s76, 10
    s_add_u32 s77, s77, {WS_MODP}
    s_lshl_b32 s79, s76, 7
    s_add_u32 s79, s79, {WS_PAR}
    s_lshr_b32 s71, s76, 5
    s_cmp_eq_u32 s71, 0
    s_cselect_b32 s80, 1.0, 0
    s_lshl_b32 s78, s34, 12
    s_add_u32 s78, s78, {WS_KEY}""")
    vm.add("kpf")
    srd(k, 72, 48, 2048)
    k.c("factor: w_r for the (1+cb) columns, 64 for the ga columns")
    k(f"""v_and_b32 v10, 7, v0
    v_lshl_add_u32 v10, v10, 2, v7
    v_lshlrev_b32 v10, 1, v10
    s_lshl_b32 s42, s76, 6
    buffer_load_ushort v10, v10, s[72:75], s42 offen""")
    vm.add("wr")
    stream("x")
    def xhelp(XH):
        XH = XH.split(',') if XH else []
        if XH:
            k.c("the line group whose address class streams slowly is pulled into L2")
            k(f"""v_and_b32 v90, 255, v0
            v_lshrrev_b32 v91, 8, v0
            v_lshl_add_u32 v90, v91, 9, v90
            v_mul_u32_u24 v90, 7168, v90""")
            for i, nm in enumerate(XH):
                sb = 44 if nm[0] == "G" else 60
                k(f"""s_lshr_b32 s42, s{sb}, 7
                s_sub_u32 s42, {E("CLS", 3)}, s42
                s_add_u32 s42, s42, s34
                s_and_b32 s42, s42, 7
                s_cmp_eq_u32 s42, 7
                s_cselect_b32 s70, 0x1000000, 0
                s_mul_i32 s43, s34, 7
                s_add_u32 s42, s42, s43
                s_lshl_b32 s42, s42, 7
                s_add_u32 s42, s42, {int(nm[1])*256*7168}
                s_add_u32 s42, s42, s70
                buffer_load_dword v{92 + i}, v90, s[{sb}:{sb+3}], s42 offen
                s_barrier""")
    def finalize(lab, st):
        k(f"""v_lshlrev_b32 v8, 3, v7
        v_lshrrev_b32 v8, v8, s32
        s_mov_b32 s83, 0
        {lab}:
        buffer_load_dwordx4 v[16:19], v3, s[12:15], s77 offen sc1
        s_waitcnt vmcnt(0)""")
        chk_bytes(k, range(16, 20), 9)
        k(f"s_cbranch_vccz {lab}x\n{spin(lab, E('SLX', 4))}\n{lab}x:")
        stamp(k, st)
        k("v_permlane32_swap_b32 v16, v18\nv_permlane32_swap_b32 v17, v19")
        padd(k, 16, 16, 18)
        k(f"v_permlane16_swap_b32 v16, v17\nv_add_f32 v16, v16, v17\nv_add_f32_dpp v16, v16, v16 row_ror:8 {DPPM}")
        round_bf16(k, 16, 16)
        k("v_add_f32 v16, s80, v16")
        round_bf16(k, 16, 16)
        def put(b, so):
            k(f"""v_bfi_b32 v{b}, s33, v8, v{b}
            v_mov_b32 v{b+1}, v{b}
            v_permlane16_swap_b32 v{b}, v{b+1}
            v_mov_b32 v{b+2}, v{b}
            v_mov_b32 v{b+3}, v{b+1}
            v_permlane32_swap_b32 v{b}, v{b+2}
            v_permlane32_swap_b32 v{b+1}, v{b+3}
            s_mov_b64 exec, 0xff
            buffer_store_dwordx4 v[{b}:{b+3}], v3, s[12:15], s{so} offen sc1
            s_mov_b64 exec, -1""")
        if st == 7:
            k("v_mul_f32 v20, v16, v10")
            put(20, 79)
            k("s_cmp_eq_u32 s80, 0\ns_cbranch_scc1 x_nc\ns_add_u32 s42, s79, 16384")
            put(16, 42)
            k("x_nc:")
        else: put(16, 79)
    k(f"s_cmp_eq_u32 s65, 1\ns_cbranch_scc1 x_na")
    k(f"""s_cmp_eq_u32 s80, 0
    s_cselect_b32 s42, {f32(64.0)}, 0
    v_lshl_or_b32 v10, v10, 16, s42""")
    if E("SLPA", 0): k(f"s_sleep {E('SLPA', 0)}")
    finalize("x_pa", 7)
    if E("PT", 0):
        k.c("pull the finished vectors into this die's L2")
        k(f"""s_sleep {E('PT', 0)}
        s_mov_b32 s42, {WS_PAR}
        v_lshlrev_b32 v9, 4, v0
        buffer_load_dwordx4 v[20:23], v9, s[12:15], s42 offen sc1""")
    k("s_add_u32 s77, s77, 65536\ns_add_u32 s79, s79, 8192\ns_mov_b32 s80, 0")
    if E("SLP", 12): k(f"s_sleep {E('SLP', 12)}")
    finalize("x_pb", 8)
    if ES("XH0", ""): k("s_barrier")
    xhelp(ES("XH0", ""))
    k("s_branch x_nb\nx_na:")
    xhelp(ES("XH", "U0"))
    k("x_nb:\ns_mov_b32 s17, s37\ns_barrier")
    if E("XPF", 2) == 2:
        k(f"""v_lshlrev_b32 v9, 7, v2
        s_mov_b64 exec, 0xfffffff
        buffer_load_dword v251, v9, s[12:15], s36 offen
        s_mov_b64 exec, -1""")
    if E("XPF", 2) == 1:
        k(f"""buffer_store_dwordx4 v[104:107], v3, s[12:15], s36 offen sc1
        buffer_store_dwordx4 v[104:107], v3, s[12:15], s36 offen offset:1024 sc1
        buffer_store_dwordx4 v[104:107], v3, s[12:15], s36 offen offset:2048 sc1
        s_mov_b32 exec_hi, 0
        buffer_store_dwordx4 v[104:107], v3, s[12:15], s36 offen offset:3072 sc1
        s_mov_b64 exec, -1""")
    srd(k, 8, 48, 2048)
    k(f"""s_and_b32 s18, s17, 63
    v_and_b32 v5, 3, v0
    v_lshlrev_b32 v5, 3, v5
    v_lshl_add_u32 v5, v7, 1, v5
    v_lshlrev_b32 v6, 1, v5
    v_and_b32 v86, -4, v5
    v_and_b32 v87, 2, v5
    v_lshlrev_b32 v87, 3, v87
    s_lshl_b32 s31, s18, 6
    s_add_u32 s30, s31, {WS_PAR + 2*4096}
    s_add_u32 s31, s30, 4096
    s_add_u32 s29, s30, 8192
    s_mov_b32 s28, {WS_PAR + 2*4096}
    v_lshlrev_b32 v88, 3, v7
    v_lshrrev_b32 v88, v88, s32
    v_lshrrev_b32 v89, 1, v86
    s_not_b32 s42, s32
    v_lshrrev_b32 v89, v89, s42
    v_and_b32 v89, {ZMASK}, v89
    v_lshlrev_b32 v9, 3, v2""")
    for j in range(4):
        k(f"buffer_load_dwordx2 v[{40+2*j}:{41+2*j}], v9, s[8:11], 0 offen offset:{j*512}")
    k("s_waitcnt vmcnt(0)")
    for i in range(8): unpack_bf16(k, 48 + 2*i, 40 + i)
    k.c("once the first scores are out every modulation vector has long been published")
    k(f"""s_cmp_lg_u32 s16, 0
    s_cbranch_scc1 x_g1x
    s_mov_b32 s83, 0
    x_g1:
    buffer_load_dword v15, v14, s[12:15], s78 offen offset:2048 sc1
    s_waitcnt vmcnt(0)
    v_cmp_ne_u32 vcc, s32, v15
    s_cbranch_vccz x_g1x
    {spin("x_g1", 6)}
    x_g1x:
    s_barrier
    s_mov_b32 s83, 0
    x_pq:""")
    for j in range(4):
        k(f"buffer_load_dwordx4 v[{64+4*j}:{67+4*j}], v3, s[12:15], s28 offen offset:{j*1024} sc1")
    k(f"""buffer_load_dword v32, v6, s[12:15], s30 offen sc1
    buffer_load_dword v33, v6, s[12:15], s31 offen sc1
    buffer_load_dword v34, v6, s[12:15], s29 offen sc1
    s_waitcnt vmcnt(0)
    v_xor_b32 v36, v32, v88
    v_bitop3_b32 v36, v36, v33, v88 bitop3:0xf6
    v_bitop3_b32 v36, v36, v34, v88 bitop3:0xf6
    v_and_b32 v36, s33, v36
    v_cmp_ne_u32 s[68:69], 0, v36""")
    chk_bytes(k, range(64, 80), 9)
    k(f"""s_or_b64 vcc, vcc, s[68:69]
    s_cbranch_vccz x_pqx
    {spin("x_pq", 4)}
    x_pqx:
    v_and_b32 v32, 0xffff0000, v32
    v_and_b32 v33, 0xffff0000, v33
    v_and_b32 v34, 0xffff0000, v34""")
    pmul(k, 8, 48, 64)
    for i in range(1, 8): pfma(k, 8, 48 + 2*i, 64 + 2*i, 8)
    k("v_add_f32 v8, v8, v9")
    wave_reduce_to63(k, [8])
    k(f"s_cmp_lg_u32 s16, 0\ns_cbranch_scc1 x_ng")
    if E("XKEY", 0):
        k(f"""s_mov_b32 s83, 0
        x_go:
        buffer_load_dword v15, v14, s[12:15], s78 offen offset:2048 sc1
        s_waitcnt vmcnt(0)
        v_cmp_ne_u32 vcc, s32, v15
        s_cbranch_vccz x_gox
        {spin("x_go", E("SLG", 3))}
        x_gox:
        s_sleep {E("SLXK", 8)}""")
        poll_keys(k, "x_pk", 16, 78, 30)
        top2(k, 16, 40, 41, 28)
        k(f"""s_and_b32 s40, s40, 0xff
        s_and_b32 s41, s41, 0xff
        s_lshl_b32 s41, s41, 8
        s_or_b32 s40, s40, s41
        v_mov_b32 v28, s40
        v_mov_b32 v29, s32
        ds_write_b32 v14, v28
        s_cmp_lg_u32 s65, 0
        s_cbranch_scc1 x_ng
        s_mov_b64 exec, 1
        buffer_store_dwordx2 v[28:29], v14, s[12:15], s78 offen offset:2304 sc1
        s_mov_b64 exec, -1
        x_ng:
        s_waitcnt lgkmcnt(0)
        s_barrier
        ds_read_b32 v28, v14
        s_waitcnt lgkmcnt(0)
        v_readfirstlane_b32 s40, v28
        s_lshr_b32 s41, s40, 8
        s_and_b32 s40, s40, 0xff
        s_sleep {E("SLXS", 12)}""")
    else:
        res_wait(k, "x_r0", 78, 22, 16, 3)
        k("x_ng:\ns_barrier")
        res_wait(k, "x_r1", 78, 22, 16, 1)
    stamp(k, 13)
    k(f"""s_cmp_lt_u32 s17, 64
    s_cselect_b32 s40, s40, s41
    s_lshl_b32 s42, s40, 11
    s_add_u32 s42, s42, {WS_SLOT}
    s_lshl_b32 s19, s18, 5
    s_add_u32 s43, s42, s19
    s_lshl_b32 s40, s40, 4
    s_add_u32 s40, s40, {WS_TT}
    s_mov_b32 s83, 0
    x_ps:
    buffer_load_dwordx4 v[80:83], v14, s[12:15], s40 offen sc1
    buffer_load_dword v40, v86, s[12:15], s43 offen sc1
    s_waitcnt vmcnt(0)
    v_xor_b32 v40, v40, v89
    v_xor_b32 v35, 0x00020002, v40
    v_and_b32 v35, {ZMASK}, v35
    v_cmp_ne_u32 s[68:69], 0, v35""")
    chk_bytes(k, range(80, 84), 9)
    k(f"""s_or_b64 vcc, vcc, s[68:69]
    s_cbranch_vccz x_psx
    {spin("x_ps", 2)}
    x_psx:
    v_readfirstlane_b32 s41, v80
    s_bfe_u32 s41, s41, 0xb0008
    s_lshl_b32 s41, s41, 11
    s_add_u32 s41, s41, s19""")
    k.c("router logit = score (decoded from the key) + sb.w_r")
    k("""v_not_b32 v36, v83
    v_ashrrev_i32 v36, 31, v36
    v_or_b32 v36, 0x80000000, v36
    v_xor_b32 v36, v36, v83
    v_add_f32 v8, v8, v36""")
    round_bf16(k, 8, 8)
    k(f"""v_mul_f32 v8, {LOG2E}, v8
    v_exp_f32 v8, v8
    v_add_f32 v8, 1.0, v8
    v_rcp_f32 v8, v8""")
    round_bf16(k, 8, 8)
    k("""v_readlane_b32 s46, v8, 63
    v_lshrrev_b32 v40, v87, v40
    v_cvt_f32_f16 v40, v40
    v_rcp_f32 v82, v82
    v_fma_f32 v36, v40, v34, v32
    v_fma_f32 v44, v40, v82, v81
    v_fmac_f32 v44, v33, v36
    v_mul_f32 v80, s46, v33""")
    stamp(k, 14)
    L = 16
    k(f"s_sleep {E('SL4', 20)}")
    def pld(j, b0): return f"buffer_load_dwordx4 v[{b0+4*j}:{b0+4*j+3}], v3, s[12:15], s36 offen offset:{j*1024} sc1"
    XM = (60, 62, 64, 66)
    k("""s_mov_b32 s83, 0
    s_mov_b64 s[60:61], -1
    s_mov_b64 s[62:63], -1
    s_mov_b64 s[64:65], -1
    s_mov_b32 s66, -1
    s_mov_b32 s67, 0""")
    k.c("two polls in flight, half a round apart, into alternate registers")
    S_ = 96; L = 112; BUF = (16, 128)
    for i in range(4): k(f"v_mov_b32 v{S_+12+i}, 0")
    def piss(b):
        for j in range(4): k(f"s_mov_b64 exec, s[{XM[j]}:{XM[j]+1}]\n" + pld(j, BUF[b]))
    piss(0)
    k(f"s_sleep {E('XST', 8)}\nx_p2:")
    for b in range(2):
        piss(1 - b)
        if b == 1:
            k(f"""s_add_u32 s83, s83, 1
            s_cmp_lt_u32 s83, {SPIN}
            s_cselect_b64 s[68:69], -1, 0""")
        for j in range(4):
            r = BUF[b] + 4*j; q = S_ + 4*j
            k(f"s_mov_b64 exec, s[{XM[j]}:{XM[j]+1}]\ns_waitcnt vmcnt({7 - j})")
            for i in range(4): k(f"v_xor_b32 v{q+i}, s{56+i}, v{r+i}")
            k(f"""v_or3_b32 v12, v{q}, v{q+1}, v{q+2}
            v_bitop3_b32 v12, v12, v{q+3}, s33 bitop3:0xa8
            v_cmp_ne_u32 s[{XM[j]}:{XM[j]+1}], 0, v12""")
            if j == 2: k("s_or_b64 s[70:71], s[60:61], s[62:63]")
        k("s_mov_b64 exec, -1")
        for h in range(2): padd(k, L + 2*h, S_ + 2*h, S_ + 4 + 2*h)
        k("s_or_b64 s[72:73], s[64:65], s[66:67]")
        for h in range(2): padd(k, L + 8 + 2*h, S_ + 8 + 2*h, S_ + 12 + 2*h)
        k("s_or_b64 s[70:71], s[70:71], s[72:73]")
        if b == 1: k("s_and_b64 s[70:71], s[70:71], s[68:69]")
        for h in range(2): padd(k, L + 2*h, L + 2*h, L + 8 + 2*h)
        k("s_cbranch_scc0 x_p3" if b == 0 else "s_cbranch_scc1 x_p2\nx_p3:\ns_nop 0")
    stamp(k, 17)
    k(f"v_permlane32_swap_b32 v{L}, v{L+2}\nv_permlane32_swap_b32 v{L+1}, v{L+3}")
    padd(k, L, L, L + 2)
    k(f"v_permlane16_swap_b32 v{L}, v{L+1}\nv_add_f32 v{L}, v{L}, v{L+1}")
    for sh in (4, 8): k(f"v_add_f32_dpp v{L}, v{L}, v{L} row_ror:{sh} {DPPM}")
    k(f"""v_fmac_f32 v44, v{L}, v80
    s_mov_b32 exec_lo, 0x000f000f
    s_mov_b32 exec_hi, 0x000f000f
    v_cvt_pk_bf16_f32 v44, v44, v44
    buffer_store_short v44, v5, s[24:27], s41 offen {ES("FST", "")}
    s_cmp_lg_u32 s17, 0
    s_cbranch_scc1 x_end
    s_add_u32 s101, s101, 1
    s_mov_b32 s43, {WS_EP}
    v_mov_b32 v8, s101
    s_mov_b64 exec, 1
    buffer_store_dword v8, v14, s[12:15], s43 offen sc1
    x_end:""")
    stamp_out(k)

def gen():
    k = K(NAME)
    stamp_init(k)
    k("""s_cmp_ge_u32 s2, 256
    s_cbranch_scc1 k_done""")
    stamp(k, 0)
    k(f"""s_load_dwordx2 s[4:5], s[0:1], {A_X}
    s_load_dwordx8 s[20:27], s[0:1], {A_C}
    s_load_dwordx2 s[6:7], s[0:1], {A_WS}
    s_load_dwordx8 s[48:55], s[0:1], {A_WR}
    s_getpc_b64 s[62:63]
    k_pc:
    v_lshrrev_b32 v1, 6, v0
    v_and_b32 v2, 63, v0
    v_readfirstlane_b32 s16, v1
    v_lshlrev_b32 v3, 4, v2
    s_and_b32 s34, s2, 7
    s_lshr_b32 s35, s2, 4
    s_bitcmp1_b32 s2, 3
    s_cbranch_scc0 f_start""")
    k.c("G head: code prefetch, first GEMV tile [128 k][128 n]: ks = c, s17 = block, s41 = vq")
    k(f"""s_lshl_b32 s40, s35, 3
    s_add_u32 s40, s40, s16
    s_lshl_b32 s40, s40, 9
    v_lshl_add_u32 v4, v2, 7, s40
    v_min_u32 v4, tab_end-k_pc-4, v4
    s_mov_b64 exec, 15
    global_load_dword v250, v4, s[62:63]
    s_mov_b64 exec, -1
    v_bfe_u32 v7, v0, 4, 2
    v_lshlrev_b32 v4, 1, v7
    v_xor_b32 v4, v4, v0
    v_and_b32 v4, 15, v4
    v_lshlrev_b32 v4, 4, v4
    s_movk_i32 s42, 12288
    v_mad_u32_u24 v4, v7, s42, v4
    v_xor_b32 v31, 0x80, v4
    s_and_b32 s17, s35, 7
    s_lshr_b32 s41, s35, 3
    s_lshl_b32 s18, s34, 3
    s_add_u32 s18, s18, s16
    s_mul_i32 s18, s18, {16*12288}
    s_lshl_b32 s68, s16, 12
    s_xor_b32 s70, s35, 8
    s_lshl_b32 s70, s70, 8
    s_add_u32 s70, s70, s18
    s_mov_b32 s10, {1024*6144*2}
    s_mov_b32 s11, 0x00020000
    s_mov_b32 m0, s68""")
    AS = E("ASSIST", 0)
    if AS:
        k.c("pull the rows the neighbour asks for last into this die's L2")
        k(f"""s_sub_u32 s36, 16, s34
        s_cmp_eq_u32 s34, 0
        s_cselect_b32 s36, 8, s36
        s_bitcmp1_b32 s35, 0
        s_cselect_b32 s36, s36, s34
        s_lshr_b32 s37, s35, 1
        s_lshl_b32 s37, s37, 4
        s_add_u32 s36, s36, s37
        s_lshl_b32 s37, s16, {7 if AS == 1 else 8}
        s_add_u32 s36, s36, s37
        s_add_u32 s36, s36, {1024 if AS == 1 else 0}
        s_lshl_b32 s36, s36, 11""")
        if AS == 1: k("v_lshl_add_u32 v5, v2, 7, s36")
        elif AS == 2: k("v_and_b32 v5, 7, v2\nv_lshlrev_b32 v5, 7, v5\nv_bfe_u32 v6, v2, 3, 1\nv_lshl_add_u32 v5, v6, 18, v5\nv_add3_u32 v5, v5, s36, v250")
        else: k("v_and_b32 v5, 15, v2\nv_lshlrev_b32 v5, 7, v5\nv_bfe_u32 v6, v2, 4, 1\nv_lshl_add_u32 v5, v6, 18, v5\nv_add_u32 v5, s36, v5")
    k("s_waitcnt lgkmcnt(0)")
    if AS: k(f"s_mov_b64 exec, {0xffff if AS == 1 else 0xffffffff}\nglobal_load_dword v249, v5, s[4:5]\ns_mov_b64 exec, -1")
    k("""s_mov_b32 s8, s22
    s_mov_b32 s9, s23""")
    if E("GDEL", 0): k(f"s_cmp_ge_u32 s35, {E('XND', 14)}\ns_cbranch_scc1 g_nd\ns_sleep {E('GDEL', 0)}\ng_nd:")
    stamp(k, 2)
    for d in range(4):
        k(f"buffer_load_dwordx4 v{(4, 31)[d >> 1]}, s[8:11], s70 offen offset:{d*1024} {ES('NTW', '')} lds")
        if d < 3: k(f"s_add_u32 s70, s70, {4*12288 - 1024}")
    k("s_branch g_start\nf_start:")
    role_F(k)
    role_G(k)
    k("k_done:\ns_endpgm")
    return k

HEADER = """; adaLN + FNet mixing + MoD block, gfx950.  Generated by gen/gen25.py (hand-written generator).
"""
def tables():
    w = tabs.words(tabs.T4())
    for g0 in (False, True):
        for wv in range(8): w += tabs.words(tabs.T1(g0, wv))
    for sp in (False, True): w += tabs.words(tabs.T2(sp))
    assert 4 * len(w) == TB_END
    t = ".p2align 8\n.type tables,@object\ntables:\n"
    for i in range(0, len(w), 8):
        t += ".long " + ",".join("0x%x" % x for x in w[i:i+8]) + "\n"
    return t + f"tab_end:\n.size tables, {4*len(w)}\n"

def main(out):
    k = gen()
    t = HEADER + f"; @launch grid=(256,1,1) block=(512,1,1) lds={LDS}\n"
    t += '.amdgcn_target "amdgcn-amd-amdhsa--gfx950"\n.text\n' + k.text() + 'code_end:\n' + tables()
    t += '.section .rodata,"a"\n' + k.desc()
    open(out, "w").write(t)
if __name__ == "__main__":
    main(sys.argv[1] if len(sys.argv) > 1 else "adaLN_cond__spectral_fnet__moe_arch_mod__prompt.s")
```

```python
import re

TRANS = ("v_exp_f32", "v_log_f32", "v_rcp_f32", "v_rsq_f32", "v_sqrt_f32", "v_sin_f32", "v_cos_f32",
         "v_rcp_iflag_f32")

def _regs(tok):
    tok = tok.strip()
    tok = tok.lstrip("-")
    m = re.match(r"^(?:abs\(|\|)(.*?)(?:\)|\|)$", tok)
    if m:
        tok = m.group(1)
    m = re.match(r"^([vsa])(\d+)$", tok)
    if m:
        return {m.group(1) + m.group(2)}
    m = re.match(r"^([vsa])\[(\d+):(\d+)\]$", tok)
    if m:
        return {m.group(1) + str(i) for i in range(int(m.group(2)), int(m.group(3)) + 1)}
    if tok in ("vcc", "vcc_lo", "vcc_hi"):
        return {"vcc"}
    if tok in ("exec", "exec_lo", "exec_hi"):
        return {"exec"}
    if tok == "m0":
        return {"m0"}
    return set()

class Ins:
    def __init__(self, text):
        self.text = text
        t = text.split(";")[0].strip()
        self.label = t.endswith(":")
        self.directive = t.startswith(".") or t == ""
        self.op = ""
        self.w = set(); self.r = set()
        self.kind = "other"
        self.states = 1
        if self.label or self.directive:
            self.states = 0
            return
        parts = t.split(None, 1)
        op = parts[0]; self.op = op
        rest = parts[1] if len(parts) > 1 else ""
        ops = []; depth = 0; cur = ""
        for ch in rest:
            if ch in "[(": depth += 1
            if ch in "])": depth -= 1
            if ch == "," and depth == 0:
                ops.append(cur); cur = ""
            else:
                cur += ch
        ops.append(cur)
        mods = ""
        if ops:
            last = ops[-1].strip().split(None, 1)
            if last:
                ops[-1] = last[0]
                mods = last[1] if len(last) > 1 else ""
        ops = [o.strip() for o in ops if o.strip() != ""]
        self.ops = ops; self.mods = mods
        R = [_regs(o) for o in ops]
        self.dpp = ("_dpp" in op) or any(k in mods for k in ("row_", "quad_perm", "wave_"))
        if op == "s_nop":
            self.states = int(ops[0], 0) + 1
            self.kind = "nop"
        elif op.startswith("v_smfmac"):
            self.kind = "mfma"
            self.w = R[0]; self.ra = R[1] | R[2] | R[3]; self.rc = R[0]; self.r = self.ra | self.rc
            self.passes = 8 if "32x32" in op else 4
        elif op.startswith("v_mfma"):
            self.kind = "mfma"
            self.w = R[0]; self.ra = R[1] | R[2]; self.rc = R[3]; self.r = self.ra | self.rc
            self.passes = 8 if "32x32" in op else 4
        elif op.startswith("v_"):
            self.kind = "valu"
            base = op.replace("_e32", "").replace("_e64", "").replace("_dpp", "").replace("_sdwa", "")
            self.base = base
            if base in ("v_swap_b32", "v_permlane16_swap_b32", "v_permlane32_swap_b32"):
                self.w = R[0] | R[1]; self.r = R[0] | R[1]
            elif base.startswith("v_cmpx"):
                self.w = R[0] | {"exec"}; self.r = set().union(*R[1:])
            elif base in ("v_add_co_u32", "v_sub_co_u32", "v_addc_co_u32", "v_subb_co_u32"):
                self.w = R[0] | R[1]; self.r = set().union(*R[2:])
            else:
                self.w = R[0]; self.r = set().union(*R[1:]) if len(R) > 1 else set()
                if base.startswith(("v_fmac", "v_dot2c", "v_fma_mixlo", "v_fma_mixhi", "v_writelane")) or self.dpp:
                    self.r |= R[0]
            self.trans = base in TRANS
            self.opsel_dst = base in ("v_fma_mixhi_f16", "v_fma_mixlo_f16") or "dst_sel:WORD" in mods or "dst_sel:BYTE" in mods
        elif op.startswith(("buffer_", "global_")):
            self.kind = "vmem"
            self.lds = (" lds" in (" " + mods)) or "_lds_" in op
            self.wide_store = False
            if "load" in op and not self.lds:
                self.w = R[0]; self.r = set().union(*R[1:])
            elif "atomic" in op:
                self.r = set().union(*R)
                if "sc0" in mods and op.startswith("buffer_"): self.w = R[0]
            else:
                self.r = set().union(*R) if R else set()
                if "store" in op and ("x4" in op or "x3" in op):
                    self.wide_store = True
                    self.sdata = R[0] if op.startswith("buffer_") else R[1]
            if self.lds: self.r |= {"m0"}
        elif op.startswith("ds_"):
            self.kind = "ds"
            if op.startswith(("ds_read", "ds_bpermute", "ds_permute", "ds_swizzle")):
                self.w = R[0]; self.r = set().union(*R[1:])
            else:
                self.r = set().union(*R)
        elif op.startswith("s_"):
            self.kind = "salu"
            if op.startswith(("s_cmp", "s_cbranch", "s_branch", "s_waitcnt", "s_barrier", "s_endpgm", "s_sleep", "s_setprio", "s_bitcmp")):
                self.r = set().union(*R) if R else set()
            else:
                self.w = R[0] if R else set(); self.r = set().union(*R[1:]) if len(R) > 1 else set()
                if "saveexec" in op: self.w |= {"exec"}

def _need(p, c):
    n = 0
    vw = {x for x in p.w if x[0] in "va" and x != "vcc"}
    sw = {x for x in p.w if x[0] == "s" or x == "vcc"}
    if p.kind == "valu":
        if c.kind == "mfma" and (vw & c.r): n = max(n, 2)
        if c.kind == "mfma" and "exec" in p.w: n = max(n, 4)
        if c.kind == "valu":
            if c.dpp and (vw & c.r): n = max(n, 2)
            if c.dpp and "exec" in p.w: n = max(n, 5)
            if c.base.startswith("v_permlane") and (vw & c.r): n = max(n, 2)
            if c.base.startswith("v_permlane") and "exec" in p.w: n = max(n, 4)
            if c.base in ("v_readlane_b32", "v_readfirstlane_b32") and (vw & c.r): n = max(n, 1)
            if c.base in ("v_readlane_b32", "v_readfirstlane_b32", "v_writelane_b32") and "exec" in p.w: n = max(n, 4)
            if sw & c.r:
                n = max(n, 4 if c.base in ("v_readlane_b32", "v_writelane_b32") else 2)
            if p.trans and (vw & c.r) : n = max(n, 1)
            if p.opsel_dst and (vw & (c.r | c.w)): n = max(n, 1)
        if c.kind == "vmem" and (sw & c.r): n = max(n, 5)
        if c.kind == "mfma" and p.trans and (vw & c.r): n = max(n, 2)
        if c.kind in ("vmem", "ds") and p.trans and (vw & c.r): n = max(n, 1)
    if p.kind == "mfma":
        big = {4: 8, 8: 12}[p.passes]
        if c.kind == "mfma":
            if p.w & c.ra: n = max(n, big)
            if p.w & c.rc:
                if not (p.w == c.rc and p.passes == c.passes): n = max(n, {4: 6, 8: 10}[p.passes])
            elif p.w & c.w: n = max(n, big)
        elif c.kind in ("valu", "vmem", "ds"):
            if p.w & (c.r | c.w): n = max(n, big)
        if c.kind == "valu" and (p.rc & c.w): n = max(n, {4: 3, 8: 7}[p.passes])
    if p.kind == "vmem" and p.wide_store:
        if p.sdata & c.w: n = max(n, 2 if c.kind in ("valu", "mfma") else 1)
    if p.kind == "salu" and "m0" in p.w and c.kind == "vmem" and c.lds: n = max(n, 1)
    return n

def fix_hazards(lines):
    out = []
    hist = []
    for ln in lines:
        ins = Ins(ln)
        if ins.label or ins.directive:
            out.append(ln)
            continue
        need = 0
        for p, dist in hist:
            k = _need(p, ins) - dist
            if k > need: need = k
        while need > 0:
            k = min(need, 16)
            out.append(f"    s_nop {k-1}")
            hist = [(p, d + k) for p, d in hist]
            need -= k
        out.append(ln)
        hist = [(p, d + ins.states) for p, d in hist if d + ins.states < 24]
        if ins.op == "s_endpgm":
            hist = []
        else:
            hist.append((ins, 0))
    return out

class K:
    def __init__(self, name):
        self.name = name
        self.lines = []
    def __call__(self, s):
        for ln in s.strip("\n").split("\n"):
            ln = ln.strip()
            if ln == "": continue
            if ln.endswith(":") and not ln.startswith(";"):
                self.lines.append(ln)
            else:
                self.lines.append("    " + ln)
    def c(self, s):
        self.lines.append("    ; " + s)
    def text(self):
        body = fix_hazards(self.lines)
        body = [l + "    ; poll back-off (reads of a line that is still being written slow its writers)" if l.strip().startswith("s_sleep") else l for l in body]
        return (f".globl {self.name}\n.p2align 8\n.type {self.name},@function\n{self.name}:\n" + "\n".join(body) + "\n")
    def maxreg(self, kind):
        mx = -1
        for ln in self.lines:
            t = ln.split(";")[0]
            for m in re.finditer(r"\b%s(\d+)\b" % kind, t): mx = max(mx, int(m.group(1)))
            for m in re.finditer(r"\b%s\[(\d+):(\d+)\]" % kind, t): mx = max(mx, int(m.group(2)))
        return mx
    def desc(self):
        nv = self.maxreg("v") + 1
        na = self.maxreg("a") + 1
        ns = self.maxreg("s") + 1
        acc = max(4, (nv + 3) // 4 * 4)
        nfv = acc + na if na else nv
        return f""".p2align 6
.amdhsa_kernel {self.name}
  .amdhsa_next_free_vgpr {nfv}
  .amdhsa_next_free_sgpr {max(ns, 16)}
  .amdhsa_accum_offset {acc}
  .amdhsa_group_segment_fixed_size 0
  .amdhsa_kernarg_size 120
  .amdhsa_user_sgpr_count 2
  .amdhsa_user_sgpr_kernarg_segment_ptr 1
  .amdhsa_system_sgpr_workgroup_id_x 1
  .amdhsa_float_denorm_mode_32 3
  .amdhsa_float_denorm_mode_16_64 3
.end_amdhsa_kernel
"""

def v(a, n=1):
    return f"v{a}" if n == 1 else f"v[{a}:{a+n-1}]"
def s(a, n=1):
    return f"s{a}" if n == 1 else f"s[{a}:{a+n-1}]"
import struct
def f32(x):
    return "0x%08x" % struct.unpack("<I", struct.pack("<f", x))[0]
```

```python
import math, sys, os
from asmgen import K, f32
from gen2 import (srd, P, padd, psub, pmul, pfma, pmul_s, pfma_s, psub_s, unpack_bf16, round_bf16, DPPM,
                  row_allreduce, wave_reduce_to63, chk_sent,
                  A_X, A_WR, A_WG, A_WU, A_WD, A_C, A_WM, A_OUT, A_DBG, A_WS, WS_SIZE)
import tabs
NAME = "adaLN_cond__spectral_fnet__moe_arch_mod__prompt_kernel"
E = lambda n, d: int(os.environ.get(n, str(d)))
ES = lambda n, d: os.environ.get(n, d)
SPIN = "0x40000"
WS_Z1   = 0x0000000
WS_SENT = 0x0400000
WS_PART = WS_SENT
WS_XA   = WS_SENT + 0x80000
WS_KEY  = WS_SENT + 0xB8000
WS_XB   = WS_SENT + 0xC0000
WS_TT   = 0x0636000
WS_SLOT = WS_SENT + 0x100000
WS_CAP  = 0x0600000
WS_MODP = 0x0610000
WS_PAR  = 0x0630000
WS_XR   = 0x0635000
WS_KR   = 0x0635400
WS_ZL   = 0x0638000
WS_MX   = 0x063C000
WS_EP   = 0x0650000
WS_STAMP = 0x2000000
NHASH = 0x9E3779B1
XP = 2064
L_S = 0; L_T4 = 33280; L_X = L_T4 + 16384; L_P = L_X + 32768; L_KEY = L_P + 5 * 4096; L_ST = L_KEY + 128; L_T3 = L_ST + 256; L_K = L_T3 + 8192
LDS = 131072 + 8192
LOG2E = f32(-math.log2(math.e))
ZMASK = E("ZMASK", 0x00030003)
TB_T4, TB_T1, TB_T2, TB_END = 0, 16384, 32768, 36864
ST = [int(x) for x in ES("ST", "").split(",") if x]
def stamp(k, i):
    if not ST: return
    if i == 0: k("s_memrealtime s[84:85]")
    elif i in ST: k(f"s_memrealtime s[{86+2*ST.index(i)}:{87+2*ST.index(i)}]")
def stamp_val(k, i, sreg):
    if i in ST: k(f"s_add_u32 s{86+2*ST.index(i)}, s{sreg}, s84")
def stamp_init(k):
    if ST:
        for j in range(8): k(f"s_mov_b32 s{84+2*j}, 0")
def stamp_out(k):
    if not ST: return
    k(f"""s_mov_b64 exec, -1
    s_waitcnt vmcnt(0)
    s_memrealtime s[98:99]
    s_waitcnt lgkmcnt(0)
    v_lshrrev_b32 v248, 6, v0
    v_lshlrev_b32 v248, 5, v248
    s_lshl_b32 s100, s2, 8
    s_add_u32 s100, s100, {WS_STAMP}""")
    for i in range(8): k(f"v_mov_b32 v{240+i}, s{84+2*i}")
    k("""s_mov_b64 exec, 1
    buffer_store_dwordx4 v[240:243], v248, s[12:15], s100 offen
    buffer_store_dwordx4 v[244:247], v248, s[12:15], s100 offen offset:16""")
def rb2(k, v, t):
    k(f"v_cvt_pk_bf16_f32 v{t}, v{v}, v{v+1}")
    unpack_bf16(k, v, t)
def spin(lab, sl):
    return (f"s_sleep {sl}\n" if sl else "") + f"s_add_u32 s83, s83, 1\ns_cmp_lt_u32 s83, {SPIN}\ns_cbranch_scc1 {lab}"
def nonce_issue(k, sp):
    k(f"s_mov_b32 s43, {WS_EP}\ns_load_dword s101, s[{sp}:{sp+1}], s43")
def nonce_finish(k):
    k(f"""s_mul_i32 s32, s101, {NHASH:#x}
    s_or_b32 s32, s32, 0x101
    s_and_b32 s32, s32, {~0x10404 & 0xffffffff:#x}
    s_and_b32 s56, s32, 0xff
    s_bfe_u32 s57, s32, 0x80008
    s_bfe_u32 s58, s32, 0x80010
    s_lshr_b32 s59, s32, 24""")
def chk_bytes(k, regs, acc):
    regs = list(regs)
    for i, r in enumerate(regs): k(f"v_xor_b32 v{r}, s{56 + (i & 3)}, v{r}")
    k(f"v_or3_b32 v{acc}, v{regs[0]}, v{regs[1]}, v{regs[2]}")
    regs = regs[3:]
    while len(regs) >= 2:
        k(f"v_or3_b32 v{acc}, v{acc}, v{regs[0]}, v{regs[1]}"); regs = regs[2:]
    if regs: k(f"v_or_b32 v{acc}, v{acc}, v{regs[0]}")
    k(f"v_and_b32 v{acc}, 0xff, v{acc}")
    k(f"v_cmp_ne_u32 vcc, 0, v{acc}")
def keys_issue(k, base, soff):
    for j in range(2):
        k(f"buffer_load_dwordx4 v[{base+4*j}:{base+4*j+3}], v3, s[12:15], s{soff} offen offset:{j*1024} sc1")
def keys_chk(k, base, tmp):
    k(f"v_xor_b32 v{tmp}, s32, v{base+2}")
    k(f"v_bitop3_b32 v{tmp}, v{tmp}, v{base+6}, s32 bitop3:0xf6")
    k(f"v_cmp_ne_u32 vcc, 0, v{tmp}")
def poll_keys(k, lab, base, soff, tmp):
    k(f"s_mov_b32 s83, 0\n{lab}:")
    keys_issue(k, base, soff)
    k("s_waitcnt vmcnt(0)")
    keys_chk(k, base, tmp)
    k(f"s_cbranch_vccz {lab}x\n{spin(lab, E('SL2', 4))}\n{lab}x:")
def top2(k, KB, s1, s2, tmp):
    m1, m2, c = tmp, tmp + 1, tmp + 2
    k(f"v_max_u32 v{m1}, v{KB}, v{KB+4}")
    k(f"v_min_u32 v{m2}, v{KB}, v{KB+4}")
    k(f"v_max3_u32 v{m2}, v{m2}, v{KB+1}, v{KB+5}")
    k(f"v_mov_b32 v{c}, v{m1}")
    wave_reduce_to63(k, [c], "v_max_u32")
    k(f"v_readlane_b32 s{s1}, v{c}, 63")
    k(f"v_cmp_eq_u32 vcc, s{s1}, v{m1}")
    k(f"v_cndmask_b32 v{c}, v{m1}, v{m2}, vcc")
    wave_reduce_to63(k, [c], "v_max_u32")
    k(f"v_readlane_b32 s{s2}, v{c}, 63")
def res_wait(k, lab, soff, vz, vd, sl):
    k(f"""v_mov_b32 v{vz}, 0
    s_mov_b32 s83, 0
    {lab}:
    buffer_load_dwordx2 v[{vd}:{vd+1}], v{vz}, s[12:15], s{soff} offen offset:2304 sc1
    s_waitcnt vmcnt(0)
    v_readfirstlane_b32 s40, v{vd}
    v_readfirstlane_b32 s41, v{vd+1}
    s_cmp_eq_u32 s41, s32
    s_cbranch_scc1 {lab}x
    {spin(lab, sl)}
    {lab}x:
    s_lshr_b32 s41, s40, 8
    s_and_b32 s40, s40, 0xff
    s_and_b32 s41, s41, 0xff""")

def role_F(k):
    ZL, PA, PB, BP, XA_, XB_, NAT, KW, KR_, FA, ZS, PG, PS = 4, 5, 6, 7, 8, 9, 10, 11, 12, 13, 14, 15, 1
    EG, T1, T2, L, D, D3, T3, TB, XA2, XB2, T4 = 16, 20, 24, 32, 48, 80, 112, 144, 160, 176, 192
    PFR, PRA, RCL, PRB0, PRC, REC, A0, A1, R0, R1 = 240, 20, 244, 96, 100, 251, 252, 253, 254, 255
    T4L = "s_mov_b32 m0, s40\ns_nop 0\nglobal_load_lds_dwordx4 v79, s[62:63]\nglobal_load_lds_dwordx4 v79, s[62:63] offset:1024"
    T1L = f"""global_load_dwordx4 v[{T1}:{T1+3}], v77, s[62:63]
    global_load_dwordx4 v[{T2}:{T2+3}], v78, s[62:63]
    global_load_dwordx4 v[{T2+4}:{T2+7}], v78, s[62:63] offset:1024"""
    k(f"""s_add_u32 s62, s62, tables-k_pc
    s_addc_u32 s63, s63, 0
    s_lshl_b32 s43, s16, 11
    v_add_u32 v79, s43, v3
    s_add_u32 s40, s43, {L_T4}
    s_lshl_b32 s42, s16, 10
    {"" if E("T4POS", 1) else T4L}
    s_add_u32 s43, s42, {TB_T1}
    s_cmp_eq_u32 s34, 0
    s_cselect_b32 s68, 8192, 0
    s_add_u32 s43, s43, s68
    v_add_u32 v77, s43, v3
    s_or_b32 s69, s34, s16
    s_cselect_b32 s68, 0, 2048
    s_add_u32 s68, s68, {TB_T2}
    v_add_u32 v78, s68, v3
    {"" if E("T1POS", 1) else T1L}
    s_sub_u32 s17, 16, s34
    s_cmp_eq_u32 s34, 0
    s_cselect_b32 s17, 8, s17
    s_bitcmp1_b32 s35, 0
    s_cselect_b32 s17, s17, s34
    s_lshr_b32 s36, s35, 1
    s_lshl_b32 s36, s36, 4
    s_add_u32 s17, s17, s36
    s_lshl_b32 s36, s16, 8
    s_add_u32 s36, s36, s17
    s_lshl_b32 s36, s36, 11
    s_add_u32 s37, s36, {128*2048}
    s_mov_b32 s10, {2048*1024*2}
    s_mov_b32 s11, 0x00020000""")
    XW, AB, S, MB, R, BFR, D0, DA, OB = 32, 48, 52, 56, 60, 80, 96, 100, 176
    VO, XWA, TRA_, RT, MT, STW, MW, NON, VZ, SH, N_, G_ = 160, 161, 162, 163, 164, 165, 166, 167, 168, 169, 170, 171
    k.c("A-matrix base: lane m = 2k+comp, rows j = 4g+i")
    k(f"""v_and_b32 v{N_}, 15, v0
    v_bfe_u32 v{G_}, v0, 4, 2
    v_lshrrev_b32 v72, 1, v{N_}
    v_and_b32 v73, 1, v0
    v_cmp_eq_u32 vcc, 1, v{N_}
    v_mov_b32 v74, s17
    v_cndmask_b32_e64 v72, v72, 8, vcc
    v_cndmask_b32_e64 v74, v74, 0, vcc
    v_cndmask_b32_e64 v73, v73, 0, vcc
    v_lshl_add_u32 v74, v{G_}, 9, v74
    s_waitcnt lgkmcnt(0)
    s_mov_b32 s8, s4
    s_mov_b32 s9, s5""")
    if E("FDEL", 0): k(f"s_sleep {E('FDEL', 0)}")
    stamp(k, 1)
    if E("FSTOP", 9) == 0: srd(k, 12, 6, WS_SIZE); stamp_out(k); k("s_endpgm")
    for h in range(2):
        for jj in range(2):
            k(f"buffer_load_dwordx4 v[{XW+8*jj+4*h}:{XW+8*jj+4*h+3}], v3, s[8:11], s{36+jj} offen offset:{h*1024}")
    nonce_issue(k, 6)
    srd(k, 12, 6, WS_SIZE)
    srd(k, 20, 52, 1024 * 3584 * 2)
    k(f"""s_mov_b32 s26, 4194304
    s_mov_b32 s27, 0x00020000
    s_getreg_b32 s39, hwreg(HW_REG_XCC_ID)
    s_and_b32 s39, s39, 7
    v_mul_u32_u24 v74, v72, v74
    v_lshl_add_u32 v74, v73, 9, v74
    v_lshlrev_b32 v72, 7, v72""")
    for i in range(4):
        k(f"v_and_b32 v{AB+i}, 2047, v74")
        if i < 3: k("v_add_u32 v74, v74, v72")
    for i in range(4): k(f"v_cvt_f32_u32 v{AB+i}, v{AB+i}")
    for i in range(4): k(f"v_mul_f32 v{AB+i}, {f32(1.0/2048)}, v{AB+i}")
    for i in range(4): k(f"v_cos_f32 v{AB+i}, v{AB+i}")
    for i in range(4): k(f"v_mul_f32 v{AB+i}, {f32(1.0/16)}, v{AB+i}")
    k(f"""v_lshlrev_b32 v{VO}, 20, v{G_}
    v_lshl_add_u32 v{VO}, v1, 15, v{VO}
    v_lshl_add_u32 v{VO}, v{N_}, 4, v{VO}
    v_mul_u32_u24 v{XWA}, {2*XP}, v1
    v_add_u32 v{XWA}, v{XWA}, v3
    v_lshrrev_b32 v72, 2, v2
    v_mul_u32_u24 v{TRA_}, {XP}, v72
    v_and_b32 v72, 3, v0
    v_lshl_add_u32 v{TRA_}, v72, 7, v{TRA_}
    v_lshl_add_u32 v{TRA_}, v1, 3, v{TRA_}
    v_lshlrev_b32 v{RT}, 4, v{G_}
    v_add_u32 v{RT}, {L_ST}, v{RT}
    v_lshlrev_b32 v{MT}, 3, v{G_}
    v_add_u32 v{MT}, {L_ST+64}, v{MT}
    v_lshrrev_b32 v72, 5, v0
    v_lshlrev_b32 v{STW}, 2, v72
    v_add_u32 v{KW}, {L_KEY}, v{STW}
    v_add_u32 v{STW}, {L_ST}, v{STW}
    v_lshlrev_b32 v{MW}, 1, v72
    v_add_u32 v{MW}, {L_ST+64}, v{MW}
    v_mov_b32 v{VZ}, 0
    v_and_b32 v{SH}, 1, v0
    v_lshlrev_b32 v{SH}, 3, v{SH}
    s_lshl_b32 s3, s34, 4
    s_and_b32 s64, s35, 1
    s_lshl_b32 s64, s64, 3
    s_lshr_b32 s65, s35, 1
    s_add_u32 s64, s64, s65
    s_and_b32 s65, s16, 3
    s_xor_b32 s64, s64, s65
    s_add_u32 s64, s64, s3
    s_add_u32 s3, s3, s35
    s_lshl_b32 s64, s64, 8
    s_add_u32 s64, s64, {WS_Z1}
    s_add_u32 s65, s64, 262144
    s_add_u32 s66, s64, 524288
    s_add_u32 s67, s64, {524288+262144}
    s_mov_b32 s44, 0x3f803f80
    s_mov_b32 s46, {f32(1.0/1024)}
    s_mov_b32 s33, {ZMASK}""")
    k.c("row ids: s30 = t, s31 = mirror row")
    k(f"""s_lshl_b32 s60, s35, 3
    s_add_u32 s60, s60, s16
    s_lshl_b32 s30, s60, 4
    s_add_u32 s30, s30, s34
    s_cmp_lg_u32 s34, 0
    s_cbranch_scc1 f_g1
    s_cmp_ge_u32 s16, 4
    s_cselect_b32 s31, 56, 0
    s_sub_u32 s30, s30, s31
    s_cmp_lg_u32 s16, 0
    s_cbranch_scc1 f_g1
    s_cmp_ge_u32 s35, 8
    s_cselect_b32 s31, 960, 0
    s_sub_u32 s30, s30, s31
    f_g1:
    s_sub_u32 s31, 2048, s30
    s_cmp_eq_u32 s30, 0
    s_cselect_b32 s31, 1024, s31
    s_lshl_b32 s18, s30, 11
    s_lshl_b32 s19, s31, 11
    s_lshl_b32 s61, s34, 19
    s_add_u32 s61, s61, {WS_Z1}
    s_lshl_b32 s28, s60, 8
    s_add_u32 s28, s28, s61
    s_add_u32 s29, s28, 131072
    s_add_u32 s50, s28, 262144
    s_add_u32 s51, s28, 393216
    s_lshl_b32 s73, s35, 15
    s_add_u32 s73, s73, s61
    s_lshl_b32 s42, s16, 12
    s_add_u32 s72, s73, s42
    s_add_u32 s45, s42, {L_X}
    s_lshl_b32 s42, s16, 8
    s_add_u32 s74, s73, s42
    s_add_u32 s75, s74, 4096
    s_lshl_b32 s76, s34, 7
    s_add_u32 s77, s76, {WS_KR}
    s_add_u32 s76, s76, {WS_XR}
    s_lshl_b32 s78, s35, 3
    s_add_u32 s79, s78, s77
    s_add_u32 s78, s78, s76
    s_lshl_b32 s80, s3, 4
    s_add_u32 s80, s80, {WS_KEY}
    s_lshl_b32 s81, s34, 12
    s_add_u32 s81, s81, {WS_KEY}
    s_lshl_b32 s82, s35, 11
    s_add_u32 s82, s82, {WS_CAP}""")
    k.c("base table (cos, sin)(d*k1/1024) of the column class wave&3")
    k(f"""v_cvt_f32_u32 v75, v{N_}
    s_lshl_b32 s42, s35, 2
    s_and_b32 s43, s16, 3
    s_add_u32 s42, s42, s43
    v_lshl_add_u32 v76, v{G_}, 8, s42
    v_mul_f32 v75, {f32(1.0/1024)}, v75
    v_cvt_f32_u32 v76, v76
    v_mul_f32 v60, v76, v75""")
    for i in range(1, 4): k(f"v_fmamk_f32 v{60+i}, v75, {f32(64.0*i)}, v60")
    for i in range(4): k(f"v_cos_f32 v{64+i}, v{60+i}")
    for i in range(4): k(f"v_sin_f32 v{68+i}, v{60+i}")
    for i in range(4): k(f"v_cvt_pk_f16_f32 v{TB+i}, v{64+i}, v{68+i}")
    def xc():
        k(f"""s_mov_b32 m0, s45
        s_add_u32 s43, s45, 2048
        buffer_load_dwordx4 v3, s[8:11], s18 offen lds
        buffer_load_dwordx4 v3, s[8:11], s18 offen offset:1024 lds
        s_mov_b32 m0, s43
        s_nop 0
        buffer_load_dwordx4 v3, s[8:11], s19 offen lds
        buffer_load_dwordx4 v3, s[8:11], s19 offen offset:1024 lds""")
    XPOS = E("XPOS", 5)
    NX = (4 if XPOS == 2 else 0) + 2 * (E("T4POS", 1) == 1) + 3 * (E("T1POS", 1) == 1)
    if E("T4POS", 1) == 1: k(T4L)
    if E("T1POS", 1) == 1: k(T1L)
    if XPOS == 2: xc()
    k("s_waitcnt lgkmcnt(0)")
    nonce_finish(k)
    k(f"v_lshrrev_b32 v{EG}, v{SH}, s32")
    for i in range(1, 4): k(f"v_lshrrev_b32 v{EG+i}, {2*i}, v{EG}")
    k(f"""v_mov_b32 v72, s32
    v_mov_b32 v73, s39
    v_mov_b32 v74, {L_K}
    s_cmp_eq_u32 s16, 0
    s_cselect_b64 exec, 1, 0
    ds_write_b32 v74, v{VZ} offset:4
    buffer_store_dwordx2 v[72:73], v{VZ}, s[12:15], s78 offen sc1
    s_mov_b64 exec, -1""")
    NX += 1
    k(f"v_mov_b32 v72, -1\nds_write_b32 v{KW}, v72 offset:64")
    for h in range(2):
        for jj in range(2):
            u = 2*h + jj
            k(f"s_waitcnt vmcnt({3 - u + NX})")
            k(f"ds_write_b128 v{XWA}, v[{XW+8*jj+4*h}:{XW+8*jj+4*h+3}] offset:{L_S + jj*XP + h*1024}")
            for q in range(4):
                r = XW + 8*jj + 4*h + q
                first = (h == 0 and q == 0)
                k(f"v_dot2_f32_bf16 v{S+jj}, v{r}, s44, {'0' if first else f'v{S+jj}'}")
                k(f"v_dot2_f32_bf16 v{S+2+jj}, v{r}, v{r}, {'0' if first else f'v{S+2+jj}'}")
    stamp(k, 2)
    if XPOS == 0: xc()
    else: k("s_nop 2")
    def red1(js):
        for j in js: k(f"v_permlane32_swap_b32 v{S+j}, v{S+j+1}")
        for j in js: k(f"v_add_f32 v{S+j}, v{S+j}, v{S+j+1}")
        regs = [S + j for j in js]
        row_allreduce(k, regs)
        for r in regs: k(f"v_add_f32_dpp v{r}, v{r}, v{r} row_bcast:15 row_mask:0xa bank_mask:0xf")
    AB2 = E("AB2", 0)
    def trreads():
        for ah in range(2):
            for q in range(4):
                u = ah * 4 + q
                k(f"ds_read_b64_tr_b16 v[{BFR+2*u}:{BFR+2*u+1}], v{TRA_} offset:{L_S + ah*64 + q*512}")
    if AB2 == 1:
        k("s_waitcnt lgkmcnt(0)\ns_barrier"); trreads()
    red1((0, 2))
    if AB2 == 2:
        k("s_waitcnt lgkmcnt(0)\ns_barrier"); trreads()
    k.c("lanes 31 / 63 hold the two rows")
    V = S + 2
    k(f"""v_mul_f32 v{S}, s46, v{S}
    v_mul_f32 v{V}, s46, v{V}
    v_mul_f32 v{R+4}, v{S}, v{S}
    v_cvt_pk_bf16_f32 v{MB}, -v{S}, -v{S}
    v_sub_f32 v{V}, v{V}, v{R+4}
    v_mul_f32 v{R+6}, {f32(512.0)}, v{V}
    v_cmp_gt_f32 vcc, v{R+4}, v{R+6}
    s_or_b32 s68, vcc_lo, vcc_hi
    s_bitcmp1_b32 s68, 31
    s_cbranch_scc1 f_slowvar
    f_var:""")
    round_bf16(k, V, V)
    k(f"v_add_f32 v{V}, {f32(1e-5)}, v{V}")
    round_bf16(k, V, V)
    k(f"v_sqrt_f32 v{V}, v{V}")
    round_bf16(k, V, V)
    k(f"""v_rcp_f32 v{V}, v{V}
    s_mov_b32 exec_lo, 0x80000000
    s_mov_b32 exec_hi, 0x80000000
    ds_write_b16 v{MW}, v{MB}
    ds_write_b32 v{STW}, v{V}
    s_mov_b64 exec, -1
    s_waitcnt lgkmcnt(0)
    s_barrier""")
    stamp(k, 30)
    if E("FSTOP", 9) == 1: stamp_out(k); k("s_endpgm")
    k(f"""ds_read_b128 v[{R}:{R+3}], v{RT}
    ds_read_b64 v[{R+4}:{R+5}], v{MT}""")
    if not AB2: trreads()
    if XPOS == 1: xc()
    k(f"s_waitcnt lgkmcnt({0 if AB2 else 8})")
    BM = R + 4; AH = 58
    for h in range(2): pmul(k, AB + 2*h, AB + 2*h, R + 2*h)
    for h in range(2): k(f"v_cvt_pk_bf16_f32 v{AH+h}, v{AB+2*h}, v{AB+2*h+1}")
    k(f"v_mfma_f32_16x16x16_bf16 v[{D0}:{D0+3}], v[{AH}:{AH+1}], v[{BM}:{BM+1}], 0")
    k("s_waitcnt lgkmcnt(0)")
    for u in range(8):
        k(f"v_mfma_f32_16x16x16_bf16 v[{DA+4*u}:{DA+4*u+3}], v[{AH}:{AH+1}], v[{BFR+2*u}:{BFR+2*u+1}], v[{D0}:{D0+3}]")
    for ah in range(2):
        for kp in range(2):
            o = OB + (2*ah + kp) * 4
            for q in range(4):
                u = ah * 4 + q
                k(f"v_cvt_pk_f16_f32 v{o+q}, v{DA+4*u+2*kp}, v{DA+4*u+2*kp+1}")
            for q in range(4): k(f"v_bfi_b32 v{o+q}, s33, v{EG+q}, v{o+q}")
            if ah + kp == 0: stamp(k, 32)
            k(f"buffer_store_dwordx4 v[{o}:{o+3}], v{VO}, s[12:15], s{64 + 2*kp + ah} offen sc1")
    stamp(k, 3)
    k("s_waitcnt vmcnt(4)\ns_barrier")
    k.c("================= wait 1: tables, x rows, addresses =================")
    n_, g_ = 48, 49
    k(f"""v_mov_b32 v{n_}, v{N_}
    v_mov_b32 v{g_}, v{G_}
    v_mov_b32 v50, s32
    v_mov_b32 v51, s39""")
    def zhint():
        k(f"""s_cmp_lg_u32 s16, {E("HW", 0)}
        s_cbranch_scc1 f_nzl
        s_lshl_b32 s68, s3, 7
        s_add_u32 s68, s68, {WS_ZL}
        v_mov_b32 v52, 0
        s_mov_b64 exec, 1
        buffer_store_dwordx2 v[50:51], v52, s[12:15], s68 offen sc1
        s_mov_b64 exec, -1
        f_nzl:""")
    if E("ZPOS", 0) == 0: zhint()
    for u in range(12):
        k(f"ds_read_b128 v[{T4+4*u}:{T4+4*u+3}], v3 offset:{L_T4 + u*1024}")
    stamp(k, 33)
    k(f"""v_lshlrev_b32 v{ZL}, 15, v{g_}
    v_lshl_add_u32 v{ZL}, v{n_}, 4, v{ZL}
    v_lshlrev_b32 v{ZS}, 13, v{g_}
    v_lshl_add_u32 v{ZS}, v{n_}, 4, v{ZS}
    v_lshl_add_u32 v{R0}, v1, 10, v{ZS}
    v_xor_b32 v{R1}, 64, v{R0}
    v_lshrrev_b32 v57, 1, v1
    v_lshlrev_b32 v{A0}, 13, v57
    v_and_b32 v57, 1, v1
    v_lshl_add_u32 v{A0}, v57, 3, v{A0}
    v_lshl_add_u32 v{A0}, v{g_}, 11, v{A0}
    v_and_b32 v57, 3, v0
    v_lshl_add_u32 v{A0}, v57, 8, v{A0}
    v_lshrrev_b32 v58, 2, v{n_}
    v_lshl_add_u32 v{A0}, v58, 4, v{A0}
    v_and_b32 v59, 1, v0
    v_lshl_add_u32 v{A0}, v59, 6, v{A0}
    v_xor_b32 v{A1}, 64, v{A0}
    v_lshl_add_u32 v57, v{g_}, 2, v57
    v_lshlrev_b32 v57, 4, v57
    v_lshl_add_u32 v250, v58, 8, v57
    v_add_u32 v{PA}, {L_P}, v3
    v_sub_u32 v{PB}, {L_P + 63*16}, v3
    v_lshl_add_u32 v57, v{n_}, 2, v{g_}
    v_lshl_add_u32 v{XA_}, v57, 3, s45
    s_add_u32 s43, s45, {2048+504}
    v_lshlrev_b32 v58, 3, v57
    v_sub_u32 v{XB_}, s43, v58
    v_add_u32 v57, 1, v57
    v_and_b32 v58, 3, v57
    v_and_b32 v57, 60, v57
    v_lshl_add_u32 v{BP}, v58, 6, v57
    v_add_u32 v{NAT}, s45, v3
    v_lshlrev_b32 v{KR_}, 2, v{n_}
    v_add_u32 v{KR_}, {L_KEY}, v{KR_}
    v_lshlrev_b32 v{FA}, 12, v2
    v_and_b32 v{REC}, 0x70, v3
    v_lshlrev_b32 v{PG}, 4, v0
    v_and_b32 v57, 3, v0
    v_bfe_u32 v58, v0, 2, 4
    v_lshl_add_u32 v57, v57, 4, v58
    v_bfe_u32 v58, v0, 6, 2
    v_lshl_add_u32 v57, v58, 6, v57
    v_lshrrev_b32 v58, 8, v0
    v_lshl_add_u32 v57, v58, 9, v57
    v_lshlrev_b32 v57, 4, v57
    v_add_u32 v{PS}, {L_P}, v57""")
    CAPA = 250; Z1A = 249; T3A = 248
    k(f"s_and_b32 s42, s35, 3\ns_lshl_b32 s42, s42, 8\nv_xor_b32 v{Z1A}, s42, v3")
    CEN = 0x00020002 if ZMASK == 0x00030003 else 0
    k(f"s_mov_b32 s44, {CEN}")
    for i in range(4): k(f"v_and_b32 v{EG+i}, s33, v{EG+i}")
    for i in range(4): k(f"v_xor_b32 v{EG+i}, s44, v{EG+i}")
    XT = D3 + 16
    def xreads():
        for T in range(4):
            k(f"ds_read_b64 v[{XT+2*T}:{XT+2*T+1}], v{XA_} offset:{512*T}")
        for T in range(4):
            k(f"ds_read_b64 v[{XT+8+2*T}:{XT+8+2*T+1}], v{XB_} offset:{512*(3-T)}")
    if XPOS < 3: xreads()
    FPJ = E("FPJ", 5); FPY = E("FPY", 0)
    k(f"""s_mov_b32 s41, {WS_PAR+8192}
    s_and_b32 s40, s16, 4
    s_lshl_b32 s40, s40, 10
    s_sub_u32 s40, {WS_PAR+16384}, s40
    s_lshl_b32 s54, s3, 13
    s_add_u32 s54, s54, {WS_SLOT}
    s_lshr_b32 s43, s60, 6
    {"s_and_b32 s55, s35, 7" if FPY else "s_and_b32 s55, s60, 63"}
    {"s_lshl_b32 s55, s55, 2" if FPY else ""}
    {"s_and_b32 s52, s16, 3" if FPY else ""}
    {"s_add_u32 s55, s55, s52" if FPY else ""}
    s_mul_i32 s55, s55, {FPJ}
    s_lshl_b32 s43, s43, 9
    s_add_u32 s55, s55, s43
    s_add_u32 s55, s55, {512 - (32 if FPY else 64)*FPJ - E("FPJO", 0)}
    s_mul_i32 s55, s55, 7168
    s_mul_i32 s43, s34, 896
    s_add_u32 s55, s55, s43
    s_mov_b32 s48, {((1 << (8 * FPJ)) - 1) & 0xffffffff}
    s_mov_b32 s49, {((1 << (8 * FPJ)) - 1) >> 32}
    s_cmp_lt_u32 s16, {4 if FPY else 0}
    s_cselect_b64 s[48:49], 0, s[48:49]
    s_mov_b32 s52, {WS_PAR}
    s_mov_b32 s53, {WS_PAR+4096}""")
    def xunpack():
        k("s_waitcnt lgkmcnt(0)")
        for i in range(8): unpack_bf16(k, XA2 + 2*i, XT + i)
        for i in range(8): unpack_bf16(k, XB2 + 2*i, XT + 8 + i)
    if XPOS < 3: xunpack()
    stamp(k, 34)
    if E("DRAIN", 0): k("s_waitcnt vmcnt(0)")
    if E("FB2", 1): k("s_barrier")
    stamp(k, 4)
    if E("FSTOP", 9) == 2: stamp_out(k); k("s_endpgm")
    CP = T3
    def cap_issue(lab, fl="sc1"):
        k(f"s_cmp_lg_u32 s34, 0\ns_cbranch_scc1 {lab}\ns_add_u32 s68, s82, 32768")
        for j in range(2):
            k(f"buffer_load_dwordx4 v[{CP+8+4*j}:{CP+8+4*j+3}], v{CAPA}, s[12:15], s68 offen offset:{j*1024} {fl}")
        k(f"{lab}:")
        for j in range(2):
            k(f"buffer_load_dwordx4 v[{CP+4*j}:{CP+4*j+3}], v{CAPA}, s[12:15], s82 offen offset:{j*1024} {fl}")
    assert XPOS == 5
    xc()
    k(f"buffer_load_dwordx4 v[{RCL}:{RCL+3}], v{REC}, s[12:15], s76 offen {ES('CFL', '')}")
    def z1_issue():
        for i in range(4):
            k(f"buffer_load_dwordx4 v[{L+4*i}:{L+4*i+3}], v{Z1A}, s[12:15], s72 offen offset:{i*1024} sc1")
    k.c("s47: bit0 = stage 1 done, bit1 = table built (waves 0-3 build one column class each)")
    TORD = E("TORD", 0)
    k(f"""v_add_u32 v{T3A}, {L_T3}, v3
    s_mov_b32 s47, 2
    s_mov_b32 s4, 0
    s_mov_b32 s83, 0
    s_cmp_ge_u32 s16, 4
    s_cbranch_scc1 f_s0""")
    if TORD == 2: k("s_mov_b32 s47, 0\ns_branch f_s0")
    if E("SLC0", 4): k(f"s_sleep {E('SLC0', 4)}")
    cap_issue("f_ci0", ES("CFL", ""))
    if TORD == 1:
        if E("SLF0", 0): k(f"s_sleep {E('SLF0', 0)}")
        z1_issue()
    k(f"""s_mov_b32 s47, 0
    s_waitcnt vmcnt({4 if TORD else 0})
    f_c1:""")
    t = D
    chk_bytes(k, range(CP, CP + 8), t)
    k(f"""s_cmp_lg_u32 s34, 0
    s_cbranch_scc1 f_c1n
    s_mov_b64 s[68:69], vcc""")
    chk_bytes(k, range(CP + 8, CP + 16), t)
    k(f"""s_or_b64 vcc, vcc, s[68:69]
    f_c1n:
    {"" if E("NOCHK", 0) & 1 else "s_cbranch_vccnz f_c1bad"}
    f_c1ok:""")
    stamp(k, 36)
    stamp_val(k, 52, 47)
    def capsum(b):
        padd(k, b, b, b + 4); padd(k, b + 2, b + 2, b + 6)
        for sh in (4, 8):
            for i in range(4): k(f"v_add_f32_dpp v{b+i}, v{b+i}, v{b+i} row_ror:{sh} {DPPM}")
        rb2(k, b, t); rb2(k, b + 2, t + 1)
    capsum(CP)
    for i in range(4): k(f"v_add_f32 v{CP+i}, 1.0, v{CP+i}")
    rb2(k, CP, t); rb2(k, CP + 2, t + 1)
    k(f"""v_max_f32_e64 v{t}, abs(v{CP}), abs(v{CP+1})
    v_max3_f32 v{t}, abs(v{CP+2}), abs(v{CP+3}), v{t}
    s_cmp_lg_u32 s34, 0
    s_cbranch_scc1 f_c1m
    v_mov_b32 v{t+2}, v{t}""")
    capsum(CP + 8)
    k(f"""v_max3_f32 v{t}, abs(v{CP+8}), abs(v{CP+9}), v{t+2}
    v_max3_f32 v{t}, abs(v{CP+10}), abs(v{CP+11}), v{t}
    f_c1m:
    s_nop 1""")
    for qp in ("[1,0,3,2]", "[2,3,0,1]"):
        k(f"v_max_f32_dpp v{t}, v{t}, v{t} quad_perm:{qp} {DPPM}")
    for g in range(4): k(f"v_readlane_b32 s{68+g}, v{t}, {16*g}")
    k(f"""s_max_u32 s68, s68, s69
    s_max_u32 s70, s70, s71
    s_max_u32 s68, s68, s70
    s_lshr_b32 s68, s68, 23
    s_sub_u32 s69, s68, 120
    s_sub_i32 s68, s68, 127
    s_max_i32 s68, s68, -100
    s_min_i32 s68, s68, 120
    s_cmp_le_u32 s69, 9
    s_cselect_b32 s68, 2, s68
    s_cselect_b32 s17, 0, 0x20000
    s_sub_i32 s69, 127, s68
    s_lshl_b32 s69, s69, 23""")
    def pick(b):
        k(f"""v_cndmask_b32 v{b}, v{b}, v{b+1}, s[64:65]
        v_cndmask_b32 v{b+2}, v{b+2}, v{b+3}, s[64:65]
        v_cndmask_b32 v{b}, v{b}, v{b+2}, s[66:67]""")
    k("""s_bitcmp1_b32 s16, 0
    s_cselect_b64 s[64:65], -1, 0
    s_bitcmp1_b32 s16, 1
    s_cselect_b64 s[66:67], -1, 0
    s_lshl_b32 s70, s16, 11""")
    pick(CP)
    BC = t + 8; TW = t + 16
    k(f"""v_mul_f32 v{CP}, s69, v{CP}
    v_add_u32 v{t+5}, s70, v{T3A}
    v_cvt_pk_f16_f32 v{t}, v{CP}, v{CP}
    s_nop 0""")
    for i in range(4): k(f"v_mov_b32_dpp v{BC+i}, v{t} quad_perm:[{i},{i},{i},{i}] {DPPM}")
    for i in range(4):
        k(f"v_pk_mul_f16 v{TW+i}, v{TB+i}, v{BC+i}")
        k(f"v_pk_mul_f16 v{TW+4+i}, v{TB+i}, v{BC+i} op_sel:[1,0] op_sel_hi:[0,1] neg_lo:[1,0]")
    k(f"""ds_write_b128 v{t+5}, v[{TW}:{TW+3}]
    ds_write_b128 v{t+5}, v[{TW+4}:{TW+7}] offset:1024
    s_cmp_lg_u32 s16, 0
    s_cbranch_scc1 f_nkr
    v_mov_b32 v{t+6}, s17
    s_mov_b32 s61, s68
    s_cmp_eq_u32 s34, 0
    s_cselect_b32 s4, 1, s17
    s_mov_b64 exec, 1
    ds_write_b32 v{T3A}, v{t+6} offset:8192
    s_mov_b64 exec, -1
    f_nkr:
    s_cmp_eq_u32 s34, 0
    s_cbranch_scc1 f_sa
    f_nsa:
    v_mov_b32 v{t+6}, 1
    s_mov_b64 exec, 1
    ds_add_u32 v{T3A}, v{t+6} offset:8196
    s_mov_b64 exec, -1
    s_bitset1_b32 s47, 1
    s_bitcmp1_b32 s47, 0
    s_cbranch_scc1 f_bar
    s_branch f_s1
    f_s0:""")
    if E("SLF", 8): k(f"s_sleep {E('SLF', 8)}")
    if not TORD: k("f_s1:")
    z1_issue()
    k("s_waitcnt vmcnt(4)")
    if TORD: k("f_s1:")
    k("s_mov_b32 s83, 0")
    stamp(k, 5)
    xreads()
    k.c("same die for the whole group? (records not there yet count as no)")
    k(f"""v_xor_b32 v2, s32, v{RCL}
    v_bitop3_b32 v2, v2, v{RCL+2}, s32 bitop3:0xf6
    v_bitop3_b32 v2, v2, v{RCL+1}, s39 bitop3:0xf6
    v_bitop3_b32 v2, v2, v{RCL+3}, s39 bitop3:0xf6
    v_cmp_ne_u32 vcc, 0, v2""")
    k("s_mov_b32 s38, vcc_lo")
    KF = RCL + 1
    k(f"v_mov_b32 v{RCL}, {L_K}")
    def t3reads():
        for u in range(8): k(f"ds_read_b128 v[{T3+4*u}:{T3+4*u+3}], v{T3A} offset:{u*1024}")
        k(f"ds_read_b32 v{KF}, v{RCL}")
    def t3try(lab):
        k(f"""ds_read_b32 v{RCL+2}, v{RCL} offset:4
        s_waitcnt lgkmcnt(0)
        v_readfirstlane_b32 s43, v{RCL+2}
        s_cmp_lg_u32 s43, 4
        s_cbranch_scc1 {lab}""")
        t3reads()
        k(f"s_bitset1_b32 s47, 2\n{lab}:")
    xunpack()
    if TORD == 2:
        if E("SLC2", 0): k(f"s_sleep {E('SLC2', 0)}")
        k("s_cmp_lt_u32 s16, 4\ns_cselect_b64 exec, -1, 0")
        cap_issue("f_ci2", ES("CFL", ""))
        k("s_mov_b64 exec, -1")
    else: t3try("f_t1")
    stamp(k, 6)
    k.c("================= phase B =================")
    k("f_z1:")
    LS = D3
    for bsel in range(2):
        Pq = L + 8 * bsel; Q = LS + 8 * bsel
        k(f"s_waitcnt vmcnt({(2 if bsel == 0 else 0) + (2 if TORD == 2 else 0)})")
        if bsel == 1: stamp(k, 7)
        for cc in range(4):
            for e in range(2): k(f"v_xor_b32 v{Q+2*cc+e}, v{Pq+4*e+cc}, v{EG+cc}")
        for cc in range(4):
            d = D + 16*bsel + 4*cc
            k(f"v_mfma_f32_16x16x16_f16 v[{d}:{d+3}], v[{T1+2*bsel}:{T1+2*bsel+1}], v[{Q+2*cc}:{Q+2*cc+1}], 0")
            for e in range(2):
                r = 2*cc + e
                if bsel == 0 and r == 0: k(f"v_xor_b32 v2, s44, v{Q}")
                else: k(f"v_bitop3_b32 v2, v2, v{Q+r}, s44 bitop3:0xf6")
    k(f"""v_and_b32 v2, s33, v2
    v_cmp_ne_u32 vcc, 0, v2
    s_cbranch_vccnz f_z1bad
    f_z1ok:""")
    for cc in range(4):
        for kdl in range(2):
            o = L + 4*cc + 2*kdl
            for bsel in range(2):
                d = D + 16*bsel + 4*cc + 2*kdl
                k(f"v_cvt_pk_f16_f32 v{o+bsel}, v{d}, v{d+1}")
            k(f"ds_write_b64 v{(A0, A1)[cc & 1]}, v[{o}:{o+1}] offset:{L_S + kdl*1024 + (cc>>1)*128}")
    stamp_val(k, 50, 83)
    k(f"""s_bitset1_b32 s47, 0
    s_mov_b32 s83, 0
    {"s_waitcnt vmcnt(0)" if TORD == 2 else ""}
    s_bitcmp1_b32 s47, 1
    s_cbranch_scc0 f_c1
    s_bitcmp1_b32 s47, 2
    s_cbranch_scc1 f_bar""")
    t3try("f_bar")
    k(f"""s_waitcnt lgkmcnt(0)
    s_bitcmp1_b32 s47, 2
    s_barrier
    s_cbranch_scc0 f_t3l
    f_t3d:""")
    stamp(k, 8)
    for n2l in range(4):
        k(f"ds_read_b128 v[{L+4*n2l}:{L+4*n2l+3}], v{(R0, R1)[n2l & 1]} offset:{L_S + n2l*256}")
    for i in range(4): k(f"v_xor_b32 v{EG+i}, {ZMASK ^ CEN}, v{EG+i}")
    PPOS = E("PPOS", 1)
    PRG = 240; STG = E("STG", 1)
    def par_issue(fl="sc1"):
        if STG: k("s_cmp_lt_u32 s16, 4\ns_cselect_b64 exec, -1, 0")
        k(f"buffer_load_dwordx4 v[{PRA}:{PRA+3}], v{PG}, s[12:15], s52 offen {fl}")
        if STG: k(f"buffer_load_dwordx4 v[{PRG}:{PRG+3}], v{PG}, s[12:15], s53 offen {fl}\ns_mov_b64 exec, -1")
    if PPOS == 0: par_issue(ES("CFL", ""))
    def parb_issue(fl="sc1"):
        k(f"buffer_load_dwordx4 v[{PRB0}:{PRB0+3}], v{PG}, s[12:15], s41 offen {fl}")
        k(f"buffer_load_dwordx4 v[{PRC}:{PRC+3}], v{PG}, s[12:15], s40 offen {fl}")
    X = TB
    def s2(n):
        k(f"s_waitcnt lgkmcnt({3-n})")
        for part in range(2):
            d = D + 8*n + 4*part
            k(f"v_mfma_f32_16x16x32_f16 v[{d}:{d+3}], v[{L+4*n}:{L+4*n+3}], v[{T2+4*part}:{T2+4*part+3}], 0")
    def cv2(n):
        for i in range(4): k(f"v_cvt_pk_f16_f32 v{X+4*n+i}, v{D+8*n+i}, v{D+8*n+4+i}")
    def d1(n):
        for part in range(2):
            d = D3 + 8*n + 4*part
            k(f"v_mfma_f32_16x16x32_f16 v[{d}:{d+3}], v[{X+4*n}:{X+4*n+3}], v[{T3+8*n+4*part}:{T3+8*n+4*part+3}], 0")
    def cv3(n):
        for i in range(4): k(f"v_cvt_pk_f16_f32 v{L+4*i+n}, v{D3+8*n+i}, v{D3+8*n+4+i}")
        for i in range(4): k(f"v_bfi_b32 v{L+4*i+n}, s33, v{EG+n}, v{L+4*i+n}")
    for n in range(4): s2(n)
    k(f"v_mov_b32 v2, v{KF}\nv_xor_b32 v{EG+3}, v{KF}, v{EG+3}")
    for u in range(13 if STG else 12, 16): k(f"ds_read_b128 v[{T4+4*u}:{T4+4*u+3}], v3 offset:{L_T4 + u*1024}")
    if PPOS == 1: par_issue(ES("CFL", ""))
    cv2(0); cv2(1); d1(0); cv2(2); d1(1); cv2(3); d1(2); d1(3)
    k("s_cmp_lg_u32 s4, 0\ns_cbranch_scc1 f_sb\nf_nsb:")
    if PPOS == 2: par_issue(ES("CFL", ""))
    for n in range(4): cv3(n)
    def zf_store(fl):
        for i in range(4):
            k(f"buffer_store_dwordx4 v[{L+4*i}:{L+4*i+3}], v{ZS}, s[12:15], s{74 + (i >> 1)} offen offset:{(i & 1)*2048} {fl}")
    k("s_cmp_lg_u32 s38, 0\ns_cbranch_scc1 f_slowst")
    zf_store(ES("ZST", "nt"))
    k("f_std:")
    stamp(k, 9)
    k.c("================= wait 2: modulation vectors into LDS =================")
    ZFL = ES("ZFL", "sc1 nt")
    if STG: k("s_cmp_ge_u32 s16, 4\ns_cbranch_scc1 f_pw2")
    k(f"s_mov_b32 s83, 0\ns_waitcnt vmcnt(4)\nf_pp:")
    chk_bytes(k, list(range(PRA, PRA + 4)) + (list(range(PRG, PRG + 4)) if STG else []), D)
    k(f"""s_cbranch_vccnz f_ppbad
    f_ppok:""")
    stamp_val(k, 53, 83)
    stamp_val(k, 55, 38)
    k(f"ds_write_b128 v{PS}, v[{PRA}:{PRA+3}]")
    k(f"ds_write_b128 v{PS}, v[{PRG}:{PRG+3}] offset:8192" if STG else "s_cmp_ge_u32 s16, 4\ns_cbranch_scc1 f_pw")
    QL = E("QL", 1)
    def qred(t_):
        padd(k, t_, PRA, PRA + 2)
        k(f"v_add_f32 v{t_}, v{t_}, v{t_+1}")
        wave_reduce_to63(k, [t_])
        k(f"""v_min_u32 v{t_}, -2, v{t_}
        s_mov_b32 exec_lo, 0
        s_mov_b32 exec_hi, 0x80000000
        ds_write_b32 v{KW}, v{t_} offset:64
        s_mov_b64 exec, -1""")
    if not QL: qred(D)
    k(f"""f_pw:
    s_waitcnt lgkmcnt(0)
    f_pw2:""")
    stamp(k, 10)
    k("s_barrier")
    for j in range(4):
        k(f"buffer_load_dwordx4 v[{L+4*j}:{L+4*j+3}], v{ZL}, s[12:15], s{(28, 29, 50, 51)[j]} offen {ZFL}")
    GA_, GB_, VA, VB = 112, 128, 48, 64
    V_V, V_SB, V_G, V_GB, V_C1 = 0, 1, 2, 3, 4
    def pread(vec, base, row):
        return [f"ds_read_b128 v[{base+4*T}:{base+4*T+3}], v{(PA, PB)[row]} offset:{vec*4096 + (T, 3-T)[row]*1024}" for T in range(4)]
    Y, YN, TT, QP = 80, 96, 144, 28
    prq = [x for q in zip(pread(V_G, GA_, 0), pread(V_G, GB_, 1), pread(V_V, VA, 0), pread(V_V, VB, 1)) for x in q]
    NPR = E("NPR", 8)
    if STG: k(f"ds_read_b128 v[{T4+48}:{T4+51}], v3 offset:{L_T4 + 12*1024}")
    for x in prq[:NPR]: k(x)
    if QL:
        k.c("(waves 4-7 reduce garbage into slots nobody reads)")
        qred(TT + 8)
    k(f"v_xor_b32 v{EG+3}, v2, v{EG+3}")
    for i in range(4): k(f"v_xor_b32 v{EG+i}, s44, v{EG+i}")
    FPF = 1 if FPJ else 0
    k(f"""v_bfe_u32 v20, v0, 3, 3
    v_mul_u32_u24 v20, 7168, v20
    v_and_b32 v{TT+7}, 7, v0
    v_min_u32 v{TT+7}, 6, v{TT+7}
    v_lshl_add_u32 v{TT+7}, v{TT+7}, 7, v20
    v_mov_b32 v20, {L_KEY + 64}
    v_lshrrev_b32 v23, 5, v0
    v_mov_b32 v22, 0xffffff00
    v_mov_b32 v21, 0x20000
    s_mov_b64 s[70:71], 1
    s_mov_b32 s83, 1""")
    ZM = (72, 74, 78, 36)
    def st4(dst, T, j):
        cc = "0" if j == 0 else f"v[{dst+4*T}:{dst+4*T+3}]"
        b = T4 + 16*T + 4*j
        k(f"v_mfma_f32_16x16x32_f16 v[{dst+4*T}:{dst+4*T+3}], v[{L+4*j}:{L+4*j+3}], v[{b}:{b+3}], {cc}")
    def zstrip(j):
        for i in range(4): k(f"v_xor_b32 v{L+4*j+i}, v{L+4*j+i}, v{EG+i}")
    def zchk(j):
        r = L + 4*j; t_ = TT + j
        return [f"v_bitop3_b32 v{t_}, v{r+3}, v21, s44 bitop3:0x56",
                f"v_bitop3_b32 v{t_}, v{t_}, v{r}, s44 bitop3:0xf6",
                f"v_bitop3_b32 v{t_}, v{t_}, v{r+1}, s44 bitop3:0xf6",
                f"v_bitop3_b32 v{t_}, v{t_}, v{r+2}, s44 bitop3:0xf6",
                f"v_and_b32 v{t_}, s33, v{t_}",
                f"v_cmp_ne_u32 s[{ZM[j]}:{ZM[j]+1}], 0, v{t_}"]
    zalt = [f"v_bitop3_b32 v2, v{L+3}, v{L+7}, v21 bitop3:0x80", f"v_bitop3_b32 v2, v2, v{L+11}, v{L+15} bitop3:0x80", "v_cmp_eq_u32 vcc, 0, v2"]
    k("""s_mov_b32 s83, 0
    s_mov_b64 s[72:73], -1
    s_mov_b64 s[74:75], -1
    s_mov_b64 s[78:79], -1
    s_mov_b64 s[36:37], -1
    s_branch f_zp
    f_zr:""")
    k.c("lanes whose piece is not there yet fetch it again")
    for j in range(4):
        k(f"s_mov_b64 exec, s[{ZM[j]}:{ZM[j]+1}]")
        k(f"buffer_load_dwordx4 v[{L+4*j}:{L+4*j+3}], v{ZL}, s[12:15], s{(28, 29, 50, 51)[j]} offen {ZFL}")
    k(f"""f_zp:
    s_add_u32 s83, s83, 1
    s_cmp_lt_u32 s83, {SPIN}
    s_cselect_b64 s[68:69], -1, 0""")
    for j in range(4):
        k(f"s_mov_b64 exec, s[{ZM[j]}:{ZM[j]+1}]\ns_waitcnt vmcnt({3-j})")
        zstrip(j)
        for x in zchk(j): k(x)
        if j == 2: k("s_or_b64 s[64:65], s[72:73], s[74:75]")
    k("s_mov_b64 exec, -1")
    for x in zalt: k(x)
    k(f"""s_or_b64 s[66:67], s[78:79], s[36:37]
    s_or_b64 s[64:65], s[64:65], s[66:67]
    s_and_b64 s[64:65], s[64:65], s[68:69]
    s_cbranch_scc1 f_zr
    s_cbranch_vccnz f_rare
    f_zf:""")
    stamp(k, 11)
    k.c("================= phase C =================")
    rest = prq[NPR:] + [f"ds_read2_b32 v[{QP}:{QP+1}], v20 offset0:1 offset1:3", f"ds_read2_b32 v[{QP+2}:{QP+3}], v20 offset0:5 offset1:7"]
    for T in range(2):
        for j in range(4):
            st4(Y, T, j)
            for x in rest[:2]: k(x)
            rest = rest[2:]
    assert not rest
    k("f_zfok:")
    if 51 in ST: k("s_sub_u32 s83, s83, 1")
    stamp_val(k, 51, 83)
    def fpf(FPN=E("FPF", 0), off=E("FPO", 0)):
        msk = (1 << (8 * FPN)) - 1
        k.c("help for the weight stream: last rows of both K halves of w_up, this die's columns")
        k(f"""v_bfe_u32 v26, v0, 3, 3
        v_mul_u32_u24 v26, 7168, v26
        v_and_b32 v27, 7, v0
        v_min_u32 v27, 6, v27
        v_lshl_add_u32 v26, v27, 7, v26
        s_lshl_b32 s36, s35, 3
        s_add_u32 s36, s36, s16
        s_lshr_b32 s37, s36, 6
        s_and_b32 s36, s36, 63
        s_mul_i32 s36, s36, {FPN}
        s_lshl_b32 s37, s37, 9
        s_add_u32 s36, s36, s37
        s_add_u32 s36, s36, {512 - 64*FPN - off}
        s_mul_i32 s36, s36, 7168
        s_mul_i32 s37, s34, 896
        s_add_u32 s36, s36, s37""")
        k(f"s_mov_b32 exec_lo, {msk & 0xffffffff}\ns_mov_b32 exec_hi, {msk >> 32}")
        k("buffer_load_dword v25, v26, s[20:23], s36 offen\ns_mov_b64 exec, -1")
    FPOS = 1
    k(f"s_waitcnt lgkmcnt({18 - NPR if NPR >= 8 else 0})")
    FPZ = E("FPZ", 0)
    def fpj():
        if FPJ:
            k("s_mov_b64 exec, s[48:49]")
            k(f"buffer_load_dword v{TT+6}, v{TT+7}, s[20:23], s55 offen\ns_mov_b64 exec, -1")
    if FPZ == 1: fpj()
    k("s_cmp_eq_u32 s30, 0\ns_cbranch_scc1 f_sp")
    RQ = 104
    tA, tB = TT, TT + 8
    def xa(T):
        for h in range(2): pfma(k, XA2 + 4*T + 2*h, GA_ + 4*T + 2*h, Y + 4*T + 2*h, XA2 + 4*T + 2*h)
    def xb(T):
        for s_ in range(1, 4): k(f"v_fmac_f32 v{XB2+4*T+s_}, v{GB_+4*T+s_}, v{Y+4*T+4-s_}")
    def bperm(T):
        k(f"v_cndmask_b32 v{YN+4+T}, v{Y+4*T}, v{Y+4*((T+1)&3)}, s[70:71]")
        k(f"ds_bpermute_b32 v{YN+T}, v{BP}, v{YN+4+T}")
    def acc(X2, V_, t, i, first):
        x = X2 + 2*i
        if first:
            pmul(k, t + 2, x, x); pmul(k, t + 4, x, V_ + 2*i)
        else:
            pfma(k, t + 2, x, x, t + 2); pfma(k, t + 4, x, V_ + 2*i, t + 4)
    def s1acc(X2, t, lst):
        pass
    st4(Y, 2, 0); xa(0); st4(Y, 2, 1); xb(0); st4(Y, 2, 2)
    acc(XA2, VA, tA, 0, True); st4(Y, 2, 3); acc(XA2, VA, tA, 1, False)
    st4(Y, 3, 0); bperm(0); xa(1); st4(Y, 3, 1); xb(1); st4(Y, 3, 2)
    acc(XA2, VA, tA, 2, False); st4(Y, 3, 3); acc(XA2, VA, tA, 3, False)
    acc(XB2, VB, tB, 1, True); acc(XB2, VB, tB, 3, False)
    padd(k, tA, XA2, XA2 + 2); padd(k, tB, XB2 + 2, XB2 + 6)
    if FPZ == 2: fpj()
    k("s_waitcnt lgkmcnt(1)")
    bperm(1); xa(2); xb(2)
    padd(k, tA, tA, XA2 + 4); padd(k, tA, tA, XA2 + 6)
    acc(XA2, VA, tA, 4, False); acc(XA2, VA, tA, 5, False); acc(XB2, VB, tB, 5, False)
    bperm(2); bperm(3); xa(3); xb(3)
    C1A, C1B, SBA, SBB, GBA, GBB = 192, 208, 224, 240, 112, 128
    acc(XA2, VA, tA, 6, False); acc(XA2, VA, tA, 7, False); acc(XB2, VB, tB, 7, False)
    for i in range(4, 8): padd(k, tA, tA, XA2 + 2*i)
    padd(k, tB, tB, XB2 + 10); padd(k, tB, tB, XB2 + 14)
    k("s_waitcnt lgkmcnt(0)")
    for T in range(4): k(f"v_fmac_f32 v{XB2+4*T}, v{GB_+4*T}, v{YN+T}")
    for T in range(4):
        acc(XB2, VB, tB, 2*T, False); padd(k, tB, tB, XB2 + 4*T)
    k("f_join:")
    if QL:
        k(f"""f_q:
        v_max3_u32 v2, v{QP}, v{QP+1}, v{QP+2}
        v_max_u32 v2, v2, v{QP+3}
        v_cmp_eq_u32 vcc, -1, v2
        s_cbranch_vccnz f_qbad""")
    padd(k, QP, QP, QP + 2)
    if FPZ == 0: fpj()
    stamp(k, 12)
    def stage_b(cnt):
        k(f"s_mov_b32 s83, 0\ns_waitcnt vmcnt({cnt})\nf_pb:")
        chk_bytes(k, list(range(PRB0, PRB0 + 4)) + list(range(PRC, PRC + 4)), 2)
        k(f"""{"" if E("NOCHK", 0) & 4 else "s_cbranch_vccnz f_pbbad"}
        f_pbok:""")
        stamp_val(k, 54, 83)
        k(f"""        ds_write_b128 v{PS}, v[{PRB0}:{PRB0+3}] offset:4096
        s_cmp_ge_u32 s16, 4
        s_cbranch_scc1 f_pbx
        ds_write_b128 v{PS}, v[{PRC}:{PRC+3}] offset:16384
        f_pbx:""")
    k.c("GO hint from one workgroup per replica")
    GOPOS = E("GOPOS", 1)
    def gohint(lab):
        k(f"""s_or_b32 s42, s35, s16
        s_cmp_lg_u32 s42, 0
        s_cbranch_scc1 {lab}
        v_mov_b32 v2, s32
        s_mov_b64 exec, 1
        buffer_store_dword v2, v{FA}, s[12:15], s81 offen offset:2048 sc1
        s_mov_b64 exec, -1
        {lab}:""")
    if GOPOS == 0: gohint("f_ngo")
    else: k("f_ngo:")
    rows = ((XA2, VA, tA, 64, C1A, SBA, GBA, XA_), (XB2, VB, tB, 66, C1B, SBB, GBB, XB_))
    for n in range(2):
        for j in range(3): k(f"v_add_f32 v{RQ+4*n+j}, v{rows[n][2]+2*j}, v{rows[n][2]+2*j+1}")
    def red(js):
        for j in js: k(f"v_permlane32_swap_b32 v{RQ+j}, v{RQ+4+j}")
        for j in js: k(f"v_add_f32 v{RQ+j}, v{RQ+j}, v{RQ+4+j}")
        regs = [RQ + j for j in js]
        row_allreduce(k, regs)
        for r in regs: k(f"v_add_f32_dpp v{r}, v{r}, v{r} row_bcast:15 row_mask:0xa bank_mask:0xf")
    k(f"v_add_f32 v{QP}, v{QP}, v{QP+1}")
    red((0, 1, 2))
    k.c("lanes 31 / 63 hold rows A / B")
    k(f"""v_mul_f32 v{RQ}, s46, v{RQ}
    v_mul_f32 v{RQ+1}, s46, v{RQ+1}
    v_mul_f32 v{RQ+4}, v{RQ}, v{RQ}
    v_fma_f32 v{RQ+2}, -v{RQ}, v{QP}, v{RQ+2}
    v_sub_f32 v{RQ+1}, v{RQ+1}, v{RQ+4}
    v_mul_f32 v{RQ+5}, 4.0, v{RQ+1}
    v_cmp_gt_f32 vcc, v{RQ+4}, v{RQ+5}
    s_or_b32 s42, vcc_lo, vcc_hi
    s_bitcmp1_b32 s42, 31
    s_cbranch_scc1 f_slow2
    f_var2:""")
    round_bf16(k, RQ + 1, RQ + 1)
    k(f"v_add_f32 v{RQ+1}, {f32(1e-5)}, v{RQ+1}")
    round_bf16(k, RQ + 1, RQ + 1)
    k(f"v_sqrt_f32 v{RQ+1}, v{RQ+1}")
    round_bf16(k, RQ + 1, RQ + 1)
    k(f"""v_rcp_f32 v{RQ+1}, v{RQ+1}
    s_mov_b32 s42, 0x80000000
    s_mov_b32 exec_lo, s42
    s_mov_b32 exec_hi, s42
    v_mul_f32 v{RQ+2}, v{RQ+2}, v{RQ+1}
    v_ashrrev_i32 v{RQ+4}, 31, v{RQ+2}
    v_or_b32 v{RQ+4}, s42, v{RQ+4}
    v_xor_b32 v{RQ+2}, v{RQ+2}, v{RQ+4}
    v_and_or_b32 v{RQ+2}, v{RQ+2}, v22, v23
    ds_write_b32 v{KW}, v{RQ+2}
    s_mov_b64 exec, -1""")
    k("s_waitcnt lgkmcnt(0)")
    stamp(k, 13)
    KV = 21
    k(f"""s_barrier
    ds_read_b32 v{KV}, v{KR_}""")
    for n in range(2):
        k(f"v_readlane_b32 s{60+n}, v{RQ+2}, {31+32*n}")
        k(f"v_readlane_b32 s{64+2*n}, v{RQ}, {31+32*n}")
        k(f"v_readlane_b32 s{65+2*n}, v{RQ+1}, {31+32*n}")
    k(f"""    s_lshl_b32 s42, s3, 1
    s_movk_i32 s43, 0xff00
    v_mov_b32 v30, s32
    v_mov_b32 v31, s32
    s_cmp_lg_u32 s16, 0
    s_waitcnt lgkmcnt(0)
    s_cbranch_scc1 f_nkey
    s_setprio 3
    v_max_u32_dpp v28, v{KV}, v{KV} row_ror:8 {DPPM}""")
    for sh in (4, 2, 1): k(f"v_max_u32_dpp v28, v28, v28 row_ror:{sh} {DPPM}")
    k(f"""v_cmp_eq_u32 vcc, v28, v{KV}
    v_cndmask_b32_e64 v29, v{KV}, 0, vcc
    v_and_or_b32 v28, v28, v22, s42
    s_add_u32 s42, s42, 1""")
    row_allreduce(k, [29], "v_max_u32")
    k(f"""v_and_or_b32 v29, v29, v22, s42
    s_mov_b64 exec, 0xff
    buffer_store_dwordx4 v[28:31], v{FA}, s[12:15], s80 offen sc1
    s_mov_b64 exec, -1
    s_setprio 0""")
    stamp(k, 40)
    if 41 in ST: k("s_waitcnt vmcnt(0)"); stamp(k, 41)
    k("f_nkey:")
    if GOPOS == 1: gohint("f_ng1")
    HP = 80; OUTR = (32, 40)
    def nrow(n):
        X2, V_, t, sr, C1, SB, GB, XL = rows[n]
        for i in range(8): psub_s(k, V_ + 2*i, X2 + 2*i, sr)
        for i in range(8): pmul_s(k, V_ + 2*i, V_ + 2*i, sr + 1)
    def relayout(n, src, dst, cvt):
        XL = rows[n][7]
        for T in range(4):
            for h in range(2): k(f"{cvt} v{HP+2*T+h}, v{src+4*T+2*h}, v{src+4*T+2*h+1}")
            k(f"ds_write_b64 v{XL}, v[{HP+2*T}:{HP+2*T+1}] offset:{512*(T, 3-T)[n]}")
        for j in range(2):
            k(f"ds_read_b128 v[{dst+4*j}:{dst+4*j+3}], v{NAT} offset:{n*2048 + j*1024}")
    for n in range(2):
        HO = 88
        k(f"""s_movk_i32 s{62+n}, 0x100
        v_cmp_lt_u32 vcc, s{60+n}, v{KV}
        s_and_b32 s42, vcc_lo, 0xffff
        s_bcnt1_i32_b32 s42, s42
        s_cmp_ge_u32 s42, 2
        s_cbranch_scc1 f_nc{n}
        s_setprio 2""")
        nrow(n)
        relayout(n, rows[n][1], HO, "v_cvt_pk_f16_f32")
        k(f"""s_lshl_b32 s{62+n}, s3, 1
        s_add_u32 s{62+n}, s{62+n}, s42
        s_lshl_b32 s42, s{62+n}, 11
        s_add_u32 s42, s42, {WS_SLOT}
        s_lshl_b32 s43, s{62+n}, 4
        s_add_u32 s43, s43, {WS_TT}
        s_lshl_b32 s68, s{30+n}, 8
        s_or_b32 s68, s68, s56
        s_andn2_b32 s69, s{64+2*n}, 0xff
        s_or_b32 s69, s69, s57
        s_andn2_b32 s70, s{65+2*n}, 0xff
        s_or_b32 s70, s70, s58
        s_andn2_b32 s71, s{60+n}, 0xff
        s_or_b32 s71, s71, s59
        s_waitcnt lgkmcnt(0)""")
        for i in range(8): k(f"v_bfi_b32 v{HO+i}, s33, v{EG+(i&3)}, v{HO+i}")
        for j in range(2):
            k(f"buffer_store_dwordx4 v[{HO+4*j}:{HO+4*j+3}], v3, s[12:15], s42 offen offset:{j*1024} sc1")
        for i in range(4): k(f"v_mov_b32 v{24+i}, s{68+i}")
        k(f"""s_mov_b64 exec, 1
        buffer_store_dwordx4 v[24:27], v3, s[12:15], s43 offen sc1
        s_mov_b64 exec, -1
        s_setprio 0
        f_nc{n}:""")
    stamp(k, 14)
    if E("FPG", 0):
        k("s_barrier")
        fpf(E("FPG", 0), E("FPGO", 0))
    parb_issue(ES("CFL", ""))
    for n in range(2):
        k(f"s_cmp_lt_u32 s{62+n}, 0x100\ns_cbranch_scc1 f_op{n}")
        nrow(n)
        k(f"f_op{n}:")
    stage_b(0)
    k("s_waitcnt lgkmcnt(0)\ns_barrier")
    for n in range(2):
        X2, V_, t, sr, C1, SB, GB, XL = rows[n]
        for x in pread(V_C1, C1, n) + pread(V_SB, SB, n) + pread(V_GB, GB, n): k(x)
        k("s_waitcnt lgkmcnt(4)")
        for i in range(8): pfma(k, V_ + 2*i, V_ + 2*i, C1 + 2*i, SB + 2*i)
        k("s_waitcnt lgkmcnt(0)")
        for i in range(8): pfma(k, X2 + 2*i, GB + 2*i, V_ + 2*i, X2 + 2*i)
        relayout(n, X2, OUTR[n], "v_cvt_pk_bf16_f32")
    if E("ZEV", 0) == 1:
        for j in range(4):
            if E("ZPACE", 0): k(f"s_waitcnt vmcnt({E('ZPACE', 0)-1})")
            k(f"buffer_load_dwordx4 v[{48+4*j}:{51+4*j}], v{ZL}, s[12:15], s{(28, 29, 50, 51)[j]} offen sc1 nt")
    OMODE = E("OMODE", 0); OPACE = E("OPACE", 2)
    def outst(n):
        for j in range(0 if E("NOOUT", 0) else 2):
            if OPACE: k(f"s_waitcnt vmcnt({OPACE-1})")
            k(f"buffer_store_dwordx4 v[{OUTR[n]+4*j}:{OUTR[n]+4*j+3}], v3, s[24:27], s{18+n} offen offset:{j*1024} {ES('OFL', 'sc1')}")
    if OMODE:
        if E("OSL", 0): k(f"s_sleep {E('OSL', 0)}")
        k("s_waitcnt lgkmcnt(0)")
        for n in range(OMODE):
            k(f"s_cmp_lt_u32 s{62+n}, 0x100\ns_cbranch_scc1 f_oq{n}")
            outst(n)
            k(f"f_oq{n}:")
    k.c("rows are written once the selection is known; the two selected rows are written by the reducers")
    k(f"""v_mov_b32 v21, {L_ST+128}
    s_cmp_lg_u32 s16, 0
    s_cbranch_scc1 f_nrs""")
    if E("FKEY", 1):
        k(f"s_sleep {E('FKS', 8)}")
        poll_keys(k, "f_kq", 96, 81, 2)
        top2(k, 96, 40, 41, 24)
        k("s_and_b32 s40, s40, 0xff\ns_and_b32 s41, s41, 0xff")
    else:
        res_wait(k, "f_rs", 81, 20, 28, E("RSL", 4))
    k(f"""v_mov_b32 v28, s40
    v_mov_b32 v29, s41
    ds_write_b64 v21, v[28:29]
    f_nrs:
    s_waitcnt lgkmcnt(0)
    s_barrier
    ds_read_b64 v[28:29], v21
    s_waitcnt lgkmcnt(0)
    v_readfirstlane_b32 s40, v28
    v_readfirstlane_b32 s41, v29""")
    for n in range(2):
        if n < OMODE: k(f"s_cmp_ge_u32 s{62+n}, 0x100\ns_cbranch_scc1 f_e{n}")
        k(f"""s_cmp_eq_u32 s{62+n}, s40
        s_cbranch_scc1 f_e{n}
        s_cmp_eq_u32 s{62+n}, s41
        s_cbranch_scc1 f_e{n}""")
        outst(n)
        k(f"f_e{n}:")
    if E("ZEV", 0) == 2:
        for j in range(4):
            k(f"buffer_load_dwordx4 v[{48+4*j}:{51+4*j}], v{ZL}, s[12:15], s{(28, 29, 50, 51)[j]} offen sc1 nt")
    if E("WB", 0):
        k(f"""s_lshl_b32 s42, s35, 3
        s_add_u32 s42, s42, s16
        s_cmp_lg_u32 s42, 15
        s_cbranch_scc1 f_nwb
        {"s_waitcnt vmcnt(0)" if E("WB", 0) == 2 else ""}
        buffer_wbl2 sc1
        f_nwb:""")
    stamp_out(k)
    k("s_endpgm")
    k.c("---- retries ----")
    if QL:
        k(f"""f_qbad:
        v_mov_b32 v2, {L_KEY + 64}
        ds_read2_b32 v[{QP}:{QP+1}], v2 offset0:1 offset1:3
        ds_read2_b32 v[{QP+2}:{QP+3}], v2 offset0:5 offset1:7
        s_waitcnt lgkmcnt(0)
        s_branch f_q""")
    k("f_t3l:")
    t3reads()
    k("s_branch f_t3d")
    k(f"""f_c1bad:
    s_add_u32 s83, s83, 1
    s_cmp_ge_u32 s83, {SPIN}
    s_cbranch_scc1 f_c1ok
    s_bitcmp1_b32 s47, 0
    s_cbranch_scc0 f_c1b2
    s_sleep {E('SLC', 3)}
    f_c1b2:""")
    cap_issue("f_ci1")
    k(f"""s_bitcmp1_b32 s47, 0
    s_cbranch_scc0 f_s1
    s_waitcnt vmcnt(0)
    s_branch f_c1
    f_z1bad:
    s_add_u32 s83, s83, 1
    s_cmp_ge_u32 s83, {SPIN}
    s_cbranch_scc1 f_z1ok
    s_sleep {E('SLR1', 4)}""")
    z1_issue()
    k(f"""s_waitcnt vmcnt(0)
    s_branch f_z1
    f_ppbad:
    s_add_u32 s83, s83, 1
    s_cmp_ge_u32 s83, {SPIN}
    s_cbranch_scc1 f_ppok
    s_sleep {E('SLP2', 3)}""")
    par_issue()
    k(f"""s_waitcnt vmcnt(0)
    s_branch f_pp
    f_pbbad:
    s_add_u32 s83, s83, 1
    s_cmp_ge_u32 s83, {SPIN}
    s_cbranch_scc1 f_pbok
    s_sleep {E('SLP2', 3)}""")
    parb_issue()
    k("s_waitcnt vmcnt(0)\ns_branch f_pb")
    k.c("---- placement fallback: write-through stores ----")
    k("f_slowst:")
    zf_store("sc1")
    k("s_branch f_std")
    k.c("---- rare: the producers use different scales ----")
    k("f_rare:")
    for j in range(4):
        k(f"v_and_b32 v2, v21, v{L+4*j+3}\nv_cmp_eq_u32 s[{ZM[j]}:{ZM[j]+1}], 0, v2")
    for j in range(4): k(f"v_or_b32 v{L+4*j+3}, v21, v{L+4*j+3}")
    k(f"""    v_bfe_u32 v{TT}, v0, 4, 2
    v_lshlrev_b32 v{TT}, 3, v{TT}""")
    for x in prq[NPR:] + [f"ds_read2_b32 v[{QP}:{QP+1}], v20 offset0:1 offset1:3", f"ds_read2_b32 v[{QP+2}:{QP+3}], v20 offset0:5 offset1:7"]: k(x)
    k("s_mov_b32 s83, 0\ns_waitcnt lgkmcnt(0)\nf_rz:")
    for j in range(4):
        k(f"buffer_load_dwordx2 v[{TT+8+2*j}:{TT+9+2*j}], v{TT}, s[12:15], s77 offen offset:{32*j} sc1")
    k(f"s_waitcnt vmcnt(0)\nv_mov_b32 v{TT+1}, s32")
    for j in range(4): k(f"v_cndmask_b32 v{TT+8+2*j}, v{TT+1}, v{TT+8+2*j}, s[{ZM[j]}:{ZM[j]+1}]")
    k(f"v_xor_b32 v2, s32, v{TT+8}")
    for j in range(1, 4): k(f"v_bitop3_b32 v2, v2, v{TT+8+2*j}, s32 bitop3:0xf6")
    k(f"""v_cmp_ne_u32 vcc, 0, v2
    s_cbranch_vccz f_rzx
    {spin("f_rz", 2)}
    f_rzx:""")
    for j in range(4): k(f"v_cndmask_b32 v{TT+4+j}, 2, v{TT+9+2*j}, s[{ZM[j]}:{ZM[j]+1}]")
    k(f"""    v_max_i32 v{TT+1}, v{TT+4}, v{TT+5}
    v_max3_i32 v{TT+1}, v{TT+1}, v{TT+6}, v{TT+7}""")
    for g in range(4): k(f"v_readlane_b32 s{64+g}, v{TT+1}, {16*g}")
    k(f"""s_max_i32 s64, s64, s65
    s_max_i32 s66, s66, s67
    s_max_i32 s64, s64, s66
    s_add_i32 s66, s64, 125
    s_lshl_b32 s66, s66, 23
    s_nop 0""")
    for j in range(4):
        k(f"v_subrev_u32 v{TT+4+j}, s64, v{TT+4+j}")
        k(f"v_ldexp_f32 v{TT+4+j}, 1.0, v{TT+4+j}")
        k(f"v_cvt_pk_f16_f32 v{TT+4+j}, v{TT+4+j}, v{TT+4+j}")
    for r in range(16): k(f"v_pk_mul_f16 v{L+r}, v{L+r}, v{TT+4+(r>>2)}")
    for i in range(16): pmul_s(k, GA_ + 2*i, GA_ + 2*i, 66)
    for T in range(2):
        for j in range(4): st4(Y, T, j)
    k("s_nop 7\ns_branch f_zfok")
    k.c("---- rare: two-pass variance / router score for LN2 ----")
    k("f_slow2:")
    k.c("here the bf16 rounding of x and of the mean matters: follow the reference's rounding steps")
    for X2, V_, t, sr, C1, SB, GB, XL in rows:
        for i in range(8): rb2(k, X2 + 2*i, t)
        for i in range(1, 8): padd(k, t, X2 if i == 1 else t, X2 + 2*i)
    for n in range(2): k(f"v_add_f32 v{RQ+4*n}, v{rows[n][2]}, v{rows[n][2]+1}")
    red((0,))
    k(f"v_mul_f32 v{RQ+3}, s46, v{RQ}")
    round_bf16(k, RQ, RQ + 3)
    k(f"v_sub_f32 v{RQ+3}, v{RQ+3}, v{RQ}")
    for n in range(2): k(f"v_readlane_b32 s{64+2*n}, v{RQ}, {31+32*n}")
    for n, (X2, V_, t, sr, C1, SB, GB, XL) in enumerate(rows):
        Dd = (80, 32)[n]
        for i in range(8): psub_s(k, Dd + 2*i, X2 + 2*i, sr)
        for i in range(8): acc(Dd, V_, t, i, i == 0)
    for n in range(2):
        for j in (1, 2): k(f"v_add_f32 v{RQ+4*n+j}, v{rows[n][2]+2*j}, v{rows[n][2]+2*j+1}")
    red((1, 2))
    k(f"""v_mul_f32 v{RQ+1}, s46, v{RQ+1}
    v_fma_f32 v{RQ+1}, -v{RQ+3}, v{RQ+3}, v{RQ+1}
    v_max_f32 v{RQ+1}, 0, v{RQ+1}
    s_branch f_var2""")
    k.c("---- rare: |mean| >> std, recompute the variance in two passes ----")
    k("f_slowvar:")
    U = 100
    k(f"v_lshlrev_b32 v{R+6}, 16, v{MB}")
    k(f"v_readlane_b32 s68, v{R+6}, 31\nv_readlane_b32 s70, v{R+6}, 63")
    for jj in range(2):
        sr = 68 + 2 * jj
        for i in range(8):
            unpack_bf16(k, U, XW + jj * 8 + i)
            k(f"v_pk_add_f32 {P(U)}, {P(U)}, s[{sr}:{sr+1}] op_sel_hi:[1,0]")
            if i == 0: pmul(k, U + 2, U, U)
            else: pfma(k, U + 2, U, U, U + 2)
        k(f"v_add_f32 v{S+2+jj}, v{U+2}, v{U+3}")
    k(f"v_add_f32 v{R+6}, v{R+6}, v{S}")
    red1((2,))
    k(f"""v_mul_f32 v{S+2}, s46, v{S+2}
    v_fma_f32 v{S+2}, -v{R+6}, v{R+6}, v{S+2}
    v_max_f32 v{S+2}, 0, v{S+2}
    s_branch f_var""")
    k.c("---- group 0, wave 0: the shift vector enters the row 0 accumulators ----")
    k("f_sa:\ns_add_u32 s69, s69, %d" % (6 << 23))
    t = D
    pick(CP + 8)
    k(f"""v_mul_f32 v{CP+8}, s69, v{CP+8}
    v_and_b32 v{t+4}, 15, v0
    v_cvt_pk_f16_f32 v{t}, v{CP+8}, v{CP+8}
    v_cmp_eq_u32 vcc, 0, v{t+4}
    v_mov_b32 v{t+6}, 0x3c00
    v_mov_b32 v{t+7}, 0xbc000000
    v_cndmask_b32 v{t+6}, 0, v{t+6}, vcc
    v_cndmask_b32 v{t+7}, 0, v{t+7}, vcc""")
    for i in range(4): k(f"v_mov_b32_dpp v{BC+i}, v{t} quad_perm:[{i},{i},{i},{i}] {DPPM}")
    SO = t + 24
    for part in range(2):
        for i in range(4): k(f"v_pk_mul_f16 v{SO+4*part+i}, v{t+6+part}, v{BC+i}")
    for part in range(2):
        k(f"v_mfma_f32_16x16x32_f16 v[{CP+4*part}:{CP+4*part+3}], v[{SO+4*part}:{SO+4*part+3}], v[{TB}:{TB+3}], 0")
    k(f"""s_lshl_b32 s70, s16, 7
    v_add_u32 v{t+4}, s70, v{KR_}
    s_mov_b64 exec, 0xffff
    ds_write2_b32 v{t+4}, v{CP}, v{CP+4} offset0:0 offset1:16
    s_mov_b64 exec, -1
    s_branch f_nsa
    f_sb:""")
    k.lines = [l.replace(f"v_add_u32 v{t+4}, s70, v{KR_}", f"v_add3_u32 v{t+4}, s70, v{KR_}, v{t+5}") for l in k.lines]
    i0 = max(i for i, l in enumerate(k.lines) if "v_add3_u32" in l)
    k.lines.insert(i0, f"    v_mov_b32 v{t+5}, {L_K + 16 - L_KEY}")
    k(f"""v_mov_b32 v{D}, s32
    v_mov_b32 v{D+1}, s61
    v_mov_b32 v{D+2}, 0
    s_cmp_lg_u32 s17, 0
    s_cselect_b64 exec, 1, 0
    buffer_store_dwordx2 v[{D}:{D+1}], v{D+2}, s[12:15], s79 offen sc1
    s_mov_b64 exec, -1
    s_cmp_lg_u32 s34, 0
    s_cbranch_scc1 f_sb2
    s_mov_b64 exec, 0xffff""")
    for u in range(8): k(f"ds_read_b32 v{D+8+u}, v{KR_} offset:{L_K + 16 - L_KEY + u*64}")
    k("s_waitcnt lgkmcnt(0)")
    for u in range(8): k(f"v_add_f32 v{D3+4*u}, v{D3+4*u}, v{D+8+u}")
    k("s_mov_b64 exec, -1\nf_sb2:")
    k("s_branch f_nsb")
    k.c("---- rows 0 and 1024 travel as one complex row ----")
    k("f_sp:\ns_waitcnt lgkmcnt(0)")
    YI, YM, YE = 96, 32, 152
    for T in range(2, 4):
        for j in range(4): st4(Y, T, j)
    for r in range(16): k(f"v_pk_mul_f16 v{L+r}, v{L+r}, 1.0 op_sel:[1,0] op_sel_hi:[0,0] neg_hi:[1,0]")
    for T in range(4):
        for j in range(4): st4(YI, T, j)
    k(f"""v_subrev_u32 v2, s45, v{XA_}
    v_lshlrev_b32 v2, 1, v2
    v_add_u32 v20, s45, v2
    s_add_u32 s42, s45, 1008
    v_sub_u32 v21, s42, v2""")
    k.c("v20: own block (f32, natural order), v21: mirror block")
    for T in range(4): k(f"ds_write_b128 v20, v[{Y+4*T}:{Y+4*T+3}] offset:{1024*T}")
    for T in range(4):
        k(f"v_sub_u32 v{YE+4+T}, {4096-1024*T}, v2\nv_and_b32 v{YE+4+T}, 4095, v{YE+4+T}\nv_add_u32 v{YE+4+T}, s45, v{YE+4+T}")
    for T in range(4): k(f"ds_read_b128 v[{YM+4*T}:{YM+4*T+3}], v21 offset:{1024*(3-T)}")
    for T in range(4): k(f"ds_read_b32 v{YE+T}, v{YE+4+T}")
    k("s_waitcnt lgkmcnt(0)")
    for T in range(4):
        k(f"v_add_f32 v{Y+4*T}, v{Y+4*T}, v{YE+T}")
        for i in range(1, 4): k(f"v_add_f32 v{Y+4*T+i}, v{Y+4*T+i}, v{YM+4*T+4-i}")
    for T in range(4): xa(T)
    for T in range(4): k(f"ds_write_b128 v20, v[{YI+4*T}:{YI+4*T+3}] offset:{1024*T}")
    for T in range(4):
        k(f"v_add_u32 v{YE+4+T}, {1024*T+16}, v2\nv_and_b32 v{YE+4+T}, 4095, v{YE+4+T}\nv_add_u32 v{YE+4+T}, s45, v{YE+4+T}")
    for T in range(4): k(f"ds_read_b128 v[{YM+4*T}:{YM+4*T+3}], v21 offset:{1024*(3-T)}")
    for T in range(4): k(f"ds_read_b32 v{YE+T}, v{YE+4+T}")
    k("s_waitcnt lgkmcnt(0)")
    for T in range(4):
        k(f"v_add_f32 v{YM+4*T}, v{YM+4*T}, v{YE+T}")
        for s_ in range(1, 4): k(f"v_add_f32 v{YM+4*T+s_}, v{YM+4*T+s_}, v{YI+4*T+4-s_}")
    for i in range(8): pfma(k, XB2 + 2*i, GB_ + 2*i, YM + 2*i, XB2 + 2*i)
    for X2, V_, t_ in ((XA2, VA, tA), (XB2, VB, tB)):
        for i in range(8): acc(X2, V_, t_, i, i == 0)
        for i in range(1, 8): padd(k, t_, X2 if i == 1 else t_, X2 + 2*i)
    k("s_branch f_join")

class VM:
    def __init__(self, k): self.k = k; self.q = []
    def add(self, tag, n=1): self.q += [tag] * n
    def wait(self, tag, extra=""):
        idx = max(i for i, t in enumerate(self.q) if t == tag)
        n = len(self.q) - 1 - idx
        self.k(f"s_waitcnt vmcnt({n}) {extra}".strip())
        self.q = self.q[idx + 1:]

def role_G(k):
    L_SI = 131072; L_H = 131072 + 512; L_A = L_H + 2048
    k("g_start:")
    nonce_issue(k, 6)
    srd(k, 44, 20, 2048)
    k(f"""v_and_b32 v6, 127, v0
    v_lshlrev_b32 v6, 1, v6
    s_lshl_b32 s19, s34, 8
    buffer_load_ushort v110, v6, s[44:47], s19 offen""")
    k.c("s35 = mm ; s64 = cluster ; s65 = kq ; s66 = 1 for X ; s40 = ks")
    k(f"""s_and_b32 s65, s35, 1
    s_lshr_b32 s40, s35, 1
    s_mul_i32 s64, s34, 7
    s_add_u32 s64, s64, s40
    s_cmp_ge_u32 s35, 14
    s_cselect_b32 s66, 1, 0
    s_mov_b32 s40, s34
    v_bfe_u32 v5, v0, 5, 1
    v_lshlrev_b32 v5, 3, v5
    v_bfe_u32 v9, v0, 3, 2
    v_add_u32 v5, v5, v9
    v_lshlrev_b32 v9, 1, v7
    v_xor_b32 v9, v9, v0
    v_and_b32 v9, 7, v9
    v_lshlrev_b32 v9, 4, v9
    s_movk_i32 s42, 7168
    v_mad_u32_u24 v5, v5, s42, v9
    v_mov_b32 v104, -1
    v_mov_b32 v105, -1
    v_mov_b32 v106, -1
    v_mov_b32 v107, -1
    v_mov_b32 v14, 0
    s_lshl_b32 s38, s64, 12
    s_lshl_b32 s42, s16, 9
    s_add_u32 s38, s38, s42
    s_mul_i32 s42, s65, {WS_XB - WS_XA}
    s_add_u32 s38, s38, s42
    s_add_u32 s38, s38, {WS_XA}""")
    srd(k, 12, 6, WS_SIZE)
    if E("TOUCH", 1):
        k.c("first touch of the small hand-off lines (brings them on die; the values are not used)")
        k(f"""s_lshl_b32 s42, s35, 3
        s_add_u32 s42, s42, s34
        s_lshl_b32 s42, s42, 3
        s_add_u32 s42, s42, s16
        s_lshl_b32 s42, s42, 8
        s_add_u32 s42, s42, {WS_CAP}
        v_lshlrev_b32 v9, 7, v2
        s_mov_b64 exec, 3
        buffer_load_dword v251, v9, s[12:15], s42 offen
        s_mov_b64 exec, -1""")
    srd(k, 44, 50, 1024 * 3584 * 2)
    srd(k, 60, 52, 1024 * 3584 * 2)
    srd(k, 72, 54, 1024 * 3584 * 2)
    k("s_mov_b32 s26, 4194304\ns_mov_b32 s27, 0x00020000")
    k.c("s67 gate/up base ; s69 down base ; v12 block read ; v8..v11 down read ; v21..v24 down source")
    k(f"""s_lshl_b32 s67, s65, 4
    s_add_u32 s67, s67, s16
    s_mul_i32 s67, s67, {32*7168}
    s_lshl_b32 s42, s64, 7
    s_add_u32 s67, s67, s42
    s_lshl_b32 s42, s64, 6
    s_and_b32 s43, s16, 3
    s_lshl_b32 s43, s43, 3
    s_add_u32 s42, s42, s43
    s_and_b32 s43, s16, 4
    s_add_u32 s42, s42, s43
    s_lshl_b32 s69, s42, 11
    s_lshl_b32 s43, s65, 10
    s_add_u32 s69, s69, s43
    s_and_b32 s43, s16, 1
    s_lshl_b32 s43, s43, 7
    v_xor_b32 v21, s43, v3
    v_xor_b32 v22, 32, v21
    v_xor_b32 v23, 64, v21
    v_xor_b32 v24, 96, v21
    v_add_u32 v109, {L_SI}, v6""")
    vm = VM(k)
    for j in range(4): vm.add(j)
    vm.add("c")
    if E("TOUCH", 1): vm.add("t")
    RV = ((1, 0), (4, 2), (3, 5))
    order = ES("ORDER", "R0,R1,R2,D0,D1,G0,G1,U0,U1").split(",")
    NT = ES("NTW", "")
    def issue(j):
        ci, d = j >> 2, j & 3
        nm = order[ci]; kind, h = nm[0], int(nm[1]); slot = (ci % 4) * 32768
        if kind == "R" and d == 0:
            k(f"s_mul_i32 s70, s41, {(RV[h][1]-RV[h][0])*2048}\ns_add_u32 s70, s70, {RV[h][0]*2048}\ns_add_u32 s70, s70, s18")
            k(f"s_add_u32 s42, s17, {h}\ns_and_b32 s42, s42, 7\ns_lshl_b32 s42, s42, 8\ns_add_u32 s70, s70, s42")
        k(f"s_add_u32 s43, s68, {slot + d*1024}")
        k("s_mov_b32 m0, s43")
        if kind == "D":
            k(f"s_add_u32 s42, s69, {(32*h + d)*2048}")
        else:
            rows = 16 * (d & 1) + 4 * (d >> 1)
            if kind == "R": k(f"s_add_u32 s42, s70, {4*d*12288}")
            else: k(f"s_add_u32 s42, s67, {(256*h + rows)*7168}")
        if j - DEPTH in vm.q: vm.wait(j - DEPTH)
        va, sb = {"R": ((4, 31)[d >> 1], 8), "G": (5, 44), "U": (5, 60), "D": (21 + d, 72)}[kind]
        if ci >= 9 - E("MCUT", 0): k("s_mov_b32 s42, 0")
        k(f"buffer_load_dwordx4 v{va}, s[{sb}:{sb+3}], s42 offen {NT} lds")
        vm.add(j)
    pf = """s_mov_b32 exec_hi, 0
    buffer_store_dwordx4 v[104:107], v3, s[12:15], s38 offen sc1
    s_mov_b64 exec, -1"""
    def silu_c():
        k(f"""v_lshlrev_b32 v110, 16, v110
        v_mul_f32 v111, {LOG2E}, v110
        v_exp_f32 v111, v111
        v_add_f32 v111, 1.0, v111
        v_rcp_f32 v111, v111
        v_mul_f32 v110, v110, v111
        v_cvt_pk_bf16_f32 v110, v110, v110
        ds_write_b16 v109, v110""")
    GST = E("GST", 0); DEPTH = E("DEPTH", 4); HOLD = E("HOLD", 99)
    def hold(p):
        if E("HSL", 0):
            k(f"s_sleep {E('HSL', 0)}"); return
        k.c("hold the stream until the neighbour's first exchange is under way (hint only, bounded)")
        k(f"""s_cmp_lg_u32 s16, 0
        s_cbranch_scc1 {p}_zlx
        s_lshl_b32 s42, s34, 4
        s_add_u32 s42, s42, s35
        s_lshl_b32 s42, s42, 7
        s_add_u32 s42, s42, {WS_ZL}
        s_mov_b32 s83, 0
        {p}_zl:
        buffer_load_dword v16, v14, s[12:15], s42 offen sc1
        s_waitcnt vmcnt(0)
        v_readfirstlane_b32 s43, v16
        s_cmp_eq_u32 s43, s32
        s_cbranch_scc1 {p}_zlx
        s_sleep {E("ZLS", 3)}
        s_add_u32 s83, s83, 1
        s_cmp_lt_u32 s83, 32
        s_cbranch_scc1 {p}_zl
        {p}_zlx:
        {f"s_sleep {E('ZLD', 0)}" if E('ZLD', 0) else ""}
        s_barrier""")
    k(f"""v_lshrrev_b32 v6, 2, v2
    v_and_b32 v15, 3, v0
    v_bfe_u32 v16, v0, 3, 2
    v_xor_b32 v12, v16, v1
    v_and_b32 v12, 3, v12
    v_lshlrev_b32 v12, 5, v12
    v_lshl_add_u32 v12, v6, 7, v12
    v_lshl_add_u32 v12, v15, 3, v12
    v_lshrrev_b32 v16, 2, v1
    v_lshl_add_u32 v12, v16, 14, v12
    v_add_u32 v25, 65536, v12
    v_and_b32 v17, 7, v6
    v_lshlrev_b32 v8, 2, v1
    v_xor_b32 v8, v8, v17
    v_lshlrev_b32 v8, 5, v8
    v_lshl_add_u32 v8, v6, 10, v8
    v_lshl_add_u32 v8, v15, 3, v8
    v_xor_b32 v9, 32, v8
    v_xor_b32 v10, 64, v8
    v_xor_b32 v11, 96, v8
    v_and_b32 v6, 1, v0
    v_lshlrev_b32 v17, 10, v6
    v_lshl_add_u32 v17, v16, 8, v17
    v_bfe_u32 v18, v0, 1, 1
    v_lshlrev_b32 v19, 4, v18
    v_lshl_add_u32 v19, v7, 5, v19
    v_add_u32 v17, v17, v19
    v_add_u32 v17, {L_H}, v17
    v_lshl_add_u32 v19, v6, 7, v19
    v_add_u32 v19, {L_A}, v19
    v_mul_u32_u24 v213, 0xaaaa, v18
    v_add_u32 v213, 0x4444, v213
    v_lshlrev_b32 v18, 4, v18
    v_lshl_add_u32 v18, v6, 1, v18
    v_and_b32 v6, 12, v0
    v_add_u32 v18, v18, v6
    v_and_b32 v6, 15, v0
    v_lshl_add_u32 v18, v1, 5, v18
    v_lshl_add_u32 v18, v7, 7, v18
    v_add_u32 v18, {L_A}, v18
    v_lshlrev_b32 v20, 2, v6
    v_lshl_add_u32 v20, v1, 14, v20
    v_lshl_add_u32 v20, v7, 12, v20
    v_lshlrev_b32 v26, 4, v7
    v_add_u32 v27, {L_SI}, v26
    v_lshlrev_b32 v28, 11, v7
    v_bfe_u32 v29, v0, 2, 3
    v_xor_b32 v29, v29, v1
    v_lshl_add_u32 v29, v29, 5, v28
    v_bfe_u32 v30, v0, 2, 2
    v_lshl_add_u32 v29, v30, 8, v29
    v_lshl_add_u32 v29, v15, 3, v29
    v_add_u32 v30, 65536, v29""")
    k.c("partial-sum destinations: s30 (ca|sa), s31 (others)")
    k(f"""s_lshl_b32 s30, s41, 15
    s_and_b32 s42, s16, 3
    s_lshl_b32 s42, s42, 13
    s_add_u32 s30, s30, s42
    s_lshl_b32 s42, s40, 8
    s_add_u32 s30, s30, s42
    s_lshl_b32 s42, s17, 1
    s_lshr_b32 s43, s16, 2
    s_add_u32 s42, s42, s43
    s_lshl_b32 s42, s42, 4
    s_add_u32 s30, s30, s42
    s_add_u32 s30, s30, {WS_CAP}
    s_lshl_b32 s31, s41, 5
    s_lshr_b32 s42, s16, 1
    s_add_u32 s31, s31, s42
    s_lshl_b32 s31, s31, 10
    s_lshl_b32 s42, s40, 7
    s_add_u32 s31, s31, s42
    s_and_b32 s42, s16, 1
    s_lshl_b32 s42, s42, 6
    s_add_u32 s31, s31, s42
    s_add_u32 s31, s31, {WS_MODP}
    s_movk_i32 s33, 0xff""")
    BD, BG, BU, SC, RB, RD, NB = 32, 64, 96, 128, 144, 160, 164
    def blockreads(ci, base):
        slot = (ci % 4) * 32768
        va, off = (12, slot) if slot < 65536 else (25, slot - 65536)
        for ks in range(4):
            k(f"ds_read_b64_tr_b16 v[{base+4*ks}:{base+4*ks+1}], v{va} offset:{off + ks*4096}")
            k(f"ds_read_b64_tr_b16 v[{base+4*ks+2}:{base+4*ks+3}], v{va} offset:{off + ks*4096 + 2048}")
    KB = 136; HA = 128; AG = 160
    KRIDE = 0
    PM = 192; ET = 208
    def pm_issue(fl):
        for u in range(4):
            k(f"buffer_load_dwordx4 v[{PM+4*u}:{PM+4*u+3}], v212, s[12:15], s{(36, 37)[u >> 1]} offen offset:{(u & 1)*16} {fl}")
    def consume(ci, p):
        nm = order[ci]; kind, h = nm[0], int(nm[1])
        if ci == 0: vm.wait("c"); silu_c()
        if 4*ci + 3 in vm.q: vm.wait(4*ci + 3)
        if ci == 2 and "pf" in vm.q: vm.wait("pf")
        k("s_waitcnt lgkmcnt(0)\ns_barrier")
        stamp(k, 20 + ci)
        if kind == "R":
            if ci == 0:
                for ks in range(4): k(f"ds_read_b128 v[{SC+4*ks}:{SC+4*ks+3}], v27 offset:{ks*64}")
            slot = (ci % 4) * 32768
            va, off = (29, slot) if slot < 65536 else (30, slot - 65536)
            for ks in range(4):
                for e in range(2):
                    k(f"ds_read_b64_tr_b16 v[{RB+4*ks+2*e}:{RB+4*ks+2*e+1}], v{va} offset:{off + ks*8192 + e*1024}")
            if ci == 0:
                nonce_finish(k)
                for i in range(4): k(f"v_mov_b32 v{NB+i}, s{56+i}")
            for ks in range(4):
                k(f"s_waitcnt lgkmcnt({6-2*ks})")
                cc = "0" if ks == 0 else f"v[{RD}:{RD+3}]"
                k(f"v_mfma_f32_16x16x32_bf16 v[{RD}:{RD+3}], v[{RB+4*ks}:{RB+4*ks+3}], v[{SC+4*ks}:{SC+4*ks+3}], {cc}")
            if h > 0: k(f"s_add_u32 s42, s17, {h}\ns_and_b32 s42, s42, 7\ns_lshl_b32 s42, s42, 12\ns_add_u32 s42, s42, s31\ns_add_u32 s42, s42, {(h-1)*65536}")
            for i in range(4): k(f"v_bfi_b32 v{RD+i}, s33, v{NB+i}, v{RD+i}")
            if not E("NOST", 0):
                k(f"""s_mov_b32 exec_lo, 0x00010001
                s_mov_b32 exec_hi, 0x00010001
                buffer_store_dwordx4 v[{RD}:{RD+3}], v{28 if h == 0 else 26}, s[12:15], s{30 if h == 0 else 42} offen sc1
                s_mov_b64 exec, -1""")
                vm.add("st")
            stamp(k, 3 + ci)
            pass
            if ci == 2 and p == "m": msetup()
            return
        frags(ci)
    def frags(ci):
        nm = order[ci]; kind, h = nm[0], int(nm[1])
        if kind == "D":
            slot = (ci % 4) * 32768
            if slot >= 65536:
                for t in range(4): k(f"v_add_u32 v{168+t}, 65536, v{8+t}")
            for t in range(4):
                b_ = BD + t*8 + h*4
                va, off = (8 + t, slot) if slot < 65536 else (168 + t, slot - 65536)
                k(f"ds_read_b64_tr_b16 v[{b_}:{b_+1}], v{va} offset:{off}")
                k(f"ds_read_b64_tr_b16 v[{b_+2}:{b_+3}], v{va} offset:{off+16384}")
        else:
            blockreads(ci, (BG if kind == "G" else BU) + 16*h)
    def stream(p):
        nonlocal DEPTH
        n = 36 if p == "m" else 12
        done = 0
        DEPTH = E("DEPTH", 4)
        for j in range(4, n):
            if j == 4 * HOLD and p == "m":
                while done < HOLD: consume(done, p); done += 1
                hold(p)
            if j == 4 and E("GAP", 0) and p == "m":
                if E("GAP", 0) == 1: consume(0, p); done = 1
                else: vm.wait(E("GAP", 0))
            DEPTH = int(ES("DEPTHS", "444466666")[j >> 2])
            if j == E("AUXJ", 32) and p == "m":
                k.c("wave 0: side loads ride in the stream")
                k("""v_lshlrev_b32 v30, 6, v2
                s_cmp_eq_u32 s16, 0
                s_cselect_b64 exec, -1, 0
                buffer_load_dword v31, v30, s[12:15], s81 offen sc1
                buffer_load_dwordx2 v[188:189], v14, s[12:15], s38 offen sc1""")
                pm_issue("")
                vm.add("aux", 6)
                k("s_mov_b64 exec, -1")
            if j == E("GOJ", 34) and p == "m":
                k("""s_cmp_eq_u32 s16, 0
                s_cselect_b64 exec, -1, 0
                buffer_load_dword v15, v14, s[12:15], s78 offen offset:2048 sc1
                s_mov_b64 exec, -1""")
                vm.add("go")
            issue(j)
            while done < (j + 1) // 4 and 4*done + 3 not in vm.q: consume(done, p); done += 1
        while done < min(n // 4, 8): consume(done, p); done += 1
    def msetup():
        k.c("================= M: weight stream =================")
        k(f"""s_getreg_b32 s39, hwreg(HW_REG_XCC_ID)
        s_and_b32 s39, s39, 7
        s_lshl_b32 s38, s64, 1
        s_add_u32 s38, s38, s65
        s_lshl_b32 s38, s38, 7
        s_add_u32 s38, s38, {WS_MX}
        s_lshl_b32 s42, s16, 28
        v_mov_b32 v28, s32
        v_mov_b32 v29, s39
        v_mov_b32 v30, s42
        s_mov_b64 exec, 1
        buffer_store_dwordx2 v[28:29], v30, s[12:15], s38 offen sc1
        s_mov_b64 exec, -1
        s_xor_b32 s38, s38, 128""")
        vm.add("mx")
        if E("HELP", 3):
            k.c("the line group whose address class streams slowly is pulled into L2 by all M workgroups of the die")
            HM = E("HELP", 3)
            nl = {1: 19, 2: 10, 3: 5}[HM]
            k(f"""s_cmp_eq_u32 s65, {"s65" if HM > 1 else 0}
            s_cselect_b32 s8, s50, s52
            s_cselect_b32 s9, s51, s53
            s_mov_b32 s10, {1024*3584*2}
            s_lshr_b32 s42, s8, 7
            s_sub_u32 s42, {E("CLS", 3)}, s42
            s_add_u32 s42, s42, s34
            s_and_b32 s42, s42, 7
            s_cmp_eq_u32 s42, 7
            s_cselect_b32 s70, 0x1000000, 0
            s_mul_i32 s43, s34, 7
            s_add_u32 s42, s42, s43
            s_lshl_b32 s42, s42, 7
            s_lshr_b32 s43, s35, {0 if HM == 2 else 1}
            s_lshl_b32 s43, s43, 3
            s_add_u32 s43, s43, s16
            s_mul_i32 s43, s43, {nl*7168}
            s_add_u32 s42, s42, s43
            s_add_u32 s42, s42, s70""")
            if HM == 3: k(f"s_mul_i32 s43, s65, {512*7168}\ns_add_u32 s42, s42, s43\ns_add_u32 s42, s42, {232*7168}")
            k(f"""v_mul_u32_u24 v30, 7168, v2
            s_mov_b64 exec, {(1 << nl) - 1}
            buffer_load_dword v252, v30, s[8:11], s42 offen
            s_mov_b64 exec, -1""")
            vm.add("help")
        k(f"""        v_and_b32 v191, 3, v0
        v_lshlrev_b32 v191, 3, v191
        v_lshrrev_b32 v191, v191, s32
        v_lshlrev_b32 v212, 5, v2
        s_lshl_b32 s36, s65, 11
        s_add_u32 s37, s36, {WS_PAR + 2*4096}
        s_add_u32 s36, s36, {WS_PAR + 4*4096}
        s_mov_b32 s18, {ZMASK}
        s_mov_b32 s19, 0x00020002
        v_and_b32 v{ET}, 1, v0
        v_lshlrev_b32 v{ET}, 3, v{ET}
        s_not_b32 s42, s32
        v_lshrrev_b32 v{ET}, v{ET}, s42
        v_lshrrev_b32 v{ET+1}, 2, v{ET}
        v_lshrrev_b32 v{ET+2}, 4, v{ET}
        v_lshrrev_b32 v{ET+3}, 6, v{ET}
        v_and_b32 v{ET}, s18, v{ET}
        v_and_b32 v{ET+1}, s18, v{ET+1}
        v_and_b32 v{ET+2}, s18, v{ET+2}
        v_and_b32 v{ET+3}, s18, v{ET+3}
        v_mov_b32 v216, s56
        v_mov_b32 v217, s57
        v_mov_b32 v218, s58
        v_mov_b32 v219, s59
        v_and_b32 v13, 1, v0
        v_lshlrev_b32 v13, 3, v13
        v_sub_u32 v13, v3, v13
        v_add_u32 v13, {L_H}, v13
        s_lshl_b32 s71, s65, 10
        s_add_u32 s71, s71, {WS_SLOT}
        s_lshl_b32 s30, s65, 17
        s_lshl_b32 s31, s64, 6
        s_add_u32 s30, s30, s31
        s_add_u32 s30, s30, {WS_PART}
        s_add_u32 s31, s30, {64*4096}
        s_lshl_b32 s79, s64, 2
        s_and_b32 s42, s16, 3
        s_add_u32 s79, s79, s42
        s_lshl_b32 s79, s79, 10
        s_add_u32 s81, s79, {WS_XA}
        s_add_u32 s82, s79, {WS_XB}
        s_lshl_b32 s76, s65, 1
        s_lshr_b32 s42, s16, 2
        s_add_u32 s76, s76, s42
        s_lshl_b32 s76, s76, 8
        s_add_u32 s77, s76, s82
        s_add_u32 s76, s76, s81
        s_lshl_b32 s78, s34, 12
        s_add_u32 s78, s78, {WS_KEY}""")
    k("s_cmp_eq_u32 s66, 1\ns_cbranch_scc1 x_start")
    q0 = list(vm.q)
    stream("m")
    if E("GONLY", 0): stamp(k, 7); stamp_out(k); k("s_endpgm")
    stamp(k, 7)
    DA_ = 144
    for i in range(12): k(f"v_mov_b32 v{AG+i}, 0")
    k(f"v_mov_b32 v190, {L_A + 1024}\ns_cmp_lg_u32 s16, 0\ns_cbranch_scc1 m_nk\ns_mov_b32 s83, 0")
    if "aux" in vm.q: vm.wait("aux")
    k("""v_xor_b32 v188, s32, v188
    v_xor_b32 v189, s39, v189
    v_or_b32 v188, v188, v189
    ds_write_b32 v190, v188
    m_pm:""")
    chk_bytes(k, range(PM, PM + 16), 30)
    k(f"""s_cbranch_vccz m_pmx
    s_sleep 4""")
    pm_issue("sc1")
    k(f"""s_waitcnt vmcnt(0)
    {spin("m_pm", 0)}
    m_pmx:
    s_mov_b32 s83, 0""")
    vm.wait("go")
    k(f"""m_go:
    v_cmp_ne_u32 vcc, s32, v15
    s_cbranch_vccz m_gox
    s_sleep {E("SLG", 3)}
    buffer_load_dword v15, v14, s[12:15], s78 offen offset:2048 sc1
    s_waitcnt vmcnt(0)
    {spin("m_go", 0)}
    m_gox:""")
    if E("SLG2", 0): k(f"s_sleep {E('SLG2', 0)}")
    stamp(k, 40)
    def kbody(b0, cnt, last):
        k(f"""s_waitcnt vmcnt({cnt})
        v_max_u32 v28, v{b0}, v{b0+4}
        v_xor_b32 v31, s32, v{b0+2}
        v_bitop3_b32 v31, v31, v{b0+6}, s32 bitop3:0xf6
        v_max_u32_dpp v30, v28, v28 row_ror:8 {DPPM}
        v_cmp_ne_u32 vcc, 0, v31
        v_min_u32 v29, v{b0}, v{b0+4}
        v_max_u32_dpp v30, v30, v30 row_ror:4 {DPPM}
        v_max3_u32 v29, v29, v{b0+1}, v{b0+5}
        s_and_b64 vcc, vcc, s[20:21]
        v_max_u32_dpp v30, v30, v30 row_ror:2 {DPPM}
        {last}""")
    cnt3 = f"s_add_u32 s83, s83, 1\ns_cmp_lt_u32 s83, {SPIN}\ns_cselect_b64 s[20:21], -1, 0"
    if E("KD", 2) == 1:
        k(f"s_mov_b32 s83, 0\ns_branch m_pk\nm_pk0:\ns_sleep {E('SL2', 4)}\nm_pk:")
        keys_issue(k, KB, 78)
        k(cnt3)
        kbody(KB, 0, "s_cbranch_scc1 m_pk0")
    else:
        k("s_mov_b32 s83, 0")
        keys_issue(k, KB, 78)
        k(f"s_sleep {E('KST', 4)}\nm_pk:")
        keys_issue(k, KB + 8, 78)
        k(cnt3)
        kbody(KB, 2, "s_cbranch_scc0 m_pkx")
        if E("KSL", 0): k(f"s_sleep {E('KSL', 0)}")
        keys_issue(k, KB, 78)
        kbody(KB + 8, 2, "s_cbranch_scc0 m_pkx")
        if E("KSL", 0): k(f"s_sleep {E('KSL', 0)}")
        k("s_branch m_pk\nm_pkx:\ns_nop 0")
    stamp(k, 13)
    stamp_val(k, 42, 83)
    k(f"""v_max_u32_dpp v30, v30, v30 row_ror:1 {DPPM}
    v_max_u32_dpp v30, v30, v30 row_bcast:15 row_mask:0xa bank_mask:0xf
    v_max_u32_dpp v30, v30, v30 row_bcast:31 row_mask:0xc bank_mask:0xf
    v_readlane_b32 s40, v30, 63
    s_and_b32 s42, s40, 0xff
    s_lshl_b32 s42, s42, 11
    v_cmp_eq_u32 vcc, s40, v28
    s_add_u32 s42, s42, s71
    buffer_load_dwordx4 v[176:179], v3, s[12:15], s42 offen sc1
    v_cndmask_b32 v30, v28, v29, vcc""")
    wave_reduce_to63(k, [30], "v_max_u32")
    hl = """buffer_load_dwordx4 v[176:179], v3, s[12:15], s42 offen sc1
    buffer_load_dwordx4 v[180:183], v3, s[12:15], s43 offen sc1"""
    k(f"""v_readlane_b32 s41, v30, 63
    s_and_b32 s41, s41, 0xff
    s_lshl_b32 s43, s41, 11
    s_add_u32 s43, s43, s71
    buffer_load_dwordx4 v[180:183], v3, s[12:15], s43 offen sc1
    s_and_b32 s40, s40, 0xff
    s_mov_b32 s83, 0
    s_lshl_b32 s41, s41, 8
    s_or_b32 s40, s40, s41
    v_mov_b32 v28, s40
    v_mov_b32 v29, s32
    s_cmp_eq_u32 s35, {99 if E("XKEY", 0) else 0}
    s_cselect_b64 exec, 1, 0
    buffer_store_dwordx2 v[28:29], v14, s[12:15], s78 offen offset:2304 sc1
    s_mov_b64 exec, -1
    s_barrier""")
    frags(8)
    k("m_ph:")
    for r in range(2):
        b0 = 176 + 4*r; f0 = 220 + 8*r
        k(f"s_waitcnt vmcnt({2-r})")
        for i in range(4): k(f"v_xor_b32 v{b0+i}, v{b0+i}, v{ET+i}")
        for e in range(8):
            k(f"v_fma_mix_f32 v{f0+e}, v{b0+(e>>1)}, v{PM+e}, v{PM+8+e} op_sel:[{e&1},0,0] op_sel_hi:[1,0,0]")
        for i in range(4): k(f"v_cvt_pk_bf16_f32 v{236+4*r+(i&1)*2+(i>>1)}, v{f0+2*i}, v{f0+2*i+1}")
        k(f"ds_write2_b64 v13, v[{236+4*r}:{237+4*r}], v[{238+4*r}:{239+4*r}] offset0:{128*r} offset1:{128*r+2}")
        for i in range(4):
            k("v_xor_b32 v30, s19, v176" if r + i == 0 else f"v_bitop3_b32 v30, v30, v{b0+i}, s19 bitop3:0xf6")
    k("v_and_b32 v30, s18, v30\nv_cmp_ne_u32 vcc, 0, v30")
    k(f"""s_cbranch_vccnz m_phb
    m_phx:""")
    stamp(k, 14)
    k("m_nk2:\ns_waitcnt lgkmcnt(0)\ns_barrier\nds_read_b32 v188, v190")
    k.c("each row is split into two 2:4-sparse rows, so one sparse MFMA covers 64 k")
    for u in range(4):
        k(f"ds_read_b128 v[{HA+4*u}:{HA+4*u+3}], v17 offset:{(u>>1)*512 + (u&1)*128}")
    for u in range(4):
        k(f"s_waitcnt lgkmcnt({3-u})")
        for a_, b_ in ((AG, BG), (AG + 4, BU)):
            k(f"v_smfmac_f32_16x16x64_bf16 v[{a_}:{a_+3}], v[{HA+4*u}:{HA+4*u+3}], v[{b_+8*u}:{b_+8*u+7}], v213")
    PB = 184
    k(f"""v_readfirstlane_b32 s70, v188
    s_mov_b32 s83, 0
    s_cmp_eq_u32 s70, 0
    s_cselect_b32 s82, s81, s82
    s_cselect_b64 s[20:21], 0, 0xffff
    v_pk_add_f32 v[{AG}:{AG+1}], v[{AG}:{AG+1}], v[{AG+2}:{AG+3}]
    v_pk_add_f32 v[{AG+4}:{AG+5}], v[{AG+4}:{AG+5}], v[{AG+6}:{AG+7}]
    v_bfi_b32 v{PB}, s33, v216, v{AG}
    v_bfi_b32 v{PB+1}, s33, v217, v{AG+1}
    v_bfi_b32 v{PB+2}, s33, v218, v{AG+4}
    v_bfi_b32 v{PB+3}, s33, v219, v{AG+5}
    s_mov_b64 exec, 0xffff
    buffer_store_dwordx4 v[{PB}:{PB+3}], v3, s[12:15], s76 offen {ES('XAS', '')}
    s_mov_b64 exec, s[20:21]
    buffer_store_dwordx4 v[{PB}:{PB+3}], v3, s[12:15], s77 offen sc1
    s_mov_b64 exec, -1""")
    for i in range(16): k(f"v_mov_b32 v{DA_+i}, 0")
    k("s_cmp_ge_u32 s16, 4\ns_cbranch_scc1 m_na")
    if E("SL3", 1): k(f"s_sleep {E('SL3', 1)}")
    stamp(k, 15)
    R = 24
    k(f"""m_px:
    buffer_load_dwordx4 v[{R}:{R+3}], v3, s[12:15], s81 offen sc1
    s_mov_b32 s42, s81
    s_mov_b32 s81, s82
    s_mov_b32 s82, s42
    s_add_u32 s83, s83, 1
    s_cmp_lt_u32 s83, {SPIN}
    s_cselect_b64 s[20:21], -1, 0
    s_waitcnt vmcnt(0)""")
    for i in range(4): k(f"v_xor_b32 v{R+i}, s{56+i}, v{R+i}")
    k(f"""v_or3_b32 v9, v{R}, v{R+1}, v{R+2}
    v_bitop3_b32 v9, v9, v{R+3}, s33 bitop3:0xa8
    v_permlane32_swap_b32 v{R}, v{R+2}
    v_cmp_ne_u32 vcc, 0, v9
    v_permlane32_swap_b32 v{R+1}, v{R+3}
    s_and_b64 vcc, vcc, s[20:21]""")
    padd(k, R, R, R + 2)
    k("s_cbranch_scc1 m_px")
    stamp(k, 16)
    k(f"v_permlane16_swap_b32 v{R}, v{R+1}")
    k(f"v_add_f32 v{R}, v{R}, v{R+1}")
    round_bf16(k, R, R)
    k(f"""v_mul_f32 v{R+1}, {LOG2E}, v{R}
    v_exp_f32 v{R+1}, v{R+1}
    v_mov_b32 v{R+2}, v{R}
    v_add_f32 v{R+1}, 1.0, v{R+1}
    v_rcp_f32 v{R+1}, v{R+1}
    v_mov_b32 v{R+3}, v{R}
    v_mul_f32 v{R+1}, v{R}, v{R+1}
    v_permlane32_swap_b32 v{R+2}, v{R+3}""")
    round_bf16(k, R + 1, R + 1)
    k(f"""v_mul_f32 v{R+1}, v{R+1}, v{R+3}
    v_cvt_pk_bf16_f32 v{R+1}, v{R+1}, v{R+1}
    ds_write_b16 v18, v{R+1}
    m_na:
    s_waitcnt lgkmcnt(0)
    s_barrier""")
    k.c("tile t only feeds rows 4t..4t+3, so lane group g ends up with tile g")
    for t in range(4):
        m_ = 0x000f000f << (4 * t)
        k(f"s_mov_b32 exec_lo, {m_:#x}\ns_mov_b32 exec_hi, {m_:#x}\nds_read_b128 v[{DA_+4*t}:{DA_+4*t+3}], v19")
    k("s_mov_b64 exec, -1")
    for t in range(4):
        k(f"s_waitcnt lgkmcnt({3-t})")
        k(f"v_smfmac_f32_16x16x64_bf16 v[{AG+8}:{AG+11}], v[{DA_+4*t}:{DA_+4*t+3}], v[{BD+8*t}:{BD+8*t+7}], v213")
    padd(k, 24, AG + 8, AG + 10)
    for row in range(2):
        k(f"v_bfi_b32 v{24+row}, s33, v191, v{24+row}")
    for row in range(2):
        k(f"buffer_store_dword v{24+row}, v20, s[12:15], s{30+row} offen sc1")
    stamp(k, 17)
    stamp_out(k)
    k("s_endpgm")
    k("m_nk:\ns_waitcnt vmcnt(0)")
    stamp(k, 18)
    k("s_barrier")
    frags(8)
    k(f"""s_branch m_nk2
    m_phb:
    s_add_u32 s83, s83, 1
    s_cmp_ge_u32 s83, {SPIN}
    s_cbranch_scc1 m_phx
    {hl}
    s_waitcnt vmcnt(0)
    s_branch m_ph""")
    k.c("================= X: finalize ga/cb/sb/gb, then final reduction =================")
    k("x_start:")
    vm.q = list(q0)
    k.c("round = wave>>2 ; unit = (q*8+c)*4 + (wave&3)")
    k(f"""s_lshl_b32 s37, s34, 1
    s_add_u32 s37, s37, s65
    s_lshl_b32 s37, s37, 3
    s_add_u32 s37, s37, s16
    s_lshl_b32 s42, s37, 8
    s_add_u32 s42, s42, {WS_KEY}
    s_mov_b64 exec, 0xffff
    buffer_store_dwordx4 v[104:107], v3, s[12:15], s42 offen sc1
    s_mov_b64 exec, -1
    s_lshl_b32 s36, s37, 12
    s_add_u32 s36, s36, {WS_PART}
    s_lshl_b32 s76, s34, 3
    s_add_u32 s76, s76, s16
    s_lshl_b32 s77, s76, 10
    s_add_u32 s77, s77, {WS_MODP}
    s_lshl_b32 s79, s76, 7
    s_add_u32 s79, s79, {WS_PAR}
    s_lshr_b32 s71, s76, 5
    s_cmp_eq_u32 s71, 0
    s_cselect_b32 s80, 1.0, 0
    s_lshl_b32 s78, s34, 12
    s_add_u32 s78, s78, {WS_KEY}""")
    vm.add("kpf")
    srd(k, 72, 48, 2048)
    k.c("factor: w_r for the (1+cb) columns, 64 for the ga columns")
    k(f"""v_and_b32 v10, 7, v0
    v_lshl_add_u32 v10, v10, 2, v7
    v_lshlrev_b32 v10, 1, v10
    s_lshl_b32 s42, s76, 6
    buffer_load_ushort v10, v10, s[72:75], s42 offen""")
    vm.add("wr")
    stream("x")
    def xhelp(XH):
        XH = XH.split(',') if XH else []
        if XH:
            k.c("the line group whose address class streams slowly is pulled into L2")
            k(f"""v_and_b32 v90, 255, v0
            v_lshrrev_b32 v91, 8, v0
            v_lshl_add_u32 v90, v91, 9, v90
            v_mul_u32_u24 v90, 7168, v90""")
            for i, nm in enumerate(XH):
                sb = 44 if nm[0] == "G" else 60
                k(f"""s_lshr_b32 s42, s{sb}, 7
                s_sub_u32 s42, {E("CLS", 3)}, s42
                s_add_u32 s42, s42, s34
                s_and_b32 s42, s42, 7
                s_cmp_eq_u32 s42, 7
                s_cselect_b32 s70, 0x1000000, 0
                s_mul_i32 s43, s34, 7
                s_add_u32 s42, s42, s43
                s_lshl_b32 s42, s42, 7
                s_add_u32 s42, s42, {int(nm[1])*256*7168}
                s_add_u32 s42, s42, s70
                buffer_load_dword v{92 + i}, v90, s[{sb}:{sb+3}], s42 offen
                s_barrier""")
    def finalize(lab, st):
        k(f"""v_lshlrev_b32 v8, 3, v7
        v_lshrrev_b32 v8, v8, s32
        s_mov_b32 s83, 0
        {lab}:
        buffer_load_dwordx4 v[16:19], v3, s[12:15], s77 offen sc1
        s_waitcnt vmcnt(0)""")
        chk_bytes(k, range(16, 20), 9)
        k(f"s_cbranch_vccz {lab}x\n{spin(lab, E('SLX', 4))}\n{lab}x:")
        stamp(k, st)
        k("v_permlane32_swap_b32 v16, v18\nv_permlane32_swap_b32 v17, v19")
        padd(k, 16, 16, 18)
        k(f"v_permlane16_swap_b32 v16, v17\nv_add_f32 v16, v16, v17\nv_add_f32_dpp v16, v16, v16 row_ror:8 {DPPM}")
        round_bf16(k, 16, 16)
        k("v_add_f32 v16, s80, v16")
        round_bf16(k, 16, 16)
        def put(b, so):
            k(f"""v_bfi_b32 v{b}, s33, v8, v{b}
            v_mov_b32 v{b+1}, v{b}
            v_permlane16_swap_b32 v{b}, v{b+1}
            v_mov_b32 v{b+2}, v{b}
            v_mov_b32 v{b+3}, v{b+1}
            v_permlane32_swap_b32 v{b}, v{b+2}
            v_permlane32_swap_b32 v{b+1}, v{b+3}
            s_mov_b64 exec, 0xff
            buffer_store_dwordx4 v[{b}:{b+3}], v3, s[12:15], s{so} offen sc1
            s_mov_b64 exec, -1""")
        if st == 7:
            k("v_mul_f32 v20, v16, v10")
            put(20, 79)
            k("s_cmp_eq_u32 s80, 0\ns_cbranch_scc1 x_nc\ns_add_u32 s42, s79, 16384")
            put(16, 42)
            k("x_nc:")
        else: put(16, 79)
    k(f"s_cmp_eq_u32 s65, 1\ns_cbranch_scc1 x_na")
    k(f"""s_cmp_eq_u32 s80, 0
    s_cselect_b32 s42, {f32(64.0)}, 0
    v_lshl_or_b32 v10, v10, 16, s42""")
    if E("SLPA", 0): k(f"s_sleep {E('SLPA', 0)}")
    finalize("x_pa", 7)
    if E("PT", 0):
        k.c("pull the finished vectors into this die's L2")
        k(f"""s_sleep {E('PT', 0)}
        s_mov_b32 s42, {WS_PAR}
        v_lshlrev_b32 v9, 4, v0
        buffer_load_dwordx4 v[20:23], v9, s[12:15], s42 offen sc1""")
    k("s_add_u32 s77, s77, 65536\ns_add_u32 s79, s79, 8192\ns_mov_b32 s80, 0")
    if E("SLP", 12): k(f"s_sleep {E('SLP', 12)}")
    finalize("x_pb", 8)
    if ES("XH0", ""): k("s_barrier")
    xhelp(ES("XH0", ""))
    k("s_branch x_nb\nx_na:")
    xhelp(ES("XH", "U0"))
    k("x_nb:\ns_mov_b32 s17, s37\ns_barrier")
    if E("XPF", 2) == 2:
        k(f"""v_lshlrev_b32 v9, 7, v2
        s_mov_b64 exec, 0xfffffff
        buffer_load_dword v251, v9, s[12:15], s36 offen
        s_mov_b64 exec, -1""")
    if E("XPF", 2) == 1:
        k(f"""buffer_store_dwordx4 v[104:107], v3, s[12:15], s36 offen sc1
        buffer_store_dwordx4 v[104:107], v3, s[12:15], s36 offen offset:1024 sc1
        buffer_store_dwordx4 v[104:107], v3, s[12:15], s36 offen offset:2048 sc1
        s_mov_b32 exec_hi, 0
        buffer_store_dwordx4 v[104:107], v3, s[12:15], s36 offen offset:3072 sc1
        s_mov_b64 exec, -1""")
    srd(k, 8, 48, 2048)
    k(f"""s_and_b32 s18, s17, 63
    v_and_b32 v5, 3, v0
    v_lshlrev_b32 v5, 3, v5
    v_lshl_add_u32 v5, v7, 1, v5
    v_lshlrev_b32 v6, 1, v5
    v_and_b32 v86, -4, v5
    v_and_b32 v87, 2, v5
    v_lshlrev_b32 v87, 3, v87
    s_lshl_b32 s31, s18, 6
    s_add_u32 s30, s31, {WS_PAR + 2*4096}
    s_add_u32 s31, s30, 4096
    s_add_u32 s29, s30, 8192
    s_mov_b32 s28, {WS_PAR + 2*4096}
    v_lshlrev_b32 v88, 3, v7
    v_lshrrev_b32 v88, v88, s32
    v_lshrrev_b32 v89, 1, v86
    s_not_b32 s42, s32
    v_lshrrev_b32 v89, v89, s42
    v_and_b32 v89, {ZMASK}, v89
    v_lshlrev_b32 v9, 3, v2""")
    for j in range(4):
        k(f"buffer_load_dwordx2 v[{40+2*j}:{41+2*j}], v9, s[8:11], 0 offen offset:{j*512}")
    k("s_waitcnt vmcnt(0)")
    for i in range(8): unpack_bf16(k, 48 + 2*i, 40 + i)
    k.c("once the first scores are out every modulation vector has long been published")
    k(f"""s_cmp_lg_u32 s16, 0
    s_cbranch_scc1 x_g1x
    s_mov_b32 s83, 0
    x_g1:
    buffer_load_dword v15, v14, s[12:15], s78 offen offset:2048 sc1
    s_waitcnt vmcnt(0)
    v_cmp_ne_u32 vcc, s32, v15
    s_cbranch_vccz x_g1x
    {spin("x_g1", 6)}
    x_g1x:
    s_barrier
    s_mov_b32 s83, 0
    x_pq:""")
    for j in range(4):
        k(f"buffer_load_dwordx4 v[{64+4*j}:{67+4*j}], v3, s[12:15], s28 offen offset:{j*1024} sc1")
    k(f"""buffer_load_dword v32, v6, s[12:15], s30 offen sc1
    buffer_load_dword v33, v6, s[12:15], s31 offen sc1
    buffer_load_dword v34, v6, s[12:15], s29 offen sc1
    s_waitcnt vmcnt(0)
    v_xor_b32 v36, v32, v88
    v_bitop3_b32 v36, v36, v33, v88 bitop3:0xf6
    v_bitop3_b32 v36, v36, v34, v88 bitop3:0xf6
    v_and_b32 v36, s33, v36
    v_cmp_ne_u32 s[68:69], 0, v36""")
    chk_bytes(k, range(64, 80), 9)
    k(f"""s_or_b64 vcc, vcc, s[68:69]
    s_cbranch_vccz x_pqx
    {spin("x_pq", 4)}
    x_pqx:
    v_and_b32 v32, 0xffff0000, v32
    v_and_b32 v33, 0xffff0000, v33
    v_and_b32 v34, 0xffff0000, v34""")
    pmul(k, 8, 48, 64)
    for i in range(1, 8): pfma(k, 8, 48 + 2*i, 64 + 2*i, 8)
    k("v_add_f32 v8, v8, v9")
    wave_reduce_to63(k, [8])
    k(f"s_cmp_lg_u32 s16, 0\ns_cbranch_scc1 x_ng")
    if E("XKEY", 0):
        k(f"""s_mov_b32 s83, 0
        x_go:
        buffer_load_dword v15, v14, s[12:15], s78 offen offset:2048 sc1
        s_waitcnt vmcnt(0)
        v_cmp_ne_u32 vcc, s32, v15
        s_cbranch_vccz x_gox
        {spin("x_go", E("SLG", 3))}
        x_gox:
        s_sleep {E("SLXK", 8)}""")
        poll_keys(k, "x_pk", 16, 78, 30)
        top2(k, 16, 40, 41, 28)
        k(f"""s_and_b32 s40, s40, 0xff
        s_and_b32 s41, s41, 0xff
        s_lshl_b32 s41, s41, 8
        s_or_b32 s40, s40, s41
        v_mov_b32 v28, s40
        v_mov_b32 v29, s32
        ds_write_b32 v14, v28
        s_cmp_lg_u32 s65, 0
        s_cbranch_scc1 x_ng
        s_mov_b64 exec, 1
        buffer_store_dwordx2 v[28:29], v14, s[12:15], s78 offen offset:2304 sc1
        s_mov_b64 exec, -1
        x_ng:
        s_waitcnt lgkmcnt(0)
        s_barrier
        ds_read_b32 v28, v14
        s_waitcnt lgkmcnt(0)
        v_readfirstlane_b32 s40, v28
        s_lshr_b32 s41, s40, 8
        s_and_b32 s40, s40, 0xff
        s_sleep {E("SLXS", 12)}""")
    else:
        res_wait(k, "x_r0", 78, 22, 16, 3)
        k("x_ng:\ns_barrier")
        res_wait(k, "x_r1", 78, 22, 16, 1)
    stamp(k, 13)
    k(f"""s_cmp_lt_u32 s17, 64
    s_cselect_b32 s40, s40, s41
    s_lshl_b32 s42, s40, 11
    s_add_u32 s42, s42, {WS_SLOT}
    s_lshl_b32 s19, s18, 5
    s_add_u32 s43, s42, s19
    s_lshl_b32 s40, s40, 4
    s_add_u32 s40, s40, {WS_TT}
    s_mov_b32 s83, 0
    x_ps:
    buffer_load_dwordx4 v[80:83], v14, s[12:15], s40 offen sc1
    buffer_load_dword v40, v86, s[12:15], s43 offen sc1
    s_waitcnt vmcnt(0)
    v_xor_b32 v40, v40, v89
    v_xor_b32 v35, 0x00020002, v40
    v_and_b32 v35, {ZMASK}, v35
    v_cmp_ne_u32 s[68:69], 0, v35""")
    chk_bytes(k, range(80, 84), 9)
    k(f"""s_or_b64 vcc, vcc, s[68:69]
    s_cbranch_vccz x_psx
    {spin("x_ps", 2)}
    x_psx:
    v_readfirstlane_b32 s41, v80
    s_bfe_u32 s41, s41, 0xb0008
    s_lshl_b32 s41, s41, 11
    s_add_u32 s41, s41, s19""")
    k.c("router logit = score (decoded from the key) + sb.w_r")
    k("""v_not_b32 v36, v83
    v_ashrrev_i32 v36, 31, v36
    v_or_b32 v36, 0x80000000, v36
    v_xor_b32 v36, v36, v83
    v_add_f32 v8, v8, v36""")
    round_bf16(k, 8, 8)
    k(f"""v_mul_f32 v8, {LOG2E}, v8
    v_exp_f32 v8, v8
    v_add_f32 v8, 1.0, v8
    v_rcp_f32 v8, v8""")
    round_bf16(k, 8, 8)
    k("""v_readlane_b32 s46, v8, 63
    v_lshrrev_b32 v40, v87, v40
    v_cvt_f32_f16 v40, v40
    v_rcp_f32 v82, v82
    v_fma_f32 v36, v40, v34, v32
    v_fma_f32 v44, v40, v82, v81
    v_fmac_f32 v44, v33, v36
    v_mul_f32 v80, s46, v33""")
    stamp(k, 14)
    L = 16
    k(f"s_sleep {E('SL4', 14)}")
    def pld(j, b0): return f"buffer_load_dwordx4 v[{b0+4*j}:{b0+4*j+3}], v3, s[12:15], s36 offen offset:{j*1024} sc1"
    XM = (60, 62, 64, 66)
    k("""s_mov_b32 s83, 0
    s_mov_b64 s[60:61], -1
    s_mov_b64 s[62:63], -1
    s_mov_b64 s[64:65], -1
    s_mov_b32 s66, -1
    s_mov_b32 s67, 0""")
    k.c("two polls in flight, half a round apart, into alternate registers")
    S_ = 96; L = 112; BUF = (16, 128)
    for i in range(4): k(f"v_mov_b32 v{S_+12+i}, 0")
    def piss(b):
        for j in range(4): k(f"s_mov_b64 exec, s[{XM[j]}:{XM[j]+1}]\n" + pld(j, BUF[b]))
    piss(0)
    k(f"s_sleep {E('XST', 8)}\nx_p2:")
    for b in range(2):
        piss(1 - b)
        if b == 1:
            k(f"""s_add_u32 s83, s83, 1
            s_cmp_lt_u32 s83, {SPIN}
            s_cselect_b64 s[68:69], -1, 0""")
        for j in range(4):
            r = BUF[b] + 4*j; q = S_ + 4*j
            k(f"s_mov_b64 exec, s[{XM[j]}:{XM[j]+1}]\ns_waitcnt vmcnt({7 - j})")
            for i in range(4): k(f"v_xor_b32 v{q+i}, s{56+i}, v{r+i}")
            k(f"""v_or3_b32 v12, v{q}, v{q+1}, v{q+2}
            v_bitop3_b32 v12, v12, v{q+3}, s33 bitop3:0xa8
            v_cmp_ne_u32 s[{XM[j]}:{XM[j]+1}], 0, v12""")
            if j == 2: k("s_or_b64 s[70:71], s[60:61], s[62:63]")
        k("s_mov_b64 exec, -1")
        for h in range(2): padd(k, L + 2*h, S_ + 2*h, S_ + 4 + 2*h)
        k("s_or_b64 s[72:73], s[64:65], s[66:67]")
        for h in range(2): padd(k, L + 8 + 2*h, S_ + 8 + 2*h, S_ + 12 + 2*h)
        k("s_or_b64 s[70:71], s[70:71], s[72:73]")
        if b == 1: k("s_and_b64 s[70:71], s[70:71], s[68:69]")
        for h in range(2): padd(k, L + 2*h, L + 2*h, L + 8 + 2*h)
        k("s_cbranch_scc0 x_p3" if b == 0 else "s_cbranch_scc1 x_p2\nx_p3:\ns_nop 0")
    stamp(k, 17)
    k(f"v_permlane32_swap_b32 v{L}, v{L+2}\nv_permlane32_swap_b32 v{L+1}, v{L+3}")
    padd(k, L, L, L + 2)
    k(f"v_permlane16_swap_b32 v{L}, v{L+1}\nv_add_f32 v{L}, v{L}, v{L+1}")
    for sh in (4, 8): k(f"v_add_f32_dpp v{L}, v{L}, v{L} row_ror:{sh} {DPPM}")
    k(f"""v_fmac_f32 v44, v{L}, v80
    s_mov_b32 exec_lo, 0x000f000f
    s_mov_b32 exec_hi, 0x000f000f
    v_cvt_pk_bf16_f32 v44, v44, v44
    buffer_store_short v44, v5, s[24:27], s41 offen {ES("FST", "")}
    s_cmp_lg_u32 s17, 0
    s_cbranch_scc1 x_end
    s_add_u32 s101, s101, 1
    s_mov_b32 s43, {WS_EP}
    v_mov_b32 v8, s101
    s_mov_b64 exec, 1
    buffer_store_dword v8, v14, s[12:15], s43 offen sc1
    x_end:""")
    stamp_out(k)

def gen():
    k = K(NAME)
    stamp_init(k)
    k("""s_cmp_ge_u32 s2, 256
    s_cbranch_scc1 k_done""")
    stamp(k, 0)
    k(f"""s_load_dwordx2 s[4:5], s[0:1], {A_X}
    s_load_dwordx8 s[20:27], s[0:1], {A_C}
    s_load_dwordx2 s[6:7], s[0:1], {A_WS}
    s_load_dwordx8 s[48:55], s[0:1], {A_WR}
    s_getpc_b64 s[62:63]
    k_pc:
    v_lshrrev_b32 v1, 6, v0
    v_and_b32 v2, 63, v0
    v_readfirstlane_b32 s16, v1
    v_lshlrev_b32 v3, 4, v2
    s_and_b32 s34, s2, 7
    s_lshr_b32 s35, s2, 4
    s_bitcmp1_b32 s2, 3
    s_cbranch_scc0 f_start""")
    k.c("G head: code prefetch, first GEMV tile [128 k][128 n]: ks = c, s17 = block, s41 = vq")
    k(f"""s_lshl_b32 s40, s35, 3
    s_add_u32 s40, s40, s16
    s_lshl_b32 s40, s40, 9
    v_lshl_add_u32 v4, v2, 7, s40
    v_min_u32 v4, tab_end-k_pc-4, v4
    s_mov_b64 exec, 15
    global_load_dword v250, v4, s[62:63]
    s_mov_b64 exec, -1
    v_bfe_u32 v7, v0, 4, 2
    v_lshlrev_b32 v4, 1, v7
    v_xor_b32 v4, v4, v0
    v_and_b32 v4, 15, v4
    v_lshlrev_b32 v4, 4, v4
    s_movk_i32 s42, 12288
    v_mad_u32_u24 v4, v7, s42, v4
    v_xor_b32 v31, 0x80, v4
    s_and_b32 s17, s35, 7
    s_lshr_b32 s41, s35, 3
    s_lshl_b32 s18, s34, 3
    s_add_u32 s18, s18, s16
    s_mul_i32 s18, s18, {16*12288}
    s_lshl_b32 s68, s16, 12
    s_xor_b32 s70, s35, 8
    s_lshl_b32 s70, s70, 8
    s_add_u32 s70, s70, s18
    s_mov_b32 s10, {1024*6144*2}
    s_mov_b32 s11, 0x00020000
    s_mov_b32 m0, s68""")
    AS = E("ASSIST", 0)
    if AS:
        k.c("pull the rows the neighbour asks for last into this die's L2")
        k(f"""s_sub_u32 s36, 16, s34
        s_cmp_eq_u32 s34, 0
        s_cselect_b32 s36, 8, s36
        s_bitcmp1_b32 s35, 0
        s_cselect_b32 s36, s36, s34
        s_lshr_b32 s37, s35, 1
        s_lshl_b32 s37, s37, 4
        s_add_u32 s36, s36, s37
        s_lshl_b32 s37, s16, {7 if AS == 1 else 8}
        s_add_u32 s36, s36, s37
        s_add_u32 s36, s36, {1024 if AS == 1 else 0}
        s_lshl_b32 s36, s36, 11""")
        if AS == 1: k("v_lshl_add_u32 v5, v2, 7, s36")
        elif AS == 2: k("v_and_b32 v5, 7, v2\nv_lshlrev_b32 v5, 7, v5\nv_bfe_u32 v6, v2, 3, 1\nv_lshl_add_u32 v5, v6, 18, v5\nv_add3_u32 v5, v5, s36, v250")
        else: k("v_and_b32 v5, 15, v2\nv_lshlrev_b32 v5, 7, v5\nv_bfe_u32 v6, v2, 4, 1\nv_lshl_add_u32 v5, v6, 18, v5\nv_add_u32 v5, s36, v5")
    k("s_waitcnt lgkmcnt(0)")
    if AS: k(f"s_mov_b64 exec, {0xffff if AS == 1 else 0xffffffff}\nglobal_load_dword v249, v5, s[4:5]\ns_mov_b64 exec, -1")
    k("""s_mov_b32 s8, s22
    s_mov_b32 s9, s23""")
    if E("GDEL", 0): k(f"s_cmp_ge_u32 s35, {E('XND', 14)}\ns_cbranch_scc1 g_nd\ns_sleep {E('GDEL', 0)}\ng_nd:")
    stamp(k, 2)
    for d in range(4):
        k(f"buffer_load_dwordx4 v{(4, 31)[d >> 1]}, s[8:11], s70 offen offset:{d*1024} {ES('NTW', '')} lds")
        if d < 3: k(f"s_add_u32 s70, s70, {4*12288 - 1024}")
    k("s_branch g_start\nf_start:")
    role_F(k)
    role_G(k)
    k("k_done:\ns_endpgm")
    return k

HEADER = """; adaLN + FNet mixing + MoD block, gfx950.  Generated by gen/gen26.py (hand-written generator).
"""
def tables():
    w = tabs.words(tabs.T4())
    for g0 in (False, True):
        for wv in range(8): w += tabs.words(tabs.T1(g0, wv))
    for sp in (False, True): w += tabs.words(tabs.T2(sp))
    assert 4 * len(w) == TB_END
    t = ".p2align 8\n.type tables,@object\ntables:\n"
    for i in range(0, len(w), 8):
        t += ".long " + ",".join("0x%x" % x for x in w[i:i+8]) + "\n"
    return t + f"tab_end:\n.size tables, {4*len(w)}\n"

def main(out):
    k = gen()
    t = HEADER + f"; @launch grid=(256,1,1) block=(512,1,1) lds={LDS}\n"
    t += '.amdgcn_target "amdgcn-amd-amdhsa--gfx950"\n.text\n' + k.text() + 'code_end:\n' + tables()
    t += '.section .rodata,"a"\n' + k.desc()
    open(out, "w").write(t)
if __name__ == "__main__":
    main(sys.argv[1] if len(sys.argv) > 1 else "adaLN_cond__spectral_fnet__moe_arch_mod__prompt.s")
```

```python
import math, sys, os
from asmgen import K, f32
from gen2 import (srd, P, padd, psub, pmul, pfma, pmul_s, pfma_s, psub_s, unpack_bf16, round_bf16, DPPM,
                  row_allreduce, wave_reduce_to63, chk_sent,
                  A_X, A_WR, A_WG, A_WU, A_WD, A_C, A_WM, A_OUT, A_DBG, A_WS, WS_SIZE)
import tabs
NAME = "adaLN_cond__spectral_fnet__moe_arch_mod__prompt_kernel"
E = lambda n, d: int(os.environ.get(n, str(d)))
ES = lambda n, d: os.environ.get(n, d)
SPIN = "0x40000"
WS_Z1   = 0x0000000
WS_SENT = 0x0400000
WS_PART = WS_SENT
WS_XA   = WS_SENT + 0x80000
WS_KEY  = WS_SENT + 0xB8000
WS_XB   = WS_SENT + 0xC0000
WS_TT   = 0x0636000
WS_SLOT = WS_SENT + 0x100000
WS_CAP  = 0x0600000
WS_MODP = 0x0610000
WS_PAR  = 0x0630000
WS_XR   = 0x0635000
WS_KR   = 0x0635400
WS_ZL   = 0x0638000
WS_MX   = 0x063C000
WS_EP   = 0x0650000
WS_STAMP = 0x2000000
NHASH = 0x9E3779B1
XP = 2064
L_S = 0; L_T4 = 33280; L_X = L_T4 + 16384; L_P = L_X + 32768; L_KEY = L_P + 5 * 4096; L_ST = L_KEY + 128; L_T3 = L_ST + 256; L_K = L_T3 + 8192
LDS = 131072 + 8192
LOG2E = f32(-math.log2(math.e))
ZMASK = E("ZMASK", 0x00030003)
TB_T4, TB_T1, TB_T2, TB_END = 0, 16384, 32768, 36864
ST = [int(x) for x in ES("ST", "").split(",") if x]
def stamp(k, i):
    if not ST: return
    if i == 0: k("s_memrealtime s[84:85]")
    elif i in ST: k(f"s_memrealtime s[{86+2*ST.index(i)}:{87+2*ST.index(i)}]")
def stamp_val(k, i, sreg):
    if i in ST: k(f"s_add_u32 s{86+2*ST.index(i)}, s{sreg}, s84")
def stamp_init(k):
    if ST:
        for j in range(8): k(f"s_mov_b32 s{84+2*j}, 0")
def stamp_out(k):
    if not ST: return
    k(f"""s_mov_b64 exec, -1
    s_waitcnt vmcnt(0)
    s_memrealtime s[98:99]
    s_waitcnt lgkmcnt(0)
    v_lshrrev_b32 v248, 6, v0
    v_lshlrev_b32 v248, 5, v248
    s_lshl_b32 s100, s2, 8
    s_add_u32 s100, s100, {WS_STAMP}""")
    for i in range(8): k(f"v_mov_b32 v{240+i}, s{84+2*i}")
    k("""s_mov_b64 exec, 1
    buffer_store_dwordx4 v[240:243], v248, s[12:15], s100 offen
    buffer_store_dwordx4 v[244:247], v248, s[12:15], s100 offen offset:16""")
def rb2(k, v, t):
    k(f"v_cvt_pk_bf16_f32 v{t}, v{v}, v{v+1}")
    unpack_bf16(k, v, t)
def spin(lab, sl):
    return (f"s_sleep {sl}\n" if sl else "") + f"s_add_u32 s83, s83, 1\ns_cmp_lt_u32 s83, {SPIN}\ns_cbranch_scc1 {lab}"
def nonce_issue(k, sp):
    k(f"s_mov_b32 s43, {WS_EP}\ns_load_dword s101, s[{sp}:{sp+1}], s43")
def nonce_finish(k):
    k(f"""s_mul_i32 s32, s101, {NHASH:#x}
    s_or_b32 s32, s32, 0x101
    s_and_b32 s32, s32, {~0x10404 & 0xffffffff:#x}
    s_and_b32 s56, s32, 0xff
    s_bfe_u32 s57, s32, 0x80008
    s_bfe_u32 s58, s32, 0x80010
    s_lshr_b32 s59, s32, 24""")
def chk_bytes(k, regs, acc):
    regs = list(regs)
    for i, r in enumerate(regs): k(f"v_xor_b32 v{r}, s{56 + (i & 3)}, v{r}")
    k(f"v_or3_b32 v{acc}, v{regs[0]}, v{regs[1]}, v{regs[2]}")
    regs = regs[3:]
    while len(regs) >= 2:
        k(f"v_or3_b32 v{acc}, v{acc}, v{regs[0]}, v{regs[1]}"); regs = regs[2:]
    if regs: k(f"v_or_b32 v{acc}, v{acc}, v{regs[0]}")
    k(f"v_and_b32 v{acc}, 0xff, v{acc}")
    k(f"v_cmp_ne_u32 vcc, 0, v{acc}")
def keys_issue(k, base, soff):
    for j in range(2):
        k(f"buffer_load_dwordx4 v[{base+4*j}:{base+4*j+3}], v3, s[12:15], s{soff} offen offset:{j*1024} sc1")
def keys_chk(k, base, tmp):
    k(f"v_xor_b32 v{tmp}, s32, v{base+2}")
    k(f"v_bitop3_b32 v{tmp}, v{tmp}, v{base+6}, s32 bitop3:0xf6")
    k(f"v_cmp_ne_u32 vcc, 0, v{tmp}")
def poll_keys(k, lab, base, soff, tmp):
    k(f"s_mov_b32 s83, 0\n{lab}:")
    keys_issue(k, base, soff)
    k("s_waitcnt vmcnt(0)")
    keys_chk(k, base, tmp)
    k(f"s_cbranch_vccz {lab}x\n{spin(lab, E('SL2', 4))}\n{lab}x:")
def top2(k, KB, s1, s2, tmp):
    m1, m2, c = tmp, tmp + 1, tmp + 2
    k(f"v_max_u32 v{m1}, v{KB}, v{KB+4}")
    k(f"v_min_u32 v{m2}, v{KB}, v{KB+4}")
    k(f"v_max3_u32 v{m2}, v{m2}, v{KB+1}, v{KB+5}")
    k(f"v_mov_b32 v{c}, v{m1}")
    wave_reduce_to63(k, [c], "v_max_u32")
    k(f"v_readlane_b32 s{s1}, v{c}, 63")
    k(f"v_cmp_eq_u32 vcc, s{s1}, v{m1}")
    k(f"v_cndmask_b32 v{c}, v{m1}, v{m2}, vcc")
    wave_reduce_to63(k, [c], "v_max_u32")
    k(f"v_readlane_b32 s{s2}, v{c}, 63")
def res_wait(k, lab, soff, vz, vd, sl):
    k(f"""v_mov_b32 v{vz}, 0
    s_mov_b32 s83, 0
    {lab}:
    buffer_load_dwordx2 v[{vd}:{vd+1}], v{vz}, s[12:15], s{soff} offen offset:2304 sc1
    s_waitcnt vmcnt(0)
    v_readfirstlane_b32 s40, v{vd}
    v_readfirstlane_b32 s41, v{vd+1}
    s_cmp_eq_u32 s41, s32
    s_cbranch_scc1 {lab}x
    {spin(lab, sl)}
    {lab}x:
    s_lshr_b32 s41, s40, 8
    s_and_b32 s40, s40, 0xff
    s_and_b32 s41, s41, 0xff""")

def role_F(k):
    ZL, PA, PB, BP, XA_, XB_, NAT, KW, KR_, FA, ZS, PG, PS = 4, 5, 6, 7, 8, 9, 10, 11, 12, 13, 14, 15, 1
    EG, T1, T2, L, D, D3, T3, TB, XA2, XB2, T4 = 16, 20, 24, 32, 48, 80, 112, 144, 160, 176, 192
    PFR, PRA, RCL, PRB0, PRC, REC, A0, A1, R0, R1 = 240, 20, 244, 96, 100, 251, 252, 253, 254, 255
    T4L = "s_mov_b32 m0, s40\ns_nop 0\nglobal_load_lds_dwordx4 v79, s[62:63]\nglobal_load_lds_dwordx4 v79, s[62:63] offset:1024"
    T1L = f"""global_load_dwordx4 v[{T1}:{T1+3}], v77, s[62:63]
    global_load_dwordx4 v[{T2}:{T2+3}], v78, s[62:63]
    global_load_dwordx4 v[{T2+4}:{T2+7}], v78, s[62:63] offset:1024"""
    k(f"""s_add_u32 s62, s62, tables-k_pc
    s_addc_u32 s63, s63, 0
    s_lshl_b32 s43, s16, 11
    v_add_u32 v79, s43, v3
    s_add_u32 s40, s43, {L_T4}
    s_lshl_b32 s42, s16, 10
    {"" if E("T4POS", 1) else T4L}
    s_add_u32 s43, s42, {TB_T1}
    s_cmp_eq_u32 s34, 0
    s_cselect_b32 s68, 8192, 0
    s_add_u32 s43, s43, s68
    v_add_u32 v77, s43, v3
    s_or_b32 s69, s34, s16
    s_cselect_b32 s68, 0, 2048
    s_add_u32 s68, s68, {TB_T2}
    v_add_u32 v78, s68, v3
    {"" if E("T1POS", 1) else T1L}
    s_sub_u32 s17, 16, s34
    s_cmp_eq_u32 s34, 0
    s_cselect_b32 s17, 8, s17
    s_bitcmp1_b32 s35, 0
    s_cselect_b32 s17, s17, s34
    s_lshr_b32 s36, s35, 1
    s_lshl_b32 s36, s36, 4
    s_add_u32 s17, s17, s36
    s_lshl_b32 s36, s16, 8
    s_add_u32 s36, s36, s17
    s_lshl_b32 s36, s36, 11
    s_add_u32 s37, s36, {128*2048}
    s_mov_b32 s10, {2048*1024*2}
    s_mov_b32 s11, 0x00020000""")
    XW, AB, S, MB, R, BFR, D0, DA, OB = 32, 48, 52, 56, 60, 80, 96, 100, 176
    VO, XWA, TRA_, RT, MT, STW, MW, NON, VZ, SH, N_, G_ = 160, 161, 162, 163, 164, 165, 166, 167, 168, 169, 170, 171
    k.c("A-matrix base: lane m = 2k+comp, rows j = 4g+i")
    k(f"""v_and_b32 v{N_}, 15, v0
    v_bfe_u32 v{G_}, v0, 4, 2
    v_lshrrev_b32 v72, 1, v{N_}
    v_and_b32 v73, 1, v0
    v_cmp_eq_u32 vcc, 1, v{N_}
    v_mov_b32 v74, s17
    v_cndmask_b32_e64 v72, v72, 8, vcc
    v_cndmask_b32_e64 v74, v74, 0, vcc
    v_cndmask_b32_e64 v73, v73, 0, vcc
    v_lshl_add_u32 v74, v{G_}, 9, v74
    s_waitcnt lgkmcnt(0)
    s_mov_b32 s8, s4
    s_mov_b32 s9, s5""")
    if E("FDEL", 0): k(f"s_sleep {E('FDEL', 0)}")
    stamp(k, 1)
    if E("FSTOP", 9) == 0: srd(k, 12, 6, WS_SIZE); stamp_out(k); k("s_endpgm")
    for h in range(2):
        for jj in range(2):
            k(f"buffer_load_dwordx4 v[{XW+8*jj+4*h}:{XW+8*jj+4*h+3}], v3, s[8:11], s{36+jj} offen offset:{h*1024}")
    nonce_issue(k, 6)
    srd(k, 12, 6, WS_SIZE)
    srd(k, 20, 52, 1024 * 3584 * 2)
    k(f"""s_mov_b32 s26, 4194304
    s_mov_b32 s27, 0x00020000
    s_getreg_b32 s39, hwreg(HW_REG_XCC_ID)
    s_and_b32 s39, s39, 7
    v_mul_u32_u24 v74, v72, v74
    v_lshl_add_u32 v74, v73, 9, v74
    v_lshlrev_b32 v72, 7, v72""")
    for i in range(4):
        k(f"v_and_b32 v{AB+i}, 2047, v74")
        if i < 3: k("v_add_u32 v74, v74, v72")
    for i in range(4): k(f"v_cvt_f32_u32 v{AB+i}, v{AB+i}")
    for i in range(4): k(f"v_mul_f32 v{AB+i}, {f32(1.0/2048)}, v{AB+i}")
    for i in range(4): k(f"v_cos_f32 v{AB+i}, v{AB+i}")
    for i in range(4): k(f"v_mul_f32 v{AB+i}, {f32(1.0/16)}, v{AB+i}")
    k(f"""v_lshlrev_b32 v{VO}, 20, v{G_}
    v_lshl_add_u32 v{VO}, v1, 15, v{VO}
    v_lshl_add_u32 v{VO}, v{N_}, 4, v{VO}
    v_mul_u32_u24 v{XWA}, {2*XP}, v1
    v_add_u32 v{XWA}, v{XWA}, v3
    v_lshrrev_b32 v72, 2, v2
    v_mul_u32_u24 v{TRA_}, {XP}, v72
    v_and_b32 v72, 3, v0
    v_lshl_add_u32 v{TRA_}, v72, 7, v{TRA_}
    v_lshl_add_u32 v{TRA_}, v1, 3, v{TRA_}
    v_lshlrev_b32 v{RT}, 4, v{G_}
    v_add_u32 v{RT}, {L_ST}, v{RT}
    v_lshlrev_b32 v{MT}, 3, v{G_}
    v_add_u32 v{MT}, {L_ST+64}, v{MT}
    v_lshrrev_b32 v72, 5, v0
    v_lshlrev_b32 v{STW}, 2, v72
    v_add_u32 v{KW}, {L_KEY}, v{STW}
    v_add_u32 v{STW}, {L_ST}, v{STW}
    v_lshlrev_b32 v{MW}, 1, v72
    v_add_u32 v{MW}, {L_ST+64}, v{MW}
    v_mov_b32 v{VZ}, 0
    v_and_b32 v{SH}, 1, v0
    v_lshlrev_b32 v{SH}, 3, v{SH}
    s_lshl_b32 s3, s34, 4
    s_and_b32 s64, s35, 1
    s_lshl_b32 s64, s64, 3
    s_lshr_b32 s65, s35, 1
    s_add_u32 s64, s64, s65
    s_and_b32 s65, s16, 3
    s_xor_b32 s64, s64, s65
    s_add_u32 s64, s64, s3
    s_add_u32 s3, s3, s35
    s_lshl_b32 s64, s64, 8
    s_add_u32 s64, s64, {WS_Z1}
    s_add_u32 s65, s64, 262144
    s_add_u32 s66, s64, 524288
    s_add_u32 s67, s64, {524288+262144}
    s_mov_b32 s44, 0x3f803f80
    s_mov_b32 s46, {f32(1.0/1024)}
    s_mov_b32 s33, {ZMASK}""")
    k.c("row ids: s30 = t, s31 = mirror row")
    k(f"""s_lshl_b32 s60, s35, 3
    s_add_u32 s60, s60, s16
    s_lshl_b32 s30, s60, 4
    s_add_u32 s30, s30, s34
    s_cmp_lg_u32 s34, 0
    s_cbranch_scc1 f_g1
    s_cmp_ge_u32 s16, 4
    s_cselect_b32 s31, 56, 0
    s_sub_u32 s30, s30, s31
    s_cmp_lg_u32 s16, 0
    s_cbranch_scc1 f_g1
    s_cmp_ge_u32 s35, 8
    s_cselect_b32 s31, 960, 0
    s_sub_u32 s30, s30, s31
    f_g1:
    s_sub_u32 s31, 2048, s30
    s_cmp_eq_u32 s30, 0
    s_cselect_b32 s31, 1024, s31
    s_lshl_b32 s18, s30, 11
    s_lshl_b32 s19, s31, 11
    s_lshl_b32 s61, s34, 19
    s_add_u32 s61, s61, {WS_Z1}
    s_lshl_b32 s28, s60, 8
    s_add_u32 s28, s28, s61
    s_add_u32 s29, s28, 131072
    s_add_u32 s50, s28, 262144
    s_add_u32 s51, s28, 393216
    s_lshl_b32 s73, s35, 15
    s_add_u32 s73, s73, s61
    s_lshl_b32 s42, s16, 12
    s_add_u32 s72, s73, s42
    s_add_u32 s45, s42, {L_X}
    s_lshl_b32 s42, s16, 8
    s_add_u32 s74, s73, s42
    s_add_u32 s75, s74, 4096
    s_lshl_b32 s76, s34, 7
    s_add_u32 s77, s76, {WS_KR}
    s_add_u32 s76, s76, {WS_XR}
    s_lshl_b32 s78, s35, 3
    s_add_u32 s79, s78, s77
    s_add_u32 s78, s78, s76
    s_lshl_b32 s80, s3, 4
    s_add_u32 s80, s80, {WS_KEY}
    s_lshl_b32 s81, s34, 12
    s_add_u32 s81, s81, {WS_KEY}
    s_lshl_b32 s82, s35, 11
    s_add_u32 s82, s82, {WS_CAP}""")
    k.c("base table (cos, sin)(d*k1/1024) of the column class wave&3")
    k(f"""v_cvt_f32_u32 v75, v{N_}
    s_lshl_b32 s42, s35, 2
    s_and_b32 s43, s16, 3
    s_add_u32 s42, s42, s43
    v_lshl_add_u32 v76, v{G_}, 8, s42
    v_mul_f32 v75, {f32(1.0/1024)}, v75
    v_cvt_f32_u32 v76, v76
    v_mul_f32 v60, v76, v75""")
    for i in range(1, 4): k(f"v_fmamk_f32 v{60+i}, v75, {f32(64.0*i)}, v60")
    for i in range(4): k(f"v_cos_f32 v{64+i}, v{60+i}")
    for i in range(4): k(f"v_sin_f32 v{68+i}, v{60+i}")
    for i in range(4): k(f"v_cvt_pk_f16_f32 v{TB+i}, v{64+i}, v{68+i}")
    def xc():
        k(f"""s_mov_b32 m0, s45
        s_add_u32 s43, s45, 2048
        buffer_load_dwordx4 v3, s[8:11], s18 offen lds
        buffer_load_dwordx4 v3, s[8:11], s18 offen offset:1024 lds
        s_mov_b32 m0, s43
        s_nop 0
        buffer_load_dwordx4 v3, s[8:11], s19 offen lds
        buffer_load_dwordx4 v3, s[8:11], s19 offen offset:1024 lds""")
    XPOS = E("XPOS", 5)
    NX = (4 if XPOS == 2 else 0) + 2 * (E("T4POS", 1) == 1) + 3 * (E("T1POS", 1) == 1)
    if E("T4POS", 1) == 1: k(T4L)
    if E("T1POS", 1) == 1: k(T1L)
    if XPOS == 2: xc()
    k("s_waitcnt lgkmcnt(0)")
    nonce_finish(k)
    k(f"v_lshrrev_b32 v{EG}, v{SH}, s32")
    for i in range(1, 4): k(f"v_lshrrev_b32 v{EG+i}, {2*i}, v{EG}")
    k(f"""v_mov_b32 v72, s32
    v_mov_b32 v73, s39
    v_mov_b32 v74, {L_K}
    s_cmp_eq_u32 s16, 0
    s_cselect_b64 exec, 1, 0
    ds_write_b32 v74, v{VZ} offset:4
    buffer_store_dwordx2 v[72:73], v{VZ}, s[12:15], s78 offen sc1
    s_mov_b64 exec, -1""")
    NX += 1
    k(f"v_mov_b32 v72, -1\nds_write_b32 v{KW}, v72 offset:64")
    for h in range(2):
        for jj in range(2):
            u = 2*h + jj
            k(f"s_waitcnt vmcnt({3 - u + NX})")
            k(f"ds_write_b128 v{XWA}, v[{XW+8*jj+4*h}:{XW+8*jj+4*h+3}] offset:{L_S + jj*XP + h*1024}")
            for q in range(4):
                r = XW + 8*jj + 4*h + q
                first = (h == 0 and q == 0)
                k(f"v_dot2_f32_bf16 v{S+jj}, v{r}, s44, {'0' if first else f'v{S+jj}'}")
                k(f"v_dot2_f32_bf16 v{S+2+jj}, v{r}, v{r}, {'0' if first else f'v{S+2+jj}'}")
    stamp(k, 2)
    if XPOS == 0: xc()
    else: k("s_nop 2")
    def red1(js):
        for j in js: k(f"v_permlane32_swap_b32 v{S+j}, v{S+j+1}")
        for j in js: k(f"v_add_f32 v{S+j}, v{S+j}, v{S+j+1}")
        regs = [S + j for j in js]
        row_allreduce(k, regs)
        for r in regs: k(f"v_add_f32_dpp v{r}, v{r}, v{r} row_bcast:15 row_mask:0xa bank_mask:0xf")
    AB2 = E("AB2", 0)
    def trreads():
        for ah in range(2):
            for q in range(4):
                u = ah * 4 + q
                k(f"ds_read_b64_tr_b16 v[{BFR+2*u}:{BFR+2*u+1}], v{TRA_} offset:{L_S + ah*64 + q*512}")
    if AB2 == 1:
        k("s_waitcnt lgkmcnt(0)\ns_barrier"); trreads()
    red1((0, 2))
    if AB2 == 2:
        k("s_waitcnt lgkmcnt(0)\ns_barrier"); trreads()
    k.c("lanes 31 / 63 hold the two rows")
    V = S + 2
    k(f"""v_mul_f32 v{S}, s46, v{S}
    v_mul_f32 v{V}, s46, v{V}
    v_mul_f32 v{R+4}, v{S}, v{S}
    v_cvt_pk_bf16_f32 v{MB}, -v{S}, -v{S}
    v_sub_f32 v{V}, v{V}, v{R+4}
    v_mul_f32 v{R+6}, {f32(512.0)}, v{V}
    v_cmp_gt_f32 vcc, v{R+4}, v{R+6}
    s_or_b32 s68, vcc_lo, vcc_hi
    s_bitcmp1_b32 s68, 31
    s_cbranch_scc1 f_slowvar
    f_var:""")
    round_bf16(k, V, V)
    k(f"v_add_f32 v{V}, {f32(1e-5)}, v{V}")
    round_bf16(k, V, V)
    k(f"v_sqrt_f32 v{V}, v{V}")
    round_bf16(k, V, V)
    k(f"""v_rcp_f32 v{V}, v{V}
    s_mov_b32 exec_lo, 0x80000000
    s_mov_b32 exec_hi, 0x80000000
    ds_write_b16 v{MW}, v{MB}
    ds_write_b32 v{STW}, v{V}
    s_mov_b64 exec, -1
    s_waitcnt lgkmcnt(0)
    s_barrier""")
    stamp(k, 30)
    if E("FSTOP", 9) == 1: stamp_out(k); k("s_endpgm")
    k(f"""ds_read_b128 v[{R}:{R+3}], v{RT}
    ds_read_b64 v[{R+4}:{R+5}], v{MT}""")
    if not AB2: trreads()
    if XPOS == 1: xc()
    k(f"s_waitcnt lgkmcnt({0 if AB2 else 8})")
    BM = R + 4; AH = 58
    for h in range(2): pmul(k, AB + 2*h, AB + 2*h, R + 2*h)
    for h in range(2): k(f"v_cvt_pk_bf16_f32 v{AH+h}, v{AB+2*h}, v{AB+2*h+1}")
    k(f"v_mfma_f32_16x16x16_bf16 v[{D0}:{D0+3}], v[{AH}:{AH+1}], v[{BM}:{BM+1}], 0")
    k("s_waitcnt lgkmcnt(0)")
    for u in range(8):
        k(f"v_mfma_f32_16x16x16_bf16 v[{DA+4*u}:{DA+4*u+3}], v[{AH}:{AH+1}], v[{BFR+2*u}:{BFR+2*u+1}], v[{D0}:{D0+3}]")
    for ah in range(2):
        for kp in range(2):
            o = OB + (2*ah + kp) * 4
            for q in range(4):
                u = ah * 4 + q
                k(f"v_cvt_pk_f16_f32 v{o+q}, v{DA+4*u+2*kp}, v{DA+4*u+2*kp+1}")
            for q in range(4): k(f"v_bfi_b32 v{o+q}, s33, v{EG+q}, v{o+q}")
            if ah + kp == 0: stamp(k, 32)
            k(f"buffer_store_dwordx4 v[{o}:{o+3}], v{VO}, s[12:15], s{64 + 2*kp + ah} offen {ES('Z1S', 'sc1').replace('+', ' ')}")
    stamp(k, 3)
    k("s_waitcnt vmcnt(4)\ns_barrier")
    k.c("================= wait 1: tables, x rows, addresses =================")
    n_, g_ = 48, 49
    k(f"""v_mov_b32 v{n_}, v{N_}
    v_mov_b32 v{g_}, v{G_}
    v_mov_b32 v50, s32
    v_mov_b32 v51, s39""")
    def zhint():
        k(f"""s_cmp_lg_u32 s16, {E("HW", 0)}
        s_cbranch_scc1 f_nzl
        s_lshl_b32 s68, s3, 7
        s_add_u32 s68, s68, {WS_ZL}
        v_mov_b32 v52, 0
        s_mov_b64 exec, 1
        buffer_store_dwordx2 v[50:51], v52, s[12:15], s68 offen sc1
        s_mov_b64 exec, -1
        f_nzl:""")
    if E("ZPOS", 0) == 0 and E("HOLD", 99) < 9: zhint()
    if E("XE", 0): xc()
    for u in range(12):
        k(f"ds_read_b128 v[{T4+4*u}:{T4+4*u+3}], v3 offset:{L_T4 + u*1024}")
    stamp(k, 33)
    k(f"""v_lshlrev_b32 v{ZL}, 15, v{g_}
    v_lshl_add_u32 v{ZL}, v{n_}, 4, v{ZL}
    v_lshlrev_b32 v{ZS}, 13, v{g_}
    v_lshl_add_u32 v{ZS}, v{n_}, 4, v{ZS}
    v_lshl_add_u32 v{R0}, v1, 10, v{ZS}
    v_xor_b32 v{R1}, 64, v{R0}
    v_lshrrev_b32 v57, 1, v1
    v_lshlrev_b32 v{A0}, 13, v57
    v_and_b32 v57, 1, v1
    v_lshl_add_u32 v{A0}, v57, 3, v{A0}
    v_lshl_add_u32 v{A0}, v{g_}, 11, v{A0}
    v_and_b32 v57, 3, v0
    v_lshl_add_u32 v{A0}, v57, 8, v{A0}
    v_lshrrev_b32 v58, 2, v{n_}
    v_lshl_add_u32 v{A0}, v58, 4, v{A0}
    v_and_b32 v59, 1, v0
    v_lshl_add_u32 v{A0}, v59, 6, v{A0}
    v_xor_b32 v{A1}, 64, v{A0}
    v_lshl_add_u32 v57, v{g_}, 2, v57
    v_lshlrev_b32 v57, 4, v57
    v_lshl_add_u32 v250, v58, 8, v57
    v_add_u32 v{PA}, {L_P}, v3
    v_sub_u32 v{PB}, {L_P + 63*16}, v3
    v_lshl_add_u32 v57, v{n_}, 2, v{g_}
    v_lshl_add_u32 v{XA_}, v57, 3, s45
    s_add_u32 s43, s45, {2048+504}
    v_lshlrev_b32 v58, 3, v57
    v_sub_u32 v{XB_}, s43, v58
    v_add_u32 v57, 1, v57
    v_and_b32 v58, 3, v57
    v_and_b32 v57, 60, v57
    v_lshl_add_u32 v{BP}, v58, 6, v57
    v_add_u32 v{NAT}, s45, v3
    v_lshlrev_b32 v{KR_}, 2, v{n_}
    v_add_u32 v{KR_}, {L_KEY}, v{KR_}
    v_lshlrev_b32 v{FA}, 12, v2
    v_and_b32 v{REC}, 0x70, v3
    v_lshlrev_b32 v{PG}, 4, v0
    v_and_b32 v57, 3, v0
    v_bfe_u32 v58, v0, 2, 4
    v_lshl_add_u32 v57, v57, 4, v58
    v_bfe_u32 v58, v0, 6, 2
    v_lshl_add_u32 v57, v58, 6, v57
    v_lshrrev_b32 v58, 8, v0
    v_lshl_add_u32 v57, v58, 9, v57
    v_lshlrev_b32 v57, 4, v57
    v_add_u32 v{PS}, {L_P}, v57""")
    CAPA = 250; Z1A = 249; T3A = 248
    k(f"s_and_b32 s42, s35, 3\ns_lshl_b32 s42, s42, 8\nv_xor_b32 v{Z1A}, s42, v3")
    CEN = 0x00020002 if ZMASK == 0x00030003 else 0
    k(f"s_mov_b32 s44, {CEN}")
    for i in range(4): k(f"v_and_b32 v{EG+i}, s33, v{EG+i}")
    for i in range(4): k(f"v_xor_b32 v{EG+i}, s44, v{EG+i}")
    XT = D3 + 16
    def xreads():
        for T in range(4):
            k(f"ds_read_b64 v[{XT+2*T}:{XT+2*T+1}], v{XA_} offset:{512*T}")
        for T in range(4):
            k(f"ds_read_b64 v[{XT+8+2*T}:{XT+8+2*T+1}], v{XB_} offset:{512*(3-T)}")
    if XPOS < 3: xreads()
    FPJ = E("FPJ", 5); FPY = E("FPY", 0)
    k(f"""s_mov_b32 s41, {WS_PAR+8192}
    s_and_b32 s40, s16, 4
    s_lshl_b32 s40, s40, 10
    s_sub_u32 s40, {WS_PAR+16384}, s40
    s_lshl_b32 s54, s3, 13
    s_add_u32 s54, s54, {WS_SLOT}
    s_lshr_b32 s43, s60, 6
    {"s_and_b32 s55, s35, 7" if FPY else "s_and_b32 s55, s60, 63"}
    {"s_lshl_b32 s55, s55, 2" if FPY else ""}
    {"s_and_b32 s52, s16, 3" if FPY else ""}
    {"s_add_u32 s55, s55, s52" if FPY else ""}
    s_mul_i32 s55, s55, {FPJ}
    s_lshl_b32 s43, s43, 9
    s_add_u32 s55, s55, s43
    s_add_u32 s55, s55, {512 - (32 if FPY else 64)*FPJ - E("FPJO", 0)}
    s_mul_i32 s55, s55, 7168
    s_mul_i32 s43, s34, 896
    s_add_u32 s55, s55, s43
    s_mov_b32 s48, {((1 << (8 * FPJ)) - 1) & 0xffffffff}
    s_mov_b32 s49, {((1 << (8 * FPJ)) - 1) >> 32}
    s_cmp_lt_u32 s16, {4 if FPY else 0}
    s_cselect_b64 s[48:49], 0, s[48:49]
    s_mov_b32 s52, {WS_PAR}
    s_mov_b32 s53, {WS_PAR+4096}""")
    def xunpack():
        k("s_waitcnt lgkmcnt(0)")
        for i in range(8): unpack_bf16(k, XA2 + 2*i, XT + i)
        for i in range(8): unpack_bf16(k, XB2 + 2*i, XT + 8 + i)
    if XPOS < 3: xunpack()
    stamp(k, 34)
    if E("DRAIN", 0): k("s_waitcnt vmcnt(0)")
    if E("FB2", 1): k("s_barrier")
    stamp(k, 4)
    if E("FSTOP", 9) == 2: stamp_out(k); k("s_endpgm")
    CP = T3
    def cap_issue(lab, fl="sc1"):
        k(f"s_cmp_lg_u32 s34, 0\ns_cbranch_scc1 {lab}\ns_add_u32 s68, s82, 32768")
        for j in range(2):
            k(f"buffer_load_dwordx4 v[{CP+8+4*j}:{CP+8+4*j+3}], v{CAPA}, s[12:15], s68 offen offset:{j*1024} {fl}")
        k(f"{lab}:")
        for j in range(2):
            k(f"buffer_load_dwordx4 v[{CP+4*j}:{CP+4*j+3}], v{CAPA}, s[12:15], s82 offen offset:{j*1024} {fl}")
    assert XPOS == 5
    if not E("XE", 0): xc()
    k(f"buffer_load_dwordx4 v[{RCL}:{RCL+3}], v{REC}, s[12:15], s76 offen {ES('CFL', '')}")
    def z1_issue():
        for i in range(4):
            k(f"buffer_load_dwordx4 v[{L+4*i}:{L+4*i+3}], v{Z1A}, s[12:15], s72 offen offset:{i*1024} {ES('Z1L', 'sc1')}")
    k.c("s47: bit0 = stage 1 done, bit1 = table built (waves 0-3 build one column class each)")
    TORD = E("TORD", 0)
    k(f"""v_add_u32 v{T3A}, {L_T3}, v3
    s_mov_b32 s47, 2
    s_mov_b32 s4, 0
    s_mov_b32 s83, 0
    s_cmp_ge_u32 s16, 4
    s_cbranch_scc1 f_s0""")
    if TORD == 2: k("s_mov_b32 s47, 0\ns_branch f_s0")
    if E("SLC0", 4): k(f"s_sleep {E('SLC0', 4)}")
    cap_issue("f_ci0", ES("CFL", ""))
    if TORD == 1:
        if E("SLF0", 0): k(f"s_sleep {E('SLF0', 0)}")
        z1_issue()
    k(f"""s_mov_b32 s47, 0
    s_waitcnt vmcnt({4 if TORD else 0})
    f_c1:""")
    t = D
    chk_bytes(k, range(CP, CP + 8), t)
    k(f"""s_cmp_lg_u32 s34, 0
    s_cbranch_scc1 f_c1n
    s_mov_b64 s[68:69], vcc""")
    chk_bytes(k, range(CP + 8, CP + 16), t)
    k(f"""s_or_b64 vcc, vcc, s[68:69]
    f_c1n:
    {"" if E("NOCHK", 0) & 1 else "s_cbranch_vccnz f_c1bad"}
    f_c1ok:""")
    stamp(k, 36)
    stamp_val(k, 52, 47)
    def capsum(b):
        padd(k, b, b, b + 4); padd(k, b + 2, b + 2, b + 6)
        for sh in (4, 8):
            for i in range(4): k(f"v_add_f32_dpp v{b+i}, v{b+i}, v{b+i} row_ror:{sh} {DPPM}")
        rb2(k, b, t); rb2(k, b + 2, t + 1)
    capsum(CP)
    for i in range(4): k(f"v_add_f32 v{CP+i}, 1.0, v{CP+i}")
    rb2(k, CP, t); rb2(k, CP + 2, t + 1)
    k(f"""v_max_f32_e64 v{t}, abs(v{CP}), abs(v{CP+1})
    v_max3_f32 v{t}, abs(v{CP+2}), abs(v{CP+3}), v{t}
    s_cmp_lg_u32 s34, 0
    s_cbranch_scc1 f_c1m
    v_mov_b32 v{t+2}, v{t}""")
    capsum(CP + 8)
    k(f"""v_max3_f32 v{t}, abs(v{CP+8}), abs(v{CP+9}), v{t+2}
    v_max3_f32 v{t}, abs(v{CP+10}), abs(v{CP+11}), v{t}
    f_c1m:
    s_nop 1""")
    for qp in ("[1,0,3,2]", "[2,3,0,1]"):
        k(f"v_max_f32_dpp v{t}, v{t}, v{t} quad_perm:{qp} {DPPM}")
    for g in range(4): k(f"v_readlane_b32 s{68+g}, v{t}, {16*g}")
    k(f"""s_max_u32 s68, s68, s69
    s_max_u32 s70, s70, s71
    s_max_u32 s68, s68, s70
    s_lshr_b32 s68, s68, 23
    s_sub_u32 s69, s68, 120
    s_sub_i32 s68, s68, 127
    s_max_i32 s68, s68, -100
    s_min_i32 s68, s68, 120
    s_cmp_le_u32 s69, 9
    s_cselect_b32 s68, 2, s68
    s_cselect_b32 s17, 0, 0x20000
    s_sub_i32 s69, 127, s68
    s_lshl_b32 s69, s69, 23""")
    def pick(b):
        k(f"""v_cndmask_b32 v{b}, v{b}, v{b+1}, s[64:65]
        v_cndmask_b32 v{b+2}, v{b+2}, v{b+3}, s[64:65]
        v_cndmask_b32 v{b}, v{b}, v{b+2}, s[66:67]""")
    k("""s_bitcmp1_b32 s16, 0
    s_cselect_b64 s[64:65], -1, 0
    s_bitcmp1_b32 s16, 1
    s_cselect_b64 s[66:67], -1, 0
    s_lshl_b32 s70, s16, 11""")
    pick(CP)
    BC = t + 8; TW = t + 16
    k(f"""v_mul_f32 v{CP}, s69, v{CP}
    v_add_u32 v{t+5}, s70, v{T3A}
    v_cvt_pk_f16_f32 v{t}, v{CP}, v{CP}
    s_nop 0""")
    for i in range(4): k(f"v_mov_b32_dpp v{BC+i}, v{t} quad_perm:[{i},{i},{i},{i}] {DPPM}")
    for i in range(4):
        k(f"v_pk_mul_f16 v{TW+i}, v{TB+i}, v{BC+i}")
        k(f"v_pk_mul_f16 v{TW+4+i}, v{TB+i}, v{BC+i} op_sel:[1,0] op_sel_hi:[0,1] neg_lo:[1,0]")
    k(f"""ds_write_b128 v{t+5}, v[{TW}:{TW+3}]
    ds_write_b128 v{t+5}, v[{TW+4}:{TW+7}] offset:1024
    s_cmp_lg_u32 s16, 0
    s_cbranch_scc1 f_nkr
    v_mov_b32 v{t+6}, s17
    s_mov_b32 s61, s68
    s_cmp_eq_u32 s34, 0
    s_cselect_b32 s4, 1, s17
    s_mov_b64 exec, 1
    ds_write_b32 v{T3A}, v{t+6} offset:8192
    s_mov_b64 exec, -1
    f_nkr:
    s_cmp_eq_u32 s34, 0
    s_cbranch_scc1 f_sa
    f_nsa:
    v_mov_b32 v{t+6}, 1
    s_mov_b64 exec, 1
    ds_add_u32 v{T3A}, v{t+6} offset:8196
    s_mov_b64 exec, -1
    s_bitset1_b32 s47, 1
    s_bitcmp1_b32 s47, 0
    s_cbranch_scc1 f_bar
    s_branch f_s1
    f_s0:""")
    if E("SLF", 8): k(f"s_sleep {E('SLF', 8)}")
    if not TORD: k("f_s1:")
    z1_issue()
    k("s_waitcnt vmcnt(4)")
    if TORD: k("f_s1:")
    k("s_mov_b32 s83, 0")
    stamp(k, 5)
    xreads()
    k.c("same die for the whole group? (records not there yet count as no)")
    k(f"""v_xor_b32 v2, s32, v{RCL}
    v_bitop3_b32 v2, v2, v{RCL+2}, s32 bitop3:0xf6
    v_bitop3_b32 v2, v2, v{RCL+1}, s39 bitop3:0xf6
    v_bitop3_b32 v2, v2, v{RCL+3}, s39 bitop3:0xf6
    v_cmp_ne_u32 vcc, 0, v2""")
    k("s_mov_b32 s38, vcc_lo")
    KF = RCL + 1
    k(f"v_mov_b32 v{RCL}, {L_K}")
    def t3reads():
        for u in range(8): k(f"ds_read_b128 v[{T3+4*u}:{T3+4*u+3}], v{T3A} offset:{u*1024}")
        k(f"ds_read_b32 v{KF}, v{RCL}")
    def t3try(lab):
        k(f"""ds_read_b32 v{RCL+2}, v{RCL} offset:4
        s_waitcnt lgkmcnt(0)
        v_readfirstlane_b32 s43, v{RCL+2}
        s_cmp_lg_u32 s43, 4
        s_cbranch_scc1 {lab}""")
        t3reads()
        k(f"s_bitset1_b32 s47, 2\n{lab}:")
    xunpack()
    if TORD == 2:
        if E("SLC2", 0): k(f"s_sleep {E('SLC2', 0)}")
        k("s_cmp_lt_u32 s16, 4\ns_cselect_b64 exec, -1, 0")
        cap_issue("f_ci2", ES("CFL", ""))
        k("s_mov_b64 exec, -1")
    else: t3try("f_t1")
    stamp(k, 6)
    k.c("================= phase B =================")
    k("f_z1:")
    LS = D3
    for bsel in range(2):
        Pq = L + 8 * bsel; Q = LS + 8 * bsel
        k(f"s_waitcnt vmcnt({(2 if bsel == 0 else 0) + (2 if TORD == 2 else 0)})")
        if bsel == 1: stamp(k, 7)
        for cc in range(4):
            for e in range(2): k(f"v_xor_b32 v{Q+2*cc+e}, v{Pq+4*e+cc}, v{EG+cc}")
        for cc in range(4):
            d = D + 16*bsel + 4*cc
            k(f"v_mfma_f32_16x16x16_f16 v[{d}:{d+3}], v[{T1+2*bsel}:{T1+2*bsel+1}], v[{Q+2*cc}:{Q+2*cc+1}], 0")
            for e in range(2):
                r = 2*cc + e
                if bsel == 0 and r == 0: k(f"v_xor_b32 v2, s44, v{Q}")
                else: k(f"v_bitop3_b32 v2, v2, v{Q+r}, s44 bitop3:0xf6")
    k(f"""v_and_b32 v2, s33, v2
    v_cmp_ne_u32 vcc, 0, v2
    s_cbranch_vccnz f_z1bad
    f_z1ok:""")
    for cc in range(4):
        for kdl in range(2):
            o = L + 4*cc + 2*kdl
            for bsel in range(2):
                d = D + 16*bsel + 4*cc + 2*kdl
                k(f"v_cvt_pk_f16_f32 v{o+bsel}, v{d}, v{d+1}")
            k(f"ds_write_b64 v{(A0, A1)[cc & 1]}, v[{o}:{o+1}] offset:{L_S + kdl*1024 + (cc>>1)*128}")
    stamp_val(k, 50, 83)
    k(f"""s_bitset1_b32 s47, 0
    s_mov_b32 s83, 0
    {"s_waitcnt vmcnt(0)" if TORD == 2 else ""}
    s_bitcmp1_b32 s47, 1
    s_cbranch_scc0 f_c1
    s_bitcmp1_b32 s47, 2
    s_cbranch_scc1 f_bar""")
    t3try("f_bar")
    k(f"""s_waitcnt lgkmcnt(0)
    s_bitcmp1_b32 s47, 2
    s_barrier
    s_cbranch_scc0 f_t3l
    f_t3d:""")
    stamp(k, 8)
    for n2l in range(4):
        k(f"ds_read_b128 v[{L+4*n2l}:{L+4*n2l+3}], v{(R0, R1)[n2l & 1]} offset:{L_S + n2l*256}")
    for i in range(4): k(f"v_xor_b32 v{EG+i}, {ZMASK ^ CEN}, v{EG+i}")
    PPOS = E("PPOS", 1)
    PRG = 240; STG = E("STG", 1)
    def par_issue(fl="sc1"):
        if STG: k("s_cmp_lt_u32 s16, 4\ns_cselect_b64 exec, -1, 0")
        k(f"buffer_load_dwordx4 v[{PRA}:{PRA+3}], v{PG}, s[12:15], s52 offen {fl}")
        if STG: k(f"buffer_load_dwordx4 v[{PRG}:{PRG+3}], v{PG}, s[12:15], s53 offen {fl}\ns_mov_b64 exec, -1")
    if PPOS == 0: par_issue(ES("CFL", ""))
    def parb_issue(fl="sc1"):
        k(f"buffer_load_dwordx4 v[{PRB0}:{PRB0+3}], v{PG}, s[12:15], s41 offen {fl}")
        k(f"buffer_load_dwordx4 v[{PRC}:{PRC+3}], v{PG}, s[12:15], s40 offen {fl}")
    X = TB
    def s2(n):
        k(f"s_waitcnt lgkmcnt({3-n})")
        for part in range(2):
            d = D + 8*n + 4*part
            k(f"v_mfma_f32_16x16x32_f16 v[{d}:{d+3}], v[{L+4*n}:{L+4*n+3}], v[{T2+4*part}:{T2+4*part+3}], 0")
    def cv2(n):
        for i in range(4): k(f"v_cvt_pk_f16_f32 v{X+4*n+i}, v{D+8*n+i}, v{D+8*n+4+i}")
    def d1(n):
        for part in range(2):
            d = D3 + 8*n + 4*part
            k(f"v_mfma_f32_16x16x32_f16 v[{d}:{d+3}], v[{X+4*n}:{X+4*n+3}], v[{T3+8*n+4*part}:{T3+8*n+4*part+3}], 0")
    def cv3(n):
        for i in range(4): k(f"v_cvt_pk_f16_f32 v{L+4*i+n}, v{D3+8*n+i}, v{D3+8*n+4+i}")
        for i in range(4): k(f"v_bfi_b32 v{L+4*i+n}, s33, v{EG+n}, v{L+4*i+n}")
    for n in range(4): s2(n)
    k(f"v_mov_b32 v2, v{KF}\nv_xor_b32 v{EG+3}, v{KF}, v{EG+3}")
    for u in range(13 if STG else 12, 16): k(f"ds_read_b128 v[{T4+4*u}:{T4+4*u+3}], v3 offset:{L_T4 + u*1024}")
    if PPOS == 1: par_issue(ES("CFL", ""))
    cv2(0); cv2(1); d1(0); cv2(2); d1(1); cv2(3); d1(2); d1(3)
    k("s_cmp_lg_u32 s4, 0\ns_cbranch_scc1 f_sb\nf_nsb:")
    if PPOS == 2: par_issue(ES("CFL", ""))
    for n in range(4): cv3(n)
    def zf_store(fl):
        for i in range(4):
            k(f"buffer_store_dwordx4 v[{L+4*i}:{L+4*i+3}], v{ZS}, s[12:15], s{74 + (i >> 1)} offen offset:{(i & 1)*2048} {fl}")
    k("s_cmp_lg_u32 s38, 0\ns_cbranch_scc1 f_slowst")
    zf_store(ES("ZST", "nt"))
    k("f_std:")
    stamp(k, 9)
    k.c("================= wait 2: modulation vectors into LDS =================")
    ZFL = ES("ZFL", "sc1 nt")
    if STG: k("s_cmp_ge_u32 s16, 4\ns_cbranch_scc1 f_pw2")
    k(f"s_mov_b32 s83, 0\ns_waitcnt vmcnt(4)\nf_pp:")
    chk_bytes(k, list(range(PRA, PRA + 4)) + (list(range(PRG, PRG + 4)) if STG else []), D)
    k(f"""s_cbranch_vccnz f_ppbad
    f_ppok:""")
    stamp_val(k, 53, 83)
    stamp_val(k, 55, 38)
    k(f"ds_write_b128 v{PS}, v[{PRA}:{PRA+3}]")
    k(f"ds_write_b128 v{PS}, v[{PRG}:{PRG+3}] offset:8192" if STG else "s_cmp_ge_u32 s16, 4\ns_cbranch_scc1 f_pw")
    QL = E("QL", 1)
    def qred(t_):
        padd(k, t_, PRA, PRA + 2)
        k(f"v_add_f32 v{t_}, v{t_}, v{t_+1}")
        wave_reduce_to63(k, [t_])
        k(f"""v_min_u32 v{t_}, -2, v{t_}
        s_mov_b32 exec_lo, 0
        s_mov_b32 exec_hi, 0x80000000
        ds_write_b32 v{KW}, v{t_} offset:64
        s_mov_b64 exec, -1""")
    if not QL: qred(D)
    k(f"""f_pw:
    s_waitcnt lgkmcnt(0)
    f_pw2:""")
    stamp(k, 10)
    k("s_barrier")
    for j in range(4):
        k(f"buffer_load_dwordx4 v[{L+4*j}:{L+4*j+3}], v{ZL}, s[12:15], s{(28, 29, 50, 51)[j]} offen {ZFL}")
    GA_, GB_, VA, VB = 112, 128, 48, 64
    V_V, V_SB, V_G, V_GB, V_C1 = 0, 1, 2, 3, 4
    def pread(vec, base, row):
        return [f"ds_read_b128 v[{base+4*T}:{base+4*T+3}], v{(PA, PB)[row]} offset:{vec*4096 + (T, 3-T)[row]*1024}" for T in range(4)]
    Y, YN, TT, QP = 80, 96, 144, 28
    prq = [x for q in zip(pread(V_G, GA_, 0), pread(V_G, GB_, 1), pread(V_V, VA, 0), pread(V_V, VB, 1)) for x in q]
    NPR = E("NPR", 8)
    if STG: k(f"ds_read_b128 v[{T4+48}:{T4+51}], v3 offset:{L_T4 + 12*1024}")
    for x in prq[:NPR]: k(x)
    if QL:
        k.c("(waves 4-7 reduce garbage into slots nobody reads)")
        qred(TT + 8)
    k(f"v_xor_b32 v{EG+3}, v2, v{EG+3}")
    for i in range(4): k(f"v_xor_b32 v{EG+i}, s44, v{EG+i}")
    FPF = 1 if FPJ else 0
    k(f"""v_bfe_u32 v20, v0, 3, 3
    v_mul_u32_u24 v20, 7168, v20
    v_and_b32 v{TT+7}, 7, v0
    v_min_u32 v{TT+7}, 6, v{TT+7}
    v_lshl_add_u32 v{TT+7}, v{TT+7}, 7, v20
    v_mov_b32 v20, {L_KEY + 64}
    v_lshrrev_b32 v23, 5, v0
    v_mov_b32 v22, 0xffffff00
    v_mov_b32 v21, 0x20000
    s_mov_b64 s[70:71], 1
    s_mov_b32 s83, 1""")
    ZM = (72, 74, 78, 36)
    def st4(dst, T, j):
        cc = "0" if j == 0 else f"v[{dst+4*T}:{dst+4*T+3}]"
        b = T4 + 16*T + 4*j
        k(f"v_mfma_f32_16x16x32_f16 v[{dst+4*T}:{dst+4*T+3}], v[{L+4*j}:{L+4*j+3}], v[{b}:{b+3}], {cc}")
    def zstrip(j):
        for i in range(4): k(f"v_xor_b32 v{L+4*j+i}, v{L+4*j+i}, v{EG+i}")
    def zchk(j):
        r = L + 4*j; t_ = TT + j
        return [f"v_bitop3_b32 v{t_}, v{r+3}, v21, s44 bitop3:0x56",
                f"v_bitop3_b32 v{t_}, v{t_}, v{r}, s44 bitop3:0xf6",
                f"v_bitop3_b32 v{t_}, v{t_}, v{r+1}, s44 bitop3:0xf6",
                f"v_bitop3_b32 v{t_}, v{t_}, v{r+2}, s44 bitop3:0xf6",
                f"v_and_b32 v{t_}, s33, v{t_}",
                f"v_cmp_ne_u32 s[{ZM[j]}:{ZM[j]+1}], 0, v{t_}"]
    zalt = [f"v_bitop3_b32 v2, v{L+3}, v{L+7}, v21 bitop3:0x80", f"v_bitop3_b32 v2, v2, v{L+11}, v{L+15} bitop3:0x80", "v_cmp_eq_u32 vcc, 0, v2"]
    k("""s_mov_b32 s83, 0
    s_mov_b64 s[72:73], -1
    s_mov_b64 s[74:75], -1
    s_mov_b64 s[78:79], -1
    s_mov_b64 s[36:37], -1
    s_branch f_zp
    f_zr:""")
    k.c("lanes whose piece is not there yet fetch it again")
    for j in range(4):
        k(f"s_mov_b64 exec, s[{ZM[j]}:{ZM[j]+1}]")
        k(f"buffer_load_dwordx4 v[{L+4*j}:{L+4*j+3}], v{ZL}, s[12:15], s{(28, 29, 50, 51)[j]} offen {ZFL}")
    k(f"""f_zp:
    s_add_u32 s83, s83, 1
    s_cmp_lt_u32 s83, {SPIN}
    s_cselect_b64 s[68:69], -1, 0""")
    for j in range(4):
        k(f"s_mov_b64 exec, s[{ZM[j]}:{ZM[j]+1}]\ns_waitcnt vmcnt({3-j})")
        zstrip(j)
        for x in zchk(j): k(x)
        if j == 2: k("s_or_b64 s[64:65], s[72:73], s[74:75]")
    k("s_mov_b64 exec, -1")
    for x in zalt: k(x)
    k(f"""s_or_b64 s[66:67], s[78:79], s[36:37]
    s_or_b64 s[64:65], s[64:65], s[66:67]
    s_and_b64 s[64:65], s[64:65], s[68:69]
    s_cbranch_scc1 f_zr
    s_cbranch_vccnz f_rare
    f_zf:""")
    stamp(k, 11)
    k.c("================= phase C =================")
    rest = prq[NPR:] + [f"ds_read2_b32 v[{QP}:{QP+1}], v20 offset0:1 offset1:3", f"ds_read2_b32 v[{QP+2}:{QP+3}], v20 offset0:5 offset1:7"]
    for T in range(2):
        for j in range(4):
            st4(Y, T, j)
            for x in rest[:2]: k(x)
            rest = rest[2:]
    assert not rest
    k("f_zfok:")
    if 51 in ST: k("s_sub_u32 s83, s83, 1")
    stamp_val(k, 51, 83)
    def fpf(FPN=E("FPF", 0), off=E("FPO", 0)):
        msk = (1 << (8 * FPN)) - 1
        k.c("help for the weight stream: last rows of both K halves of w_up, this die's columns")
        k(f"""v_bfe_u32 v26, v0, 3, 3
        v_mul_u32_u24 v26, 7168, v26
        v_and_b32 v27, 7, v0
        v_min_u32 v27, 6, v27
        v_lshl_add_u32 v26, v27, 7, v26
        s_lshl_b32 s36, s35, 3
        s_add_u32 s36, s36, s16
        s_lshr_b32 s37, s36, 6
        s_and_b32 s36, s36, 63
        s_mul_i32 s36, s36, {FPN}
        s_lshl_b32 s37, s37, 9
        s_add_u32 s36, s36, s37
        s_add_u32 s36, s36, {512 - 64*FPN - off}
        s_mul_i32 s36, s36, 7168
        s_mul_i32 s37, s34, 896
        s_add_u32 s36, s36, s37""")
        k(f"s_mov_b32 exec_lo, {msk & 0xffffffff}\ns_mov_b32 exec_hi, {msk >> 32}")
        k("buffer_load_dword v25, v26, s[20:23], s36 offen\ns_mov_b64 exec, -1")
    FPOS = 1
    k(f"s_waitcnt lgkmcnt({18 - NPR if NPR >= 8 else 0})")
    FPZ = E("FPZ", 0)
    def fpj():
        if FPJ:
            k("s_mov_b64 exec, s[48:49]")
            k(f"buffer_load_dword v{TT+6}, v{TT+7}, s[20:23], s55 offen\ns_mov_b64 exec, -1")
    if FPZ == 1: fpj()
    k("s_cmp_eq_u32 s30, 0\ns_cbranch_scc1 f_sp")
    RQ = 104
    tA, tB = TT, TT + 8
    def xa(T):
        for h in range(2): pfma(k, XA2 + 4*T + 2*h, GA_ + 4*T + 2*h, Y + 4*T + 2*h, XA2 + 4*T + 2*h)
    def xb(T):
        for s_ in range(1, 4): k(f"v_fmac_f32 v{XB2+4*T+s_}, v{GB_+4*T+s_}, v{Y+4*T+4-s_}")
    def bperm(T):
        k(f"v_cndmask_b32 v{YN+4+T}, v{Y+4*T}, v{Y+4*((T+1)&3)}, s[70:71]")
        k(f"ds_bpermute_b32 v{YN+T}, v{BP}, v{YN+4+T}")
    def acc(X2, V_, t, i, first):
        x = X2 + 2*i
        if first:
            pmul(k, t + 2, x, x); pmul(k, t + 4, x, V_ + 2*i)
        else:
            pfma(k, t + 2, x, x, t + 2); pfma(k, t + 4, x, V_ + 2*i, t + 4)
    def s1acc(X2, t, lst):
        pass
    st4(Y, 2, 0); xa(0); st4(Y, 2, 1); xb(0); st4(Y, 2, 2)
    acc(XA2, VA, tA, 0, True); st4(Y, 2, 3); acc(XA2, VA, tA, 1, False)
    st4(Y, 3, 0); bperm(0); xa(1); st4(Y, 3, 1); xb(1); st4(Y, 3, 2)
    acc(XA2, VA, tA, 2, False); st4(Y, 3, 3); acc(XA2, VA, tA, 3, False)
    acc(XB2, VB, tB, 1, True); acc(XB2, VB, tB, 3, False)
    padd(k, tA, XA2, XA2 + 2); padd(k, tB, XB2 + 2, XB2 + 6)
    if FPZ == 2: fpj()
    k("s_waitcnt lgkmcnt(1)")
    bperm(1); xa(2); xb(2)
    padd(k, tA, tA, XA2 + 4); padd(k, tA, tA, XA2 + 6)
    acc(XA2, VA, tA, 4, False); acc(XA2, VA, tA, 5, False); acc(XB2, VB, tB, 5, False)
    bperm(2); bperm(3); xa(3); xb(3)
    C1A, C1B, SBA, SBB, GBA, GBB = 192, 208, 224, 240, 112, 128
    acc(XA2, VA, tA, 6, False); acc(XA2, VA, tA, 7, False); acc(XB2, VB, tB, 7, False)
    for i in range(4, 8): padd(k, tA, tA, XA2 + 2*i)
    padd(k, tB, tB, XB2 + 10); padd(k, tB, tB, XB2 + 14)
    k("s_waitcnt lgkmcnt(0)")
    for T in range(4): k(f"v_fmac_f32 v{XB2+4*T}, v{GB_+4*T}, v{YN+T}")
    for T in range(4):
        acc(XB2, VB, tB, 2*T, False); padd(k, tB, tB, XB2 + 4*T)
    k("f_join:")
    if QL:
        k(f"""f_q:
        v_max3_u32 v2, v{QP}, v{QP+1}, v{QP+2}
        v_max_u32 v2, v2, v{QP+3}
        v_cmp_eq_u32 vcc, -1, v2
        s_cbranch_vccnz f_qbad""")
    padd(k, QP, QP, QP + 2)
    PBJ = E("PBJ", 0)
    if PBJ: parb_issue(ES("CFL", ""))
    if FPZ == 0: fpj()
    stamp(k, 12)
    def stage_b(cnt):
        k(f"s_mov_b32 s83, 0\ns_waitcnt vmcnt({cnt})\nf_pb:")
        chk_bytes(k, list(range(PRB0, PRB0 + 4)) + list(range(PRC, PRC + 4)), 2)
        k(f"""{"" if E("NOCHK", 0) & 4 else "s_cbranch_vccnz f_pbbad"}
        f_pbok:""")
        stamp_val(k, 54, 83)
        k(f"""        ds_write_b128 v{PS}, v[{PRB0}:{PRB0+3}] offset:4096
        s_cmp_ge_u32 s16, 4
        s_cbranch_scc1 f_pbx
        ds_write_b128 v{PS}, v[{PRC}:{PRC+3}] offset:16384
        f_pbx:""")
    k.c("GO hint from one workgroup per replica")
    GOPOS = E("GOPOS", 1)
    def gohint(lab):
        k(f"""s_lshl_b32 s42, s16, 4
        s_or_b32 s42, s35, s42
        s_cmp_lg_u32 s42, {E("GOM", 0)}
        s_cbranch_scc1 {lab}
        v_mov_b32 v2, s32
        s_mov_b64 exec, 1
        buffer_store_dword v2, v{FA}, s[12:15], s81 offen offset:2048 sc1
        s_mov_b64 exec, -1
        {lab}:""")
    if GOPOS == 0: gohint("f_ngo")
    else: k("f_ngo:")
    rows = ((XA2, VA, tA, 64, C1A, SBA, GBA, XA_), (XB2, VB, tB, 66, C1B, SBB, GBB, XB_))
    for n in range(2):
        for j in range(3): k(f"v_add_f32 v{RQ+4*n+j}, v{rows[n][2]+2*j}, v{rows[n][2]+2*j+1}")
    def red(js):
        for j in js: k(f"v_permlane32_swap_b32 v{RQ+j}, v{RQ+4+j}")
        for j in js: k(f"v_add_f32 v{RQ+j}, v{RQ+j}, v{RQ+4+j}")
        regs = [RQ + j for j in js]
        row_allreduce(k, regs)
        for r in regs: k(f"v_add_f32_dpp v{r}, v{r}, v{r} row_bcast:15 row_mask:0xa bank_mask:0xf")
    k(f"v_add_f32 v{QP}, v{QP}, v{QP+1}")
    red((0, 1, 2))
    k.c("lanes 31 / 63 hold rows A / B")
    k(f"""v_mul_f32 v{RQ}, s46, v{RQ}
    v_mul_f32 v{RQ+1}, s46, v{RQ+1}
    v_mul_f32 v{RQ+4}, v{RQ}, v{RQ}
    v_fma_f32 v{RQ+2}, -v{RQ}, v{QP}, v{RQ+2}
    v_sub_f32 v{RQ+1}, v{RQ+1}, v{RQ+4}
    v_mul_f32 v{RQ+5}, 4.0, v{RQ+1}
    v_cmp_gt_f32 vcc, v{RQ+4}, v{RQ+5}
    s_or_b32 s42, vcc_lo, vcc_hi
    s_bitcmp1_b32 s42, 31
    s_cbranch_scc1 f_slow2
    f_var2:""")
    round_bf16(k, RQ + 1, RQ + 1)
    k(f"v_add_f32 v{RQ+1}, {f32(1e-5)}, v{RQ+1}")
    round_bf16(k, RQ + 1, RQ + 1)
    k(f"v_sqrt_f32 v{RQ+1}, v{RQ+1}")
    round_bf16(k, RQ + 1, RQ + 1)
    k(f"""v_rcp_f32 v{RQ+1}, v{RQ+1}
    s_mov_b32 s42, 0x80000000
    s_mov_b32 exec_lo, s42
    s_mov_b32 exec_hi, s42
    v_mul_f32 v{RQ+2}, v{RQ+2}, v{RQ+1}
    v_ashrrev_i32 v{RQ+4}, 31, v{RQ+2}
    v_or_b32 v{RQ+4}, s42, v{RQ+4}
    v_xor_b32 v{RQ+2}, v{RQ+2}, v{RQ+4}
    v_and_or_b32 v{RQ+2}, v{RQ+2}, v22, v23
    ds_write_b32 v{KW}, v{RQ+2}
    s_mov_b64 exec, -1""")
    k("s_waitcnt vmcnt(1) lgkmcnt(0)" if PBJ else "s_waitcnt lgkmcnt(0)")
    stamp(k, 13)
    KV = 21
    k(f"""s_barrier
    ds_read_b32 v{KV}, v{KR_}""")
    for n in range(2):
        k(f"v_readlane_b32 s{60+n}, v{RQ+2}, {31+32*n}")
        k(f"v_readlane_b32 s{64+2*n}, v{RQ}, {31+32*n}")
        k(f"v_readlane_b32 s{65+2*n}, v{RQ+1}, {31+32*n}")
    k(f"""    s_lshl_b32 s42, s3, 1
    s_movk_i32 s43, 0xff00
    v_mov_b32 v30, s32
    v_mov_b32 v31, s32
    s_cmp_lg_u32 s16, 0
    s_waitcnt lgkmcnt(0)
    s_cbranch_scc1 f_nkey
    s_setprio 3
    v_max_u32_dpp v28, v{KV}, v{KV} row_ror:8 {DPPM}""")
    for sh in (4, 2, 1): k(f"v_max_u32_dpp v28, v28, v28 row_ror:{sh} {DPPM}")
    k(f"""v_cmp_eq_u32 vcc, v28, v{KV}
    v_cndmask_b32_e64 v29, v{KV}, 0, vcc
    v_and_or_b32 v28, v28, v22, s42
    s_add_u32 s42, s42, 1""")
    row_allreduce(k, [29], "v_max_u32")
    k(f"""v_and_or_b32 v29, v29, v22, s42
    s_mov_b64 exec, 0xff
    buffer_store_dwordx4 v[28:31], v{FA}, s[12:15], s80 offen sc1
    s_mov_b64 exec, -1
    s_setprio 0""")
    stamp(k, 40)
    if 41 in ST: k("s_waitcnt vmcnt(0)"); stamp(k, 41)
    k("f_nkey:")
    if GOPOS == 1: gohint("f_ng1")
    HP = 80; OUTR = (32, 40)
    def nrow(n):
        X2, V_, t, sr, C1, SB, GB, XL = rows[n]
        for i in range(8): psub_s(k, V_ + 2*i, X2 + 2*i, sr)
        for i in range(8): pmul_s(k, V_ + 2*i, V_ + 2*i, sr + 1)
    def relayout(n, src, dst, cvt):
        XL = rows[n][7]
        for T in range(4):
            for h in range(2): k(f"{cvt} v{HP+2*T+h}, v{src+4*T+2*h}, v{src+4*T+2*h+1}")
            k(f"ds_write_b64 v{XL}, v[{HP+2*T}:{HP+2*T+1}] offset:{512*(T, 3-T)[n]}")
        for j in range(2):
            k(f"ds_read_b128 v[{dst+4*j}:{dst+4*j+3}], v{NAT} offset:{n*2048 + j*1024}")
    for n in range(2):
        HO = 88
        k(f"""s_movk_i32 s{62+n}, 0x100
        v_cmp_lt_u32 vcc, s{60+n}, v{KV}
        s_and_b32 s42, vcc_lo, 0xffff
        s_bcnt1_i32_b32 s42, s42
        s_cmp_ge_u32 s42, 2
        s_cbranch_scc1 f_nc{n}
        s_setprio 2""")
        nrow(n)
        relayout(n, rows[n][1], HO, "v_cvt_pk_f16_f32")
        k(f"""s_lshl_b32 s{62+n}, s3, 1
        s_add_u32 s{62+n}, s{62+n}, s42
        s_lshl_b32 s42, s{62+n}, 11
        s_add_u32 s42, s42, {WS_SLOT}
        s_lshl_b32 s43, s{62+n}, 4
        s_add_u32 s43, s43, {WS_TT}
        s_lshl_b32 s68, s{30+n}, 8
        s_or_b32 s68, s68, s56
        s_andn2_b32 s69, s{64+2*n}, 0xff
        s_or_b32 s69, s69, s57
        s_andn2_b32 s70, s{65+2*n}, 0xff
        s_or_b32 s70, s70, s58
        s_andn2_b32 s71, s{60+n}, 0xff
        s_or_b32 s71, s71, s59
        s_waitcnt lgkmcnt(0)""")
        for i in range(8): k(f"v_bfi_b32 v{HO+i}, s33, v{EG+(i&3)}, v{HO+i}")
        for j in range(2):
            k(f"buffer_store_dwordx4 v[{HO+4*j}:{HO+4*j+3}], v3, s[12:15], s42 offen offset:{j*1024} sc1")
        for i in range(4): k(f"v_mov_b32 v{24+i}, s{68+i}")
        k(f"""s_mov_b64 exec, 1
        buffer_store_dwordx4 v[24:27], v3, s[12:15], s43 offen sc1
        s_mov_b64 exec, -1
        s_setprio 0
        f_nc{n}:""")
    stamp(k, 14)
    if E("FPG", 0):
        k("s_barrier")
        fpf(E("FPG", 0), E("FPGO", 0))
    if not PBJ: parb_issue(ES("CFL", ""))
    for n in range(2):
        k(f"s_cmp_lt_u32 s{62+n}, 0x100\ns_cbranch_scc1 f_op{n}")
        nrow(n)
        k(f"f_op{n}:")
    stage_b(63 if PBJ else 0)
    k("s_waitcnt lgkmcnt(0)\ns_barrier")
    for n in range(2):
        X2, V_, t, sr, C1, SB, GB, XL = rows[n]
        for x in pread(V_C1, C1, n) + pread(V_SB, SB, n) + pread(V_GB, GB, n): k(x)
        k("s_waitcnt lgkmcnt(4)")
        for i in range(8): pfma(k, V_ + 2*i, V_ + 2*i, C1 + 2*i, SB + 2*i)
        k("s_waitcnt lgkmcnt(0)")
        for i in range(8): pfma(k, X2 + 2*i, GB + 2*i, V_ + 2*i, X2 + 2*i)
        relayout(n, X2, OUTR[n], "v_cvt_pk_bf16_f32")
    if E("ZEV", 0) == 1:
        for j in range(4):
            if E("ZPACE", 0): k(f"s_waitcnt vmcnt({E('ZPACE', 0)-1})")
            k(f"buffer_load_dwordx4 v[{48+4*j}:{51+4*j}], v{ZL}, s[12:15], s{(28, 29, 50, 51)[j]} offen sc1 nt")
    OMODE = E("OMODE", 0); OPACE = E("OPACE", 2)
    def outst(n):
        for j in range(0 if E("NOOUT", 0) else 2):
            if OPACE: k(f"s_waitcnt vmcnt({OPACE-1})")
            k(f"buffer_store_dwordx4 v[{OUTR[n]+4*j}:{OUTR[n]+4*j+3}], v3, s[24:27], s{18+n} offen offset:{j*1024} {ES('OFL', 'sc1')}")
    if OMODE:
        if E("OSL", 0): k(f"s_sleep {E('OSL', 0)}")
        k("s_waitcnt lgkmcnt(0)")
        for n in range(OMODE):
            k(f"s_cmp_lt_u32 s{62+n}, 0x100\ns_cbranch_scc1 f_oq{n}")
            outst(n)
            k(f"f_oq{n}:")
    k.c("rows are written once the selection is known; the two selected rows are written by the reducers")
    k(f"""v_mov_b32 v21, {L_ST+128}
    s_cmp_lg_u32 s16, 0
    s_cbranch_scc1 f_nrs""")
    if E("FKEY", 1):
        k(f"s_sleep {E('FKS', 8)}")
        poll_keys(k, "f_kq", 96, 81, 2)
        top2(k, 96, 40, 41, 24)
        k("s_and_b32 s40, s40, 0xff\ns_and_b32 s41, s41, 0xff")
    else:
        res_wait(k, "f_rs", 81, 20, 28, E("RSL", 4))
    k(f"""v_mov_b32 v28, s40
    v_mov_b32 v29, s41
    ds_write_b64 v21, v[28:29]
    f_nrs:
    s_waitcnt lgkmcnt(0)
    s_barrier
    ds_read_b64 v[28:29], v21
    s_waitcnt lgkmcnt(0)
    v_readfirstlane_b32 s40, v28
    v_readfirstlane_b32 s41, v29""")
    stamp(k, 19)
    if E("ODEL", 0): k(f"s_sleep {E('ODEL', 0)}")
    for n in range(2):
        if n < OMODE: k(f"s_cmp_ge_u32 s{62+n}, 0x100\ns_cbranch_scc1 f_e{n}")
        k(f"""s_cmp_eq_u32 s{62+n}, s40
        s_cbranch_scc1 f_e{n}
        s_cmp_eq_u32 s{62+n}, s41
        s_cbranch_scc1 f_e{n}""")
        outst(n)
        k(f"f_e{n}:")
    if E("ZEV", 0) == 2:
        for j in range(4):
            k(f"buffer_load_dwordx4 v[{48+4*j}:{51+4*j}], v{ZL}, s[12:15], s{(28, 29, 50, 51)[j]} offen sc1 nt")
    if E("WB", 0):
        k(f"""s_lshl_b32 s42, s35, 3
        s_add_u32 s42, s42, s16
        s_cmp_lg_u32 s42, 15
        s_cbranch_scc1 f_nwb
        {"s_waitcnt vmcnt(0)" if E("WB", 0) == 2 else ""}
        buffer_wbl2 sc1
        f_nwb:""")
    stamp_out(k)
    k("s_endpgm")
    k.c("---- retries ----")
    if QL:
        k(f"""f_qbad:
        v_mov_b32 v2, {L_KEY + 64}
        ds_read2_b32 v[{QP}:{QP+1}], v2 offset0:1 offset1:3
        ds_read2_b32 v[{QP+2}:{QP+3}], v2 offset0:5 offset1:7
        s_waitcnt lgkmcnt(0)
        s_branch f_q""")
    k("f_t3l:")
    t3reads()
    k("s_branch f_t3d")
    k(f"""f_c1bad:
    s_add_u32 s83, s83, 1
    s_cmp_ge_u32 s83, {SPIN}
    s_cbranch_scc1 f_c1ok
    s_bitcmp1_b32 s47, 0
    s_cbranch_scc0 f_c1b2
    s_sleep {E('SLC', 3)}
    f_c1b2:""")
    cap_issue("f_ci1")
    k(f"""s_bitcmp1_b32 s47, 0
    s_cbranch_scc0 f_s1
    s_waitcnt vmcnt(0)
    s_branch f_c1
    f_z1bad:
    s_add_u32 s83, s83, 1
    s_cmp_ge_u32 s83, {SPIN}
    s_cbranch_scc1 f_z1ok
    s_sleep {E('SLR1', 4)}""")
    z1_issue()
    k(f"""s_waitcnt vmcnt(0)
    s_branch f_z1
    f_ppbad:
    s_add_u32 s83, s83, 1
    s_cmp_ge_u32 s83, {SPIN}
    s_cbranch_scc1 f_ppok
    s_sleep {E('SLP2', 3)}""")
    par_issue()
    k(f"""s_waitcnt vmcnt(0)
    s_branch f_pp
    f_pbbad:
    s_add_u32 s83, s83, 1
    s_cmp_ge_u32 s83, {SPIN}
    s_cbranch_scc1 f_pbok
    s_sleep {E('SLP2', 3)}""")
    parb_issue()
    k("s_waitcnt vmcnt(0)\ns_branch f_pb")
    k.c("---- placement fallback: write-through stores ----")
    k("f_slowst:")
    zf_store("sc1")
    k("s_branch f_std")
    k.c("---- rare: the producers use different scales ----")
    k("f_rare:")
    for j in range(4):
        k(f"v_and_b32 v2, v21, v{L+4*j+3}\nv_cmp_eq_u32 s[{ZM[j]}:{ZM[j]+1}], 0, v2")
    for j in range(4): k(f"v_or_b32 v{L+4*j+3}, v21, v{L+4*j+3}")
    k(f"""    v_bfe_u32 v{TT}, v0, 4, 2
    v_lshlrev_b32 v{TT}, 3, v{TT}""")
    for x in prq[NPR:] + [f"ds_read2_b32 v[{QP}:{QP+1}], v20 offset0:1 offset1:3", f"ds_read2_b32 v[{QP+2}:{QP+3}], v20 offset0:5 offset1:7"]: k(x)
    k("s_mov_b32 s83, 0\ns_waitcnt lgkmcnt(0)\nf_rz:")
    for j in range(4):
        k(f"buffer_load_dwordx2 v[{TT+8+2*j}:{TT+9+2*j}], v{TT}, s[12:15], s77 offen offset:{32*j} sc1")
    k(f"s_waitcnt vmcnt(0)\nv_mov_b32 v{TT+1}, s32")
    for j in range(4): k(f"v_cndmask_b32 v{TT+8+2*j}, v{TT+1}, v{TT+8+2*j}, s[{ZM[j]}:{ZM[j]+1}]")
    k(f"v_xor_b32 v2, s32, v{TT+8}")
    for j in range(1, 4): k(f"v_bitop3_b32 v2, v2, v{TT+8+2*j}, s32 bitop3:0xf6")
    k(f"""v_cmp_ne_u32 vcc, 0, v2
    s_cbranch_vccz f_rzx
    {spin("f_rz", 2)}
    f_rzx:""")
    for j in range(4): k(f"v_cndmask_b32 v{TT+4+j}, 2, v{TT+9+2*j}, s[{ZM[j]}:{ZM[j]+1}]")
    k(f"""    v_max_i32 v{TT+1}, v{TT+4}, v{TT+5}
    v_max3_i32 v{TT+1}, v{TT+1}, v{TT+6}, v{TT+7}""")
    for g in range(4): k(f"v_readlane_b32 s{64+g}, v{TT+1}, {16*g}")
    k(f"""s_max_i32 s64, s64, s65
    s_max_i32 s66, s66, s67
    s_max_i32 s64, s64, s66
    s_add_i32 s66, s64, 125
    s_lshl_b32 s66, s66, 23
    s_nop 0""")
    for j in range(4):
        k(f"v_subrev_u32 v{TT+4+j}, s64, v{TT+4+j}")
        k(f"v_ldexp_f32 v{TT+4+j}, 1.0, v{TT+4+j}")
        k(f"v_cvt_pk_f16_f32 v{TT+4+j}, v{TT+4+j}, v{TT+4+j}")
    for r in range(16): k(f"v_pk_mul_f16 v{L+r}, v{L+r}, v{TT+4+(r>>2)}")
    for i in range(16): pmul_s(k, GA_ + 2*i, GA_ + 2*i, 66)
    for T in range(2):
        for j in range(4): st4(Y, T, j)
    k("s_nop 7\ns_branch f_zfok")
    k.c("---- rare: two-pass variance / router score for LN2 ----")
    k("f_slow2:")
    k.c("here the bf16 rounding of x and of the mean matters: follow the reference's rounding steps")
    for X2, V_, t, sr, C1, SB, GB, XL in rows:
        for i in range(8): rb2(k, X2 + 2*i, t)
        for i in range(1, 8): padd(k, t, X2 if i == 1 else t, X2 + 2*i)
    for n in range(2): k(f"v_add_f32 v{RQ+4*n}, v{rows[n][2]}, v{rows[n][2]+1}")
    red((0,))
    k(f"v_mul_f32 v{RQ+3}, s46, v{RQ}")
    round_bf16(k, RQ, RQ + 3)
    k(f"v_sub_f32 v{RQ+3}, v{RQ+3}, v{RQ}")
    for n in range(2): k(f"v_readlane_b32 s{64+2*n}, v{RQ}, {31+32*n}")
    for n, (X2, V_, t, sr, C1, SB, GB, XL) in enumerate(rows):
        Dd = (80, 32)[n]
        for i in range(8): psub_s(k, Dd + 2*i, X2 + 2*i, sr)
        for i in range(8): acc(Dd, V_, t, i, i == 0)
    for n in range(2):
        for j in (1, 2): k(f"v_add_f32 v{RQ+4*n+j}, v{rows[n][2]+2*j}, v{rows[n][2]+2*j+1}")
    red((1, 2))
    k(f"""v_mul_f32 v{RQ+1}, s46, v{RQ+1}
    v_fma_f32 v{RQ+1}, -v{RQ+3}, v{RQ+3}, v{RQ+1}
    v_max_f32 v{RQ+1}, 0, v{RQ+1}
    s_branch f_var2""")
    k.c("---- rare: |mean| >> std, recompute the variance in two passes ----")
    k("f_slowvar:")
    U = 100
    k(f"v_lshlrev_b32 v{R+6}, 16, v{MB}")
    k(f"v_readlane_b32 s68, v{R+6}, 31\nv_readlane_b32 s70, v{R+6}, 63")
    for jj in range(2):
        sr = 68 + 2 * jj
        for i in range(8):
            unpack_bf16(k, U, XW + jj * 8 + i)
            k(f"v_pk_add_f32 {P(U)}, {P(U)}, s[{sr}:{sr+1}] op_sel_hi:[1,0]")
            if i == 0: pmul(k, U + 2, U, U)
            else: pfma(k, U + 2, U, U, U + 2)
        k(f"v_add_f32 v{S+2+jj}, v{U+2}, v{U+3}")
    k(f"v_add_f32 v{R+6}, v{R+6}, v{S}")
    red1((2,))
    k(f"""v_mul_f32 v{S+2}, s46, v{S+2}
    v_fma_f32 v{S+2}, -v{R+6}, v{R+6}, v{S+2}
    v_max_f32 v{S+2}, 0, v{S+2}
    s_branch f_var""")
    k.c("---- group 0, wave 0: the shift vector enters the row 0 accumulators ----")
    k("f_sa:\ns_add_u32 s69, s69, %d" % (6 << 23))
    t = D
    pick(CP + 8)
    k(f"""v_mul_f32 v{CP+8}, s69, v{CP+8}
    v_and_b32 v{t+4}, 15, v0
    v_cvt_pk_f16_f32 v{t}, v{CP+8}, v{CP+8}
    v_cmp_eq_u32 vcc, 0, v{t+4}
    v_mov_b32 v{t+6}, 0x3c00
    v_mov_b32 v{t+7}, 0xbc000000
    v_cndmask_b32 v{t+6}, 0, v{t+6}, vcc
    v_cndmask_b32 v{t+7}, 0, v{t+7}, vcc""")
    for i in range(4): k(f"v_mov_b32_dpp v{BC+i}, v{t} quad_perm:[{i},{i},{i},{i}] {DPPM}")
    SO = t + 24
    for part in range(2):
        for i in range(4): k(f"v_pk_mul_f16 v{SO+4*part+i}, v{t+6+part}, v{BC+i}")
    for part in range(2):
        k(f"v_mfma_f32_16x16x32_f16 v[{CP+4*part}:{CP+4*part+3}], v[{SO+4*part}:{SO+4*part+3}], v[{TB}:{TB+3}], 0")
    k(f"""s_lshl_b32 s70, s16, 7
    v_add_u32 v{t+4}, s70, v{KR_}
    s_mov_b64 exec, 0xffff
    ds_write2_b32 v{t+4}, v{CP}, v{CP+4} offset0:0 offset1:16
    s_mov_b64 exec, -1
    s_branch f_nsa
    f_sb:""")
    k.lines = [l.replace(f"v_add_u32 v{t+4}, s70, v{KR_}", f"v_add3_u32 v{t+4}, s70, v{KR_}, v{t+5}") for l in k.lines]
    i0 = max(i for i, l in enumerate(k.lines) if "v_add3_u32" in l)
    k.lines.insert(i0, f"    v_mov_b32 v{t+5}, {L_K + 16 - L_KEY}")
    k(f"""v_mov_b32 v{D}, s32
    v_mov_b32 v{D+1}, s61
    v_mov_b32 v{D+2}, 0
    s_cmp_lg_u32 s17, 0
    s_cselect_b64 exec, 1, 0
    buffer_store_dwordx2 v[{D}:{D+1}], v{D+2}, s[12:15], s79 offen sc1
    s_mov_b64 exec, -1
    s_cmp_lg_u32 s34, 0
    s_cbranch_scc1 f_sb2
    s_mov_b64 exec, 0xffff""")
    for u in range(8): k(f"ds_read_b32 v{D+8+u}, v{KR_} offset:{L_K + 16 - L_KEY + u*64}")
    k("s_waitcnt lgkmcnt(0)")
    for u in range(8): k(f"v_add_f32 v{D3+4*u}, v{D3+4*u}, v{D+8+u}")
    k("s_mov_b64 exec, -1\nf_sb2:")
    k("s_branch f_nsb")
    k.c("---- rows 0 and 1024 travel as one complex row ----")
    k("f_sp:")
    if E("SPP", 0): k("s_setprio 3")
    YI, YM, YM2, YE = 96, 32, 192, 152
    P1, P2 = L_S, L_S + 4352
    for j in range(4): st4(Y, 2, j)
    k(f"""v_subrev_u32 v25, s45, v{XA_}
    v_lshlrev_b32 v25, 1, v25
    v_sub_u32 v26, 1008, v25""")
    for j in range(4):
        st4(Y, 3, j)
        for r in range(4*j, 4*j + 4): k(f"v_pk_mul_f16 v{L+r}, v{L+r}, 1.0 op_sel:[1,0] op_sel_hi:[0,0] neg_hi:[1,0]")
    def img(src, base, T):
        k(f"ds_write_b128 v25, v[{src+4*T}:{src+4*T+3}] offset:{base + 1024*T}")
        if T == 0: k(f"s_mov_b64 exec, 1\nds_write_b32 v25, v{src} offset:{base + 4096}\ns_mov_b64 exec, -1")
    k.c("v25: own block, v26: mirror block")
    for T in range(4):
        for j in range(4): st4(YI, T, j)
        img(Y, P1, T)
    for T in range(4):
        k(f"ds_read_b128 v[{YM+4*T}:{YM+4*T+3}], v26 offset:{P1 + 1024*(3-T)}")
        k(f"ds_read_b32 v{YE+T}, v26 offset:{P1 + 1024*(3-T) + 16}")
    for T in range(4): img(YI, P2, T)
    k("s_waitcnt lgkmcnt(5)")
    for T in range(4):
        k(f"ds_read_b128 v[{YM2+4*T}:{YM2+4*T+3}], v26 offset:{P2 + 1024*(3-T)}")
        k(f"ds_read_b32 v{YE+4+T}, v25 offset:{P2 + 1024*T + 16}")
    for T in range(4):
        k(f"v_add_f32 v{Y+4*T}, v{Y+4*T}, v{YE+T}")
        for i in range(1, 4): k(f"v_add_f32 v{Y+4*T+i}, v{Y+4*T+i}, v{YM+4*T+4-i}")
    for T in range(4): xa(T)
    for i in range(8): acc(XA2, VA, tA, i, i == 0)
    for i in range(1, 8): padd(k, tA, XA2 if i == 1 else tA, XA2 + 2*i)
    k("s_waitcnt lgkmcnt(0)")
    for T in range(4):
        k(f"v_add_f32 v{YM2+4*T}, v{YM2+4*T}, v{YE+4+T}")
        for s_ in range(1, 4): k(f"v_add_f32 v{YM2+4*T+s_}, v{YM2+4*T+s_}, v{YI+4*T+4-s_}")
    for i in range(8): pfma(k, XB2 + 2*i, GB_ + 2*i, YM2 + 2*i, XB2 + 2*i)
    for i in range(8): acc(XB2, VB, tB, i, i == 0)
    for i in range(1, 8): padd(k, tB, XB2 if i == 1 else tB, XB2 + 2*i)
    if E("SPP", 0): k("s_setprio 0")
    k("s_branch f_join")

class VM:
    def __init__(self, k): self.k = k; self.q = []
    def add(self, tag, n=1): self.q += [tag] * n
    def wait(self, tag, extra=""):
        idx = max(i for i, t in enumerate(self.q) if t == tag)
        n = len(self.q) - 1 - idx
        self.k(f"s_waitcnt vmcnt({n}) {extra}".strip())
        self.q = self.q[idx + 1:]

def role_G(k):
    L_SI = 131072; L_H = 131072 + 512; L_A = L_H + 2048
    k("g_start:")
    nonce_issue(k, 6)
    srd(k, 44, 20, 2048)
    k(f"""v_and_b32 v6, 127, v0
    v_lshlrev_b32 v6, 1, v6
    s_lshl_b32 s19, s34, 8
    buffer_load_ushort v110, v6, s[44:47], s19 offen""")
    k.c("s35 = mm ; s64 = cluster ; s65 = kq ; s66 = 1 for X ; s40 = ks")
    k(f"""s_and_b32 s65, s35, 1
    s_lshr_b32 s40, s35, 1
    s_mul_i32 s64, s34, 7
    s_add_u32 s64, s64, s40
    s_cmp_ge_u32 s35, 14
    s_cselect_b32 s66, 1, 0
    s_mov_b32 s40, s34
    v_bfe_u32 v5, v0, 5, 1
    v_lshlrev_b32 v5, 3, v5
    v_bfe_u32 v9, v0, 3, 2
    v_add_u32 v5, v5, v9
    v_lshlrev_b32 v9, 1, v7
    v_xor_b32 v9, v9, v0
    v_and_b32 v9, 7, v9
    v_lshlrev_b32 v9, 4, v9
    s_movk_i32 s42, 7168
    v_mad_u32_u24 v5, v5, s42, v9
    v_mov_b32 v104, -1
    v_mov_b32 v105, -1
    v_mov_b32 v106, -1
    v_mov_b32 v107, -1
    v_mov_b32 v14, 0
    s_lshl_b32 s38, s64, 12
    s_lshl_b32 s42, s16, 9
    s_add_u32 s38, s38, s42
    s_mul_i32 s42, s65, {WS_XB - WS_XA}
    s_add_u32 s38, s38, s42
    s_add_u32 s38, s38, {WS_XA}""")
    srd(k, 12, 6, WS_SIZE)
    if E("TOUCH", 1):
        k.c("first touch of the small hand-off lines (brings them on die; the values are not used)")
        k(f"""s_lshl_b32 s42, s35, 3
        s_add_u32 s42, s42, s34
        s_lshl_b32 s42, s42, 3
        s_add_u32 s42, s42, s16
        s_lshl_b32 s42, s42, 8
        s_add_u32 s42, s42, {WS_CAP}
        v_lshlrev_b32 v9, 7, v2
        s_mov_b64 exec, 3
        buffer_load_dword v251, v9, s[12:15], s42 offen
        s_mov_b64 exec, -1""")
    srd(k, 44, 50, 1024 * 3584 * 2)
    srd(k, 60, 52, 1024 * 3584 * 2)
    srd(k, 72, 54, 1024 * 3584 * 2)
    k("s_mov_b32 s26, 4194304\ns_mov_b32 s27, 0x00020000")
    k.c("s67 gate/up base ; s69 down base ; v12 block read ; v8..v11 down read ; v21..v24 down source")
    k(f"""s_lshl_b32 s67, s65, 4
    s_add_u32 s67, s67, s16
    s_mul_i32 s67, s67, {32*7168}
    s_lshl_b32 s42, s64, 7
    s_add_u32 s67, s67, s42
    s_lshl_b32 s42, s64, 6
    s_and_b32 s43, s16, 3
    s_lshl_b32 s43, s43, 3
    s_add_u32 s42, s42, s43
    s_and_b32 s43, s16, 4
    s_add_u32 s42, s42, s43
    s_lshl_b32 s69, s42, 11
    s_lshl_b32 s43, s65, 10
    s_add_u32 s69, s69, s43
    s_and_b32 s43, s16, 1
    s_lshl_b32 s43, s43, 7
    v_xor_b32 v21, s43, v3
    v_xor_b32 v22, 32, v21
    v_xor_b32 v23, 64, v21
    v_xor_b32 v24, 96, v21
    v_add_u32 v109, {L_SI}, v6""")
    vm = VM(k)
    for j in range(4): vm.add(j)
    vm.add("c")
    if E("TOUCH", 1): vm.add("t")
    RV = ((1, 0), (4, 2), (3, 5))
    order = ES("ORDER", "R0,R1,R2,D0,D1,G0,G1,U0,U1").split(",")
    NT = ES("NTW", "")
    def issue(j):
        ci, d = j >> 2, j & 3
        nm = order[ci]; kind, h = nm[0], int(nm[1]); slot = (ci % 4) * 32768
        if kind == "R" and d == 0:
            k(f"s_mul_i32 s70, s41, {(RV[h][1]-RV[h][0])*2048}\ns_add_u32 s70, s70, {RV[h][0]*2048}\ns_add_u32 s70, s70, s18")
            k(f"s_add_u32 s42, s17, {h}\ns_and_b32 s42, s42, 7\ns_lshl_b32 s42, s42, 8\ns_add_u32 s70, s70, s42")
        k(f"s_add_u32 s43, s68, {slot + d*1024}")
        k("s_mov_b32 m0, s43")
        if kind == "D":
            k(f"s_add_u32 s42, s69, {(32*h + d)*2048}")
        else:
            rows = 16 * (d & 1) + 4 * (d >> 1)
            if kind == "R": k(f"s_add_u32 s42, s70, {4*d*12288}")
            else: k(f"s_add_u32 s42, s67, {(256*h + rows)*7168}")
        if j - DEPTH in vm.q: vm.wait(j - DEPTH)
        va, sb = {"R": ((4, 31)[d >> 1], 8), "G": (5, 44), "U": (5, 60), "D": (21 + d, 72)}[kind]
        if ci >= 9 - E("MCUT", 0): k("s_mov_b32 s42, 0")
        if ci == 2 and d >= 4 - E("RCUT", 0): k("s_mov_b32 s42, 0")
        k(f"buffer_load_dwordx4 v{va}, s[{sb}:{sb+3}], s42 offen {'nt' if kind in ES('NTK', '') else ''} lds")
        vm.add(j)
    pf = """s_mov_b32 exec_hi, 0
    buffer_store_dwordx4 v[104:107], v3, s[12:15], s38 offen sc1
    s_mov_b64 exec, -1"""
    def silu_c():
        k(f"""v_lshlrev_b32 v110, 16, v110
        v_mul_f32 v111, {LOG2E}, v110
        v_exp_f32 v111, v111
        v_add_f32 v111, 1.0, v111
        v_rcp_f32 v111, v111
        v_mul_f32 v110, v110, v111
        v_cvt_pk_bf16_f32 v110, v110, v110
        ds_write_b16 v109, v110""")
    GST = E("GST", 0); DEPTH = E("DEPTH", 4); HOLD = E("HOLD", 99)
    def hold(p):
        if E("HSL", 0):
            k(f"s_sleep {E('HSL', 0)}"); return
        k.c("hold the stream until the neighbour's first exchange is under way (hint only, bounded)")
        k(f"""s_cmp_lg_u32 s16, 0
        s_cbranch_scc1 {p}_zlx
        s_lshl_b32 s42, s34, 4
        s_add_u32 s42, s42, s35
        s_lshl_b32 s42, s42, 7
        s_add_u32 s42, s42, {WS_ZL}
        s_mov_b32 s83, 0
        {p}_zl:
        buffer_load_dword v16, v14, s[12:15], s42 offen sc1
        s_waitcnt vmcnt(0)
        v_readfirstlane_b32 s43, v16
        s_cmp_eq_u32 s43, s32
        s_cbranch_scc1 {p}_zlx
        s_sleep {E("ZLS", 3)}
        s_add_u32 s83, s83, 1
        s_cmp_lt_u32 s83, 32
        s_cbranch_scc1 {p}_zl
        {p}_zlx:
        {f"s_sleep {E('ZLD', 0)}" if E('ZLD', 0) else ""}
        s_barrier""")
    k(f"""v_lshrrev_b32 v6, 2, v2
    v_and_b32 v15, 3, v0
    v_bfe_u32 v16, v0, 3, 2
    v_xor_b32 v12, v16, v1
    v_and_b32 v12, 3, v12
    v_lshlrev_b32 v12, 5, v12
    v_lshl_add_u32 v12, v6, 7, v12
    v_lshl_add_u32 v12, v15, 3, v12
    v_lshrrev_b32 v16, 2, v1
    v_lshl_add_u32 v12, v16, 14, v12
    v_add_u32 v25, 65536, v12
    v_and_b32 v17, 7, v6
    v_lshlrev_b32 v8, 2, v1
    v_xor_b32 v8, v8, v17
    v_lshlrev_b32 v8, 5, v8
    v_lshl_add_u32 v8, v6, 10, v8
    v_lshl_add_u32 v8, v15, 3, v8
    v_xor_b32 v9, 32, v8
    v_xor_b32 v10, 64, v8
    v_xor_b32 v11, 96, v8
    v_and_b32 v6, 1, v0
    v_lshlrev_b32 v17, 10, v6
    v_lshl_add_u32 v17, v16, 8, v17
    v_bfe_u32 v18, v0, 1, 1
    v_lshlrev_b32 v19, 4, v18
    v_lshl_add_u32 v19, v7, 5, v19
    v_add_u32 v17, v17, v19
    v_add_u32 v17, {L_H}, v17
    v_lshl_add_u32 v19, v6, 7, v19
    v_add_u32 v19, {L_A}, v19
    v_mul_u32_u24 v213, 0xaaaa, v18
    v_add_u32 v213, 0x4444, v213
    v_lshlrev_b32 v18, 4, v18
    v_lshl_add_u32 v18, v6, 1, v18
    v_and_b32 v6, 12, v0
    v_add_u32 v18, v18, v6
    v_and_b32 v6, 15, v0
    v_lshl_add_u32 v18, v1, 5, v18
    v_lshl_add_u32 v18, v7, 7, v18
    v_add_u32 v18, {L_A}, v18
    v_lshlrev_b32 v20, 2, v6
    v_lshl_add_u32 v20, v1, 14, v20
    {"v_lshl_add_u32 v20, v7, 12, v20" if not E("PL", 0) else "v_and_b32 v16, 1, v7"}
    {"" if not E("PL", 0) else "v_lshl_add_u32 v20, v16, 6, v20"}
    {"" if not E("PL", 0) else "v_lshrrev_b32 v16, 1, v7"}
    {"" if not E("PL", 0) else "v_lshl_add_u32 v20, v16, 13, v20"}
    v_lshlrev_b32 v26, 4, v7
    v_add_u32 v27, {L_SI}, v26
    v_lshlrev_b32 v28, 11, v7
    v_bfe_u32 v29, v0, 2, 3
    v_xor_b32 v29, v29, v1
    v_lshl_add_u32 v29, v29, 5, v28
    v_bfe_u32 v30, v0, 2, 2
    v_lshl_add_u32 v29, v30, 8, v29
    v_lshl_add_u32 v29, v15, 3, v29
    v_add_u32 v30, 65536, v29""")
    k.c("partial-sum destinations: s30 (ca|sa), s31 (others)")
    k(f"""s_lshl_b32 s30, s41, 15
    s_and_b32 s42, s16, 3
    s_lshl_b32 s42, s42, 13
    s_add_u32 s30, s30, s42
    s_lshl_b32 s42, s40, 8
    s_add_u32 s30, s30, s42
    s_lshl_b32 s42, s17, 1
    s_lshr_b32 s43, s16, 2
    s_add_u32 s42, s42, s43
    s_lshl_b32 s42, s42, 4
    s_add_u32 s30, s30, s42
    s_add_u32 s30, s30, {WS_CAP}
    s_lshl_b32 s31, s41, 5
    s_lshr_b32 s42, s16, 1
    s_add_u32 s31, s31, s42
    s_lshl_b32 s31, s31, 10
    s_lshl_b32 s42, s40, 7
    s_add_u32 s31, s31, s42
    s_and_b32 s42, s16, 1
    s_lshl_b32 s42, s42, 6
    s_add_u32 s31, s31, s42
    s_add_u32 s31, s31, {WS_MODP}
    s_movk_i32 s33, 0xff""")
    BD, BG, BU, SC, RB, RD, NB = 32, 64, 96, 128, 144, 160, 164
    def blockreads(ci, base):
        slot = (ci % 4) * 32768
        va, off = (12, slot) if slot < 65536 else (25, slot - 65536)
        for ks in range(4):
            k(f"ds_read_b64_tr_b16 v[{base+4*ks}:{base+4*ks+1}], v{va} offset:{off + ks*4096}")
            k(f"ds_read_b64_tr_b16 v[{base+4*ks+2}:{base+4*ks+3}], v{va} offset:{off + ks*4096 + 2048}")
    KB = 136; HA = 128; AG = 160
    KRIDE = 0
    PM = 192; ET = 208
    def pm_issue(fl):
        for u in range(4):
            k(f"buffer_load_dwordx4 v[{PM+4*u}:{PM+4*u+3}], v212, s[12:15], s{(36, 37)[u >> 1]} offen offset:{(u & 1)*16} {fl}")
    def consume(ci, p):
        nm = order[ci]; kind, h = nm[0], int(nm[1])
        if ci == 0: vm.wait("c"); silu_c()
        if 4*ci + 3 in vm.q: vm.wait(4*ci + 3)
        if ci == 2 and "pf" in vm.q: vm.wait("pf")
        k("s_waitcnt lgkmcnt(0)\ns_barrier")
        stamp(k, 20 + ci)
        if kind == "R":
            if ci == 0:
                for ks in range(4): k(f"ds_read_b128 v[{SC+4*ks}:{SC+4*ks+3}], v27 offset:{ks*64}")
            slot = (ci % 4) * 32768
            va, off = (29, slot) if slot < 65536 else (30, slot - 65536)
            for ks in range(4):
                for e in range(2):
                    k(f"ds_read_b64_tr_b16 v[{RB+4*ks+2*e}:{RB+4*ks+2*e+1}], v{va} offset:{off + ks*8192 + e*1024}")
            if ci == 0:
                nonce_finish(k)
                for i in range(4): k(f"v_mov_b32 v{NB+i}, s{56+i}")
            for ks in range(4):
                k(f"s_waitcnt lgkmcnt({6-2*ks})")
                cc = "0" if ks == 0 else f"v[{RD}:{RD+3}]"
                k(f"v_mfma_f32_16x16x32_bf16 v[{RD}:{RD+3}], v[{RB+4*ks}:{RB+4*ks+3}], v[{SC+4*ks}:{SC+4*ks+3}], {cc}")
            if h > 0: k(f"s_add_u32 s42, s17, {h}\ns_and_b32 s42, s42, 7\ns_lshl_b32 s42, s42, 12\ns_add_u32 s42, s42, s31\ns_add_u32 s42, s42, {(h-1)*65536}")
            for i in range(4): k(f"v_bfi_b32 v{RD+i}, s33, v{NB+i}, v{RD+i}")
            if not E("NOST", 0):
                k(f"""s_mov_b32 exec_lo, 0x00010001
                s_mov_b32 exec_hi, 0x00010001
                buffer_store_dwordx4 v[{RD}:{RD+3}], v{28 if h == 0 else 26}, s[12:15], s{30 if h == 0 else 42} offen sc1
                s_mov_b64 exec, -1""")
                vm.add("st")
            stamp(k, 3 + ci)
            pass
            if ci == 2 and p == "m": msetup()
            return
        frags(ci)
    def frags(ci):
        nm = order[ci]; kind, h = nm[0], int(nm[1])
        if kind == "D":
            slot = (ci % 4) * 32768
            if slot >= 65536:
                for t in range(4): k(f"v_add_u32 v{168+t}, 65536, v{8+t}")
            for t in range(4):
                b_ = BD + t*8 + h*4
                va, off = (8 + t, slot) if slot < 65536 else (168 + t, slot - 65536)
                k(f"ds_read_b64_tr_b16 v[{b_}:{b_+1}], v{va} offset:{off}")
                k(f"ds_read_b64_tr_b16 v[{b_+2}:{b_+3}], v{va} offset:{off+16384}")
        else:
            blockreads(ci, (BG if kind == "G" else BU) + 16*h)
    def stream(p):
        nonlocal DEPTH
        n = 36 if p == "m" else 12
        done = 0
        DEPTH = E("DEPTH", 4)
        for j in range(4, n):
            if j == 4 * HOLD and p == "m":
                while done < HOLD: consume(done, p); done += 1
                hold(p)
            if j == 4 and E("GAP", 0) and p == "m":
                if E("GAP", 0) == 1: consume(0, p); done = 1
                else: vm.wait(E("GAP", 0))
            DEPTH = int(ES("DEPTHS", "444466666")[j >> 2])
            if j == E("AUXJ", 32) and p == "m":
                k.c("wave 0: side loads ride in the stream")
                k("""v_lshlrev_b32 v30, 6, v2
                s_cmp_eq_u32 s16, 0
                s_cselect_b64 exec, -1, 0
                buffer_load_dword v31, v30, s[12:15], s81 offen sc1
                buffer_load_dwordx2 v[188:189], v14, s[12:15], s38 offen sc1""")
                pm_issue("")
                vm.add("aux", 6)
                k("s_mov_b64 exec, -1")
            if j == E("GOJ", 34) and p == "m":
                k("""s_cmp_eq_u32 s16, 0
                s_cselect_b64 exec, -1, 0
                buffer_load_dword v15, v14, s[12:15], s78 offen offset:2048 sc1
                s_mov_b64 exec, -1""")
                vm.add("go")
            issue(j)
            while done < (j + 1) // 4 and 4*done + 3 not in vm.q: consume(done, p); done += 1
        while done < min(n // 4, 8): consume(done, p); done += 1
    def msetup():
        k.c("================= M: weight stream =================")
        k(f"""s_getreg_b32 s39, hwreg(HW_REG_XCC_ID)
        s_and_b32 s39, s39, 7
        s_lshl_b32 s38, s64, 1
        s_add_u32 s38, s38, s65
        s_lshl_b32 s38, s38, 7
        s_add_u32 s38, s38, {WS_MX}
        s_lshl_b32 s42, s16, 28
        v_mov_b32 v28, s32
        v_mov_b32 v29, s39
        v_mov_b32 v30, s42
        s_mov_b64 exec, 1
        buffer_store_dwordx2 v[28:29], v30, s[12:15], s38 offen sc1
        s_mov_b64 exec, -1
        s_xor_b32 s38, s38, 128""")
        vm.add("mx")
        if E("HELP", 3):
            k.c("the line group whose address class streams slowly is pulled into L2 by all M workgroups of the die")
            HM = E("HELP", 3)
            nl = {1: 19, 2: 10, 3: 5}[HM]
            k(f"""s_cmp_eq_u32 s65, {"s65" if HM > 1 else 0}
            s_cselect_b32 s8, s50, s52
            s_cselect_b32 s9, s51, s53
            s_mov_b32 s10, {1024*3584*2}
            s_lshr_b32 s42, s8, 7
            s_sub_u32 s42, {E("CLS", 3)}, s42
            s_add_u32 s42, s42, s34
            s_and_b32 s42, s42, 7
            s_cmp_eq_u32 s42, 7
            s_cselect_b32 s70, 0x1000000, 0
            s_mul_i32 s43, s34, 7
            s_add_u32 s42, s42, s43
            s_lshl_b32 s42, s42, 7
            s_lshr_b32 s43, s35, {0 if HM == 2 else 1}
            s_lshl_b32 s43, s43, 3
            s_add_u32 s43, s43, s16
            s_mul_i32 s43, s43, {nl*7168}
            s_add_u32 s42, s42, s43
            s_add_u32 s42, s42, s70""")
            if HM == 3: k(f"s_mul_i32 s43, s65, {512*7168}\ns_add_u32 s42, s42, s43\ns_add_u32 s42, s42, {232*7168}")
            k(f"""v_mul_u32_u24 v30, 7168, v2
            s_mov_b64 exec, {(1 << nl) - 1}
            buffer_load_dword v252, v30, s[8:11], s42 offen
            s_mov_b64 exec, -1""")
            vm.add("help")
        k(f"""        v_and_b32 v191, 3, v0
        v_lshlrev_b32 v191, 3, v191
        v_lshrrev_b32 v191, v191, s32
        v_lshlrev_b32 v212, 5, v2
        s_lshl_b32 s36, s65, 11
        s_add_u32 s37, s36, {WS_PAR + 2*4096}
        s_add_u32 s36, s36, {WS_PAR + 4*4096}
        s_mov_b32 s18, {ZMASK}
        s_mov_b32 s19, 0x00020002
        v_and_b32 v{ET}, 1, v0
        v_lshlrev_b32 v{ET}, 3, v{ET}
        s_not_b32 s42, s32
        v_lshrrev_b32 v{ET}, v{ET}, s42
        v_lshrrev_b32 v{ET+1}, 2, v{ET}
        v_lshrrev_b32 v{ET+2}, 4, v{ET}
        v_lshrrev_b32 v{ET+3}, 6, v{ET}
        v_and_b32 v{ET}, s18, v{ET}
        v_and_b32 v{ET+1}, s18, v{ET+1}
        v_and_b32 v{ET+2}, s18, v{ET+2}
        v_and_b32 v{ET+3}, s18, v{ET+3}
        v_mov_b32 v216, s56
        v_mov_b32 v217, s57
        v_mov_b32 v218, s58
        v_mov_b32 v219, s59
        v_and_b32 v13, 1, v0
        v_lshlrev_b32 v13, 3, v13
        v_sub_u32 v13, v3, v13
        v_add_u32 v13, {L_H}, v13
        s_lshl_b32 s71, s65, 10
        s_add_u32 s71, s71, {WS_SLOT}
        s_lshl_b32 s30, s65, 17
        s_lshl_b32 s31, s64, {7 if E("PL", 0) else 6}
        s_add_u32 s30, s30, s31
        s_add_u32 s30, s30, {WS_PART}
        s_add_u32 s31, s30, {64*4096}
        s_lshl_b32 s79, s64, 2
        s_and_b32 s42, s16, 3
        s_add_u32 s79, s79, s42
        s_lshl_b32 s79, s79, 10
        s_add_u32 s81, s79, {WS_XA}
        s_add_u32 s82, s79, {WS_XB}
        s_lshl_b32 s76, s65, 1
        s_lshr_b32 s42, s16, 2
        s_add_u32 s76, s76, s42
        s_lshl_b32 s76, s76, 8
        s_add_u32 s77, s76, s82
        s_add_u32 s76, s76, s81
        s_lshl_b32 s78, s34, 12
        s_add_u32 s78, s78, {WS_KEY}""")
    k("s_cmp_eq_u32 s66, 1\ns_cbranch_scc1 x_start")
    q0 = list(vm.q)
    stream("m")
    if E("GONLY", 0): stamp(k, 7); stamp_out(k); k("s_endpgm")
    stamp(k, 7)
    DA_ = 144
    for i in range(12): k(f"v_mov_b32 v{AG+i}, 0")
    k(f"v_mov_b32 v190, {L_A + 1024}\ns_cmp_lg_u32 s16, 0\ns_cbranch_scc1 m_nk\ns_mov_b32 s83, 0")
    if "aux" in vm.q: vm.wait("aux")
    k("""v_xor_b32 v188, s32, v188
    v_xor_b32 v189, s39, v189
    v_or_b32 v188, v188, v189
    ds_write_b32 v190, v188
    m_pm:""")
    chk_bytes(k, range(PM, PM + 16), 30)
    k(f"""s_cbranch_vccz m_pmx
    s_sleep 4""")
    pm_issue("sc1")
    k(f"""s_waitcnt vmcnt(0)
    {spin("m_pm", 0)}
    m_pmx:
    s_mov_b32 s83, 0""")
    vm.wait("go")
    k(f"""m_go:
    v_cmp_ne_u32 vcc, s32, v15
    s_cbranch_vccz m_gox
    s_sleep {E("SLG", 3)}
    buffer_load_dword v15, v14, s[12:15], s78 offen offset:2048 sc1
    s_waitcnt vmcnt(0)
    {spin("m_go", 0)}
    m_gox:""")
    if E("SLG2", 0): k(f"s_sleep {E('SLG2', 0)}")
    stamp(k, 40)
    def kbody(b0, cnt, last):
        k(f"""s_waitcnt vmcnt({cnt})
        v_max_u32 v28, v{b0}, v{b0+4}
        v_xor_b32 v31, s32, v{b0+2}
        v_bitop3_b32 v31, v31, v{b0+6}, s32 bitop3:0xf6
        v_max_u32_dpp v30, v28, v28 row_ror:8 {DPPM}
        v_cmp_ne_u32 vcc, 0, v31
        v_min_u32 v29, v{b0}, v{b0+4}
        v_max_u32_dpp v30, v30, v30 row_ror:4 {DPPM}
        v_max3_u32 v29, v29, v{b0+1}, v{b0+5}
        s_and_b64 vcc, vcc, s[20:21]
        v_max_u32_dpp v30, v30, v30 row_ror:2 {DPPM}
        {last}""")
    cnt3 = f"s_add_u32 s83, s83, 1\ns_cmp_lt_u32 s83, {SPIN}\ns_cselect_b64 s[20:21], -1, 0"
    if E("KD", 2) == 1:
        k(f"s_mov_b32 s83, 0\ns_branch m_pk\nm_pk0:\ns_sleep {E('SL2', 4)}\nm_pk:")
        keys_issue(k, KB, 78)
        k(cnt3)
        kbody(KB, 0, "s_cbranch_scc1 m_pk0")
    else:
        k("s_mov_b32 s83, 0")
        keys_issue(k, KB, 78)
        k(f"s_sleep {E('KST', 4)}\nm_pk:")
        keys_issue(k, KB + 8, 78)
        k(cnt3)
        kbody(KB, 2, "s_cbranch_scc0 m_pkx")
        if E("KSL", 0): k(f"s_sleep {E('KSL', 0)}")
        keys_issue(k, KB, 78)
        kbody(KB + 8, 2, "s_cbranch_scc0 m_pkx")
        if E("KSL", 0): k(f"s_sleep {E('KSL', 0)}")
        k("s_branch m_pk\nm_pkx:\ns_nop 0")
    stamp(k, 13)
    stamp_val(k, 42, 83)
    k(f"""v_max_u32_dpp v30, v30, v30 row_ror:1 {DPPM}
    v_max_u32_dpp v30, v30, v30 row_bcast:15 row_mask:0xa bank_mask:0xf
    v_max_u32_dpp v30, v30, v30 row_bcast:31 row_mask:0xc bank_mask:0xf
    v_readlane_b32 s40, v30, 63
    s_and_b32 s42, s40, 0xff
    s_lshl_b32 s42, s42, 11
    v_cmp_eq_u32 vcc, s40, v28
    s_add_u32 s42, s42, s71
    buffer_load_dwordx4 v[176:179], v3, s[12:15], s42 offen sc1
    v_cndmask_b32 v30, v28, v29, vcc""")
    wave_reduce_to63(k, [30], "v_max_u32")
    hl = """buffer_load_dwordx4 v[176:179], v3, s[12:15], s42 offen sc1
    buffer_load_dwordx4 v[180:183], v3, s[12:15], s43 offen sc1"""
    k(f"""v_readlane_b32 s41, v30, 63
    s_and_b32 s41, s41, 0xff
    s_lshl_b32 s43, s41, 11
    s_add_u32 s43, s43, s71
    buffer_load_dwordx4 v[180:183], v3, s[12:15], s43 offen sc1
    s_and_b32 s40, s40, 0xff
    s_mov_b32 s83, 0
    s_lshl_b32 s41, s41, 8
    s_or_b32 s40, s40, s41
    v_mov_b32 v28, s40
    v_mov_b32 v29, s32
    s_cmp_eq_u32 s35, {99 if E("XKEY", 0) else 0}
    s_cselect_b64 exec, 1, 0
    buffer_store_dwordx2 v[28:29], v14, s[12:15], s78 offen offset:2304 sc1
    s_mov_b64 exec, -1
    s_barrier""")
    frags(8)
    k("m_ph:")
    for r in range(2):
        b0 = 176 + 4*r; f0 = 220 + 8*r
        k(f"s_waitcnt vmcnt({2-r})")
        for i in range(4): k(f"v_xor_b32 v{b0+i}, v{b0+i}, v{ET+i}")
        for e in range(8):
            k(f"v_fma_mix_f32 v{f0+e}, v{b0+(e>>1)}, v{PM+e}, v{PM+8+e} op_sel:[{e&1},0,0] op_sel_hi:[1,0,0]")
        for i in range(4): k(f"v_cvt_pk_bf16_f32 v{236+4*r+(i&1)*2+(i>>1)}, v{f0+2*i}, v{f0+2*i+1}")
        k(f"ds_write2_b64 v13, v[{236+4*r}:{237+4*r}], v[{238+4*r}:{239+4*r}] offset0:{128*r} offset1:{128*r+2}")
        for i in range(4):
            k("v_xor_b32 v30, s19, v176" if r + i == 0 else f"v_bitop3_b32 v30, v30, v{b0+i}, s19 bitop3:0xf6")
    k("v_and_b32 v30, s18, v30\nv_cmp_ne_u32 vcc, 0, v30")
    k(f"""s_cbranch_vccnz m_phb
    m_phx:""")
    stamp(k, 14)
    k("m_nk2:\ns_waitcnt lgkmcnt(0)\ns_barrier\nds_read_b32 v188, v190")
    k.c("each row is split into two 2:4-sparse rows, so one sparse MFMA covers 64 k")
    for u in range(4):
        k(f"ds_read_b128 v[{HA+4*u}:{HA+4*u+3}], v17 offset:{(u>>1)*512 + (u&1)*128}")
    for u in range(4):
        k(f"s_waitcnt lgkmcnt({3-u})")
        for a_, b_ in ((AG, BG), (AG + 4, BU)):
            k(f"v_smfmac_f32_16x16x64_bf16 v[{a_}:{a_+3}], v[{HA+4*u}:{HA+4*u+3}], v[{b_+8*u}:{b_+8*u+7}], v213")
    PB = 184
    k(f"""v_readfirstlane_b32 s70, v188
    s_mov_b32 s83, 0
    s_cmp_eq_u32 s70, 0
    s_cselect_b32 s82, s81, s82
    s_cselect_b64 s[20:21], 0, 0xffff
    v_pk_add_f32 v[{AG}:{AG+1}], v[{AG}:{AG+1}], v[{AG+2}:{AG+3}]
    v_pk_add_f32 v[{AG+4}:{AG+5}], v[{AG+4}:{AG+5}], v[{AG+6}:{AG+7}]
    v_bfi_b32 v{PB}, s33, v216, v{AG}
    v_bfi_b32 v{PB+1}, s33, v217, v{AG+1}
    v_bfi_b32 v{PB+2}, s33, v218, v{AG+4}
    v_bfi_b32 v{PB+3}, s33, v219, v{AG+5}
    s_mov_b64 exec, 0xffff
    buffer_store_dwordx4 v[{PB}:{PB+3}], v3, s[12:15], s76 offen {ES('XAS', '')}
    s_mov_b64 exec, s[20:21]
    buffer_store_dwordx4 v[{PB}:{PB+3}], v3, s[12:15], s77 offen sc1
    s_mov_b64 exec, -1""")
    for i in range(16): k(f"v_mov_b32 v{DA_+i}, 0")
    k("s_cmp_ge_u32 s16, 4\ns_cbranch_scc1 m_na")
    if E("SL3", 1): k(f"s_sleep {E('SL3', 1)}")
    stamp(k, 15)
    R = 24
    k(f"""m_px:
    buffer_load_dwordx4 v[{R}:{R+3}], v3, s[12:15], s81 offen sc1
    s_mov_b32 s42, s81
    s_mov_b32 s81, s82
    s_mov_b32 s82, s42
    s_add_u32 s83, s83, 1
    s_cmp_lt_u32 s83, {SPIN}
    s_cselect_b64 s[20:21], -1, 0
    s_waitcnt vmcnt(0)""")
    for i in range(4): k(f"v_xor_b32 v{R+i}, s{56+i}, v{R+i}")
    k(f"""v_or3_b32 v9, v{R}, v{R+1}, v{R+2}
    v_bitop3_b32 v9, v9, v{R+3}, s33 bitop3:0xa8
    v_permlane32_swap_b32 v{R}, v{R+2}
    v_cmp_ne_u32 vcc, 0, v9
    v_permlane32_swap_b32 v{R+1}, v{R+3}
    s_and_b64 vcc, vcc, s[20:21]""")
    padd(k, R, R, R + 2)
    k("s_cbranch_scc1 m_px")
    stamp(k, 16)
    k(f"v_permlane16_swap_b32 v{R}, v{R+1}")
    k(f"v_add_f32 v{R}, v{R}, v{R+1}")
    round_bf16(k, R, R)
    k(f"""v_mul_f32 v{R+1}, {LOG2E}, v{R}
    v_exp_f32 v{R+1}, v{R+1}
    v_mov_b32 v{R+2}, v{R}
    v_add_f32 v{R+1}, 1.0, v{R+1}
    v_rcp_f32 v{R+1}, v{R+1}
    v_mov_b32 v{R+3}, v{R}
    v_mul_f32 v{R+1}, v{R}, v{R+1}
    v_permlane32_swap_b32 v{R+2}, v{R+3}""")
    round_bf16(k, R + 1, R + 1)
    k(f"""v_mul_f32 v{R+1}, v{R+1}, v{R+3}
    v_cvt_pk_bf16_f32 v{R+1}, v{R+1}, v{R+1}
    ds_write_b16 v18, v{R+1}
    m_na:
    s_waitcnt lgkmcnt(0)
    s_barrier""")
    k.c("tile t only feeds rows 4t..4t+3, so lane group g ends up with tile g")
    for t in range(4):
        m_ = 0x000f000f << (4 * t)
        k(f"s_mov_b32 exec_lo, {m_:#x}\ns_mov_b32 exec_hi, {m_:#x}\nds_read_b128 v[{DA_+4*t}:{DA_+4*t+3}], v19")
    k("s_mov_b64 exec, -1")
    for t in range(4):
        k(f"s_waitcnt lgkmcnt({3-t})")
        k(f"v_smfmac_f32_16x16x64_bf16 v[{AG+8}:{AG+11}], v[{DA_+4*t}:{DA_+4*t+3}], v[{BD+8*t}:{BD+8*t+7}], v213")
    padd(k, 24, AG + 8, AG + 10)
    for row in range(2):
        k(f"v_bfi_b32 v{24+row}, s33, v191, v{24+row}")
    for row in range(2):
        k(f"buffer_store_dword v{24+row}, v20, s[12:15], s{30+row} offen sc1")
    stamp(k, 17)
    stamp_out(k)
    k("s_endpgm")
    k("m_nk:\ns_waitcnt vmcnt(0)")
    stamp(k, 18)
    k("s_barrier")
    frags(8)
    k(f"""s_branch m_nk2
    m_phb:
    s_add_u32 s83, s83, 1
    s_cmp_ge_u32 s83, {SPIN}
    s_cbranch_scc1 m_phx
    {hl}
    s_waitcnt vmcnt(0)
    s_branch m_ph""")
    k.c("================= X: finalize ga/cb/sb/gb, then final reduction =================")
    k("x_start:")
    vm.q = list(q0)
    k.c("round = wave>>2 ; unit = (q*8+c)*4 + (wave&3)")
    k(f"""s_lshl_b32 s37, s34, 1
    s_add_u32 s37, s37, s65
    s_lshl_b32 s37, s37, 3
    s_add_u32 s37, s37, s16
    s_lshl_b32 s42, s37, 8
    s_add_u32 s42, s42, {WS_KEY}
    s_mov_b64 exec, 0xffff
    buffer_store_dwordx4 v[104:107], v3, s[12:15], s42 offen sc1
    s_mov_b64 exec, -1
    s_lshl_b32 s36, s37, 12
    s_add_u32 s36, s36, {WS_PART}
    s_lshl_b32 s76, s16, 3
    s_add_u32 s76, s76, s34
    s_lshl_b32 s77, s76, 10
    s_add_u32 s77, s77, {WS_MODP}
    s_lshl_b32 s79, s76, 7
    s_add_u32 s79, s79, {WS_PAR}
    s_lshr_b32 s71, s76, 5
    s_cmp_eq_u32 s71, 0
    s_cselect_b32 s80, 1.0, 0
    s_lshl_b32 s78, s34, 12
    s_add_u32 s78, s78, {WS_KEY}""")
    vm.add("kpf")
    srd(k, 72, 48, 2048)
    k.c("factor: w_r for the (1+cb) columns, 64 for the ga columns")
    k(f"""v_and_b32 v10, 7, v0
    v_lshl_add_u32 v10, v10, 2, v7
    v_lshlrev_b32 v10, 1, v10
    s_lshl_b32 s42, s76, 6
    buffer_load_ushort v10, v10, s[72:75], s42 offen""")
    vm.add("wr")
    stream("x")
    def xhelp(XH):
        XH = XH.split(',') if XH else []
        if XH:
            k.c("the line group whose address class streams slowly is pulled into L2")
            k(f"""v_and_b32 v90, 255, v0
            v_lshrrev_b32 v91, 8, v0
            v_lshl_add_u32 v90, v91, 9, v90
            v_mul_u32_u24 v90, 7168, v90""")
            for i, nm in enumerate(XH):
                sb = 44 if nm[0] == "G" else 60
                k(f"""s_lshr_b32 s42, s{sb}, 7
                s_sub_u32 s42, {E("CLS", 3)}, s42
                s_add_u32 s42, s42, s34
                s_and_b32 s42, s42, 7
                s_cmp_eq_u32 s42, 7
                s_cselect_b32 s70, 0x1000000, 0
                s_mul_i32 s43, s34, 7
                s_add_u32 s42, s42, s43
                s_lshl_b32 s42, s42, 7
                s_add_u32 s42, s42, {int(nm[1])*256*7168}
                s_add_u32 s42, s42, s70
                buffer_load_dword v{92 + i}, v90, s[{sb}:{sb+3}], s42 offen
                s_barrier""")
    def finalize(lab, st):
        k(f"""v_lshlrev_b32 v8, 3, v7
        v_lshrrev_b32 v8, v8, s32
        s_mov_b32 s83, 0
        {lab}:
        buffer_load_dwordx4 v[16:19], v3, s[12:15], s77 offen sc1
        s_waitcnt vmcnt(0)""")
        chk_bytes(k, range(16, 20), 9)
        k(f"s_cbranch_vccz {lab}x\n{spin(lab, E('SLX', 4))}\n{lab}x:")
        stamp(k, st)
        k("v_permlane32_swap_b32 v16, v18\nv_permlane32_swap_b32 v17, v19")
        padd(k, 16, 16, 18)
        k(f"v_permlane16_swap_b32 v16, v17\nv_add_f32 v16, v16, v17\nv_add_f32_dpp v16, v16, v16 row_ror:8 {DPPM}")
        round_bf16(k, 16, 16)
        k("v_add_f32 v16, s80, v16")
        round_bf16(k, 16, 16)
        def put(b, so):
            k(f"""v_bfi_b32 v{b}, s33, v8, v{b}
            v_mov_b32 v{b+1}, v{b}
            v_permlane16_swap_b32 v{b}, v{b+1}
            v_mov_b32 v{b+2}, v{b}
            v_mov_b32 v{b+3}, v{b+1}
            v_permlane32_swap_b32 v{b}, v{b+2}
            v_permlane32_swap_b32 v{b+1}, v{b+3}
            s_mov_b64 exec, 0xff
            buffer_store_dwordx4 v[{b}:{b+3}], v3, s[12:15], s{so} offen sc1
            s_mov_b64 exec, -1""")
        if st == 7:
            k("v_mul_f32 v20, v16, v10")
            put(20, 79)
            k("s_cmp_eq_u32 s80, 0\ns_cbranch_scc1 x_nc\ns_add_u32 s42, s79, 16384")
            put(16, 42)
            k("x_nc:")
        else: put(16, 79)
    k(f"s_cmp_eq_u32 s65, 1\ns_cbranch_scc1 x_na")
    k(f"""s_cmp_eq_u32 s80, 0
    s_cselect_b32 s42, {f32(64.0)}, 0
    v_lshl_or_b32 v10, v10, 16, s42""")
    if E("SLPA", 0): k(f"s_sleep {E('SLPA', 0)}")
    finalize("x_pa", 7)
    if E("PT", 0):
        k.c("pull the finished vectors into this die's L2")
        k(f"""s_sleep {E('PT', 0)}
        s_mov_b32 s42, {WS_PAR}
        v_lshlrev_b32 v9, 4, v0
        buffer_load_dwordx4 v[20:23], v9, s[12:15], s42 offen sc1""")
    if E("XPF", 2) == 3:
        k.c("bring the partial-sum lines on die by writing them; complete before sb is published, hence before any real write")
        for u in range(2):
            k(f"s_add_u32 s42, s36, {u*32768}")
            for j in range(4):
                if j == 3: k("s_mov_b32 exec_hi, 0")
                k(f"buffer_store_dwordx4 v[104:107], v3, s[12:15], s42 offen offset:{j*1024} sc1")
            k("s_mov_b64 exec, -1")
        k("s_waitcnt vmcnt(0)\ns_barrier")
    k("s_add_u32 s77, s77, 65536\ns_add_u32 s79, s79, 8192\ns_mov_b32 s80, 0")
    if E("SLP", 12): k(f"s_sleep {E('SLP', 12)}")
    finalize("x_pb", 8)
    if ES("XH0", ""): k("s_barrier")
    xhelp(ES("XH0", ""))
    def xnorm(n, top):
        if not n: return
        k.c("idle time: pull more rows of w_up (this die's columns) into L2")
        k(f"""s_barrier
        v_lshrrev_b32 v90, 3, v2
        v_mul_u32_u24 v90, 7168, v90
        v_and_b32 v91, 7, v0
        v_min_u32 v91, 6, v91
        v_lshl_add_u32 v90, v91, 7, v90
        s_lshr_b32 s42, s16, 2
        s_lshl_b32 s42, s42, 9
        s_and_b32 s43, s16, 3
        s_lshl_b32 s43, s43, 3
        s_add_u32 s42, s42, s43
        s_add_u32 s42, s42, {top - 32*n}
        s_mul_i32 s42, s42, 7168
        s_mul_i32 s43, s34, 896
        s_add_u32 s42, s42, s43""")
        for i in range(n):
            k(f"buffer_load_dword v{94+i}, v90, s[60:63], s42 offen\ns_add_u32 s42, s42, {32*7168}")
    xnorm(E("XN0", 1), 512 - 64 * E("FPJ", 5))
    k("s_branch x_nb\nx_na:")
    xhelp(ES("XH", "U0"))
    xnorm(E("XN1", 0), 512 - 64 * E("FPJ", 5) - 32 * E("XN0", 1))
    k("x_nb:\ns_mov_b32 s17, s37\ns_barrier")
    if E("GONLY", 0): stamp_out(k); k("s_endpgm")
    if E("XPF", 2) == 2:
        k(f"""v_lshlrev_b32 v9, 7, v2
        s_mov_b64 exec, {0xffffffff if E("PL", 0) else 0xfffffff}
        buffer_load_dword v251, v9, s[12:15], s36 offen
        s_mov_b64 exec, -1""")
    if E("XPF", 2) == 1:
        k(f"""buffer_store_dwordx4 v[104:107], v3, s[12:15], s36 offen sc1
        buffer_store_dwordx4 v[104:107], v3, s[12:15], s36 offen offset:1024 sc1
        buffer_store_dwordx4 v[104:107], v3, s[12:15], s36 offen offset:2048 sc1
        s_mov_b32 exec_hi, 0
        buffer_store_dwordx4 v[104:107], v3, s[12:15], s36 offen offset:3072 sc1
        s_mov_b64 exec, -1""")
    srd(k, 8, 48, 2048)
    k(f"""s_and_b32 s18, s17, 63
    v_and_b32 v5, 3, v0
    v_lshlrev_b32 v5, 3, v5
    v_lshl_add_u32 v5, v7, 1, v5
    v_lshlrev_b32 v6, 1, v5
    v_and_b32 v86, -4, v5
    v_and_b32 v87, 2, v5
    v_lshlrev_b32 v87, 3, v87
    s_lshl_b32 s31, s18, 6
    s_add_u32 s30, s31, {WS_PAR + 2*4096}
    s_add_u32 s31, s30, 4096
    s_add_u32 s29, s30, 8192
    s_mov_b32 s28, {WS_PAR + 2*4096}
    v_lshlrev_b32 v88, 3, v7
    v_lshrrev_b32 v88, v88, s32
    v_lshrrev_b32 v89, 1, v86
    s_not_b32 s42, s32
    v_lshrrev_b32 v89, v89, s42
    v_and_b32 v89, {ZMASK}, v89
    v_lshlrev_b32 v9, 3, v2""")
    for j in range(4):
        k(f"buffer_load_dwordx2 v[{40+2*j}:{41+2*j}], v9, s[8:11], 0 offen offset:{j*512}")
    k("s_waitcnt vmcnt(0)")
    for i in range(8): unpack_bf16(k, 48 + 2*i, 40 + i)
    k.c("once the first scores are out every modulation vector has long been published")
    k(f"""s_cmp_lg_u32 s16, 0
    s_cbranch_scc1 x_g1x
    s_mov_b32 s83, 0
    x_g1:
    buffer_load_dword v15, v14, s[12:15], s78 offen offset:2048 sc1
    s_waitcnt vmcnt(0)
    v_cmp_ne_u32 vcc, s32, v15
    s_cbranch_vccz x_g1x
    {spin("x_g1", 6)}
    x_g1x:
    s_barrier
    s_mov_b32 s83, 0
    x_pq:""")
    for j in range(4):
        k(f"buffer_load_dwordx4 v[{64+4*j}:{67+4*j}], v3, s[12:15], s28 offen offset:{j*1024} sc1")
    k(f"""buffer_load_dword v32, v6, s[12:15], s30 offen sc1
    buffer_load_dword v33, v6, s[12:15], s31 offen sc1
    buffer_load_dword v34, v6, s[12:15], s29 offen sc1
    s_waitcnt vmcnt(0)
    v_xor_b32 v36, v32, v88
    v_bitop3_b32 v36, v36, v33, v88 bitop3:0xf6
    v_bitop3_b32 v36, v36, v34, v88 bitop3:0xf6
    v_and_b32 v36, s33, v36
    v_cmp_ne_u32 s[68:69], 0, v36""")
    chk_bytes(k, range(64, 80), 9)
    k(f"""s_or_b64 vcc, vcc, s[68:69]
    s_cbranch_vccz x_pqx
    {spin("x_pq", 4)}
    x_pqx:
    v_and_b32 v32, 0xffff0000, v32
    v_and_b32 v33, 0xffff0000, v33
    v_and_b32 v34, 0xffff0000, v34""")
    pmul(k, 8, 48, 64)
    for i in range(1, 8): pfma(k, 8, 48 + 2*i, 64 + 2*i, 8)
    k("v_add_f32 v8, v8, v9")
    wave_reduce_to63(k, [8])
    k(f"s_cmp_lg_u32 s16, 0\ns_cbranch_scc1 x_ng")
    if E("XKEY", 0):
        k(f"""s_mov_b32 s83, 0
        x_go:
        buffer_load_dword v15, v14, s[12:15], s78 offen offset:2048 sc1
        s_waitcnt vmcnt(0)
        v_cmp_ne_u32 vcc, s32, v15
        s_cbranch_vccz x_gox
        {spin("x_go", E("SLG", 3))}
        x_gox:
        s_sleep {E("SLXK", 8)}""")
        poll_keys(k, "x_pk", 16, 78, 30)
        top2(k, 16, 40, 41, 28)
        k(f"""s_and_b32 s40, s40, 0xff
        s_and_b32 s41, s41, 0xff
        s_lshl_b32 s41, s41, 8
        s_or_b32 s40, s40, s41
        v_mov_b32 v28, s40
        v_mov_b32 v29, s32
        ds_write_b32 v14, v28
        s_cmp_lg_u32 s65, 0
        s_cbranch_scc1 x_ng
        s_mov_b64 exec, 1
        buffer_store_dwordx2 v[28:29], v14, s[12:15], s78 offen offset:2304 sc1
        s_mov_b64 exec, -1
        x_ng:
        s_waitcnt lgkmcnt(0)
        s_barrier
        ds_read_b32 v28, v14
        s_waitcnt lgkmcnt(0)
        v_readfirstlane_b32 s40, v28
        s_lshr_b32 s41, s40, 8
        s_and_b32 s40, s40, 0xff
        s_sleep {E("SLXS", 12)}""")
    else:
        res_wait(k, "x_r0", 78, 22, 16, 3)
        k("x_ng:\ns_barrier")
        res_wait(k, "x_r1", 78, 22, 16, 1)
    stamp(k, 13)
    k(f"""s_cmp_lt_u32 s17, 64
    s_cselect_b32 s40, s40, s41
    s_lshl_b32 s42, s40, 11
    s_add_u32 s42, s42, {WS_SLOT}
    s_lshl_b32 s19, s18, 5
    s_add_u32 s43, s42, s19
    s_lshl_b32 s40, s40, 4
    s_add_u32 s40, s40, {WS_TT}
    s_mov_b32 s83, 0
    x_ps:
    buffer_load_dwordx4 v[80:83], v14, s[12:15], s40 offen sc1
    buffer_load_dword v40, v86, s[12:15], s43 offen sc1
    s_waitcnt vmcnt(0)
    v_xor_b32 v40, v40, v89
    v_xor_b32 v35, 0x00020002, v40
    v_and_b32 v35, {ZMASK}, v35
    v_cmp_ne_u32 s[68:69], 0, v35""")
    chk_bytes(k, range(80, 84), 9)
    k(f"""s_or_b64 vcc, vcc, s[68:69]
    s_cbranch_vccz x_psx
    {spin("x_ps", 2)}
    x_psx:
    v_readfirstlane_b32 s41, v80
    s_bfe_u32 s41, s41, 0xb0008
    s_lshl_b32 s41, s41, 11
    s_add_u32 s41, s41, s19""")
    k.c("router logit = score (decoded from the key) + sb.w_r")
    k("""v_not_b32 v36, v83
    v_ashrrev_i32 v36, 31, v36
    v_or_b32 v36, 0x80000000, v36
    v_xor_b32 v36, v36, v83
    v_add_f32 v8, v8, v36""")
    round_bf16(k, 8, 8)
    k(f"""v_mul_f32 v8, {LOG2E}, v8
    v_exp_f32 v8, v8
    v_add_f32 v8, 1.0, v8
    v_rcp_f32 v8, v8""")
    round_bf16(k, 8, 8)
    k("""v_readlane_b32 s46, v8, 63
    v_lshrrev_b32 v40, v87, v40
    v_cvt_f32_f16 v40, v40
    v_rcp_f32 v82, v82
    v_fma_f32 v36, v40, v34, v32
    v_fma_f32 v44, v40, v82, v81
    v_fmac_f32 v44, v33, v36
    v_mul_f32 v80, s46, v33""")
    stamp(k, 14)
    L = 16
    if E("XSTOP", 0): stamp_out(k); k("s_endpgm")
    k(f"s_sleep {E('SL4', 14)}")
    def pld(j, b0): return f"buffer_load_dwordx4 v[{b0+4*j}:{b0+4*j+3}], v3, s[12:15], s36 offen offset:{j*1024} sc1"
    XM = (60, 62, 64, 66)
    k("""s_mov_b32 s83, 0
    s_mov_b64 s[60:61], -1
    s_mov_b64 s[62:63], -1
    s_mov_b64 s[64:65], -1
    s_mov_b32 s66, -1
    s_mov_b32 s67, 0""")
    k.c("two polls in flight, half a round apart, into alternate registers")
    S_ = 96; L = 112; BUF = (16, 128)
    for i in range(4): k(f"v_mov_b32 v{S_+12+i}, 0")
    def piss(b):
        for j in range(4): k(f"s_mov_b64 exec, s[{XM[j]}:{XM[j]+1}]\n" + pld(j, BUF[b]))
    piss(0)
    k(f"s_sleep {E('XST', 8)}\nx_p2:")
    for b in range(2):
        piss(1 - b)
        if b == 1:
            k(f"""s_add_u32 s83, s83, 1
            s_cmp_lt_u32 s83, {SPIN}
            s_cselect_b64 s[68:69], -1, 0""")
        for j in range(4):
            r = BUF[b] + 4*j; q = S_ + 4*j
            k(f"s_mov_b64 exec, s[{XM[j]}:{XM[j]+1}]\ns_waitcnt vmcnt({7 - j})")
            for i in range(4): k(f"v_xor_b32 v{q+i}, s{56+i}, v{r+i}")
            k(f"""v_or3_b32 v12, v{q}, v{q+1}, v{q+2}
            v_bitop3_b32 v12, v12, v{q+3}, s33 bitop3:0xa8
            v_cmp_ne_u32 s[{XM[j]}:{XM[j]+1}], 0, v12""")
            if j == 2: k("s_or_b64 s[70:71], s[60:61], s[62:63]")
        k("s_mov_b64 exec, -1")
        for h in range(2): padd(k, L + 2*h, S_ + 2*h, S_ + 4 + 2*h)
        k("s_or_b64 s[72:73], s[64:65], s[66:67]")
        for h in range(2): padd(k, L + 8 + 2*h, S_ + 8 + 2*h, S_ + 12 + 2*h)
        k("s_or_b64 s[70:71], s[70:71], s[72:73]")
        if b == 1: k("s_and_b64 s[70:71], s[70:71], s[68:69]")
        for h in range(2): padd(k, L + 2*h, L + 2*h, L + 8 + 2*h)
        k("s_cbranch_scc0 x_p3" if b == 0 else "s_cbranch_scc1 x_p2\nx_p3:\ns_nop 0")
    stamp(k, 17)
    k(f"v_permlane32_swap_b32 v{L}, v{L+2}\nv_permlane32_swap_b32 v{L+1}, v{L+3}")
    padd(k, L, L, L + 2)
    k(f"v_permlane16_swap_b32 v{L}, v{L+1}\nv_add_f32 v{L}, v{L}, v{L+1}")
    for sh in (4, 8): k(f"v_add_f32_dpp v{L}, v{L}, v{L} row_ror:{sh} {DPPM}")
    k(f"""v_fmac_f32 v44, v{L}, v80
    s_mov_b32 exec_lo, 0x000f000f
    s_mov_b32 exec_hi, 0x000f000f
    v_cvt_pk_bf16_f32 v44, v44, v44
    buffer_store_short v44, v5, s[24:27], s41 offen {ES("FST", "")}
    s_cmp_lg_u32 s17, 0
    s_cbranch_scc1 x_end
    s_add_u32 s101, s101, 1
    s_mov_b32 s43, {WS_EP}
    v_mov_b32 v8, s101
    s_mov_b64 exec, 1
    buffer_store_dword v8, v14, s[12:15], s43 offen sc1
    x_end:""")
    stamp_out(k)

def gen():
    k = K(NAME)
    stamp_init(k)
    k("""s_cmp_ge_u32 s2, 256
    s_cbranch_scc1 k_done""")
    stamp(k, 0)
    k(f"""s_load_dwordx2 s[4:5], s[0:1], {A_X}
    s_load_dwordx8 s[20:27], s[0:1], {A_C}
    s_load_dwordx2 s[6:7], s[0:1], {A_WS}
    s_load_dwordx8 s[48:55], s[0:1], {A_WR}
    s_getpc_b64 s[62:63]
    k_pc:
    v_lshrrev_b32 v1, 6, v0
    v_and_b32 v2, 63, v0
    v_readfirstlane_b32 s16, v1
    v_lshlrev_b32 v3, 4, v2
    s_and_b32 s34, s2, 7
    s_lshr_b32 s35, s2, 4
    s_bitcmp1_b32 s2, 3
    s_cbranch_scc0 f_start""")
    k.c("G head: code prefetch, first GEMV tile [128 k][128 n]: ks = c, s17 = block, s41 = vq")
    k(f"""s_lshl_b32 s40, s35, 3
    s_add_u32 s40, s40, s16
    s_lshl_b32 s40, s40, 9
    v_lshl_add_u32 v4, v2, 7, s40
    v_min_u32 v4, tab_end-k_pc-4, v4
    s_mov_b64 exec, 15
    global_load_dword v250, v4, s[62:63]
    s_mov_b64 exec, -1
    v_bfe_u32 v7, v0, 4, 2
    v_lshlrev_b32 v4, 1, v7
    v_xor_b32 v4, v4, v0
    v_and_b32 v4, 15, v4
    v_lshlrev_b32 v4, 4, v4
    s_movk_i32 s42, 12288
    v_mad_u32_u24 v4, v7, s42, v4
    v_xor_b32 v31, 0x80, v4
    s_and_b32 s17, s35, 7
    s_lshr_b32 s41, s35, 3
    s_lshl_b32 s18, s34, 3
    s_add_u32 s18, s18, s16
    s_mul_i32 s18, s18, {16*12288}
    s_lshl_b32 s68, s16, 12
    s_xor_b32 s70, s35, 8
    s_lshl_b32 s70, s70, 8
    s_add_u32 s70, s70, s18
    s_mov_b32 s10, {1024*6144*2}
    s_mov_b32 s11, 0x00020000
    s_mov_b32 m0, s68""")
    AS = E("ASSIST", 0)
    if AS:
        k.c("pull the rows the neighbour asks for last into this die's L2")
        k(f"""s_sub_u32 s36, 16, s34
        s_cmp_eq_u32 s34, 0
        s_cselect_b32 s36, 8, s36
        s_bitcmp1_b32 s35, 0
        s_cselect_b32 s36, s36, s34
        s_lshr_b32 s37, s35, 1
        s_lshl_b32 s37, s37, 4
        s_add_u32 s36, s36, s37
        s_lshl_b32 s37, s16, {7 if AS == 1 else 8}
        s_add_u32 s36, s36, s37
        s_add_u32 s36, s36, {1024 if AS == 1 else 0}
        s_lshl_b32 s36, s36, 11""")
        if AS == 1: k("v_lshl_add_u32 v5, v2, 7, s36")
        elif AS == 2: k("v_and_b32 v5, 7, v2\nv_lshlrev_b32 v5, 7, v5\nv_bfe_u32 v6, v2, 3, 1\nv_lshl_add_u32 v5, v6, 18, v5\nv_add3_u32 v5, v5, s36, v250")
        else: k("v_and_b32 v5, 15, v2\nv_lshlrev_b32 v5, 7, v5\nv_bfe_u32 v6, v2, 4, 1\nv_lshl_add_u32 v5, v6, 18, v5\nv_add_u32 v5, s36, v5")
    k("s_waitcnt lgkmcnt(0)")
    if AS: k(f"s_mov_b64 exec, {0xffff if AS == 1 else 0xffffffff}\nglobal_load_dword v249, v5, s[4:5]\ns_mov_b64 exec, -1")
    k("""s_mov_b32 s8, s22
    s_mov_b32 s9, s23""")
    if E("GDEL", 0): k(f"s_cmp_ge_u32 s35, {E('XND', 14)}\ns_cbranch_scc1 g_nd\ns_sleep {E('GDEL', 0)}\ng_nd:")
    stamp(k, 2)
    for d in range(4):
        k(f"buffer_load_dwordx4 v{(4, 31)[d >> 1]}, s[8:11], s70 offen offset:{d*1024} {'nt' if 'R' in ES('NTK', '') else ''} lds")
        if d < 3: k(f"s_add_u32 s70, s70, {4*12288 - 1024}")
    k("s_branch g_start\nf_start:")
    role_F(k)
    role_G(k)
    k("k_done:\ns_endpgm")
    return k

HEADER = """; adaLN + FNet mixing + MoD block, gfx950.  Generated by gen/gen27.py (hand-written generator).
"""
def tables():
    w = tabs.words(tabs.T4())
    for g0 in (False, True):
        for wv in range(8): w += tabs.words(tabs.T1(g0, wv))
    for sp in (False, True): w += tabs.words(tabs.T2(sp))
    assert 4 * len(w) == TB_END
    t = ".p2align 8\n.type tables,@object\ntables:\n"
    for i in range(0, len(w), 8):
        t += ".long " + ",".join("0x%x" % x for x in w[i:i+8]) + "\n"
    return t + f"tab_end:\n.size tables, {4*len(w)}\n"

def main(out):
    k = gen()
    t = HEADER + f"; @launch grid=(256,1,1) block=(512,1,1) lds={LDS}\n"
    t += '.amdgcn_target "amdgcn-amd-amdhsa--gfx950"\n.text\n' + k.text() + 'code_end:\n' + tables()
    t += '.section .rodata,"a"\n' + k.desc()
    open(out, "w").write(t)
if __name__ == "__main__":
    main(sys.argv[1] if len(sys.argv) > 1 else "adaLN_cond__spectral_fnet__moe_arch_mod__prompt.s")
```

```python
import math, sys, os
from asmgen import K, f32
from gen2 import (srd, P, padd, psub, pmul, pfma, pmul_s, pfma_s, psub_s, unpack_bf16, round_bf16, DPPM,
                  row_allreduce, wave_reduce_to63, chk_sent,
                  A_X, A_WR, A_WG, A_WU, A_WD, A_C, A_WM, A_OUT, A_DBG, A_WS, WS_SIZE)
import tabs
NAME = "adaLN_cond__spectral_fnet__moe_arch_mod__prompt_kernel"
E = lambda n, d: int(os.environ.get(n, str(d)))
ES = lambda n, d: os.environ.get(n, d)
SPIN = "0x40000"
WS_Z1   = 0x0000000
WS_SENT = 0x0400000
WS_PART = WS_SENT
WS_XA   = WS_SENT + 0x80000
WS_KEY  = WS_SENT + 0xB8000
WS_XB   = WS_SENT + 0xC0000
WS_TT   = 0x0636000
WS_SLOT = WS_SENT + 0x100000
WS_CAP  = 0x0600000
WS_MODP = 0x0610000
WS_PAR  = 0x0630000
WS_XR   = 0x0635000
WS_KR   = 0x0635400
WS_ZL   = 0x0638000
WS_MX   = 0x063C000
WS_EP   = 0x0650000
WS_STAMP = 0x2000000
NHASH = 0x9E3779B1
XP = 2064
L_S = 0; L_T4 = 33280; L_X = L_T4 + 16384; L_P = L_X + 32768; L_KEY = L_P + 5 * 4096; L_ST = L_KEY + 128; L_T3 = L_ST + 256; L_K = L_T3 + 8192
LDS = 131072 + 8192
LOG2E = f32(-math.log2(math.e))
ZMASK = E("ZMASK", 0x00030003)
TB_T4, TB_T1, TB_T2, TB_END = 0, 16384, 32768, 36864
ST = [int(x) for x in ES("ST", "").split(",") if x]
def stamp(k, i):
    if not ST: return
    if i == 0: k("s_memrealtime s[84:85]")
    elif i in ST: k(f"s_memrealtime s[{86+2*ST.index(i)}:{87+2*ST.index(i)}]")
def stamp_val(k, i, sreg):
    if i in ST: k(f"s_add_u32 s{86+2*ST.index(i)}, s{sreg}, s84")
def stamp_init(k):
    if ST:
        for j in range(8): k(f"s_mov_b32 s{84+2*j}, 0")
def stamp_out(k):
    if not ST: return
    k(f"""s_mov_b64 exec, -1
    s_waitcnt vmcnt(0)
    s_memrealtime s[98:99]
    s_waitcnt lgkmcnt(0)
    v_lshrrev_b32 v248, 6, v0
    v_lshlrev_b32 v248, 5, v248
    s_lshl_b32 s100, s2, 8
    s_add_u32 s100, s100, {WS_STAMP}""")
    for i in range(8): k(f"v_mov_b32 v{240+i}, s{84+2*i}")
    k("""s_mov_b64 exec, 1
    buffer_store_dwordx4 v[240:243], v248, s[12:15], s100 offen
    buffer_store_dwordx4 v[244:247], v248, s[12:15], s100 offen offset:16""")
def rb2(k, v, t):
    k(f"v_cvt_pk_bf16_f32 v{t}, v{v}, v{v+1}")
    unpack_bf16(k, v, t)
def spin(lab, sl):
    return (f"s_sleep {sl}\n" if sl else "") + f"s_add_u32 s83, s83, 1\ns_cmp_lt_u32 s83, {SPIN}\ns_cbranch_scc1 {lab}"
def nonce_issue(k, sp):
    k(f"s_mov_b32 s43, {WS_EP}\ns_load_dword s101, s[{sp}:{sp+1}], s43")
def nonce_finish(k):
    k(f"""s_mul_i32 s32, s101, {NHASH:#x}
    s_or_b32 s32, s32, 0x101
    s_and_b32 s32, s32, {~0x10404 & 0xffffffff:#x}
    s_and_b32 s56, s32, 0xff
    s_bfe_u32 s57, s32, 0x80008
    s_bfe_u32 s58, s32, 0x80010
    s_lshr_b32 s59, s32, 24""")
def chk_bytes(k, regs, acc):
    regs = list(regs)
    for i, r in enumerate(regs): k(f"v_xor_b32 v{r}, s{56 + (i & 3)}, v{r}")
    k(f"v_or3_b32 v{acc}, v{regs[0]}, v{regs[1]}, v{regs[2]}")
    regs = regs[3:]
    while len(regs) >= 2:
        k(f"v_or3_b32 v{acc}, v{acc}, v{regs[0]}, v{regs[1]}"); regs = regs[2:]
    if regs: k(f"v_or_b32 v{acc}, v{acc}, v{regs[0]}")
    k(f"v_and_b32 v{acc}, 0xff, v{acc}")
    k(f"v_cmp_ne_u32 vcc, 0, v{acc}")
def keys_issue(k, base, soff):
    for j in range(2):
        k(f"buffer_load_dwordx4 v[{base+4*j}:{base+4*j+3}], v3, s[12:15], s{soff} offen offset:{j*1024} sc1")
def keys_chk(k, base, tmp):
    k(f"v_xor_b32 v{tmp}, s32, v{base+2}")
    k(f"v_bitop3_b32 v{tmp}, v{tmp}, v{base+6}, s32 bitop3:0xf6")
    k(f"v_cmp_ne_u32 vcc, 0, v{tmp}")
def poll_keys(k, lab, base, soff, tmp):
    k(f"s_mov_b32 s83, 0\n{lab}:")
    keys_issue(k, base, soff)
    k("s_waitcnt vmcnt(0)")
    keys_chk(k, base, tmp)
    k(f"s_cbranch_vccz {lab}x\n{spin(lab, E('SL2', 4))}\n{lab}x:")
def top2(k, KB, s1, s2, tmp):
    m1, m2, c = tmp, tmp + 1, tmp + 2
    k(f"v_max_u32 v{m1}, v{KB}, v{KB+4}")
    k(f"v_min_u32 v{m2}, v{KB}, v{KB+4}")
    k(f"v_max3_u32 v{m2}, v{m2}, v{KB+1}, v{KB+5}")
    k(f"v_mov_b32 v{c}, v{m1}")
    wave_reduce_to63(k, [c], "v_max_u32")
    k(f"v_readlane_b32 s{s1}, v{c}, 63")
    k(f"v_cmp_eq_u32 vcc, s{s1}, v{m1}")
    k(f"v_cndmask_b32 v{c}, v{m1}, v{m2}, vcc")
    wave_reduce_to63(k, [c], "v_max_u32")
    k(f"v_readlane_b32 s{s2}, v{c}, 63")
def res_wait(k, lab, soff, vz, vd, sl):
    k(f"""v_mov_b32 v{vz}, 0
    s_mov_b32 s83, 0
    {lab}:
    buffer_load_dwordx2 v[{vd}:{vd+1}], v{vz}, s[12:15], s{soff} offen offset:2304 sc1
    s_waitcnt vmcnt(0)
    v_readfirstlane_b32 s40, v{vd}
    v_readfirstlane_b32 s41, v{vd+1}
    s_cmp_eq_u32 s41, s32
    s_cbranch_scc1 {lab}x
    {spin(lab, sl)}
    {lab}x:
    s_lshr_b32 s41, s40, 8
    s_and_b32 s40, s40, 0xff
    s_and_b32 s41, s41, 0xff""")

def role_F(k):
    ZL, PA, PB, BP, XA_, XB_, NAT, KW, KR_, FA, ZS, PG, PS = 4, 5, 6, 7, 8, 9, 10, 11, 12, 13, 14, 15, 1
    EG, T1, T2, L, D, D3, T3, TB, XA2, XB2, T4 = 16, 20, 24, 32, 48, 80, 112, 144, 160, 176, 192
    PFR, PRA, RCL, PRB0, PRC, REC, A0, A1, R0, R1 = 240, 20, 244, 96, 100, 251, 252, 253, 254, 255
    T4L = "s_mov_b32 m0, s40\ns_nop 0\nglobal_load_lds_dwordx4 v79, s[62:63]\nglobal_load_lds_dwordx4 v79, s[62:63] offset:1024"
    T1L = f"""global_load_dwordx4 v[{T1}:{T1+3}], v77, s[62:63]
    global_load_dwordx4 v[{T2}:{T2+3}], v78, s[62:63]
    global_load_dwordx4 v[{T2+4}:{T2+7}], v78, s[62:63] offset:1024"""
    k(f"""s_add_u32 s62, s62, tables-k_pc
    s_addc_u32 s63, s63, 0
    s_lshl_b32 s43, s16, 11
    v_add_u32 v79, s43, v3
    s_add_u32 s40, s43, {L_T4}
    s_lshl_b32 s42, s16, 10
    {"" if E("T4POS", 1) else T4L}
    s_add_u32 s43, s42, {TB_T1}
    s_cmp_eq_u32 s34, 0
    s_cselect_b32 s68, 8192, 0
    s_add_u32 s43, s43, s68
    v_add_u32 v77, s43, v3
    s_or_b32 s69, s34, s16
    s_cselect_b32 s68, 0, 2048
    s_add_u32 s68, s68, {TB_T2}
    v_add_u32 v78, s68, v3
    {"" if E("T1POS", 1) else T1L}
    s_sub_u32 s17, 16, s34
    s_cmp_eq_u32 s34, 0
    s_cselect_b32 s17, 8, s17
    s_bitcmp1_b32 s35, 0
    s_cselect_b32 s17, s17, s34
    s_lshr_b32 s36, s35, 1
    s_lshl_b32 s36, s36, 4
    s_add_u32 s17, s17, s36
    s_lshl_b32 s36, s16, 8
    s_add_u32 s36, s36, s17
    s_lshl_b32 s36, s36, 11
    s_add_u32 s37, s36, {128*2048}
    s_mov_b32 s10, {2048*1024*2}
    s_mov_b32 s11, 0x00020000""")
    XW, AB, S, MB, R, BFR, D0, DA, OB = 32, 48, 52, 56, 60, 80, 96, 100, 176
    VO, XWA, TRA_, RT, MT, STW, MW, NON, VZ, SH, N_, G_ = 160, 161, 162, 163, 164, 165, 166, 167, 168, 169, 170, 171
    k.c("A-matrix base: lane m = 2k+comp, rows j = 4g+i")
    k(f"""v_and_b32 v{N_}, 15, v0
    v_bfe_u32 v{G_}, v0, 4, 2
    v_lshrrev_b32 v72, 1, v{N_}
    v_and_b32 v73, 1, v0
    v_cmp_eq_u32 vcc, 1, v{N_}
    v_mov_b32 v74, s17
    v_cndmask_b32_e64 v72, v72, 8, vcc
    v_cndmask_b32_e64 v74, v74, 0, vcc
    v_cndmask_b32_e64 v73, v73, 0, vcc
    v_lshl_add_u32 v74, v{G_}, 9, v74
    s_waitcnt lgkmcnt(0)
    s_mov_b32 s8, s4
    s_mov_b32 s9, s5""")
    if E("FDEL", 0): k(f"s_sleep {E('FDEL', 0)}")
    stamp(k, 1)
    if E("FSTOP", 9) == 0: srd(k, 12, 6, WS_SIZE); stamp_out(k); k("s_endpgm")
    for h in range(2):
        for jj in range(2):
            k(f"buffer_load_dwordx4 v[{XW+8*jj+4*h}:{XW+8*jj+4*h+3}], v3, s[8:11], s{36+jj} offen offset:{h*1024}")
    nonce_issue(k, 6)
    srd(k, 12, 6, WS_SIZE)
    srd(k, 20, 52, 1024 * 3584 * 2)
    k(f"""s_mov_b32 s26, 4194304
    s_mov_b32 s27, 0x00020000
    s_getreg_b32 s39, hwreg(HW_REG_XCC_ID)
    s_and_b32 s39, s39, 7
    v_mul_u32_u24 v74, v72, v74
    v_lshl_add_u32 v74, v73, 9, v74
    v_lshlrev_b32 v72, 7, v72""")
    for i in range(4):
        k(f"v_and_b32 v{AB+i}, 2047, v74")
        if i < 3: k("v_add_u32 v74, v74, v72")
    for i in range(4): k(f"v_cvt_f32_u32 v{AB+i}, v{AB+i}")
    for i in range(4): k(f"v_mul_f32 v{AB+i}, {f32(1.0/2048)}, v{AB+i}")
    for i in range(4): k(f"v_cos_f32 v{AB+i}, v{AB+i}")
    for i in range(4): k(f"v_mul_f32 v{AB+i}, {f32(1.0/16)}, v{AB+i}")
    k(f"""v_lshlrev_b32 v{VO}, 20, v{G_}
    v_lshl_add_u32 v{VO}, v1, 15, v{VO}
    v_lshl_add_u32 v{VO}, v{N_}, 4, v{VO}
    v_mul_u32_u24 v{XWA}, {2*XP}, v1
    v_add_u32 v{XWA}, v{XWA}, v3
    v_lshrrev_b32 v72, 2, v2
    v_mul_u32_u24 v{TRA_}, {XP}, v72
    v_and_b32 v72, 3, v0
    v_lshl_add_u32 v{TRA_}, v72, 7, v{TRA_}
    v_lshl_add_u32 v{TRA_}, v1, 3, v{TRA_}
    v_lshlrev_b32 v{RT}, 4, v{G_}
    v_add_u32 v{RT}, {L_ST}, v{RT}
    v_lshlrev_b32 v{MT}, 3, v{G_}
    v_add_u32 v{MT}, {L_ST+64}, v{MT}
    v_lshrrev_b32 v72, 5, v0
    v_lshlrev_b32 v{STW}, 2, v72
    v_add_u32 v{KW}, {L_KEY}, v{STW}
    v_add_u32 v{STW}, {L_ST}, v{STW}
    v_lshlrev_b32 v{MW}, 1, v72
    v_add_u32 v{MW}, {L_ST+64}, v{MW}
    v_mov_b32 v{VZ}, 0
    v_and_b32 v{SH}, 1, v0
    v_lshlrev_b32 v{SH}, 3, v{SH}
    s_lshl_b32 s3, s34, 4
    s_and_b32 s64, s35, 1
    s_lshl_b32 s64, s64, 3
    s_lshr_b32 s65, s35, 1
    s_add_u32 s64, s64, s65
    s_and_b32 s65, s16, 3
    s_xor_b32 s64, s64, s65
    s_add_u32 s64, s64, s3
    s_add_u32 s3, s3, s35
    s_lshl_b32 s64, s64, 8
    s_add_u32 s64, s64, {WS_Z1}
    s_add_u32 s65, s64, 262144
    s_add_u32 s66, s64, 524288
    s_add_u32 s67, s64, {524288+262144}
    s_mov_b32 s44, 0x3f803f80
    s_mov_b32 s46, {f32(1.0/1024)}
    s_mov_b32 s33, {ZMASK}""")
    k.c("row ids: s30 = t, s31 = mirror row")
    k(f"""s_lshl_b32 s60, s35, 3
    s_add_u32 s60, s60, s16
    s_lshl_b32 s30, s60, 4
    s_add_u32 s30, s30, s34
    s_cmp_lg_u32 s34, 0
    s_cbranch_scc1 f_g1
    s_cmp_ge_u32 s16, 4
    s_cselect_b32 s31, 56, 0
    s_sub_u32 s30, s30, s31
    s_cmp_lg_u32 s16, 0
    s_cbranch_scc1 f_g1
    s_cmp_ge_u32 s35, 8
    s_cselect_b32 s31, 960, 0
    s_sub_u32 s30, s30, s31
    f_g1:
    s_sub_u32 s31, 2048, s30
    s_cmp_eq_u32 s30, 0
    s_cselect_b32 s31, 1024, s31
    s_lshl_b32 s18, s30, 11
    s_lshl_b32 s19, s31, 11
    s_lshl_b32 s61, s34, 19
    s_add_u32 s61, s61, {WS_Z1}
    s_lshl_b32 s28, s60, 8
    s_add_u32 s28, s28, s61
    s_add_u32 s29, s28, 131072
    s_add_u32 s50, s28, 262144
    s_add_u32 s51, s28, 393216
    s_lshl_b32 s73, s35, 15
    s_add_u32 s73, s73, s61
    s_lshl_b32 s42, s16, 12
    s_add_u32 s72, s73, s42
    s_add_u32 s45, s42, {L_X}
    s_lshl_b32 s42, s16, 8
    s_add_u32 s74, s73, s42
    s_add_u32 s75, s74, 4096
    s_lshl_b32 s76, s34, 7
    s_add_u32 s77, s76, {WS_KR}
    s_add_u32 s76, s76, {WS_XR}
    s_lshl_b32 s78, s35, 3
    s_add_u32 s79, s78, s77
    s_add_u32 s78, s78, s76
    s_lshl_b32 s80, s3, 4
    s_add_u32 s80, s80, {WS_KEY}
    s_lshl_b32 s81, s34, 12
    s_add_u32 s81, s81, {WS_KEY}
    s_lshl_b32 s82, s35, 11
    s_add_u32 s82, s82, {WS_CAP}""")
    k.c("base table (cos, sin)(d*k1/1024) of the column class wave&3")
    k(f"""v_cvt_f32_u32 v75, v{N_}
    s_lshl_b32 s42, s35, 2
    s_and_b32 s43, s16, 3
    s_add_u32 s42, s42, s43
    v_lshl_add_u32 v76, v{G_}, 8, s42
    v_mul_f32 v75, {f32(1.0/1024)}, v75
    v_cvt_f32_u32 v76, v76
    v_mul_f32 v60, v76, v75""")
    for i in range(1, 4): k(f"v_fmamk_f32 v{60+i}, v75, {f32(64.0*i)}, v60")
    for i in range(4): k(f"v_cos_f32 v{64+i}, v{60+i}")
    for i in range(4): k(f"v_sin_f32 v{68+i}, v{60+i}")
    for i in range(4): k(f"v_cvt_pk_f16_f32 v{TB+i}, v{64+i}, v{68+i}")
    def xc():
        k(f"""s_mov_b32 m0, s45
        s_add_u32 s43, s45, 2048
        buffer_load_dwordx4 v3, s[8:11], s18 offen lds
        buffer_load_dwordx4 v3, s[8:11], s18 offen offset:1024 lds
        s_mov_b32 m0, s43
        s_nop 0
        buffer_load_dwordx4 v3, s[8:11], s19 offen lds
        buffer_load_dwordx4 v3, s[8:11], s19 offen offset:1024 lds""")
    XPOS = E("XPOS", 5)
    NX = (4 if XPOS == 2 else 0) + 2 * (E("T4POS", 1) == 1) + 3 * (E("T1POS", 1) == 1)
    if E("T4POS", 1) == 1: k(T4L)
    if E("T1POS", 1) == 1: k(T1L)
    if XPOS == 2: xc()
    k("s_waitcnt lgkmcnt(0)")
    nonce_finish(k)
    k(f"v_lshrrev_b32 v{EG}, v{SH}, s32")
    for i in range(1, 4): k(f"v_lshrrev_b32 v{EG+i}, {2*i}, v{EG}")
    k(f"""v_mov_b32 v72, s32
    v_mov_b32 v73, s39
    v_mov_b32 v74, {L_K}
    s_cmp_eq_u32 s16, 0
    s_cselect_b64 exec, 1, 0
    ds_write_b32 v74, v{VZ} offset:4
    buffer_store_dwordx2 v[72:73], v{VZ}, s[12:15], s78 offen sc1
    s_mov_b64 exec, -1""")
    NX += 1
    k(f"v_mov_b32 v72, -1\nds_write_b32 v{KW}, v72 offset:64")
    for h in range(2):
        for jj in range(2):
            u = 2*h + jj
            k(f"s_waitcnt vmcnt({3 - u + NX})")
            k(f"ds_write_b128 v{XWA}, v[{XW+8*jj+4*h}:{XW+8*jj+4*h+3}] offset:{L_S + jj*XP + h*1024}")
            for q in range(4):
                r = XW + 8*jj + 4*h + q
                first = (h == 0 and q == 0)
                k(f"v_dot2_f32_bf16 v{S+jj}, v{r}, s44, {'0' if first else f'v{S+jj}'}")
                k(f"v_dot2_f32_bf16 v{S+2+jj}, v{r}, v{r}, {'0' if first else f'v{S+2+jj}'}")
    stamp(k, 2)
    if XPOS == 0: xc()
    else: k("s_nop 2")
    def red1(js):
        for j in js: k(f"v_permlane32_swap_b32 v{S+j}, v{S+j+1}")
        for j in js: k(f"v_add_f32 v{S+j}, v{S+j}, v{S+j+1}")
        regs = [S + j for j in js]
        row_allreduce(k, regs)
        for r in regs: k(f"v_add_f32_dpp v{r}, v{r}, v{r} row_bcast:15 row_mask:0xa bank_mask:0xf")
    AB2 = E("AB2", 0)
    def trreads():
        for ah in range(2):
            for q in range(4):
                u = ah * 4 + q
                k(f"ds_read_b64_tr_b16 v[{BFR+2*u}:{BFR+2*u+1}], v{TRA_} offset:{L_S + ah*64 + q*512}")
    if AB2 == 1:
        k("s_waitcnt lgkmcnt(0)\ns_barrier"); trreads()
    red1((0, 2))
    if AB2 == 2:
        k("s_waitcnt lgkmcnt(0)\ns_barrier"); trreads()
    k.c("lanes 31 / 63 hold the two rows")
    V = S + 2
    k(f"""v_mul_f32 v{S}, s46, v{S}
    v_mul_f32 v{V}, s46, v{V}
    v_mul_f32 v{R+4}, v{S}, v{S}
    v_cvt_pk_bf16_f32 v{MB}, -v{S}, -v{S}
    v_sub_f32 v{V}, v{V}, v{R+4}
    v_mul_f32 v{R+6}, {f32(512.0)}, v{V}
    v_cmp_gt_f32 vcc, v{R+4}, v{R+6}
    s_or_b32 s68, vcc_lo, vcc_hi
    s_bitcmp1_b32 s68, 31
    s_cbranch_scc1 f_slowvar
    f_var:""")
    round_bf16(k, V, V)
    k(f"v_add_f32 v{V}, {f32(1e-5)}, v{V}")
    round_bf16(k, V, V)
    k(f"v_sqrt_f32 v{V}, v{V}")
    round_bf16(k, V, V)
    k(f"""v_rcp_f32 v{V}, v{V}
    s_mov_b32 exec_lo, 0x80000000
    s_mov_b32 exec_hi, 0x80000000
    ds_write_b16 v{MW}, v{MB}
    ds_write_b32 v{STW}, v{V}
    s_mov_b64 exec, -1
    s_waitcnt lgkmcnt(0)
    s_barrier""")
    stamp(k, 30)
    if E("FSTOP", 9) == 1: stamp_out(k); k("s_endpgm")
    k(f"""ds_read_b128 v[{R}:{R+3}], v{RT}
    ds_read_b64 v[{R+4}:{R+5}], v{MT}""")
    if not AB2: trreads()
    if XPOS == 1: xc()
    k(f"s_waitcnt lgkmcnt({0 if AB2 else 8})")
    BM = R + 4; AH = 58
    for h in range(2): pmul(k, AB + 2*h, AB + 2*h, R + 2*h)
    for h in range(2): k(f"v_cvt_pk_bf16_f32 v{AH+h}, v{AB+2*h}, v{AB+2*h+1}")
    k(f"v_mfma_f32_16x16x16_bf16 v[{D0}:{D0+3}], v[{AH}:{AH+1}], v[{BM}:{BM+1}], 0")
    k("s_waitcnt lgkmcnt(0)")
    for u in range(8):
        k(f"v_mfma_f32_16x16x16_bf16 v[{DA+4*u}:{DA+4*u+3}], v[{AH}:{AH+1}], v[{BFR+2*u}:{BFR+2*u+1}], v[{D0}:{D0+3}]")
    for ah in range(2):
        for kp in range(2):
            o = OB + (2*ah + kp) * 4
            for q in range(4):
                u = ah * 4 + q
                k(f"v_cvt_pk_f16_f32 v{o+q}, v{DA+4*u+2*kp}, v{DA+4*u+2*kp+1}")
            for q in range(4): k(f"v_bfi_b32 v{o+q}, s33, v{EG+q}, v{o+q}")
            if ah + kp == 0: stamp(k, 32)
            if E("ZP1", 0) and 2*ah + kp >= E("ZP1", 0): k(f"s_waitcnt vmcnt({E('ZP1', 0) - 1})")
            if E("ZS1", 0) and ah + kp > 0: k(f"s_sleep {E('ZS1', 0)}")
            k(f"buffer_store_dwordx4 v[{o}:{o+3}], v{VO}, s[12:15], s{64 + 2*kp + ah} offen {ES('Z1S', 'sc1').replace('+', ' ')}")
    stamp(k, 3)
    k("s_waitcnt vmcnt(4)\ns_barrier")
    k.c("================= wait 1: tables, x rows, addresses =================")
    n_, g_ = 48, 49
    k(f"""v_mov_b32 v{n_}, v{N_}
    v_mov_b32 v{g_}, v{G_}
    v_mov_b32 v50, s32
    v_mov_b32 v51, s39""")
    def zhint():
        k(f"""s_cmp_lg_u32 s16, {E("HW", 0)}
        s_cbranch_scc1 f_nzl
        s_lshl_b32 s68, s3, 7
        s_add_u32 s68, s68, {WS_ZL}
        v_mov_b32 v52, 0
        s_mov_b64 exec, 1
        buffer_store_dwordx2 v[50:51], v52, s[12:15], s68 offen sc1
        s_mov_b64 exec, -1
        f_nzl:""")
    if E("ZPOS", 0) == 0 and E("HOLD", 99) < 9: zhint()
    if E("XE", 0): xc()
    for u in range(12):
        k(f"ds_read_b128 v[{T4+4*u}:{T4+4*u+3}], v3 offset:{L_T4 + u*1024}")
    stamp(k, 33)
    k(f"""v_lshlrev_b32 v{ZL}, 15, v{g_}
    v_lshl_add_u32 v{ZL}, v{n_}, 4, v{ZL}
    v_lshlrev_b32 v{ZS}, 13, v{g_}
    v_lshl_add_u32 v{ZS}, v{n_}, 4, v{ZS}
    v_lshl_add_u32 v{R0}, v1, 10, v{ZS}
    v_xor_b32 v{R1}, 64, v{R0}
    v_lshrrev_b32 v57, 1, v1
    v_lshlrev_b32 v{A0}, 13, v57
    v_and_b32 v57, 1, v1
    v_lshl_add_u32 v{A0}, v57, 3, v{A0}
    v_lshl_add_u32 v{A0}, v{g_}, 11, v{A0}
    v_and_b32 v57, 3, v0
    v_lshl_add_u32 v{A0}, v57, 8, v{A0}
    v_lshrrev_b32 v58, 2, v{n_}
    v_lshl_add_u32 v{A0}, v58, 4, v{A0}
    v_and_b32 v59, 1, v0
    v_lshl_add_u32 v{A0}, v59, 6, v{A0}
    v_xor_b32 v{A1}, 64, v{A0}
    v_lshl_add_u32 v57, v{g_}, 2, v57
    v_lshlrev_b32 v57, 4, v57
    v_lshl_add_u32 v250, v58, 8, v57
    v_add_u32 v{PA}, {L_P}, v3
    v_sub_u32 v{PB}, {L_P + 63*16}, v3
    v_lshl_add_u32 v57, v{n_}, 2, v{g_}
    v_lshl_add_u32 v{XA_}, v57, 3, s45
    s_add_u32 s43, s45, {2048+504}
    v_lshlrev_b32 v58, 3, v57
    v_sub_u32 v{XB_}, s43, v58
    v_add_u32 v57, 1, v57
    v_and_b32 v58, 3, v57
    v_and_b32 v57, 60, v57
    v_lshl_add_u32 v{BP}, v58, 6, v57
    v_add_u32 v{NAT}, s45, v3
    v_lshlrev_b32 v{KR_}, 2, v{n_}
    v_add_u32 v{KR_}, {L_KEY}, v{KR_}
    v_lshlrev_b32 v{FA}, 12, v2
    v_and_b32 v{REC}, 0x70, v3
    v_lshlrev_b32 v{PG}, 4, v0
    v_and_b32 v57, 3, v0
    v_bfe_u32 v58, v0, 2, 4
    v_lshl_add_u32 v57, v57, 4, v58
    v_bfe_u32 v58, v0, 6, 2
    v_lshl_add_u32 v57, v58, 6, v57
    v_lshrrev_b32 v58, 8, v0
    v_lshl_add_u32 v57, v58, 9, v57
    v_lshlrev_b32 v57, 4, v57
    v_add_u32 v{PS}, {L_P}, v57""")
    CAPA = 250; Z1A = 249; T3A = 248
    k(f"s_and_b32 s42, s35, 3\ns_lshl_b32 s42, s42, 8\nv_xor_b32 v{Z1A}, s42, v3")
    CEN = 0x00020002 if ZMASK == 0x00030003 else 0
    k(f"s_mov_b32 s44, {CEN}")
    for i in range(4): k(f"v_and_b32 v{EG+i}, s33, v{EG+i}")
    for i in range(4): k(f"v_xor_b32 v{EG+i}, s44, v{EG+i}")
    XT = D3 + 16
    def xreads():
        for T in range(4):
            k(f"ds_read_b64 v[{XT+2*T}:{XT+2*T+1}], v{XA_} offset:{512*T}")
        for T in range(4):
            k(f"ds_read_b64 v[{XT+8+2*T}:{XT+8+2*T+1}], v{XB_} offset:{512*(3-T)}")
    if XPOS < 3: xreads()
    FPJ = E("FPJ", 5); FPY = E("FPY", 0)
    k(f"""s_mov_b32 s41, {WS_PAR+8192}
    s_and_b32 s40, s16, 4
    s_lshl_b32 s40, s40, 10
    s_sub_u32 s40, {WS_PAR+16384}, s40
    s_lshl_b32 s54, s3, 13
    s_add_u32 s54, s54, {WS_SLOT}
    s_lshr_b32 s43, s60, 6
    {"s_and_b32 s55, s35, 7" if FPY else "s_and_b32 s55, s60, 63"}
    {"s_lshl_b32 s55, s55, 2" if FPY else ""}
    {"s_and_b32 s52, s16, 3" if FPY else ""}
    {"s_add_u32 s55, s55, s52" if FPY else ""}
    s_mul_i32 s55, s55, {FPJ}
    s_lshl_b32 s43, s43, 9
    s_add_u32 s55, s55, s43
    s_add_u32 s55, s55, {512 - (32 if FPY else 64)*FPJ - E("FPJO", 0)}
    s_mul_i32 s55, s55, 7168
    s_mul_i32 s43, s34, 896
    s_add_u32 s55, s55, s43
    s_mov_b32 s48, {((1 << (8 * FPJ)) - 1) & 0xffffffff}
    s_mov_b32 s49, {((1 << (8 * FPJ)) - 1) >> 32}
    s_cmp_lt_u32 s16, {4 if FPY else 0}
    s_cselect_b64 s[48:49], 0, s[48:49]
    s_mov_b32 s52, {WS_PAR}
    s_mov_b32 s53, {WS_PAR+4096}""")
    def xunpack():
        k("s_waitcnt lgkmcnt(0)")
        for i in range(8): unpack_bf16(k, XA2 + 2*i, XT + i)
        for i in range(8): unpack_bf16(k, XB2 + 2*i, XT + 8 + i)
    if XPOS < 3: xunpack()
    stamp(k, 34)
    if E("DRAIN", 0): k("s_waitcnt vmcnt(0)")
    if E("FB2", 1): k("s_barrier")
    stamp(k, 4)
    if E("FSTOP", 9) == 2: stamp_out(k); k("s_endpgm")
    CP = T3
    def cap_issue(lab, fl="sc1"):
        k(f"s_cmp_lg_u32 s34, 0\ns_cbranch_scc1 {lab}\ns_add_u32 s68, s82, 32768")
        for j in range(2):
            k(f"buffer_load_dwordx4 v[{CP+8+4*j}:{CP+8+4*j+3}], v{CAPA}, s[12:15], s68 offen offset:{j*1024} {fl}")
        k(f"{lab}:")
        for j in range(2):
            k(f"buffer_load_dwordx4 v[{CP+4*j}:{CP+4*j+3}], v{CAPA}, s[12:15], s82 offen offset:{j*1024} {fl}")
    assert XPOS == 5
    if not E("XE", 0): xc()
    k(f"buffer_load_dwordx4 v[{RCL}:{RCL+3}], v{REC}, s[12:15], s76 offen {ES('CFL', '')}")
    def z1_issue():
        for i in range(4):
            k(f"buffer_load_dwordx4 v[{L+4*i}:{L+4*i+3}], v{Z1A}, s[12:15], s72 offen offset:{i*1024} {ES('Z1L', 'sc1')}")
    k.c("s47: bit0 = stage 1 done, bit1 = table built (waves 0-3 build one column class each)")
    TORD = E("TORD", 0)
    k(f"""v_add_u32 v{T3A}, {L_T3}, v3
    s_mov_b32 s47, 2
    s_mov_b32 s4, 0
    s_mov_b32 s83, 0
    s_cmp_ge_u32 s16, 4
    s_cbranch_scc1 f_s0""")
    if TORD == 2: k("s_mov_b32 s47, 0\ns_branch f_s0")
    if E("SLC0", 4): k(f"s_sleep {E('SLC0', 4)}")
    cap_issue("f_ci0", ES("CFL", ""))
    if TORD == 1:
        if E("SLF0", 0): k(f"s_sleep {E('SLF0', 0)}")
        z1_issue()
    k(f"""s_mov_b32 s47, 0
    s_waitcnt vmcnt({4 if TORD else 0})
    f_c1:""")
    t = D
    chk_bytes(k, range(CP, CP + 8), t)
    k(f"""s_cmp_lg_u32 s34, 0
    s_cbranch_scc1 f_c1n
    s_mov_b64 s[68:69], vcc""")
    chk_bytes(k, range(CP + 8, CP + 16), t)
    k(f"""s_or_b64 vcc, vcc, s[68:69]
    f_c1n:
    {"" if E("NOCHK", 0) & 1 else "s_cbranch_vccnz f_c1bad"}
    f_c1ok:""")
    stamp(k, 36)
    stamp_val(k, 52, 47)
    def capsum(b):
        padd(k, b, b, b + 4); padd(k, b + 2, b + 2, b + 6)
        for sh in (4, 8):
            for i in range(4): k(f"v_add_f32_dpp v{b+i}, v{b+i}, v{b+i} row_ror:{sh} {DPPM}")
        rb2(k, b, t); rb2(k, b + 2, t + 1)
    capsum(CP)
    for i in range(4): k(f"v_add_f32 v{CP+i}, 1.0, v{CP+i}")
    rb2(k, CP, t); rb2(k, CP + 2, t + 1)
    k(f"""v_max_f32_e64 v{t}, abs(v{CP}), abs(v{CP+1})
    v_max3_f32 v{t}, abs(v{CP+2}), abs(v{CP+3}), v{t}
    s_cmp_lg_u32 s34, 0
    s_cbranch_scc1 f_c1m
    v_mov_b32 v{t+2}, v{t}""")
    capsum(CP + 8)
    k(f"""v_max3_f32 v{t}, abs(v{CP+8}), abs(v{CP+9}), v{t+2}
    v_max3_f32 v{t}, abs(v{CP+10}), abs(v{CP+11}), v{t}
    f_c1m:
    s_nop 1""")
    for qp in ("[1,0,3,2]", "[2,3,0,1]"):
        k(f"v_max_f32_dpp v{t}, v{t}, v{t} quad_perm:{qp} {DPPM}")
    for g in range(4): k(f"v_readlane_b32 s{68+g}, v{t}, {16*g}")
    k(f"""s_max_u32 s68, s68, s69
    s_max_u32 s70, s70, s71
    s_max_u32 s68, s68, s70
    s_lshr_b32 s68, s68, 23
    s_sub_u32 s69, s68, 120
    s_sub_i32 s68, s68, 127
    s_max_i32 s68, s68, -100
    s_min_i32 s68, s68, 120
    s_cmp_le_u32 s69, 9
    s_cselect_b32 s68, 2, s68
    s_cselect_b32 s17, 0, 0x20000
    s_sub_i32 s69, 127, s68
    s_lshl_b32 s69, s69, 23""")
    def pick(b):
        k(f"""v_cndmask_b32 v{b}, v{b}, v{b+1}, s[64:65]
        v_cndmask_b32 v{b+2}, v{b+2}, v{b+3}, s[64:65]
        v_cndmask_b32 v{b}, v{b}, v{b+2}, s[66:67]""")
    k("""s_bitcmp1_b32 s16, 0
    s_cselect_b64 s[64:65], -1, 0
    s_bitcmp1_b32 s16, 1
    s_cselect_b64 s[66:67], -1, 0
    s_lshl_b32 s70, s16, 11""")
    pick(CP)
    BC = t + 8; TW = t + 16
    k(f"""v_mul_f32 v{CP}, s69, v{CP}
    v_add_u32 v{t+5}, s70, v{T3A}
    v_cvt_pk_f16_f32 v{t}, v{CP}, v{CP}
    s_nop 0""")
    for i in range(4): k(f"v_mov_b32_dpp v{BC+i}, v{t} quad_perm:[{i},{i},{i},{i}] {DPPM}")
    for i in range(4):
        k(f"v_pk_mul_f16 v{TW+i}, v{TB+i}, v{BC+i}")
        k(f"v_pk_mul_f16 v{TW+4+i}, v{TB+i}, v{BC+i} op_sel:[1,0] op_sel_hi:[0,1] neg_lo:[1,0]")
    k(f"""ds_write_b128 v{t+5}, v[{TW}:{TW+3}]
    ds_write_b128 v{t+5}, v[{TW+4}:{TW+7}] offset:1024
    s_cmp_lg_u32 s16, 0
    s_cbranch_scc1 f_nkr
    v_mov_b32 v{t+6}, s17
    s_mov_b32 s61, s68
    s_cmp_eq_u32 s34, 0
    s_cselect_b32 s4, 1, s17
    s_mov_b64 exec, 1
    ds_write_b32 v{T3A}, v{t+6} offset:8192
    s_mov_b64 exec, -1
    f_nkr:
    s_cmp_eq_u32 s34, 0
    s_cbranch_scc1 f_sa
    f_nsa:
    v_mov_b32 v{t+6}, 1
    s_mov_b64 exec, 1
    ds_add_u32 v{T3A}, v{t+6} offset:8196
    s_mov_b64 exec, -1
    s_bitset1_b32 s47, 1
    s_bitcmp1_b32 s47, 0
    s_cbranch_scc1 f_bar
    s_branch f_s1
    f_s0:""")
    if E("SLF", 8): k(f"s_sleep {E('SLF', 8)}")
    if not TORD: k("f_s1:")
    z1_issue()
    k("s_waitcnt vmcnt(4)")
    if TORD: k("f_s1:")
    k("s_mov_b32 s83, 0")
    stamp(k, 5)
    xreads()
    k.c("same die for the whole group? (records not there yet count as no)")
    k(f"""v_xor_b32 v2, s32, v{RCL}
    v_bitop3_b32 v2, v2, v{RCL+2}, s32 bitop3:0xf6
    v_bitop3_b32 v2, v2, v{RCL+1}, s39 bitop3:0xf6
    v_bitop3_b32 v2, v2, v{RCL+3}, s39 bitop3:0xf6
    v_cmp_ne_u32 vcc, 0, v2""")
    k("s_mov_b32 s38, vcc_lo")
    KF = RCL + 1
    k(f"v_mov_b32 v{RCL}, {L_K}")
    def t3reads():
        for u in range(8): k(f"ds_read_b128 v[{T3+4*u}:{T3+4*u+3}], v{T3A} offset:{u*1024}")
        k(f"ds_read_b32 v{KF}, v{RCL}")
    def t3try(lab):
        k(f"""ds_read_b32 v{RCL+2}, v{RCL} offset:4
        s_waitcnt lgkmcnt(0)
        v_readfirstlane_b32 s43, v{RCL+2}
        s_cmp_lg_u32 s43, 4
        s_cbranch_scc1 {lab}""")
        t3reads()
        k(f"s_bitset1_b32 s47, 2\n{lab}:")
    xunpack()
    if TORD == 2:
        if E("SLC2", 0): k(f"s_sleep {E('SLC2', 0)}")
        k("s_cmp_lt_u32 s16, 4\ns_cselect_b64 exec, -1, 0")
        cap_issue("f_ci2", ES("CFL", ""))
        k("s_mov_b64 exec, -1")
    else: t3try("f_t1")
    stamp(k, 6)
    k.c("================= phase B =================")
    k("f_z1:")
    LS = D3
    for bsel in range(2):
        Pq = L + 8 * bsel; Q = LS + 8 * bsel
        k(f"s_waitcnt vmcnt({(2 if bsel == 0 else 0) + (2 if TORD == 2 else 0)})")
        if bsel == 1: stamp(k, 7)
        for cc in range(4):
            for e in range(2): k(f"v_xor_b32 v{Q+2*cc+e}, v{Pq+4*e+cc}, v{EG+cc}")
        for cc in range(4):
            d = D + 16*bsel + 4*cc
            k(f"v_mfma_f32_16x16x16_f16 v[{d}:{d+3}], v[{T1+2*bsel}:{T1+2*bsel+1}], v[{Q+2*cc}:{Q+2*cc+1}], 0")
            for e in range(2):
                r = 2*cc + e
                if bsel == 0 and r == 0: k(f"v_xor_b32 v2, s44, v{Q}")
                else: k(f"v_bitop3_b32 v2, v2, v{Q+r}, s44 bitop3:0xf6")
    k(f"""v_and_b32 v2, s33, v2
    v_cmp_ne_u32 vcc, 0, v2
    s_cbranch_vccnz f_z1bad
    f_z1ok:""")
    for cc in range(4):
        for kdl in range(2):
            o = L + 4*cc + 2*kdl
            for bsel in range(2):
                d = D + 16*bsel + 4*cc + 2*kdl
                k(f"v_cvt_pk_f16_f32 v{o+bsel}, v{d}, v{d+1}")
            k(f"ds_write_b64 v{(A0, A1)[cc & 1]}, v[{o}:{o+1}] offset:{L_S + kdl*1024 + (cc>>1)*128}")
    stamp_val(k, 50, 83)
    k(f"""s_bitset1_b32 s47, 0
    s_mov_b32 s83, 0
    {"s_waitcnt vmcnt(0)" if TORD == 2 else ""}
    s_bitcmp1_b32 s47, 1
    s_cbranch_scc0 f_c1
    s_bitcmp1_b32 s47, 2
    s_cbranch_scc1 f_bar""")
    t3try("f_bar")
    k(f"""s_waitcnt lgkmcnt(0)
    s_bitcmp1_b32 s47, 2
    s_barrier
    s_cbranch_scc0 f_t3l
    f_t3d:""")
    stamp(k, 8)
    for n2l in range(4):
        k(f"ds_read_b128 v[{L+4*n2l}:{L+4*n2l+3}], v{(R0, R1)[n2l & 1]} offset:{L_S + n2l*256}")
    for i in range(4): k(f"v_xor_b32 v{EG+i}, {ZMASK ^ CEN}, v{EG+i}")
    PPOS = E("PPOS", 1)
    PRG = 240; STG = E("STG", 1)
    def par_issue(fl="sc1"):
        if STG: k("s_cmp_lt_u32 s16, 4\ns_cselect_b64 exec, -1, 0")
        k(f"buffer_load_dwordx4 v[{PRA}:{PRA+3}], v{PG}, s[12:15], s52 offen {fl}")
        if STG: k(f"buffer_load_dwordx4 v[{PRG}:{PRG+3}], v{PG}, s[12:15], s53 offen {fl}\ns_mov_b64 exec, -1")
    if PPOS == 0: par_issue(ES("CFL", ""))
    def parb_issue(fl="sc1"):
        k(f"buffer_load_dwordx4 v[{PRB0}:{PRB0+3}], v{PG}, s[12:15], s41 offen {fl}")
        k(f"buffer_load_dwordx4 v[{PRC}:{PRC+3}], v{PG}, s[12:15], s40 offen {fl}")
    X = TB
    def s2(n):
        k(f"s_waitcnt lgkmcnt({3-n})")
        for part in range(2):
            d = D + 8*n + 4*part
            k(f"v_mfma_f32_16x16x32_f16 v[{d}:{d+3}], v[{L+4*n}:{L+4*n+3}], v[{T2+4*part}:{T2+4*part+3}], 0")
    def cv2(n):
        for i in range(4): k(f"v_cvt_pk_f16_f32 v{X+4*n+i}, v{D+8*n+i}, v{D+8*n+4+i}")
    def d1(n):
        for part in range(2):
            d = D3 + 8*n + 4*part
            k(f"v_mfma_f32_16x16x32_f16 v[{d}:{d+3}], v[{X+4*n}:{X+4*n+3}], v[{T3+8*n+4*part}:{T3+8*n+4*part+3}], 0")
    def cv3(n):
        for i in range(4): k(f"v_cvt_pk_f16_f32 v{L+4*i+n}, v{D3+8*n+i}, v{D3+8*n+4+i}")
        for i in range(4): k(f"v_bfi_b32 v{L+4*i+n}, s33, v{EG+n}, v{L+4*i+n}")
    for n in range(4): s2(n)
    k(f"v_mov_b32 v2, v{KF}\nv_xor_b32 v{EG+3}, v{KF}, v{EG+3}")
    for u in range(13 if STG else 12, 16): k(f"ds_read_b128 v[{T4+4*u}:{T4+4*u+3}], v3 offset:{L_T4 + u*1024}")
    if PPOS == 1: par_issue(ES("CFL", ""))
    cv2(0); cv2(1); d1(0); cv2(2); d1(1); cv2(3); d1(2); d1(3)
    k("s_cmp_lg_u32 s4, 0\ns_cbranch_scc1 f_sb\nf_nsb:")
    if PPOS == 2: par_issue(ES("CFL", ""))
    for n in range(4): cv3(n)
    def zf_store(fl):
        for i in range(4):
            k(f"buffer_store_dwordx4 v[{L+4*i}:{L+4*i+3}], v{ZS}, s[12:15], s{74 + (i >> 1)} offen offset:{(i & 1)*2048} {fl}")
    k("s_cmp_lg_u32 s38, 0\ns_cbranch_scc1 f_slowst")
    zf_store(ES("ZST", "nt"))
    k("f_std:")
    stamp(k, 9)
    k.c("================= wait 2: modulation vectors into LDS =================")
    ZFL = ES("ZFL", "sc1 nt")
    if STG: k("s_cmp_ge_u32 s16, 4\ns_cbranch_scc1 f_pw2")
    k(f"s_mov_b32 s83, 0\ns_waitcnt vmcnt(4)\nf_pp:")
    chk_bytes(k, list(range(PRA, PRA + 4)) + (list(range(PRG, PRG + 4)) if STG else []), D)
    k(f"""s_cbranch_vccnz f_ppbad
    f_ppok:""")
    stamp_val(k, 53, 83)
    stamp_val(k, 55, 38)
    k(f"ds_write_b128 v{PS}, v[{PRA}:{PRA+3}]")
    k(f"ds_write_b128 v{PS}, v[{PRG}:{PRG+3}] offset:8192" if STG else "s_cmp_ge_u32 s16, 4\ns_cbranch_scc1 f_pw")
    QL = E("QL", 1)
    def qred(t_):
        padd(k, t_, PRA, PRA + 2)
        k(f"v_add_f32 v{t_}, v{t_}, v{t_+1}")
        wave_reduce_to63(k, [t_])
        k(f"""v_min_u32 v{t_}, -2, v{t_}
        s_mov_b32 exec_lo, 0
        s_mov_b32 exec_hi, 0x80000000
        ds_write_b32 v{KW}, v{t_} offset:64
        s_mov_b64 exec, -1""")
    if not QL: qred(D)
    k(f"""f_pw:
    s_waitcnt lgkmcnt(0)
    f_pw2:""")
    stamp(k, 10)
    k("s_barrier")
    for j in range(4):
        k(f"buffer_load_dwordx4 v[{L+4*j}:{L+4*j+3}], v{ZL}, s[12:15], s{(28, 29, 50, 51)[j]} offen {ZFL}")
    GA_, GB_, VA, VB = 112, 128, 48, 64
    V_V, V_SB, V_G, V_GB, V_C1 = 0, 1, 2, 3, 4
    def pread(vec, base, row):
        return [f"ds_read_b128 v[{base+4*T}:{base+4*T+3}], v{(PA, PB)[row]} offset:{vec*4096 + (T, 3-T)[row]*1024}" for T in range(4)]
    Y, YN, TT, QP = 80, 96, 144, 28
    prq = [x for q in zip(pread(V_G, GA_, 0), pread(V_G, GB_, 1), pread(V_V, VA, 0), pread(V_V, VB, 1)) for x in q]
    NPR = E("NPR", 8)
    if STG: k(f"ds_read_b128 v[{T4+48}:{T4+51}], v3 offset:{L_T4 + 12*1024}")
    for x in prq[:NPR]: k(x)
    if QL:
        k.c("(waves 4-7 reduce garbage into slots nobody reads)")
        qred(TT + 8)
    k(f"v_xor_b32 v{EG+3}, v2, v{EG+3}")
    for i in range(4): k(f"v_xor_b32 v{EG+i}, s44, v{EG+i}")
    FPF = 1 if FPJ else 0
    k(f"""v_bfe_u32 v20, v0, 3, 3
    v_mul_u32_u24 v20, 7168, v20
    v_and_b32 v{TT+7}, 7, v0
    v_min_u32 v{TT+7}, 6, v{TT+7}
    v_lshl_add_u32 v{TT+7}, v{TT+7}, 7, v20
    v_mov_b32 v20, {L_KEY + 64}
    v_lshrrev_b32 v23, 5, v0
    v_mov_b32 v22, 0xffffff00
    v_mov_b32 v21, 0x20000
    s_mov_b64 s[70:71], 1
    s_mov_b32 s83, 1""")
    ZM = (72, 74, 78, 36)
    def st4(dst, T, j):
        cc = "0" if j == 0 else f"v[{dst+4*T}:{dst+4*T+3}]"
        b = T4 + 16*T + 4*j
        k(f"v_mfma_f32_16x16x32_f16 v[{dst+4*T}:{dst+4*T+3}], v[{L+4*j}:{L+4*j+3}], v[{b}:{b+3}], {cc}")
    def zstrip(j):
        for i in range(4): k(f"v_xor_b32 v{L+4*j+i}, v{L+4*j+i}, v{EG+i}")
    def zchk(j):
        r = L + 4*j; t_ = TT + j
        return [f"v_bitop3_b32 v{t_}, v{r+3}, v21, s44 bitop3:0x56",
                f"v_bitop3_b32 v{t_}, v{t_}, v{r}, s44 bitop3:0xf6",
                f"v_bitop3_b32 v{t_}, v{t_}, v{r+1}, s44 bitop3:0xf6",
                f"v_bitop3_b32 v{t_}, v{t_}, v{r+2}, s44 bitop3:0xf6",
                f"v_and_b32 v{t_}, s33, v{t_}",
                f"v_cmp_ne_u32 s[{ZM[j]}:{ZM[j]+1}], 0, v{t_}"]
    zalt = [f"v_bitop3_b32 v2, v{L+3}, v{L+7}, v21 bitop3:0x80", f"v_bitop3_b32 v2, v2, v{L+11}, v{L+15} bitop3:0x80", "v_cmp_eq_u32 vcc, 0, v2"]
    k("""s_mov_b32 s83, 0
    s_mov_b64 s[72:73], -1
    s_mov_b64 s[74:75], -1
    s_mov_b64 s[78:79], -1
    s_mov_b64 s[36:37], -1
    s_branch f_zp
    f_zr:""")
    k.c("lanes whose piece is not there yet fetch it again")
    for j in range(4):
        k(f"s_mov_b64 exec, s[{ZM[j]}:{ZM[j]+1}]")
        k(f"buffer_load_dwordx4 v[{L+4*j}:{L+4*j+3}], v{ZL}, s[12:15], s{(28, 29, 50, 51)[j]} offen {ZFL}")
    k(f"""f_zp:
    s_add_u32 s83, s83, 1
    s_cmp_lt_u32 s83, {SPIN}
    s_cselect_b64 s[68:69], -1, 0""")
    for j in range(4):
        k(f"s_mov_b64 exec, s[{ZM[j]}:{ZM[j]+1}]\ns_waitcnt vmcnt({3-j})")
        zstrip(j)
        for x in zchk(j): k(x)
        if j == 2: k("s_or_b64 s[64:65], s[72:73], s[74:75]")
    k("s_mov_b64 exec, -1")
    for x in zalt: k(x)
    k(f"""s_or_b64 s[66:67], s[78:79], s[36:37]
    s_or_b64 s[64:65], s[64:65], s[66:67]
    s_and_b64 s[64:65], s[64:65], s[68:69]
    s_cbranch_scc1 f_zr
    s_cbranch_vccnz f_rare
    f_zf:""")
    stamp(k, 11)
    k.c("================= phase C =================")
    rest = prq[NPR:] + [f"ds_read2_b32 v[{QP}:{QP+1}], v20 offset0:1 offset1:3", f"ds_read2_b32 v[{QP+2}:{QP+3}], v20 offset0:5 offset1:7"]
    for T in range(2):
        for j in range(4):
            st4(Y, T, j)
            for x in rest[:2]: k(x)
            rest = rest[2:]
    assert not rest
    k("f_zfok:")
    if 51 in ST: k("s_sub_u32 s83, s83, 1")
    stamp_val(k, 51, 83)
    def fpf(FPN=E("FPF", 0), off=E("FPO", 0)):
        msk = (1 << (8 * FPN)) - 1
        k.c("help for the weight stream: last rows of both K halves of w_up, this die's columns")
        k(f"""v_bfe_u32 v26, v0, 3, 3
        v_mul_u32_u24 v26, 7168, v26
        v_and_b32 v27, 7, v0
        v_min_u32 v27, 6, v27
        v_lshl_add_u32 v26, v27, 7, v26
        s_lshl_b32 s36, s35, 3
        s_add_u32 s36, s36, s16
        s_lshr_b32 s37, s36, 6
        s_and_b32 s36, s36, 63
        s_mul_i32 s36, s36, {FPN}
        s_lshl_b32 s37, s37, 9
        s_add_u32 s36, s36, s37
        s_add_u32 s36, s36, {512 - 64*FPN - off}
        s_mul_i32 s36, s36, 7168
        s_mul_i32 s37, s34, 896
        s_add_u32 s36, s36, s37""")
        k(f"s_mov_b32 exec_lo, {msk & 0xffffffff}\ns_mov_b32 exec_hi, {msk >> 32}")
        k("buffer_load_dword v25, v26, s[20:23], s36 offen\ns_mov_b64 exec, -1")
    FPOS = 1
    k(f"s_waitcnt lgkmcnt({18 - NPR if NPR >= 8 else 0})")
    FPZ = E("FPZ", 0)
    def fpj():
        if FPJ:
            k("s_mov_b64 exec, s[48:49]")
            k(f"buffer_load_dword v{TT+6}, v{TT+7}, s[20:23], s55 offen\ns_mov_b64 exec, -1")
    if FPZ == 1: fpj()
    k("s_cmp_eq_u32 s30, 0\ns_cbranch_scc1 f_sp")
    RQ = 104
    tA, tB = TT, TT + 8
    def xa(T):
        for h in range(2): pfma(k, XA2 + 4*T + 2*h, GA_ + 4*T + 2*h, Y + 4*T + 2*h, XA2 + 4*T + 2*h)
    def xb(T):
        for s_ in range(1, 4): k(f"v_fmac_f32 v{XB2+4*T+s_}, v{GB_+4*T+s_}, v{Y+4*T+4-s_}")
    def bperm(T):
        k(f"v_cndmask_b32 v{YN+4+T}, v{Y+4*T}, v{Y+4*((T+1)&3)}, s[70:71]")
        k(f"ds_bpermute_b32 v{YN+T}, v{BP}, v{YN+4+T}")
    def acc(X2, V_, t, i, first):
        x = X2 + 2*i
        if first:
            pmul(k, t + 2, x, x); pmul(k, t + 4, x, V_ + 2*i)
        else:
            pfma(k, t + 2, x, x, t + 2); pfma(k, t + 4, x, V_ + 2*i, t + 4)
    def s1acc(X2, t, lst):
        pass
    st4(Y, 2, 0); xa(0); st4(Y, 2, 1); xb(0); st4(Y, 2, 2)
    acc(XA2, VA, tA, 0, True); st4(Y, 2, 3); acc(XA2, VA, tA, 1, False)
    st4(Y, 3, 0); bperm(0); xa(1); st4(Y, 3, 1); xb(1); st4(Y, 3, 2)
    acc(XA2, VA, tA, 2, False); st4(Y, 3, 3); acc(XA2, VA, tA, 3, False)
    acc(XB2, VB, tB, 1, True); acc(XB2, VB, tB, 3, False)
    padd(k, tA, XA2, XA2 + 2); padd(k, tB, XB2 + 2, XB2 + 6)
    if FPZ == 2: fpj()
    k("s_waitcnt lgkmcnt(1)")
    bperm(1); xa(2); xb(2)
    padd(k, tA, tA, XA2 + 4); padd(k, tA, tA, XA2 + 6)
    acc(XA2, VA, tA, 4, False); acc(XA2, VA, tA, 5, False); acc(XB2, VB, tB, 5, False)
    bperm(2); bperm(3); xa(3); xb(3)
    C1A, C1B, SBA, SBB, GBA, GBB = 192, 208, 224, 240, 112, 128
    acc(XA2, VA, tA, 6, False); acc(XA2, VA, tA, 7, False); acc(XB2, VB, tB, 7, False)
    for i in range(4, 8): padd(k, tA, tA, XA2 + 2*i)
    padd(k, tB, tB, XB2 + 10); padd(k, tB, tB, XB2 + 14)
    k("s_waitcnt lgkmcnt(0)")
    for T in range(4): k(f"v_fmac_f32 v{XB2+4*T}, v{GB_+4*T}, v{YN+T}")
    for T in range(4):
        acc(XB2, VB, tB, 2*T, False); padd(k, tB, tB, XB2 + 4*T)
    k("f_join:")
    if QL:
        k(f"""f_q:
        v_max3_u32 v2, v{QP}, v{QP+1}, v{QP+2}
        v_max_u32 v2, v2, v{QP+3}
        v_cmp_eq_u32 vcc, -1, v2
        s_cbranch_vccnz f_qbad""")
    padd(k, QP, QP, QP + 2)
    PBJ = E("PBJ", 0)
    if PBJ: parb_issue(ES("CFL", ""))
    if FPZ == 0: fpj()
    stamp(k, 12)
    def stage_b(cnt):
        k(f"s_mov_b32 s83, 0\ns_waitcnt vmcnt({cnt})\nf_pb:")
        chk_bytes(k, list(range(PRB0, PRB0 + 4)) + list(range(PRC, PRC + 4)), 2)
        k(f"""{"" if E("NOCHK", 0) & 4 else "s_cbranch_vccnz f_pbbad"}
        f_pbok:""")
        stamp_val(k, 54, 83)
        k(f"""        ds_write_b128 v{PS}, v[{PRB0}:{PRB0+3}] offset:4096
        s_cmp_ge_u32 s16, 4
        s_cbranch_scc1 f_pbx
        ds_write_b128 v{PS}, v[{PRC}:{PRC+3}] offset:16384
        f_pbx:""")
    k.c("GO hint from one workgroup per replica")
    GOPOS = E("GOPOS", 1)
    def gohint(lab):
        k(f"""s_lshl_b32 s42, s16, 4
        s_or_b32 s42, s35, s42
        s_cmp_lg_u32 s42, {E("GOM", 0)}
        s_cbranch_scc1 {lab}
        v_mov_b32 v2, s32
        s_mov_b64 exec, 1
        buffer_store_dword v2, v{FA}, s[12:15], s81 offen offset:2048 sc1
        s_mov_b64 exec, -1
        {lab}:""")
    if GOPOS == 0: gohint("f_ngo")
    else: k("f_ngo:")
    rows = ((XA2, VA, tA, 64, C1A, SBA, GBA, XA_), (XB2, VB, tB, 66, C1B, SBB, GBB, XB_))
    for n in range(2):
        for j in range(3): k(f"v_add_f32 v{RQ+4*n+j}, v{rows[n][2]+2*j}, v{rows[n][2]+2*j+1}")
    def red(js):
        for j in js: k(f"v_permlane32_swap_b32 v{RQ+j}, v{RQ+4+j}")
        for j in js: k(f"v_add_f32 v{RQ+j}, v{RQ+j}, v{RQ+4+j}")
        regs = [RQ + j for j in js]
        row_allreduce(k, regs)
        for r in regs: k(f"v_add_f32_dpp v{r}, v{r}, v{r} row_bcast:15 row_mask:0xa bank_mask:0xf")
    k(f"v_add_f32 v{QP}, v{QP}, v{QP+1}")
    red((0, 1, 2))
    k.c("lanes 31 / 63 hold rows A / B")
    k(f"""v_mul_f32 v{RQ}, s46, v{RQ}
    v_mul_f32 v{RQ+1}, s46, v{RQ+1}
    v_mul_f32 v{RQ+4}, v{RQ}, v{RQ}
    v_fma_f32 v{RQ+2}, -v{RQ}, v{QP}, v{RQ+2}
    v_sub_f32 v{RQ+1}, v{RQ+1}, v{RQ+4}
    v_mul_f32 v{RQ+5}, 4.0, v{RQ+1}
    v_cmp_gt_f32 vcc, v{RQ+4}, v{RQ+5}
    s_or_b32 s42, vcc_lo, vcc_hi
    s_bitcmp1_b32 s42, 31
    s_cbranch_scc1 f_slow2
    f_var2:""")
    round_bf16(k, RQ + 1, RQ + 1)
    k(f"v_add_f32 v{RQ+1}, {f32(1e-5)}, v{RQ+1}")
    round_bf16(k, RQ + 1, RQ + 1)
    k(f"v_sqrt_f32 v{RQ+1}, v{RQ+1}")
    round_bf16(k, RQ + 1, RQ + 1)
    k(f"""v_rcp_f32 v{RQ+1}, v{RQ+1}
    s_mov_b32 s42, 0x80000000
    s_mov_b32 exec_lo, s42
    s_mov_b32 exec_hi, s42
    v_mul_f32 v{RQ+2}, v{RQ+2}, v{RQ+1}
    v_ashrrev_i32 v{RQ+4}, 31, v{RQ+2}
    v_or_b32 v{RQ+4}, s42, v{RQ+4}
    v_xor_b32 v{RQ+2}, v{RQ+2}, v{RQ+4}
    v_and_or_b32 v{RQ+2}, v{RQ+2}, v22, v23
    ds_write_b32 v{KW}, v{RQ+2}
    s_mov_b64 exec, -1""")
    k("s_waitcnt vmcnt(1) lgkmcnt(0)" if PBJ else "s_waitcnt lgkmcnt(0)")
    stamp(k, 13)
    KV = 21
    k(f"""s_barrier
    ds_read_b32 v{KV}, v{KR_}""")
    for n in range(2):
        k(f"v_readlane_b32 s{60+n}, v{RQ+2}, {31+32*n}")
        k(f"v_readlane_b32 s{64+2*n}, v{RQ}, {31+32*n}")
        k(f"v_readlane_b32 s{65+2*n}, v{RQ+1}, {31+32*n}")
    k(f"""    s_lshl_b32 s42, s3, 1
    s_movk_i32 s43, 0xff00
    v_mov_b32 v30, s32
    v_mov_b32 v31, s32
    s_cmp_lg_u32 s16, 0
    s_waitcnt lgkmcnt(0)
    s_cbranch_scc1 f_nkey
    s_setprio 3
    v_max_u32_dpp v28, v{KV}, v{KV} row_ror:8 {DPPM}""")
    for sh in (4, 2, 1): k(f"v_max_u32_dpp v28, v28, v28 row_ror:{sh} {DPPM}")
    k(f"""v_cmp_eq_u32 vcc, v28, v{KV}
    v_cndmask_b32_e64 v29, v{KV}, 0, vcc
    v_and_or_b32 v28, v28, v22, s42
    s_add_u32 s42, s42, 1""")
    row_allreduce(k, [29], "v_max_u32")
    k(f"""v_and_or_b32 v29, v29, v22, s42
    s_mov_b64 exec, 0xff
    buffer_store_dwordx4 v[28:31], v{FA}, s[12:15], s80 offen sc1
    s_mov_b64 exec, -1
    s_setprio 0""")
    stamp(k, 40)
    if 41 in ST: k("s_waitcnt vmcnt(0)"); stamp(k, 41)
    k("f_nkey:")
    if GOPOS == 1: gohint("f_ng1")
    HP = 80; OUTR = (32, 40)
    def nrow(n):
        X2, V_, t, sr, C1, SB, GB, XL = rows[n]
        for i in range(8): psub_s(k, V_ + 2*i, X2 + 2*i, sr)
        for i in range(8): pmul_s(k, V_ + 2*i, V_ + 2*i, sr + 1)
    def relayout(n, src, dst, cvt):
        XL = rows[n][7]
        for T in range(4):
            for h in range(2): k(f"{cvt} v{HP+2*T+h}, v{src+4*T+2*h}, v{src+4*T+2*h+1}")
            k(f"ds_write_b64 v{XL}, v[{HP+2*T}:{HP+2*T+1}] offset:{512*(T, 3-T)[n]}")
        for j in range(2):
            k(f"ds_read_b128 v[{dst+4*j}:{dst+4*j+3}], v{NAT} offset:{n*2048 + j*1024}")
    for n in range(2):
        HO = 88
        k(f"""s_movk_i32 s{62+n}, 0x100
        v_cmp_lt_u32 vcc, s{60+n}, v{KV}
        s_and_b32 s42, vcc_lo, 0xffff
        s_bcnt1_i32_b32 s42, s42
        s_cmp_ge_u32 s42, 2
        s_cbranch_scc1 f_nc{n}
        s_setprio 2""")
        nrow(n)
        relayout(n, rows[n][1], HO, "v_cvt_pk_f16_f32")
        k(f"""s_lshl_b32 s{62+n}, s3, 1
        s_add_u32 s{62+n}, s{62+n}, s42
        s_lshl_b32 s42, s{62+n}, 11
        s_add_u32 s42, s42, {WS_SLOT}
        s_lshl_b32 s43, s{62+n}, 4
        s_add_u32 s43, s43, {WS_TT}
        s_lshl_b32 s68, s{30+n}, 8
        s_or_b32 s68, s68, s56
        s_andn2_b32 s69, s{64+2*n}, 0xff
        s_or_b32 s69, s69, s57
        s_andn2_b32 s70, s{65+2*n}, 0xff
        s_or_b32 s70, s70, s58
        s_andn2_b32 s71, s{60+n}, 0xff
        s_or_b32 s71, s71, s59
        s_waitcnt lgkmcnt(0)""")
        for i in range(8): k(f"v_bfi_b32 v{HO+i}, s33, v{EG+(i&3)}, v{HO+i}")
        for j in range(2):
            k(f"buffer_store_dwordx4 v[{HO+4*j}:{HO+4*j+3}], v3, s[12:15], s42 offen offset:{j*1024} sc1")
        for i in range(4): k(f"v_mov_b32 v{24+i}, s{68+i}")
        k(f"""s_mov_b64 exec, 1
        buffer_store_dwordx4 v[24:27], v3, s[12:15], s43 offen sc1
        s_mov_b64 exec, -1
        s_setprio 0
        f_nc{n}:""")
    stamp(k, 14)
    if E("FPG", 0):
        if E("FPGB", 1): k("s_barrier")
        fpf(E("FPG", 0), E("FPGO", 0))
    if not PBJ: parb_issue(ES("CFL", ""))
    for n in range(2):
        k(f"s_cmp_lt_u32 s{62+n}, 0x100\ns_cbranch_scc1 f_op{n}")
        nrow(n)
        k(f"f_op{n}:")
    stage_b(63 if PBJ else 0)
    k("s_waitcnt lgkmcnt(0)\ns_barrier")
    for n in range(2):
        X2, V_, t, sr, C1, SB, GB, XL = rows[n]
        for x in pread(V_C1, C1, n) + pread(V_SB, SB, n) + pread(V_GB, GB, n): k(x)
        k("s_waitcnt lgkmcnt(4)")
        for i in range(8): pfma(k, V_ + 2*i, V_ + 2*i, C1 + 2*i, SB + 2*i)
        k("s_waitcnt lgkmcnt(0)")
        for i in range(8): pfma(k, X2 + 2*i, GB + 2*i, V_ + 2*i, X2 + 2*i)
        relayout(n, X2, OUTR[n], "v_cvt_pk_bf16_f32")
    if E("ZEV", 0) == 1:
        for j in range(4):
            if E("ZPACE", 0): k(f"s_waitcnt vmcnt({E('ZPACE', 0)-1})")
            k(f"buffer_load_dwordx4 v[{48+4*j}:{51+4*j}], v{ZL}, s[12:15], s{(28, 29, 50, 51)[j]} offen sc1 nt")
    OMODE = E("OMODE", 0); OPACE = E("OPACE", 2)
    def outst(n):
        for j in range(0 if E("NOOUT", 0) else 2):
            if OPACE: k(f"s_waitcnt vmcnt({OPACE-1})")
            k(f"buffer_store_dwordx4 v[{OUTR[n]+4*j}:{OUTR[n]+4*j+3}], v3, s[24:27], s{18+n} offen offset:{j*1024} {ES('OFL', 'sc1')}")
    if OMODE:
        if E("OSL", 0): k(f"s_sleep {E('OSL', 0)}")
        k("s_waitcnt lgkmcnt(0)")
        for n in range(OMODE):
            k(f"s_cmp_lt_u32 s{62+n}, 0x100\ns_cbranch_scc1 f_oq{n}")
            outst(n)
            k(f"f_oq{n}:")
    k.c("rows are written once the selection is known; the two selected rows are written by the reducers")
    k(f"""v_mov_b32 v21, {L_ST+128}
    s_cmp_lg_u32 s16, 0
    s_cbranch_scc1 f_nrs""")
    if E("FKEY", 1):
        k(f"s_sleep {E('FKS', 8)}")
        poll_keys(k, "f_kq", 96, 81, 2)
        top2(k, 96, 40, 41, 24)
        k("s_and_b32 s40, s40, 0xff\ns_and_b32 s41, s41, 0xff")
    else:
        res_wait(k, "f_rs", 81, 20, 28, E("RSL", 4))
    k(f"""v_mov_b32 v28, s40
    v_mov_b32 v29, s41
    ds_write_b64 v21, v[28:29]
    f_nrs:
    s_waitcnt lgkmcnt(0)
    s_barrier
    ds_read_b64 v[28:29], v21
    s_waitcnt lgkmcnt(0)
    v_readfirstlane_b32 s40, v28
    v_readfirstlane_b32 s41, v29""")
    stamp(k, 19)
    if E("ODEL", 0): k(f"s_sleep {E('ODEL', 0)}")
    for n in range(2):
        if n < OMODE: k(f"s_cmp_ge_u32 s{62+n}, 0x100\ns_cbranch_scc1 f_e{n}")
        k(f"""s_cmp_eq_u32 s{62+n}, s40
        s_cbranch_scc1 f_e{n}
        s_cmp_eq_u32 s{62+n}, s41
        s_cbranch_scc1 f_e{n}""")
        outst(n)
        k(f"f_e{n}:")
    if E("ZEV", 0) == 2:
        for j in range(4):
            k(f"buffer_load_dwordx4 v[{48+4*j}:{51+4*j}], v{ZL}, s[12:15], s{(28, 29, 50, 51)[j]} offen sc1 nt")
    if E("WB", 0):
        k(f"""s_lshl_b32 s42, s35, 3
        s_add_u32 s42, s42, s16
        s_cmp_lg_u32 s42, 15
        s_cbranch_scc1 f_nwb
        {"s_waitcnt vmcnt(0)" if E("WB", 0) == 2 else ""}
        buffer_wbl2 sc1
        f_nwb:""")
    stamp_out(k)
    k("s_endpgm")
    k.c("---- retries ----")
    if QL:
        k(f"""f_qbad:
        v_mov_b32 v2, {L_KEY + 64}
        ds_read2_b32 v[{QP}:{QP+1}], v2 offset0:1 offset1:3
        ds_read2_b32 v[{QP+2}:{QP+3}], v2 offset0:5 offset1:7
        s_waitcnt lgkmcnt(0)
        s_branch f_q""")
    k("f_t3l:")
    t3reads()
    k("s_branch f_t3d")
    k(f"""f_c1bad:
    s_add_u32 s83, s83, 1
    s_cmp_ge_u32 s83, {SPIN}
    s_cbranch_scc1 f_c1ok
    s_bitcmp1_b32 s47, 0
    s_cbranch_scc0 f_c1b2
    s_sleep {E('SLC', 3)}
    f_c1b2:""")
    cap_issue("f_ci1")
    k(f"""s_bitcmp1_b32 s47, 0
    s_cbranch_scc0 f_s1
    s_waitcnt vmcnt(0)
    s_branch f_c1
    f_z1bad:
    s_add_u32 s83, s83, 1
    s_cmp_ge_u32 s83, {SPIN}
    s_cbranch_scc1 f_z1ok
    s_sleep {E('SLR1', 4)}""")
    z1_issue()
    k(f"""s_waitcnt vmcnt(0)
    s_branch f_z1
    f_ppbad:
    s_add_u32 s83, s83, 1
    s_cmp_ge_u32 s83, {SPIN}
    s_cbranch_scc1 f_ppok
    s_sleep {E('SLP2', 3)}""")
    par_issue()
    k(f"""s_waitcnt vmcnt(0)
    s_branch f_pp
    f_pbbad:
    s_add_u32 s83, s83, 1
    s_cmp_ge_u32 s83, {SPIN}
    s_cbranch_scc1 f_pbok
    s_sleep {E('SLP2', 3)}""")
    parb_issue()
    k("s_waitcnt vmcnt(0)\ns_branch f_pb")
    k.c("---- placement fallback: write-through stores ----")
    k("f_slowst:")
    zf_store("sc1")
    k("s_branch f_std")
    k.c("---- rare: the producers use different scales ----")
    k("f_rare:")
    for j in range(4):
        k(f"v_and_b32 v2, v21, v{L+4*j+3}\nv_cmp_eq_u32 s[{ZM[j]}:{ZM[j]+1}], 0, v2")
    for j in range(4): k(f"v_or_b32 v{L+4*j+3}, v21, v{L+4*j+3}")
    k(f"""    v_bfe_u32 v{TT}, v0, 4, 2
    v_lshlrev_b32 v{TT}, 3, v{TT}""")
    for x in prq[NPR:] + [f"ds_read2_b32 v[{QP}:{QP+1}], v20 offset0:1 offset1:3", f"ds_read2_b32 v[{QP+2}:{QP+3}], v20 offset0:5 offset1:7"]: k(x)
    k("s_mov_b32 s83, 0\ns_waitcnt lgkmcnt(0)\nf_rz:")
    for j in range(4):
        k(f"buffer_load_dwordx2 v[{TT+8+2*j}:{TT+9+2*j}], v{TT}, s[12:15], s77 offen offset:{32*j} sc1")
    k(f"s_waitcnt vmcnt(0)\nv_mov_b32 v{TT+1}, s32")
    for j in range(4): k(f"v_cndmask_b32 v{TT+8+2*j}, v{TT+1}, v{TT+8+2*j}, s[{ZM[j]}:{ZM[j]+1}]")
    k(f"v_xor_b32 v2, s32, v{TT+8}")
    for j in range(1, 4): k(f"v_bitop3_b32 v2, v2, v{TT+8+2*j}, s32 bitop3:0xf6")
    k(f"""v_cmp_ne_u32 vcc, 0, v2
    s_cbranch_vccz f_rzx
    {spin("f_rz", 2)}
    f_rzx:""")
    for j in range(4): k(f"v_cndmask_b32 v{TT+4+j}, 2, v{TT+9+2*j}, s[{ZM[j]}:{ZM[j]+1}]")
    k(f"""    v_max_i32 v{TT+1}, v{TT+4}, v{TT+5}
    v_max3_i32 v{TT+1}, v{TT+1}, v{TT+6}, v{TT+7}""")
    for g in range(4): k(f"v_readlane_b32 s{64+g}, v{TT+1}, {16*g}")
    k(f"""s_max_i32 s64, s64, s65
    s_max_i32 s66, s66, s67
    s_max_i32 s64, s64, s66
    s_add_i32 s66, s64, 125
    s_lshl_b32 s66, s66, 23
    s_nop 0""")
    for j in range(4):
        k(f"v_subrev_u32 v{TT+4+j}, s64, v{TT+4+j}")
        k(f"v_ldexp_f32 v{TT+4+j}, 1.0, v{TT+4+j}")
        k(f"v_cvt_pk_f16_f32 v{TT+4+j}, v{TT+4+j}, v{TT+4+j}")
    for r in range(16): k(f"v_pk_mul_f16 v{L+r}, v{L+r}, v{TT+4+(r>>2)}")
    for i in range(16): pmul_s(k, GA_ + 2*i, GA_ + 2*i, 66)
    for T in range(2):
        for j in range(4): st4(Y, T, j)
    k("s_nop 7\ns_branch f_zfok")
    k.c("---- rare: two-pass variance / router score for LN2 ----")
    k("f_slow2:")
    k.c("here the bf16 rounding of x and of the mean matters: follow the reference's rounding steps")
    for X2, V_, t, sr, C1, SB, GB, XL in rows:
        for i in range(8): rb2(k, X2 + 2*i, t)
        for i in range(1, 8): padd(k, t, X2 if i == 1 else t, X2 + 2*i)
    for n in range(2): k(f"v_add_f32 v{RQ+4*n}, v{rows[n][2]}, v{rows[n][2]+1}")
    red((0,))
    k(f"v_mul_f32 v{RQ+3}, s46, v{RQ}")
    round_bf16(k, RQ, RQ + 3)
    k(f"v_sub_f32 v{RQ+3}, v{RQ+3}, v{RQ}")
    for n in range(2): k(f"v_readlane_b32 s{64+2*n}, v{RQ}, {31+32*n}")
    for n, (X2, V_, t, sr, C1, SB, GB, XL) in enumerate(rows):
        Dd = (80, 32)[n]
        for i in range(8): psub_s(k, Dd + 2*i, X2 + 2*i, sr)
        for i in range(8): acc(Dd, V_, t, i, i == 0)
    for n in range(2):
        for j in (1, 2): k(f"v_add_f32 v{RQ+4*n+j}, v{rows[n][2]+2*j}, v{rows[n][2]+2*j+1}")
    red((1, 2))
    k(f"""v_mul_f32 v{RQ+1}, s46, v{RQ+1}
    v_fma_f32 v{RQ+1}, -v{RQ+3}, v{RQ+3}, v{RQ+1}
    v_max_f32 v{RQ+1}, 0, v{RQ+1}
    s_branch f_var2""")
    k.c("---- rare: |mean| >> std, recompute the variance in two passes ----")
    k("f_slowvar:")
    U = 100
    k(f"v_lshlrev_b32 v{R+6}, 16, v{MB}")
    k(f"v_readlane_b32 s68, v{R+6}, 31\nv_readlane_b32 s70, v{R+6}, 63")
    for jj in range(2):
        sr = 68 + 2 * jj
        for i in range(8):
            unpack_bf16(k, U, XW + jj * 8 + i)
            k(f"v_pk_add_f32 {P(U)}, {P(U)}, s[{sr}:{sr+1}] op_sel_hi:[1,0]")
            if i == 0: pmul(k, U + 2, U, U)
            else: pfma(k, U + 2, U, U, U + 2)
        k(f"v_add_f32 v{S+2+jj}, v{U+2}, v{U+3}")
    k(f"v_add_f32 v{R+6}, v{R+6}, v{S}")
    red1((2,))
    k(f"""v_mul_f32 v{S+2}, s46, v{S+2}
    v_fma_f32 v{S+2}, -v{R+6}, v{R+6}, v{S+2}
    v_max_f32 v{S+2}, 0, v{S+2}
    s_branch f_var""")
    k.c("---- group 0, wave 0: the shift vector enters the row 0 accumulators ----")
    k("f_sa:\ns_add_u32 s69, s69, %d" % (6 << 23))
    t = D
    pick(CP + 8)
    k(f"""v_mul_f32 v{CP+8}, s69, v{CP+8}
    v_and_b32 v{t+4}, 15, v0
    v_cvt_pk_f16_f32 v{t}, v{CP+8}, v{CP+8}
    v_cmp_eq_u32 vcc, 0, v{t+4}
    v_mov_b32 v{t+6}, 0x3c00
    v_mov_b32 v{t+7}, 0xbc000000
    v_cndmask_b32 v{t+6}, 0, v{t+6}, vcc
    v_cndmask_b32 v{t+7}, 0, v{t+7}, vcc""")
    for i in range(4): k(f"v_mov_b32_dpp v{BC+i}, v{t} quad_perm:[{i},{i},{i},{i}] {DPPM}")
    SO = t + 24
    for part in range(2):
        for i in range(4): k(f"v_pk_mul_f16 v{SO+4*part+i}, v{t+6+part}, v{BC+i}")
    for part in range(2):
        k(f"v_mfma_f32_16x16x32_f16 v[{CP+4*part}:{CP+4*part+3}], v[{SO+4*part}:{SO+4*part+3}], v[{TB}:{TB+3}], 0")
    k(f"""s_lshl_b32 s70, s16, 7
    v_add_u32 v{t+4}, s70, v{KR_}
    s_mov_b64 exec, 0xffff
    ds_write2_b32 v{t+4}, v{CP}, v{CP+4} offset0:0 offset1:16
    s_mov_b64 exec, -1
    s_branch f_nsa
    f_sb:""")
    k.lines = [l.replace(f"v_add_u32 v{t+4}, s70, v{KR_}", f"v_add3_u32 v{t+4}, s70, v{KR_}, v{t+5}") for l in k.lines]
    i0 = max(i for i, l in enumerate(k.lines) if "v_add3_u32" in l)
    k.lines.insert(i0, f"    v_mov_b32 v{t+5}, {L_K + 16 - L_KEY}")
    k(f"""v_mov_b32 v{D}, s32
    v_mov_b32 v{D+1}, s61
    v_mov_b32 v{D+2}, 0
    s_cmp_lg_u32 s17, 0
    s_cselect_b64 exec, 1, 0
    buffer_store_dwordx2 v[{D}:{D+1}], v{D+2}, s[12:15], s79 offen sc1
    s_mov_b64 exec, -1
    s_cmp_lg_u32 s34, 0
    s_cbranch_scc1 f_sb2
    s_mov_b64 exec, 0xffff""")
    for u in range(8): k(f"ds_read_b32 v{D+8+u}, v{KR_} offset:{L_K + 16 - L_KEY + u*64}")
    k("s_waitcnt lgkmcnt(0)")
    for u in range(8): k(f"v_add_f32 v{D3+4*u}, v{D3+4*u}, v{D+8+u}")
    k("s_mov_b64 exec, -1\nf_sb2:")
    k("s_branch f_nsb")
    k.c("---- rows 0 and 1024 travel as one complex row ----")
    k("f_sp:")
    if E("SPP", 0): k("s_setprio 3")
    YI, YM, YM2, YE = 96, 32, 192, 152
    P1, P2 = L_S, L_S + 4352
    for j in range(4): st4(Y, 2, j)
    k(f"""v_subrev_u32 v25, s45, v{XA_}
    v_lshlrev_b32 v25, 1, v25
    v_sub_u32 v26, 1008, v25""")
    for j in range(4):
        st4(Y, 3, j)
        for r in range(4*j, 4*j + 4): k(f"v_pk_mul_f16 v{L+r}, v{L+r}, 1.0 op_sel:[1,0] op_sel_hi:[0,0] neg_hi:[1,0]")
    def img(src, base, T):
        k(f"ds_write_b128 v25, v[{src+4*T}:{src+4*T+3}] offset:{base + 1024*T}")
        if T == 0: k(f"s_mov_b64 exec, 1\nds_write_b32 v25, v{src} offset:{base + 4096}\ns_mov_b64 exec, -1")
    k.c("v25: own block, v26: mirror block")
    for T in range(4):
        for j in range(4): st4(YI, T, j)
        img(Y, P1, T)
    for T in range(4):
        k(f"ds_read_b128 v[{YM+4*T}:{YM+4*T+3}], v26 offset:{P1 + 1024*(3-T)}")
        k(f"ds_read_b32 v{YE+T}, v26 offset:{P1 + 1024*(3-T) + 16}")
    for T in range(4): img(YI, P2, T)
    k("s_waitcnt lgkmcnt(5)")
    for T in range(4):
        k(f"ds_read_b128 v[{YM2+4*T}:{YM2+4*T+3}], v26 offset:{P2 + 1024*(3-T)}")
        k(f"ds_read_b32 v{YE+4+T}, v25 offset:{P2 + 1024*T + 16}")
    for T in range(4):
        k(f"v_add_f32 v{Y+4*T}, v{Y+4*T}, v{YE+T}")
        for i in range(1, 4): k(f"v_add_f32 v{Y+4*T+i}, v{Y+4*T+i}, v{YM+4*T+4-i}")
    for T in range(4): xa(T)
    for i in range(8): acc(XA2, VA, tA, i, i == 0)
    for i in range(1, 8): padd(k, tA, XA2 if i == 1 else tA, XA2 + 2*i)
    k("s_waitcnt lgkmcnt(0)")
    for T in range(4):
        k(f"v_add_f32 v{YM2+4*T}, v{YM2+4*T}, v{YE+4+T}")
        for s_ in range(1, 4): k(f"v_add_f32 v{YM2+4*T+s_}, v{YM2+4*T+s_}, v{YI+4*T+4-s_}")
    for i in range(8): pfma(k, XB2 + 2*i, GB_ + 2*i, YM2 + 2*i, XB2 + 2*i)
    for i in range(8): acc(XB2, VB, tB, i, i == 0)
    for i in range(1, 8): padd(k, tB, XB2 if i == 1 else tB, XB2 + 2*i)
    if E("SPP", 0): k("s_setprio 0")
    k("s_branch f_join")

class VM:
    def __init__(self, k): self.k = k; self.q = []
    def add(self, tag, n=1): self.q += [tag] * n
    def wait(self, tag, extra=""):
        idx = max(i for i, t in enumerate(self.q) if t == tag)
        n = len(self.q) - 1 - idx
        self.k(f"s_waitcnt vmcnt({n}) {extra}".strip())
        self.q = self.q[idx + 1:]

def role_G(k):
    L_SI = 131072; L_H = 131072 + 512; L_A = L_H + 2048
    if E("PADG", -1) >= 0:
        k(".p2align 7")
        for i in range(E("PADG", -1) // 4): k("s_nop 0")
    k("g_start:")
    nonce_issue(k, 6)
    srd(k, 44, 20, 2048)
    k(f"""v_and_b32 v6, 127, v0
    v_lshlrev_b32 v6, 1, v6
    s_lshl_b32 s19, s34, 8
    buffer_load_ushort v110, v6, s[44:47], s19 offen""")
    k.c("s35 = mm ; s64 = cluster ; s65 = kq ; s66 = 1 for X ; s40 = ks")
    k(f"""s_and_b32 s65, s35, 1
    s_lshr_b32 s40, s35, 1
    s_mul_i32 s64, s34, 7
    s_add_u32 s64, s64, s40
    s_cmp_ge_u32 s35, 14
    s_cselect_b32 s66, 1, 0
    s_mov_b32 s40, s34
    v_bfe_u32 v5, v0, 5, 1
    v_lshlrev_b32 v5, 3, v5
    v_bfe_u32 v9, v0, 3, 2
    v_add_u32 v5, v5, v9
    v_lshlrev_b32 v9, 1, v7
    v_xor_b32 v9, v9, v0
    v_and_b32 v9, 7, v9
    v_lshlrev_b32 v9, 4, v9
    s_movk_i32 s42, 7168
    v_mad_u32_u24 v5, v5, s42, v9
    v_mov_b32 v104, -1
    v_mov_b32 v105, -1
    v_mov_b32 v106, -1
    v_mov_b32 v107, -1
    v_mov_b32 v14, 0
    s_lshl_b32 s38, s64, 12
    s_lshl_b32 s42, s16, 9
    s_add_u32 s38, s38, s42
    s_mul_i32 s42, s65, {WS_XB - WS_XA}
    s_add_u32 s38, s38, s42
    s_add_u32 s38, s38, {WS_XA}""")
    srd(k, 12, 6, WS_SIZE)
    if E("TOUCH", 1):
        k.c("first touch of the small hand-off lines (brings them on die; the values are not used)")
        k(f"""s_lshl_b32 s42, s35, 3
        s_add_u32 s42, s42, s34
        s_lshl_b32 s42, s42, 3
        s_add_u32 s42, s42, s16
        s_lshl_b32 s42, s42, 8
        s_add_u32 s42, s42, {WS_CAP}
        v_lshlrev_b32 v9, 7, v2
        s_mov_b64 exec, 3
        buffer_load_dword v251, v9, s[12:15], s42 offen {ES('TFL2', '').replace('+', ' ')}
        s_mov_b64 exec, -1""")
    srd(k, 44, 50, 1024 * 3584 * 2)
    srd(k, 60, 52, 1024 * 3584 * 2)
    srd(k, 72, 54, 1024 * 3584 * 2)
    k("s_mov_b32 s26, 4194304\ns_mov_b32 s27, 0x00020000")
    k.c("s67 gate/up base ; s69 down base ; v12 block read ; v8..v11 down read ; v21..v24 down source")
    k(f"""s_lshl_b32 s67, s65, 4
    s_add_u32 s67, s67, s16
    s_mul_i32 s67, s67, {32*7168}
    s_lshl_b32 s42, s64, 7
    s_add_u32 s67, s67, s42
    s_lshl_b32 s42, s64, 6
    s_and_b32 s43, s16, 3
    s_lshl_b32 s43, s43, 3
    s_add_u32 s42, s42, s43
    s_and_b32 s43, s16, 4
    s_add_u32 s42, s42, s43
    s_lshl_b32 s69, s42, 11
    s_lshl_b32 s43, s65, 10
    s_add_u32 s69, s69, s43
    s_and_b32 s43, s16, 1
    s_lshl_b32 s43, s43, 7
    v_xor_b32 v21, s43, v3
    v_xor_b32 v22, 32, v21
    v_xor_b32 v23, 64, v21
    v_xor_b32 v24, 96, v21
    v_add_u32 v109, {L_SI}, v6""")
    vm = VM(k)
    for j in range(4): vm.add(j)
    vm.add("c")
    if E("TOUCH", 1): vm.add("t")
    RV = ((1, 0), (4, 2), (3, 5))
    order = ES("ORDER", "R0,R1,R2,D0,D1,G0,G1,U0,U1").split(",")
    NT = ES("NTW", "")
    def issue(j):
        ci, d = j >> 2, j & 3
        nm = order[ci]; kind, h = nm[0], int(nm[1]); slot = (ci % 4) * 32768
        if kind == "R" and d == 0:
            k(f"s_mul_i32 s70, s41, {(RV[h][1]-RV[h][0])*2048}\ns_add_u32 s70, s70, {RV[h][0]*2048}\ns_add_u32 s70, s70, s18")
            k(f"s_add_u32 s42, s17, {h}\ns_and_b32 s42, s42, 7\ns_lshl_b32 s42, s42, 8\ns_add_u32 s70, s70, s42")
        k(f"s_add_u32 s43, s68, {slot + d*1024}")
        k("s_mov_b32 m0, s43")
        if kind == "D":
            k(f"s_add_u32 s42, s69, {(32*h + d)*2048}")
        else:
            rows = 16 * (d & 1) + 4 * (d >> 1)
            if kind == "R": k(f"s_add_u32 s42, s70, {4*d*12288}")
            else: k(f"s_add_u32 s42, s67, {(256*h + rows)*7168}")
        if j - DEPTH in vm.q: vm.wait(j - DEPTH)
        va, sb = {"R": ((4, 31)[d >> 1], 8), "G": (5, 44), "U": (5, 60), "D": (21 + d, 72)}[kind]
        if ci >= 9 - E("MCUT", 0): k("s_mov_b32 s42, 0")
        if ci == 2 and d >= 4 - E("RCUT", 0): k("s_mov_b32 s42, 0")
        k(f"buffer_load_dwordx4 v{va}, s[{sb}:{sb+3}], s42 offen {'nt' if kind in ES('NTK', '') else ''} lds")
        vm.add(j)
    pf = """s_mov_b32 exec_hi, 0
    buffer_store_dwordx4 v[104:107], v3, s[12:15], s38 offen sc1
    s_mov_b64 exec, -1"""
    def silu_c():
        k(f"""v_lshlrev_b32 v110, 16, v110
        v_mul_f32 v111, {LOG2E}, v110
        v_exp_f32 v111, v111
        v_add_f32 v111, 1.0, v111
        v_rcp_f32 v111, v111
        v_mul_f32 v110, v110, v111
        v_cvt_pk_bf16_f32 v110, v110, v110
        ds_write_b16 v109, v110""")
    GST = E("GST", 0); DEPTH = E("DEPTH", 4); HOLD = E("HOLD", 99)
    def hold(p):
        if E("HSL", 0):
            k(f"s_sleep {E('HSL', 0)}"); return
        k.c("hold the stream until the neighbour's first exchange is under way (hint only, bounded)")
        k(f"""s_cmp_lg_u32 s16, 0
        s_cbranch_scc1 {p}_zlx
        s_lshl_b32 s42, s34, 4
        s_add_u32 s42, s42, s35
        s_lshl_b32 s42, s42, 7
        s_add_u32 s42, s42, {WS_ZL}
        s_mov_b32 s83, 0
        {p}_zl:
        buffer_load_dword v16, v14, s[12:15], s42 offen sc1
        s_waitcnt vmcnt(0)
        v_readfirstlane_b32 s43, v16
        s_cmp_eq_u32 s43, s32
        s_cbranch_scc1 {p}_zlx
        s_sleep {E("ZLS", 3)}
        s_add_u32 s83, s83, 1
        s_cmp_lt_u32 s83, 32
        s_cbranch_scc1 {p}_zl
        {p}_zlx:
        {f"s_sleep {E('ZLD', 0)}" if E('ZLD', 0) else ""}
        s_barrier""")
    k(f"""v_lshrrev_b32 v6, 2, v2
    v_and_b32 v15, 3, v0
    v_bfe_u32 v16, v0, 3, 2
    v_xor_b32 v12, v16, v1
    v_and_b32 v12, 3, v12
    v_lshlrev_b32 v12, 5, v12
    v_lshl_add_u32 v12, v6, 7, v12
    v_lshl_add_u32 v12, v15, 3, v12
    v_lshrrev_b32 v16, 2, v1
    v_lshl_add_u32 v12, v16, 14, v12
    v_add_u32 v25, 65536, v12
    v_and_b32 v17, 7, v6
    v_lshlrev_b32 v8, 2, v1
    v_xor_b32 v8, v8, v17
    v_lshlrev_b32 v8, 5, v8
    v_lshl_add_u32 v8, v6, 10, v8
    v_lshl_add_u32 v8, v15, 3, v8
    v_xor_b32 v9, 32, v8
    v_xor_b32 v10, 64, v8
    v_xor_b32 v11, 96, v8
    v_and_b32 v6, 1, v0
    v_lshlrev_b32 v17, 10, v6
    v_lshl_add_u32 v17, v16, 8, v17
    v_bfe_u32 v18, v0, 1, 1
    v_lshlrev_b32 v19, 4, v18
    v_lshl_add_u32 v19, v7, 5, v19
    v_add_u32 v17, v17, v19
    v_add_u32 v17, {L_H}, v17
    v_lshl_add_u32 v19, v6, 7, v19
    v_add_u32 v19, {L_A}, v19
    v_mul_u32_u24 v213, 0xaaaa, v18
    v_add_u32 v213, 0x4444, v213
    v_lshlrev_b32 v18, 4, v18
    v_lshl_add_u32 v18, v6, 1, v18
    v_and_b32 v6, 12, v0
    v_add_u32 v18, v18, v6
    v_and_b32 v6, 15, v0
    v_lshl_add_u32 v18, v1, 5, v18
    v_lshl_add_u32 v18, v7, 7, v18
    v_add_u32 v18, {L_A}, v18
    v_lshlrev_b32 v20, 2, v6
    v_lshl_add_u32 v20, v1, 14, v20
    {"v_lshl_add_u32 v20, v7, 12, v20" if not E("PL", 0) else "v_and_b32 v16, 1, v7"}
    {"" if not E("PL", 0) else "v_lshl_add_u32 v20, v16, 6, v20"}
    {"" if not E("PL", 0) else "v_lshrrev_b32 v16, 1, v7"}
    {"" if not E("PL", 0) else "v_lshl_add_u32 v20, v16, 13, v20"}
    v_lshlrev_b32 v26, 4, v7
    v_add_u32 v27, {L_SI}, v26
    v_lshlrev_b32 v28, 11, v7
    v_bfe_u32 v29, v0, 2, 3
    v_xor_b32 v29, v29, v1
    v_lshl_add_u32 v29, v29, 5, v28
    v_bfe_u32 v30, v0, 2, 2
    v_lshl_add_u32 v29, v30, 8, v29
    v_lshl_add_u32 v29, v15, 3, v29
    v_add_u32 v30, 65536, v29""")
    k.c("partial-sum destinations: s30 (ca|sa), s31 (others)")
    k(f"""s_lshl_b32 s30, s41, 15
    s_and_b32 s42, s16, 3
    s_lshl_b32 s42, s42, 13
    s_add_u32 s30, s30, s42
    s_lshl_b32 s42, s40, 8
    s_add_u32 s30, s30, s42
    s_lshl_b32 s42, s17, 1
    s_lshr_b32 s43, s16, 2
    s_add_u32 s42, s42, s43
    s_lshl_b32 s42, s42, 4
    s_add_u32 s30, s30, s42
    s_add_u32 s30, s30, {WS_CAP}
    s_lshl_b32 s31, s41, 5
    s_lshr_b32 s42, s16, 1
    s_add_u32 s31, s31, s42
    s_lshl_b32 s31, s31, 10
    s_lshl_b32 s42, s40, 7
    s_add_u32 s31, s31, s42
    s_and_b32 s42, s16, 1
    s_lshl_b32 s42, s42, 6
    s_add_u32 s31, s31, s42
    s_add_u32 s31, s31, {WS_MODP}
    s_movk_i32 s33, 0xff""")
    BD, BG, BU, SC, RB, RD, NB = 32, 64, 96, 128, 144, 160, 164
    def blockreads(ci, base):
        slot = (ci % 4) * 32768
        va, off = (12, slot) if slot < 65536 else (25, slot - 65536)
        for ks in range(4):
            k(f"ds_read_b64_tr_b16 v[{base+4*ks}:{base+4*ks+1}], v{va} offset:{off + ks*4096}")
            k(f"ds_read_b64_tr_b16 v[{base+4*ks+2}:{base+4*ks+3}], v{va} offset:{off + ks*4096 + 2048}")
    KB = 136; HA = 128; AG = 160
    KRIDE = 0
    PM = 192; ET = 208
    def pm_issue(fl):
        for u in range(4):
            k(f"buffer_load_dwordx4 v[{PM+4*u}:{PM+4*u+3}], v212, s[12:15], s{(36, 37)[u >> 1]} offen offset:{(u & 1)*16} {fl}")
    def consume(ci, p):
        nm = order[ci]; kind, h = nm[0], int(nm[1])
        if ci == 0: vm.wait("c"); silu_c()
        if 4*ci + 3 in vm.q: vm.wait(4*ci + 3)
        if ci == 2 and "pf" in vm.q: vm.wait("pf")
        k("s_waitcnt lgkmcnt(0)\ns_barrier")
        stamp(k, 20 + ci)
        if kind == "R":
            if ci == 0:
                for ks in range(4): k(f"ds_read_b128 v[{SC+4*ks}:{SC+4*ks+3}], v27 offset:{ks*64}")
            slot = (ci % 4) * 32768
            va, off = (29, slot) if slot < 65536 else (30, slot - 65536)
            for ks in range(4):
                for e in range(2):
                    k(f"ds_read_b64_tr_b16 v[{RB+4*ks+2*e}:{RB+4*ks+2*e+1}], v{va} offset:{off + ks*8192 + e*1024}")
            if ci == 0:
                nonce_finish(k)
                for i in range(4): k(f"v_mov_b32 v{NB+i}, s{56+i}")
            for ks in range(4):
                k(f"s_waitcnt lgkmcnt({6-2*ks})")
                cc = "0" if ks == 0 else f"v[{RD}:{RD+3}]"
                k(f"v_mfma_f32_16x16x32_bf16 v[{RD}:{RD+3}], v[{RB+4*ks}:{RB+4*ks+3}], v[{SC+4*ks}:{SC+4*ks+3}], {cc}")
            if h > 0: k(f"s_add_u32 s42, s17, {h}\ns_and_b32 s42, s42, 7\ns_lshl_b32 s42, s42, 12\ns_add_u32 s42, s42, s31\ns_add_u32 s42, s42, {(h-1)*65536}")
            for i in range(4): k(f"v_bfi_b32 v{RD+i}, s33, v{NB+i}, v{RD+i}")
            if not E("NOST", 0):
                k(f"""s_mov_b32 exec_lo, 0x00010001
                s_mov_b32 exec_hi, 0x00010001
                buffer_store_dwordx4 v[{RD}:{RD+3}], v{28 if h == 0 else 26}, s[12:15], s{30 if h == 0 else 42} offen sc1
                s_mov_b64 exec, -1""")
                vm.add("st")
            stamp(k, 3 + ci)
            pass
            if ci == 2 and p == "m": msetup()
            return
        frags(ci)
    def frags(ci):
        nm = order[ci]; kind, h = nm[0], int(nm[1])
        if kind == "D":
            slot = (ci % 4) * 32768
            if slot >= 65536:
                for t in range(4): k(f"v_add_u32 v{168+t}, 65536, v{8+t}")
            for t in range(4):
                b_ = BD + t*8 + h*4
                va, off = (8 + t, slot) if slot < 65536 else (168 + t, slot - 65536)
                k(f"ds_read_b64_tr_b16 v[{b_}:{b_+1}], v{va} offset:{off}")
                k(f"ds_read_b64_tr_b16 v[{b_+2}:{b_+3}], v{va} offset:{off+16384}")
        else:
            blockreads(ci, (BG if kind == "G" else BU) + 16*h)
    def stream(p):
        nonlocal DEPTH
        n = 36 if p == "m" else 12
        done = 0
        DEPTH = E("DEPTH", 4)
        for j in range(4, n):
            if j == 4 * HOLD and p == "m":
                while done < HOLD: consume(done, p); done += 1
                hold(p)
            if j == 4 and E("GAP", 0) and p == "m":
                if E("GAP", 0) == 1: consume(0, p); done = 1
                else: vm.wait(E("GAP", 0))
            DEPTH = int(ES("DEPTHS", "444466666")[j >> 2])
            if j == E("AUXJ", 32) and p == "m":
                k.c("wave 0: side loads ride in the stream")
                k("""v_lshlrev_b32 v30, 6, v2
                s_cmp_eq_u32 s16, 0
                s_cselect_b64 exec, -1, 0
                buffer_load_dword v31, v30, s[12:15], s81 offen sc1
                buffer_load_dwordx2 v[188:189], v14, s[12:15], s38 offen sc1""")
                pm_issue("")
                vm.add("aux", 6)
                k("s_mov_b64 exec, -1")
            if j == E("GOJ", 34) and p == "m":
                k("""s_cmp_eq_u32 s16, 0
                s_cselect_b64 exec, -1, 0
                buffer_load_dword v15, v14, s[12:15], s78 offen offset:2048 sc1
                s_mov_b64 exec, -1""")
                vm.add("go")
            issue(j)
            while done < (j + 1) // 4 and 4*done + 3 not in vm.q: consume(done, p); done += 1
        while done < min(n // 4, 8): consume(done, p); done += 1
    def msetup():
        k.c("================= M: weight stream =================")
        k(f"""s_getreg_b32 s39, hwreg(HW_REG_XCC_ID)
        s_and_b32 s39, s39, 7
        s_lshl_b32 s38, s64, 1
        s_add_u32 s38, s38, s65
        s_lshl_b32 s38, s38, 7
        s_add_u32 s38, s38, {WS_MX}
        s_lshl_b32 s42, s16, 28
        v_mov_b32 v28, s32
        v_mov_b32 v29, s39
        v_mov_b32 v30, s42
        s_mov_b64 exec, 1
        buffer_store_dwordx2 v[28:29], v30, s[12:15], s38 offen sc1
        s_mov_b64 exec, -1
        s_xor_b32 s38, s38, 128""")
        vm.add("mx")
        if E("HELP", 3):
            k.c("the line group whose address class streams slowly is pulled into L2 by all M workgroups of the die")
            HM = E("HELP", 3)
            nl = {1: 19, 2: 10, 3: 5}[HM]
            k(f"""s_cmp_eq_u32 s65, {"s65" if HM > 1 else 0}
            s_cselect_b32 s8, s50, s52
            s_cselect_b32 s9, s51, s53
            s_mov_b32 s10, {1024*3584*2}
            s_lshr_b32 s42, s8, 7
            s_sub_u32 s42, {E("CLS", 3)}, s42
            s_add_u32 s42, s42, s34
            s_and_b32 s42, s42, 7
            s_cmp_eq_u32 s42, 7
            s_cselect_b32 s70, 0x1000000, 0
            s_mul_i32 s43, s34, 7
            s_add_u32 s42, s42, s43
            s_lshl_b32 s42, s42, 7
            s_lshr_b32 s43, s35, {0 if HM == 2 else 1}
            s_lshl_b32 s43, s43, 3
            s_add_u32 s43, s43, s16
            s_mul_i32 s43, s43, {nl*7168}
            s_add_u32 s42, s42, s43
            s_add_u32 s42, s42, s70""")
            if HM == 3: k(f"s_mul_i32 s43, s65, {512*7168}\ns_add_u32 s42, s42, s43\ns_add_u32 s42, s42, {232*7168}")
            k(f"""v_mul_u32_u24 v30, 7168, v2
            s_mov_b64 exec, {(1 << nl) - 1}
            buffer_load_dword v252, v30, s[8:11], s42 offen
            s_mov_b64 exec, -1""")
            vm.add("help")
        k(f"""        v_and_b32 v191, 3, v0
        v_lshlrev_b32 v191, 3, v191
        v_lshrrev_b32 v191, v191, s32
        v_lshlrev_b32 v212, 5, v2
        s_lshl_b32 s36, s65, 11
        s_add_u32 s37, s36, {WS_PAR + 2*4096}
        s_add_u32 s36, s36, {WS_PAR + 4*4096}
        s_mov_b32 s18, {ZMASK}
        s_mov_b32 s19, 0x00020002
        v_and_b32 v{ET}, 1, v0
        v_lshlrev_b32 v{ET}, 3, v{ET}
        s_not_b32 s42, s32
        v_lshrrev_b32 v{ET}, v{ET}, s42
        v_lshrrev_b32 v{ET+1}, 2, v{ET}
        v_lshrrev_b32 v{ET+2}, 4, v{ET}
        v_lshrrev_b32 v{ET+3}, 6, v{ET}
        v_and_b32 v{ET}, s18, v{ET}
        v_and_b32 v{ET+1}, s18, v{ET+1}
        v_and_b32 v{ET+2}, s18, v{ET+2}
        v_and_b32 v{ET+3}, s18, v{ET+3}
        v_mov_b32 v216, s56
        v_mov_b32 v217, s57
        v_mov_b32 v218, s58
        v_mov_b32 v219, s59
        v_and_b32 v13, 1, v0
        v_lshlrev_b32 v13, 3, v13
        v_sub_u32 v13, v3, v13
        v_add_u32 v13, {L_H}, v13
        s_lshl_b32 s71, s65, 10
        s_add_u32 s71, s71, {WS_SLOT}
        s_lshl_b32 s30, s65, 17
        s_lshl_b32 s31, s64, {7 if E("PL", 0) else 6}
        s_add_u32 s30, s30, s31
        s_add_u32 s30, s30, {WS_PART}
        s_add_u32 s31, s30, {64*4096}
        s_lshl_b32 s79, s64, 2
        s_and_b32 s42, s16, 3
        s_add_u32 s79, s79, s42
        s_lshl_b32 s79, s79, 10
        s_add_u32 s81, s79, {WS_XA}
        s_add_u32 s82, s79, {WS_XB}
        s_lshl_b32 s76, s65, 1
        s_lshr_b32 s42, s16, 2
        s_add_u32 s76, s76, s42
        s_lshl_b32 s76, s76, 8
        s_add_u32 s77, s76, s82
        s_add_u32 s76, s76, s81
        s_lshl_b32 s78, s34, 12
        s_add_u32 s78, s78, {WS_KEY}""")
    k("s_cmp_eq_u32 s66, 1\ns_cbranch_scc1 x_start")
    q0 = list(vm.q)
    stream("m")
    if E("GONLY", 0): stamp(k, 7); stamp_out(k); k("s_endpgm")
    stamp(k, 7)
    DA_ = 144
    for i in range(12): k(f"v_mov_b32 v{AG+i}, 0")
    k(f"v_mov_b32 v190, {L_A + 1024}\ns_cmp_lg_u32 s16, 0\ns_cbranch_scc1 m_nk\ns_mov_b32 s83, 0")
    if "aux" in vm.q: vm.wait("aux")
    k("""v_xor_b32 v188, s32, v188
    v_xor_b32 v189, s39, v189
    v_or_b32 v188, v188, v189
    ds_write_b32 v190, v188
    m_pm:""")
    chk_bytes(k, range(PM, PM + 16), 30)
    k(f"""s_cbranch_vccz m_pmx
    s_sleep 4""")
    pm_issue("sc1")
    k(f"""s_waitcnt vmcnt(0)
    {spin("m_pm", 0)}
    m_pmx:
    s_mov_b32 s83, 0""")
    vm.wait("go")
    k(f"""m_go:
    v_cmp_ne_u32 vcc, s32, v15
    s_cbranch_vccz m_gox
    s_sleep {E("SLG", 3)}
    buffer_load_dword v15, v14, s[12:15], s78 offen offset:2048 sc1
    s_waitcnt vmcnt(0)
    {spin("m_go", 0)}
    m_gox:""")
    if E("SLG2", 0): k(f"s_sleep {E('SLG2', 0)}")
    stamp(k, 40)
    def kbody(b0, cnt, last):
        k(f"""s_waitcnt vmcnt({cnt})
        v_max_u32 v28, v{b0}, v{b0+4}
        v_xor_b32 v31, s32, v{b0+2}
        v_bitop3_b32 v31, v31, v{b0+6}, s32 bitop3:0xf6
        v_max_u32_dpp v30, v28, v28 row_ror:8 {DPPM}
        v_cmp_ne_u32 vcc, 0, v31
        v_min_u32 v29, v{b0}, v{b0+4}
        v_max_u32_dpp v30, v30, v30 row_ror:4 {DPPM}
        v_max3_u32 v29, v29, v{b0+1}, v{b0+5}
        s_and_b64 vcc, vcc, s[20:21]
        v_max_u32_dpp v30, v30, v30 row_ror:2 {DPPM}
        {last}""")
    cnt3 = f"s_add_u32 s83, s83, 1\ns_cmp_lt_u32 s83, {SPIN}\ns_cselect_b64 s[20:21], -1, 0"
    if E("KD", 2) == 1:
        k(f"s_mov_b32 s83, 0\ns_branch m_pk\nm_pk0:\ns_sleep {E('SL2', 4)}\nm_pk:")
        keys_issue(k, KB, 78)
        k(cnt3)
        kbody(KB, 0, "s_cbranch_scc1 m_pk0")
    else:
        k("s_mov_b32 s83, 0")
        keys_issue(k, KB, 78)
        k(f"s_sleep {E('KST', 4)}\nm_pk:")
        keys_issue(k, KB + 8, 78)
        k(cnt3)
        kbody(KB, 2, "s_cbranch_scc0 m_pkx")
        if E("KSL", 0): k(f"s_sleep {E('KSL', 0)}")
        keys_issue(k, KB, 78)
        kbody(KB + 8, 2, "s_cbranch_scc0 m_pkx")
        if E("KSL", 0): k(f"s_sleep {E('KSL', 0)}")
        k("s_branch m_pk\nm_pkx:\ns_nop 0")
    stamp(k, 13)
    stamp_val(k, 42, 83)
    k(f"""v_max_u32_dpp v30, v30, v30 row_ror:1 {DPPM}
    v_max_u32_dpp v30, v30, v30 row_bcast:15 row_mask:0xa bank_mask:0xf
    v_max_u32_dpp v30, v30, v30 row_bcast:31 row_mask:0xc bank_mask:0xf
    v_readlane_b32 s40, v30, 63
    s_and_b32 s42, s40, 0xff
    s_lshl_b32 s42, s42, 11
    v_cmp_eq_u32 vcc, s40, v28
    s_add_u32 s42, s42, s71
    buffer_load_dwordx4 v[176:179], v3, s[12:15], s42 offen sc1
    v_cndmask_b32 v30, v28, v29, vcc""")
    wave_reduce_to63(k, [30], "v_max_u32")
    hl = """buffer_load_dwordx4 v[176:179], v3, s[12:15], s42 offen sc1
    buffer_load_dwordx4 v[180:183], v3, s[12:15], s43 offen sc1"""
    k(f"""v_readlane_b32 s41, v30, 63
    s_and_b32 s41, s41, 0xff
    s_lshl_b32 s43, s41, 11
    s_add_u32 s43, s43, s71
    buffer_load_dwordx4 v[180:183], v3, s[12:15], s43 offen sc1
    s_and_b32 s40, s40, 0xff
    s_mov_b32 s83, 0
    s_lshl_b32 s41, s41, 8
    s_or_b32 s40, s40, s41
    v_mov_b32 v28, s40
    v_mov_b32 v29, s32
    s_cmp_eq_u32 s35, {99 if E("XKEY", 0) else 0}
    s_cselect_b64 exec, 1, 0
    buffer_store_dwordx2 v[28:29], v14, s[12:15], s78 offen offset:2304 sc1
    s_mov_b64 exec, -1
    s_barrier""")
    frags(8)
    k("m_ph:")
    for r in range(2):
        b0 = 176 + 4*r; f0 = 220 + 8*r
        k(f"s_waitcnt vmcnt({2-r})")
        for i in range(4): k(f"v_xor_b32 v{b0+i}, v{b0+i}, v{ET+i}")
        for e in range(8):
            k(f"v_fma_mix_f32 v{f0+e}, v{b0+(e>>1)}, v{PM+e}, v{PM+8+e} op_sel:[{e&1},0,0] op_sel_hi:[1,0,0]")
        for i in range(4): k(f"v_cvt_pk_bf16_f32 v{236+4*r+(i&1)*2+(i>>1)}, v{f0+2*i}, v{f0+2*i+1}")
        k(f"ds_write2_b64 v13, v[{236+4*r}:{237+4*r}], v[{238+4*r}:{239+4*r}] offset0:{128*r} offset1:{128*r+2}")
        for i in range(4):
            k("v_xor_b32 v30, s19, v176" if r + i == 0 else f"v_bitop3_b32 v30, v30, v{b0+i}, s19 bitop3:0xf6")
    k("v_and_b32 v30, s18, v30\nv_cmp_ne_u32 vcc, 0, v30")
    k(f"""s_cbranch_vccnz m_phb
    m_phx:""")
    stamp(k, 14)
    k("m_nk2:\ns_waitcnt lgkmcnt(0)\ns_barrier\nds_read_b32 v188, v190")
    k.c("each row is split into two 2:4-sparse rows, so one sparse MFMA covers 64 k")
    for u in range(4):
        k(f"ds_read_b128 v[{HA+4*u}:{HA+4*u+3}], v17 offset:{(u>>1)*512 + (u&1)*128}")
    for u in range(4):
        k(f"s_waitcnt lgkmcnt({3-u})")
        for a_, b_ in ((AG, BG), (AG + 4, BU)):
            k(f"v_smfmac_f32_16x16x64_bf16 v[{a_}:{a_+3}], v[{HA+4*u}:{HA+4*u+3}], v[{b_+8*u}:{b_+8*u+7}], v213")
    PB = 184
    k(f"""v_readfirstlane_b32 s70, v188
    s_mov_b32 s83, 0
    s_cmp_eq_u32 s70, 0
    s_cselect_b32 s82, s81, s82
    s_cselect_b64 s[20:21], 0, 0xffff
    v_pk_add_f32 v[{AG}:{AG+1}], v[{AG}:{AG+1}], v[{AG+2}:{AG+3}]
    v_pk_add_f32 v[{AG+4}:{AG+5}], v[{AG+4}:{AG+5}], v[{AG+6}:{AG+7}]
    v_bfi_b32 v{PB}, s33, v216, v{AG}
    v_bfi_b32 v{PB+1}, s33, v217, v{AG+1}
    v_bfi_b32 v{PB+2}, s33, v218, v{AG+4}
    v_bfi_b32 v{PB+3}, s33, v219, v{AG+5}
    s_mov_b64 exec, 0xffff
    buffer_store_dwordx4 v[{PB}:{PB+3}], v3, s[12:15], s76 offen {ES('XAS', '')}
    s_mov_b64 exec, s[20:21]
    buffer_store_dwordx4 v[{PB}:{PB+3}], v3, s[12:15], s77 offen sc1
    s_mov_b64 exec, -1""")
    for i in range(16): k(f"v_mov_b32 v{DA_+i}, 0")
    k("s_cmp_ge_u32 s16, 4\ns_cbranch_scc1 m_na")
    if E("SL3", 1): k(f"s_sleep {E('SL3', 1)}")
    stamp(k, 15)
    R = 24
    k(f"""m_px:
    buffer_load_dwordx4 v[{R}:{R+3}], v3, s[12:15], s81 offen sc1
    s_mov_b32 s42, s81
    s_mov_b32 s81, s82
    s_mov_b32 s82, s42
    s_add_u32 s83, s83, 1
    s_cmp_lt_u32 s83, {SPIN}
    s_cselect_b64 s[20:21], -1, 0
    s_waitcnt vmcnt(0)""")
    for i in range(4): k(f"v_xor_b32 v{R+i}, s{56+i}, v{R+i}")
    k(f"""v_or3_b32 v9, v{R}, v{R+1}, v{R+2}
    v_bitop3_b32 v9, v9, v{R+3}, s33 bitop3:0xa8
    v_permlane32_swap_b32 v{R}, v{R+2}
    v_cmp_ne_u32 vcc, 0, v9
    v_permlane32_swap_b32 v{R+1}, v{R+3}
    s_and_b64 vcc, vcc, s[20:21]""")
    padd(k, R, R, R + 2)
    k("s_cbranch_scc1 m_px")
    stamp(k, 16)
    k(f"v_permlane16_swap_b32 v{R}, v{R+1}")
    k(f"v_add_f32 v{R}, v{R}, v{R+1}")
    round_bf16(k, R, R)
    k(f"""v_mul_f32 v{R+1}, {LOG2E}, v{R}
    v_exp_f32 v{R+1}, v{R+1}
    v_mov_b32 v{R+2}, v{R}
    v_add_f32 v{R+1}, 1.0, v{R+1}
    v_rcp_f32 v{R+1}, v{R+1}
    v_mov_b32 v{R+3}, v{R}
    v_mul_f32 v{R+1}, v{R}, v{R+1}
    v_permlane32_swap_b32 v{R+2}, v{R+3}""")
    round_bf16(k, R + 1, R + 1)
    k(f"""v_mul_f32 v{R+1}, v{R+1}, v{R+3}
    v_cvt_pk_bf16_f32 v{R+1}, v{R+1}, v{R+1}
    ds_write_b16 v18, v{R+1}
    m_na:
    s_waitcnt lgkmcnt(0)
    s_barrier""")
    k.c("tile t only feeds rows 4t..4t+3, so lane group g ends up with tile g")
    for t in range(4):
        m_ = 0x000f000f << (4 * t)
        k(f"s_mov_b32 exec_lo, {m_:#x}\ns_mov_b32 exec_hi, {m_:#x}\nds_read_b128 v[{DA_+4*t}:{DA_+4*t+3}], v19")
    k("s_mov_b64 exec, -1")
    for t in range(4):
        k(f"s_waitcnt lgkmcnt({3-t})")
        k(f"v_smfmac_f32_16x16x64_bf16 v[{AG+8}:{AG+11}], v[{DA_+4*t}:{DA_+4*t+3}], v[{BD+8*t}:{BD+8*t+7}], v213")
    padd(k, 24, AG + 8, AG + 10)
    for row in range(2):
        k(f"v_bfi_b32 v{24+row}, s33, v191, v{24+row}")
    for row in range(2):
        k(f"buffer_store_dword v{24+row}, v20, s[12:15], s{30+row} offen sc1")
    stamp(k, 17)
    stamp_out(k)
    k("s_endpgm")
    k("m_nk:\ns_waitcnt vmcnt(0)")
    stamp(k, 18)
    k("s_barrier")
    frags(8)
    k(f"""s_branch m_nk2
    m_phb:
    s_add_u32 s83, s83, 1
    s_cmp_ge_u32 s83, {SPIN}
    s_cbranch_scc1 m_phx
    {hl}
    s_waitcnt vmcnt(0)
    s_branch m_ph""")
    k.c("================= X: finalize ga/cb/sb/gb, then final reduction =================")
    if E("PADX", -1) >= 0:
        k(".p2align 7")
        for i in range(E("PADX", -1) // 4): k("s_nop 0")
    k("x_start:")
    vm.q = list(q0)
    k.c("round = wave>>2 ; unit = (q*8+c)*4 + (wave&3)")
    k(f"""s_lshl_b32 s37, s34, 1
    s_add_u32 s37, s37, s65
    s_lshl_b32 s37, s37, 3
    s_add_u32 s37, s37, s16
    s_lshl_b32 s42, s37, 8
    s_add_u32 s42, s42, {WS_KEY}
    s_mov_b64 exec, 0xffff
    buffer_store_dwordx4 v[104:107], v3, s[12:15], s42 offen sc1
    s_mov_b64 exec, -1
    s_lshl_b32 s36, s37, 12
    s_add_u32 s36, s36, {WS_PART}
    s_lshl_b32 s76, s16, 3
    s_add_u32 s76, s76, s34
    s_lshl_b32 s77, s76, 10
    s_add_u32 s77, s77, {WS_MODP}
    s_lshl_b32 s79, s76, 7
    s_add_u32 s79, s79, {WS_PAR}
    s_lshr_b32 s71, s76, 5
    s_cmp_eq_u32 s71, 0
    s_cselect_b32 s80, 1.0, 0
    s_lshl_b32 s78, s34, 12
    s_add_u32 s78, s78, {WS_KEY}""")
    vm.add("kpf")
    if E("XPF", 2) == 4:
        k(f"""v_lshlrev_b32 v9, 7, v2
        s_mov_b64 exec, 0xfffffff
        buffer_load_dword v251, v9, s[12:15], s36 offen {ES('TFL', '').replace('+', ' ')}
        s_mov_b64 exec, -1""")
        vm.add("pt")
    srd(k, 72, 48, 2048)
    k.c("factor: w_r for the (1+cb) columns, 64 for the ga columns")
    k(f"""v_and_b32 v10, 7, v0
    v_lshl_add_u32 v10, v10, 2, v7
    v_lshlrev_b32 v10, 1, v10
    s_lshl_b32 s42, s76, 6
    buffer_load_ushort v10, v10, s[72:75], s42 offen""")
    vm.add("wr")
    stream("x")
    def xhelp(XH):
        XH = XH.split(',') if XH else []
        if XH:
            k.c("the line group whose address class streams slowly is pulled into L2")
            k(f"""v_and_b32 v90, 255, v0
            v_lshrrev_b32 v91, 8, v0
            v_lshl_add_u32 v90, v91, 9, v90
            v_mul_u32_u24 v90, 7168, v90""")
            for i, nm in enumerate(XH):
                sb = 44 if nm[0] == "G" else 60
                k(f"""s_lshr_b32 s42, s{sb}, 7
                s_sub_u32 s42, {E("CLS", 3)}, s42
                s_add_u32 s42, s42, s34
                s_and_b32 s42, s42, 7
                s_cmp_eq_u32 s42, 7
                s_cselect_b32 s70, 0x1000000, 0
                s_mul_i32 s43, s34, 7
                s_add_u32 s42, s42, s43
                s_lshl_b32 s42, s42, 7
                s_add_u32 s42, s42, {int(nm[1])*256*7168}
                s_add_u32 s42, s42, s70
                buffer_load_dword v{92 + i}, v90, s[{sb}:{sb+3}], s42 offen
                s_barrier""")
    def finalize(lab, st):
        k(f"""v_lshlrev_b32 v8, 3, v7
        v_lshrrev_b32 v8, v8, s32
        s_mov_b32 s83, 0
        {lab}:
        buffer_load_dwordx4 v[16:19], v3, s[12:15], s77 offen sc1
        s_waitcnt vmcnt(0)""")
        chk_bytes(k, range(16, 20), 9)
        k(f"s_cbranch_vccz {lab}x\n{spin(lab, E('SLX', 4))}\n{lab}x:")
        stamp(k, st)
        k("v_permlane32_swap_b32 v16, v18\nv_permlane32_swap_b32 v17, v19")
        padd(k, 16, 16, 18)
        k(f"v_permlane16_swap_b32 v16, v17\nv_add_f32 v16, v16, v17\nv_add_f32_dpp v16, v16, v16 row_ror:8 {DPPM}")
        round_bf16(k, 16, 16)
        k("v_add_f32 v16, s80, v16")
        round_bf16(k, 16, 16)
        def put(b, so):
            k(f"""v_bfi_b32 v{b}, s33, v8, v{b}
            v_mov_b32 v{b+1}, v{b}
            v_permlane16_swap_b32 v{b}, v{b+1}
            v_mov_b32 v{b+2}, v{b}
            v_mov_b32 v{b+3}, v{b+1}
            v_permlane32_swap_b32 v{b}, v{b+2}
            v_permlane32_swap_b32 v{b+1}, v{b+3}
            s_mov_b64 exec, 0xff
            buffer_store_dwordx4 v[{b}:{b+3}], v3, s[12:15], s{so} offen sc1
            s_mov_b64 exec, -1""")
        if st == 7:
            k("v_mul_f32 v20, v16, v10")
            put(20, 79)
            k("s_cmp_eq_u32 s80, 0\ns_cbranch_scc1 x_nc\ns_add_u32 s42, s79, 16384")
            put(16, 42)
            k("x_nc:")
        else: put(16, 79)
    k(f"s_cmp_eq_u32 s65, 1\ns_cbranch_scc1 x_na")
    k(f"""s_cmp_eq_u32 s80, 0
    s_cselect_b32 s42, {f32(64.0)}, 0
    v_lshl_or_b32 v10, v10, 16, s42""")
    if E("SLPA", 0): k(f"s_sleep {E('SLPA', 0)}")
    finalize("x_pa", 7)
    if E("PT", 0):
        k.c("pull the finished vectors into this die's L2")
        k(f"""s_sleep {E('PT', 0)}
        s_mov_b32 s42, {WS_PAR}
        v_lshlrev_b32 v9, 4, v0
        buffer_load_dwordx4 v[20:23], v9, s[12:15], s42 offen sc1""")
    if E("XPF", 2) == 3:
        k.c("bring the partial-sum lines on die by writing them; complete before sb is published, hence before any real write")
        for u in range(2):
            k(f"s_add_u32 s42, s36, {u*32768}")
            for j in range(4):
                if j == 3: k("s_mov_b32 exec_hi, 0")
                k(f"buffer_store_dwordx4 v[104:107], v3, s[12:15], s42 offen offset:{j*1024} sc1")
            k("s_mov_b64 exec, -1")
        k("s_waitcnt vmcnt(0)\ns_barrier")
    k("s_add_u32 s77, s77, 65536\ns_add_u32 s79, s79, 8192\ns_mov_b32 s80, 0")
    if E("SLP", 12): k(f"s_sleep {E('SLP', 12)}")
    finalize("x_pb", 8)
    if ES("XH0", ""): k("s_barrier")
    xhelp(ES("XH0", ""))
    def xnorm(n, top):
        if not n: return
        k.c("idle time: pull more rows of w_up (this die's columns) into L2")
        k(f"""s_barrier
        v_lshrrev_b32 v90, 3, v2
        v_mul_u32_u24 v90, 7168, v90
        v_and_b32 v91, 7, v0
        v_min_u32 v91, 6, v91
        v_lshl_add_u32 v90, v91, 7, v90
        s_lshr_b32 s42, s16, 2
        s_lshl_b32 s42, s42, 9
        s_and_b32 s43, s16, 3
        s_lshl_b32 s43, s43, 3
        s_add_u32 s42, s42, s43
        s_add_u32 s42, s42, {top - 32*n}
        s_mul_i32 s42, s42, 7168
        s_mul_i32 s43, s34, 896
        s_add_u32 s42, s42, s43""")
        for i in range(n):
            k(f"buffer_load_dword v{94+i}, v90, s[60:63], s42 offen\ns_add_u32 s42, s42, {32*7168}")
    xnorm(E("XN0", 1), 512 - 64 * E("FPJ", 5))
    k("s_branch x_nb\nx_na:")
    xhelp(ES("XH", "U0"))
    xnorm(E("XN1", 0), 512 - 64 * E("FPJ", 5) - 32 * E("XN0", 1))
    k("x_nb:\ns_mov_b32 s17, s37\ns_barrier")
    if E("GONLY", 0): stamp_out(k); k("s_endpgm")
    if E("XPF", 2) == 2:
        k(f"""v_lshlrev_b32 v9, 7, v2
        s_mov_b64 exec, {0xffffffff if E("PL", 0) else 0xfffffff}
        buffer_load_dword v251, v9, s[12:15], s36 offen {ES('TFL', '').replace('+', ' ')}
        s_mov_b64 exec, -1""")
    if E("XPF", 2) == 1:
        k(f"""buffer_store_dwordx4 v[104:107], v3, s[12:15], s36 offen sc1
        buffer_store_dwordx4 v[104:107], v3, s[12:15], s36 offen offset:1024 sc1
        buffer_store_dwordx4 v[104:107], v3, s[12:15], s36 offen offset:2048 sc1
        s_mov_b32 exec_hi, 0
        buffer_store_dwordx4 v[104:107], v3, s[12:15], s36 offen offset:3072 sc1
        s_mov_b64 exec, -1""")
    srd(k, 8, 48, 2048)
    k(f"""s_and_b32 s18, s17, 63
    v_and_b32 v5, 3, v0
    v_lshlrev_b32 v5, 3, v5
    v_lshl_add_u32 v5, v7, 1, v5
    v_lshlrev_b32 v6, 1, v5
    v_and_b32 v86, -4, v5
    v_and_b32 v87, 2, v5
    v_lshlrev_b32 v87, 3, v87
    s_lshl_b32 s31, s18, 6
    s_add_u32 s30, s31, {WS_PAR + 2*4096}
    s_add_u32 s31, s30, 4096
    s_add_u32 s29, s30, 8192
    s_mov_b32 s28, {WS_PAR + 2*4096}
    v_lshlrev_b32 v88, 3, v7
    v_lshrrev_b32 v88, v88, s32
    v_lshrrev_b32 v89, 1, v86
    s_not_b32 s42, s32
    v_lshrrev_b32 v89, v89, s42
    v_and_b32 v89, {ZMASK}, v89
    v_lshlrev_b32 v9, 3, v2""")
    for j in range(4):
        k(f"buffer_load_dwordx2 v[{40+2*j}:{41+2*j}], v9, s[8:11], 0 offen offset:{j*512}")
    k("s_waitcnt vmcnt(0)")
    for i in range(8): unpack_bf16(k, 48 + 2*i, 40 + i)
    k.c("once the first scores are out every modulation vector has long been published")
    k(f"""s_cmp_lg_u32 s16, 0
    s_cbranch_scc1 x_g1x
    s_mov_b32 s83, 0
    x_g1:
    buffer_load_dword v15, v14, s[12:15], s78 offen offset:2048 sc1
    s_waitcnt vmcnt(0)
    v_cmp_ne_u32 vcc, s32, v15
    s_cbranch_vccz x_g1x
    {spin("x_g1", 6)}
    x_g1x:
    s_barrier
    s_mov_b32 s83, 0
    x_pq:""")
    for j in range(4):
        k(f"buffer_load_dwordx4 v[{64+4*j}:{67+4*j}], v3, s[12:15], s28 offen offset:{j*1024} sc1")
    k(f"""buffer_load_dword v32, v6, s[12:15], s30 offen sc1
    buffer_load_dword v33, v6, s[12:15], s31 offen sc1
    buffer_load_dword v34, v6, s[12:15], s29 offen sc1
    s_waitcnt vmcnt(0)
    v_xor_b32 v36, v32, v88
    v_bitop3_b32 v36, v36, v33, v88 bitop3:0xf6
    v_bitop3_b32 v36, v36, v34, v88 bitop3:0xf6
    v_and_b32 v36, s33, v36
    v_cmp_ne_u32 s[68:69], 0, v36""")
    chk_bytes(k, range(64, 80), 9)
    k(f"""s_or_b64 vcc, vcc, s[68:69]
    s_cbranch_vccz x_pqx
    {spin("x_pq", 4)}
    x_pqx:
    v_and_b32 v32, 0xffff0000, v32
    v_and_b32 v33, 0xffff0000, v33
    v_and_b32 v34, 0xffff0000, v34""")
    pmul(k, 8, 48, 64)
    for i in range(1, 8): pfma(k, 8, 48 + 2*i, 64 + 2*i, 8)
    k("v_add_f32 v8, v8, v9")
    wave_reduce_to63(k, [8])
    k(f"s_cmp_lg_u32 s16, 0\ns_cbranch_scc1 x_ng")
    if E("XKEY", 0):
        k(f"""s_mov_b32 s83, 0
        x_go:
        buffer_load_dword v15, v14, s[12:15], s78 offen offset:2048 sc1
        s_waitcnt vmcnt(0)
        v_cmp_ne_u32 vcc, s32, v15
        s_cbranch_vccz x_gox
        {spin("x_go", E("SLG", 3))}
        x_gox:
        s_sleep {E("SLXK", 8)}""")
        poll_keys(k, "x_pk", 16, 78, 30)
        top2(k, 16, 40, 41, 28)
        k(f"""s_and_b32 s40, s40, 0xff
        s_and_b32 s41, s41, 0xff
        s_lshl_b32 s41, s41, 8
        s_or_b32 s40, s40, s41
        v_mov_b32 v28, s40
        v_mov_b32 v29, s32
        ds_write_b32 v14, v28
        s_cmp_lg_u32 s65, 0
        s_cbranch_scc1 x_ng
        s_mov_b64 exec, 1
        buffer_store_dwordx2 v[28:29], v14, s[12:15], s78 offen offset:2304 sc1
        s_mov_b64 exec, -1
        x_ng:
        s_waitcnt lgkmcnt(0)
        s_barrier
        ds_read_b32 v28, v14
        s_waitcnt lgkmcnt(0)
        v_readfirstlane_b32 s40, v28
        s_lshr_b32 s41, s40, 8
        s_and_b32 s40, s40, 0xff
        s_sleep {E("SLXS", 12)}""")
    else:
        res_wait(k, "x_r0", 78, 22, 16, 3)
        k("x_ng:\ns_barrier")
        res_wait(k, "x_r1", 78, 22, 16, 1)
    stamp(k, 13)
    k(f"""s_cmp_lt_u32 s17, 64
    s_cselect_b32 s40, s40, s41
    s_lshl_b32 s42, s40, 11
    s_add_u32 s42, s42, {WS_SLOT}
    s_lshl_b32 s19, s18, 5
    s_add_u32 s43, s42, s19
    s_lshl_b32 s40, s40, 4
    s_add_u32 s40, s40, {WS_TT}
    s_mov_b32 s83, 0
    x_ps:
    buffer_load_dwordx4 v[80:83], v14, s[12:15], s40 offen sc1
    buffer_load_dword v40, v86, s[12:15], s43 offen sc1
    s_waitcnt vmcnt(0)
    v_xor_b32 v40, v40, v89
    v_xor_b32 v35, 0x00020002, v40
    v_and_b32 v35, {ZMASK}, v35
    v_cmp_ne_u32 s[68:69], 0, v35""")
    chk_bytes(k, range(80, 84), 9)
    k(f"""s_or_b64 vcc, vcc, s[68:69]
    s_cbranch_vccz x_psx
    {spin("x_ps", 2)}
    x_psx:
    v_readfirstlane_b32 s41, v80
    s_bfe_u32 s41, s41, 0xb0008
    s_lshl_b32 s41, s41, 11
    s_add_u32 s41, s41, s19""")
    k.c("router logit = score (decoded from the key) + sb.w_r")
    k("""v_not_b32 v36, v83
    v_ashrrev_i32 v36, 31, v36
    v_or_b32 v36, 0x80000000, v36
    v_xor_b32 v36, v36, v83
    v_add_f32 v8, v8, v36""")
    round_bf16(k, 8, 8)
    k(f"""v_mul_f32 v8, {LOG2E}, v8
    v_exp_f32 v8, v8
    v_add_f32 v8, 1.0, v8
    v_rcp_f32 v8, v8""")
    round_bf16(k, 8, 8)
    k("""v_readlane_b32 s46, v8, 63
    v_lshrrev_b32 v40, v87, v40
    v_cvt_f32_f16 v40, v40
    v_rcp_f32 v82, v82
    v_fma_f32 v36, v40, v34, v32
    v_fma_f32 v44, v40, v82, v81
    v_fmac_f32 v44, v33, v36
    v_mul_f32 v80, s46, v33""")
    stamp(k, 14)
    L = 16
    if E("XSTOP", 0): stamp_out(k); k("s_endpgm")
    k(f"s_sleep {E('SL4', 14)}")
    def pld(j, b0): return f"buffer_load_dwordx4 v[{b0+4*j}:{b0+4*j+3}], v3, s[12:15], s36 offen offset:{j*1024} sc1"
    XM = (60, 62, 64, 66)
    k("""s_mov_b32 s83, 0
    s_mov_b64 s[60:61], -1
    s_mov_b64 s[62:63], -1
    s_mov_b64 s[64:65], -1
    s_mov_b32 s66, -1
    s_mov_b32 s67, 0""")
    k.c("two polls in flight, half a round apart, into alternate registers")
    S_ = 96; L = 112; BUF = (16, 128)
    for i in range(4): k(f"v_mov_b32 v{S_+12+i}, 0")
    def piss(b):
        for j in range(4): k(f"s_mov_b64 exec, s[{XM[j]}:{XM[j]+1}]\n" + pld(j, BUF[b]))
    piss(0)
    k(f"s_sleep {E('XST', 8)}\nx_p2:")
    for b in range(2):
        piss(1 - b)
        if b == 1:
            k(f"""s_add_u32 s83, s83, 1
            s_cmp_lt_u32 s83, {SPIN}
            s_cselect_b64 s[68:69], -1, 0""")
        for j in range(4):
            r = BUF[b] + 4*j; q = S_ + 4*j
            k(f"s_mov_b64 exec, s[{XM[j]}:{XM[j]+1}]\ns_waitcnt vmcnt({7 - j})")
            for i in range(4): k(f"v_xor_b32 v{q+i}, s{56+i}, v{r+i}")
            k(f"""v_or3_b32 v12, v{q}, v{q+1}, v{q+2}
            v_bitop3_b32 v12, v12, v{q+3}, s33 bitop3:0xa8
            v_cmp_ne_u32 s[{XM[j]}:{XM[j]+1}], 0, v12""")
            if j == 2: k("s_or_b64 s[70:71], s[60:61], s[62:63]")
        k("s_mov_b64 exec, -1")
        for h in range(2): padd(k, L + 2*h, S_ + 2*h, S_ + 4 + 2*h)
        k("s_or_b64 s[72:73], s[64:65], s[66:67]")
        for h in range(2): padd(k, L + 8 + 2*h, S_ + 8 + 2*h, S_ + 12 + 2*h)
        k("s_or_b64 s[70:71], s[70:71], s[72:73]")
        if b == 1: k("s_and_b64 s[70:71], s[70:71], s[68:69]")
        for h in range(2): padd(k, L + 2*h, L + 2*h, L + 8 + 2*h)
        k("s_cbranch_scc0 x_p3" if b == 0 else "s_cbranch_scc1 x_p2\nx_p3:\ns_nop 0")
    stamp(k, 17)
    k(f"v_permlane32_swap_b32 v{L}, v{L+2}\nv_permlane32_swap_b32 v{L+1}, v{L+3}")
    padd(k, L, L, L + 2)
    k(f"v_permlane16_swap_b32 v{L}, v{L+1}\nv_add_f32 v{L}, v{L}, v{L+1}")
    for sh in (4, 8): k(f"v_add_f32_dpp v{L}, v{L}, v{L} row_ror:{sh} {DPPM}")
    k(f"""v_fmac_f32 v44, v{L}, v80
    s_mov_b32 exec_lo, 0x000f000f
    s_mov_b32 exec_hi, 0x000f000f
    v_cvt_pk_bf16_f32 v44, v44, v44
    buffer_store_short v44, v5, s[24:27], s41 offen {ES("FST", "")}
    s_cmp_lg_u32 s17, 0
    s_cbranch_scc1 x_end
    s_add_u32 s101, s101, 1
    s_mov_b32 s43, {WS_EP}
    v_mov_b32 v8, s101
    s_mov_b64 exec, 1
    buffer_store_dword v8, v14, s[12:15], s43 offen sc1
    x_end:""")
    stamp_out(k)

def gen():
    k = K(NAME)
    stamp_init(k)
    k("""s_cmp_ge_u32 s2, 256
    s_cbranch_scc1 k_done""")
    stamp(k, 0)
    k(f"""s_load_dwordx2 s[4:5], s[0:1], {A_X}
    s_load_dwordx8 s[20:27], s[0:1], {A_C}
    s_load_dwordx2 s[6:7], s[0:1], {A_WS}
    s_load_dwordx8 s[48:55], s[0:1], {A_WR}
    s_getpc_b64 s[62:63]
    k_pc:
    v_lshrrev_b32 v1, 6, v0
    v_and_b32 v2, 63, v0
    v_readfirstlane_b32 s16, v1
    v_lshlrev_b32 v3, 4, v2
    s_and_b32 s34, s2, 7
    s_lshr_b32 s35, s2, 4
    s_bitcmp1_b32 s2, 3
    s_cbranch_scc0 f_start""")
    k.c("G head: code prefetch, first GEMV tile [128 k][128 n]: ks = c, s17 = block, s41 = vq")
    k(f"""s_lshl_b32 s40, s35, 3
    s_add_u32 s40, s40, s16
    s_lshl_b32 s40, s40, 9
    v_lshl_add_u32 v4, v2, 7, s40
    v_min_u32 v4, tab_end-k_pc-4, v4
    s_mov_b64 exec, 15
    global_load_dword v250, v4, s[62:63]
    s_mov_b64 exec, -1
    v_bfe_u32 v7, v0, 4, 2
    v_lshlrev_b32 v4, 1, v7
    v_xor_b32 v4, v4, v0
    v_and_b32 v4, 15, v4
    v_lshlrev_b32 v4, 4, v4
    s_movk_i32 s42, 12288
    v_mad_u32_u24 v4, v7, s42, v4
    v_xor_b32 v31, 0x80, v4
    s_and_b32 s17, s35, 7
    s_lshr_b32 s41, s35, 3
    s_lshl_b32 s18, s34, 3
    s_add_u32 s18, s18, s16
    s_mul_i32 s18, s18, {16*12288}
    s_lshl_b32 s68, s16, 12
    s_xor_b32 s70, s35, 8
    s_lshl_b32 s70, s70, 8
    s_add_u32 s70, s70, s18
    s_mov_b32 s10, {1024*6144*2}
    s_mov_b32 s11, 0x00020000
    s_mov_b32 m0, s68""")
    AS = E("ASSIST", 0)
    if AS:
        k.c("pull the rows the neighbour asks for last into this die's L2")
        k(f"""s_sub_u32 s36, 16, s34
        s_cmp_eq_u32 s34, 0
        s_cselect_b32 s36, 8, s36
        s_bitcmp1_b32 s35, 0
        s_cselect_b32 s36, s36, s34
        s_lshr_b32 s37, s35, 1
        s_lshl_b32 s37, s37, 4
        s_add_u32 s36, s36, s37
        s_lshl_b32 s37, s16, {7 if AS == 1 else 8}
        s_add_u32 s36, s36, s37
        s_add_u32 s36, s36, {1024 if AS == 1 else 0}
        s_lshl_b32 s36, s36, 11""")
        if AS == 1: k("v_lshl_add_u32 v5, v2, 7, s36")
        elif AS == 2: k("v_and_b32 v5, 7, v2\nv_lshlrev_b32 v5, 7, v5\nv_bfe_u32 v6, v2, 3, 1\nv_lshl_add_u32 v5, v6, 18, v5\nv_add3_u32 v5, v5, s36, v250")
        else: k("v_and_b32 v5, 15, v2\nv_lshlrev_b32 v5, 7, v5\nv_bfe_u32 v6, v2, 4, 1\nv_lshl_add_u32 v5, v6, 18, v5\nv_add_u32 v5, s36, v5")
    k("s_waitcnt lgkmcnt(0)")
    if AS: k(f"s_mov_b64 exec, {0xffff if AS == 1 else 0xffffffff}\nglobal_load_dword v249, v5, s[4:5]\ns_mov_b64 exec, -1")
    k("""s_mov_b32 s8, s22
    s_mov_b32 s9, s23""")
    if E("GDEL", 0): k(f"s_cmp_ge_u32 s35, {E('XND', 14)}\ns_cbranch_scc1 g_nd\ns_sleep {E('GDEL', 0)}\ng_nd:")
    stamp(k, 2)
    for d in range(4):
        k(f"buffer_load_dwordx4 v{(4, 31)[d >> 1]}, s[8:11], s70 offen offset:{d*1024} {'nt' if 'R' in ES('NTK', '') else ''} lds")
        if d < 3: k(f"s_add_u32 s70, s70, {4*12288 - 1024}")
    k("s_branch g_start\nf_start:")
    role_F(k)
    role_G(k)
    k("k_done:\ns_endpgm")
    return k

HEADER = """; adaLN + FNet mixing + MoD block, gfx950.  Generated by gen/gen27.py (hand-written generator).
"""
def tables():
    w = tabs.words(tabs.T4())
    for g0 in (False, True):
        for wv in range(8): w += tabs.words(tabs.T1(g0, wv))
    for sp in (False, True): w += tabs.words(tabs.T2(sp))
    assert 4 * len(w) == TB_END
    t = ".p2align 8\n.type tables,@object\ntables:\n"
    for i in range(0, len(w), 8):
        t += ".long " + ",".join("0x%x" % x for x in w[i:i+8]) + "\n"
    return t + f"tab_end:\n.size tables, {4*len(w)}\n"

def main(out):
    k = gen()
    t = HEADER + f"; @launch grid=(256,1,1) block=(512,1,1) lds={LDS}\n"
    t += '.amdgcn_target "amdgcn-amd-amdhsa--gfx950"\n.text\n' + k.text() + 'code_end:\n' + tables()
    t += '.section .rodata,"a"\n' + k.desc()
    open(out, "w").write(t)
if __name__ == "__main__":
    main(sys.argv[1] if len(sys.argv) > 1 else "adaLN_cond__spectral_fnet__moe_arch_mod__prompt.s")
```
